```python
import torch

def _softmax(x, axis=-1):
    return torch.softmax(x, dim=axis)
def _gelu(x):
    return torch.nn.functional.gelu(x, approximate="tanh")
def _silu(x):
    return torch.nn.functional.silu(x)
def _sigmoid(x):
    return torch.sigmoid(x)
def _layernorm(x, axis=-1, eps=1e-5):
    m = x.mean(dim=axis, keepdim=True)
    v = x.var(dim=axis, keepdim=True, unbiased=False)
    return (x - m) / torch.sqrt(v + eps)
def _scatter_add(tgt, idx, src, axis=0):
    return tgt.clone().index_add_(axis, idx, src)
def _segment_sum(src, seg, n):
    out = torch.zeros((n,) + src.shape[1:], dtype=src.dtype)
    return out.index_add_(0, seg, src)
def _pad(x, pw):
    flat = tuple(v for pair in reversed(pw) for v in pair)
    return torch.nn.functional.pad(x, flat)

kernel_name = 'parallel_sum__spectral_gfnet__dense_activation_mish__prompt'

def setup_inputs():

    _w = (lambda a: (lambda t: t.to(torch.bfloat16) if t.is_floating_point() else t)(torch.as_tensor(a)))
    def _A_setup():
        B, S, D = 1, 2048, 576
        Df = D // 2 + 1
        return {
            "x": _w((lambda *s: torch.randn(*s, dtype=torch.bfloat16) * 0.05)(B, S, D)),
            "w_r": _w((lambda *s: torch.randn(*s, dtype=torch.bfloat16) * 0.8)(S, Df) * 0.02),
            "w_i": _w((lambda *s: torch.randn(*s, dtype=torch.bfloat16) * 0.8)(S, Df) * 0.02),
        }
    _A_in = _A_setup()

    def _B_setup():
        B, S, D, F = 1, 2048, 576, 4608
        return {
            "x": _w((lambda *s: torch.randn(*s, dtype=torch.bfloat16) * 0.05)(B, S, D)),
            "w1": _w((lambda *s: torch.randn(*s, dtype=torch.bfloat16) * 0.8)(D, F) * (D ** -0.5)),
            "b1": _w((lambda *s: torch.randn(*s, dtype=torch.bfloat16) * 0.2)(F)),
            "w2": _w((lambda *s: torch.randn(*s, dtype=torch.bfloat16) * 0.1)(F, D) * (F ** -0.5)),
        }
    _B_in = _B_setup()

    return {
        "A_x": _A_in["x"],
        "A_w_r": _A_in["w_r"],
        "A_w_i": _A_in["w_i"],
        "B_x": _B_in["x"],
        "B_w1": _B_in["w1"],
        "B_b1": _B_in["b1"],
        "B_w2": _B_in["w2"],
    }

def reference(A_x, A_w_r, A_w_i, B_x, B_w1, B_b1, B_w2):
    def _A_ref(x, w_r, w_i):
        B, S, D = x.shape
        X = (lambda x, axes=(-2,-1): torch.fft.rfft2(x.float(), dim=axes))(x, axes=(-2, -1))
        W = w_r + 1j * w_i
        X = X * W
        y = (lambda x, s, axes=(-2,-1): torch.fft.irfft2(x, s=s, dim=axes).to(torch.bfloat16))(X, (S, D), axes=(-2, -1))
        return y

    def _B_ref(x, w1, b1, w2):
        h = torch.einsum("bsd,df->bsf", x, w1) + b1
        sp = torch.log1p(torch.exp(-torch.abs(h))) + torch.where(h > 0, h, torch.zeros_like(h))
        act = h * torch.tanh(sp)
        return torch.einsum("bsf,fd->bsd", act, w2)

    x = A_x
    xn = _layernorm(x, axis=-1)
    return x + _A_ref(xn, A_w_r, A_w_i) + _B_ref(xn, B_w1, B_b1, B_w2)
```

```python
import struct, math
T, D, F = 2048, 576, 4608
LOG2E = 1.4426950408889634; LN2 = 0.6931471805599453
def fbits(x): return "0x%08x" % struct.unpack("<I", struct.pack("<f", x))[0]
WS_ACT  = 0
WS_U    = 0x1200000
WS_WT   = WS_U + 576*4096
WS_V    = WS_WT + 64*65536
WS_PART = WS_V + 64*36*1024
WS_GT   = WS_PART + 4*64*18*2048
WS_END  = WS_GT + 9*36*1024
WS_SYNC = (WS_END + 8191) // 8192 * 8192
WS_STAMP = 0x4000000
assert WS_U == 64*144*2048


def mark(a, opt, k):
    if opt.get("stamp"):
        a(f"s_memrealtime s[92:93]\ns_waitcnt lgkmcnt(0)\ns_mov_b32 s{84+k}, s92")
        a.lg = []
def stamp_out(a, slot, wavereg, srd, endlab):
    a(f"""s_memrealtime s[92:93]
s_waitcnt lgkmcnt(0)
s_lshl_b32 s94, s2, 3
s_add_u32 s94, s94, {wavereg}
s_lshl_b32 s94, s94, 5
s_add_u32 s94, s94, {WS_STAMP + slot*131072}
v_mov_b32 v4, s90
v_mov_b32 v5, s84
v_mov_b32 v6, s85
v_mov_b32 v7, s86
v_mov_b32 v8, s87
v_mov_b32 v9, s88
v_mov_b32 v10, s89
v_mov_b32 v11, s92
v_mov_b32 v12, 0
s_mov_b64 exec, 1
buffer_store_dwordx4 v[4:7], v12, s[{srd}:{srd+3}], s94 offen
buffer_store_dwordx4 v[8:11], v12, s[{srd}:{srd+3}], s94 offen offset:16
s_waitcnt vmcnt(0)""")
```

```python
import re

NAME = "parallel_sum__spectral_gfnet__dense_activation_mish__prompt"

HEADER = """; Kernarg layout for this problem (80 bytes, ptrs only, base s[0:1]):
"""

_REG = re.compile(r"(?<![\w.])([vsa])(?:(\d+)|\[(\d+):(\d+)\])(?![\w])")
TRANS = ("v_exp_f32", "v_log_f32", "v_rcp_f32", "v_rsq_f32", "v_sqrt_f32", "v_sin_f32", "v_cos_f32")

def regs_of(tok):
    out = set()
    for m in _REG.finditer(tok):
        k = m.group(1)
        if m.group(2) is not None:
            out.add((k, int(m.group(2))))
        else:
            for i in range(int(m.group(3)), int(m.group(4)) + 1):
                out.add((k, i))
    if re.search(r"\bvcc\b", tok): out.add(("s", "vcc"))
    if re.search(r"\bm0\b", tok): out.add(("s", "m0"))
    if re.search(r"\bexec\b", tok): out.add(("s", "exec"))
    return out

class Ins:
    def __init__(self, text):
        self.text = text
        t = text.split(";")[0].strip()
        self.op = t.split()[0] if t else ""
        rest = t[len(self.op):].strip()
        ops = [o.strip() for o in re.split(r",(?![^\[]*\])", rest)] if rest else []
        self.ops = ops
        op = self.op
        self.is_label = t.endswith(":")
        self.is_dir = op.startswith(".")
        self.mfma = op.startswith("v_mfma")
        self.valu = op.startswith("v_") and not self.mfma
        self.salu = op.startswith("s_")
        self.ds = op.startswith("ds_")
        self.vmem = op.startswith("buffer_") or op.startswith("global_")
        self.trans = op.replace("_e32", "").replace("_e64", "") in TRANS
        self.dot = op.startswith("v_dot")
        self.w = set(); self.r = set(); self.srcc = set(); self.srcab = set()
        if self.is_label or self.is_dir or not op:
            return
        if self.mfma:
            self.w = regs_of(ops[0]); self.srcab = regs_of(ops[1]) | regs_of(ops[2]); self.srcc = regs_of(ops[3])
            self.r = self.srcab | self.srcc
            self.passes = 8 if "32x32" in op else 4
        elif self.valu:
            if op.startswith("v_cmp"):
                self.w = regs_of(ops[0]); self.r = set().union(*[regs_of(o) for o in ops[1:]])
            elif op.startswith("v_permlane") and "swap" in op:
                self.w = regs_of(ops[0]) | regs_of(ops[1]); self.r = set(self.w)
            elif op.startswith(("v_add_co", "v_sub_co", "v_addc_co", "v_subb_co")):
                self.w = regs_of(ops[0]) | regs_of(ops[1]); self.r = set().union(*[regs_of(o) for o in ops[2:]])
            else:
                self.w = regs_of(ops[0]); self.r = set().union(*[regs_of(o) for o in ops[1:]]) if len(ops) > 1 else set()
                if op.startswith(("v_fmac", "v_dot2c", "v_writelane")):
                    self.r |= self.w
        elif self.ds:
            if op.startswith(("ds_read", "ds_bpermute", "ds_permute", "ds_swizzle")):
                self.w = regs_of(ops[0]); self.r = set().union(*[regs_of(o) for o in ops[1:]])
            else:
                self.r = set().union(*[regs_of(o) for o in ops])
        elif self.vmem:
            allr = [regs_of(o) for o in ops]
            self.lds = bool(re.search(r"\blds\b", t)) or "load_lds" in op
            if "load" in op and not self.lds:
                self.w = allr[0]; self.r = set().union(*allr[1:])
            else:
                self.r = set().union(*allr) if allr else set()
            if self.lds: self.r.add(("s", "m0"))
            self.wide_store = ("store_dwordx4" in op or "store_dwordx3" in op)
            self.data = allr[0] if (self.wide_store and op.startswith("buffer")) else (allr[1] if self.wide_store else set())
        elif self.salu:
            if op.startswith(("s_cmp", "s_cbranch", "s_branch", "s_waitcnt", "s_barrier", "s_nop", "s_endpgm", "s_setprio", "s_sleep")):
                self.r = set().union(*[regs_of(o) for o in ops]) if ops else set()
            else:
                self.w = regs_of(ops[0]); self.r = set().union(*[regs_of(o) for o in ops[1:]]) if len(ops) > 1 else set()
                if "saveexec" in op: self.w.add(("s", "exec"))
    def states(self):
        if self.is_label or self.is_dir or not self.op: return 0
        if self.op == "s_nop": return int(self.ops[0], 0) + 1
        return 1

def need(p, c):
    n = 0
    vw = {x for x in p.w if x[0] in "va"}
    sw = {x for x in p.w if x[0] == "s"}
    if p.mfma:
        big = {8: 12, 4: 8}[p.passes]
        if c.mfma:
            if vw & c.srcab: n = max(n, big)
            if vw & c.srcc and not (c.srcc == vw and c.passes == p.passes): n = max(n, big - 2)
            if vw & c.w and not (c.srcc == vw): n = max(n, big - 2)
        elif c.valu or c.ds or c.vmem:
            if vw & (c.r | c.w): n = max(n, big)
        if c.valu and (p.srcc & c.w): n = max(n, {8: 7, 4: 3}[p.passes])
    if p.valu:
        if c.mfma and vw & c.r: n = max(n, 2)
        if p.trans and c.valu and not c.trans and vw & c.r: n = max(n, 1)
        if p.trans and (c.ds or c.vmem) and vw & c.r: n = max(n, 1)
        if p.dot:
            if c.dot and c.op == p.op:
                ab = set().union(*[regs_of(o) for o in c.ops[1:3]])
                if vw & ab: n = max(n, 3)
            elif vw & (c.r | c.w): n = max(n, 3)
        if c.op.startswith(("v_readfirstlane", "v_readlane")) and vw & c.r: n = max(n, 1)
        if c.op.startswith("v_permlane") and vw & c.r: n = max(n, 2)
        if "dpp" in c.text and c.valu and vw & c.r: n = max(n, 2)
        if sw:
            if c.vmem and sw & c.r: n = max(n, 5)
            if c.valu and sw & c.r: n = max(n, 2)
            if c.op.startswith(("v_readlane", "v_writelane")) and sw & c.r: n = max(n, 4)
            if c.salu and sw & c.r: n = max(n, 1)
            if ("s", "exec") in sw and c.mfma: n = max(n, 4)
    if p.salu and ("s", "m0") in p.w and c.vmem and getattr(c, "lds", False): n = max(n, 1)
    if p.vmem and getattr(p, "wide_store", False):
        if p.data & c.w: n = max(n, 2)
    return n

def fix_hazards(lines):
    out = []
    hists = [[]]
    saved = {}
    for l in lines:
        ins = Ins(l)
        if ins.is_label:
            lab = ins.text.strip()[:-1]
            for h in saved.pop(lab, []):
                hists.append(h)
        elif ins.op and not ins.is_dir:
            req = 0
            for hist in hists:
                dist = 0
                for p in reversed(hist):
                    if dist >= 20: break
                    k = need(p, ins) - dist
                    if k > req: req = k
                    dist += p.states()
            while req > 0:
                k = min(req, 16)
                nop = Ins(f"    s_nop {k-1}")
                out.append(nop)
                for h in hists: h.append(nop)
                req -= k
            for h in hists:
                h.append(ins)
                del h[:-24]
            uniq = []
            for h in hists:
                if not any(len(h) == len(u) and all(a is b for a, b in zip(h, u)) for u in uniq): uniq.append(h)
            hists = uniq
            if ins.op.startswith(("s_cbranch", "s_branch")):
                saved.setdefault(ins.ops[0], []).extend([list(h) for h in hists])
            if ins.op in ("s_branch", "s_endpgm", "s_setpc_b64"):
                hists = [[]]
        out.append(ins)
    return [i.text for i in out]

class Asm:
    def __init__(self):
        self.lines = []; self.launches = []; self.kds = []; self.tail = []
        self.vm = []; self.lg = []
    def __call__(self, s=""):
        for l in s.split("\n"):
            if l.strip():
                self.lines.append(l if l.startswith((" ", "\t")) or l.rstrip().endswith(":") or l.startswith(".") or l.startswith(";") else "    " + l)
    def vmop(self, s, tag=None):
        self(s); self.vm.append(tag)
    def lgop(self, s, tag=None):
        self(s); self.lg.append(tag)
    def _n(self, q, tags):
        if not isinstance(tags, (list, set)): tags = [tags]
        idx = max([i for i, t in enumerate(q) if t in tags], default=-1)
        return idx
    def wait(self, vm=None, lg=None):
        parts = []
        if vm is not None:
            if vm == "all":
                if self.vm: parts.append("vmcnt(0)")
                self.vm = []
            else:
                i = self._n(self.vm, vm)
                if i >= 0:
                    n = len(self.vm) - 1 - i
                    n2 = min(n, 63)
                    parts.append(f"vmcnt({n2})"); self.vm = self.vm[len(self.vm) - n2:] if n2 else []
        if lg is not None:
            if lg == "all":
                if self.lg: parts.append("lgkmcnt(0)")
                self.lg = []
            else:
                i = self._n(self.lg, lg)
                if i >= 0:
                    n = len(self.lg) - 1 - i
                    n2 = min(n, 15)
                    parts.append(f"lgkmcnt({n2})"); self.lg = self.lg[len(self.lg) - n2:] if n2 else []
        if parts: self("s_waitcnt " + " ".join(parts))
    def launch(self, kernel, grid, block, lds):
        if kernel == NAME + "_kernel": self.launches.append(f"; @launch grid=({grid},1,1) block=({block},1,1) lds={lds}")
        else: self.launches.append(f"; @launch kernel={kernel} grid=({grid},1,1) block=({block},1,1) lds={lds}")
    def begin_kernel(self, name):
        self.vm = []; self.lg = []
        self(f".globl {name}\n.p2align 8\n.type {name},@function\n{name}:")
    def end_kernel(self, name, vgpr, sgpr=102, accum=None):
        if accum is None: accum = min(256, (vgpr + 3) // 4 * 4)
        self.kds.append(f""".p2align 6
.amdhsa_kernel {name}
  .amdhsa_next_free_vgpr {vgpr}
  .amdhsa_next_free_sgpr {sgpr}
  .amdhsa_accum_offset {accum}
  .amdhsa_group_segment_fixed_size 0
  .amdhsa_kernarg_size 80
  .amdhsa_user_sgpr_count 2
  .amdhsa_user_sgpr_kernarg_segment_ptr 1
  .amdhsa_system_sgpr_workgroup_id_x 1
  .amdhsa_float_denorm_mode_32 3
  .amdhsa_float_denorm_mode_16_64 3
.end_amdhsa_kernel""")
    def srd(self, d, base, nbytes):
        self(f"""s_mov_b32 s{d}, s{base}
s_mov_b32 s{d+1}, s{base+1}
s_mov_b32 s{d+2}, {nbytes}
s_mov_b32 s{d+3}, 0x00020000""")
    def text(self):
        out = HEADER + "\n".join(self.launches) + "\n"
        out += '.amdgcn_target "amdgcn-amd-amdhsa--gfx950"\n.text\n'
        out += "\n".join(fix_hazards(self.lines)) + "\n"
        out += '.section .rodata,"a"\n' + "\n".join(self.kds) + "\n"
        out += "\n".join(self.tail) + "\n"
        return out
    def write(self, path):
        open(path, "w").write(self.text())
```

```python
from fw import *
from common import *

XBUF = lambda b: b*16384
H_OFF = 81920
F_OFF = H_OFF + 36864
CS_OFF = 131072
BI_OFF = 139264
STAT = 159744
RM = STAT + 2048
X0 = 112
ACCX, ACCY, ACCZ = 16, 32, 48
STG = 64
FR = 80
TMP = 96; PK = 104
M32 = "v_mfma_f32_32x32x16_bf16"; M16 = "v_mfma_f32_16x16x32_bf16"
CA = 8
SEL = 12
TF = 72; CF = 76

def r4(x): return f"v[{x}:{x+3}]"
def r16(x): return f"v[{x}:{x+15}]"

def gen_k1(a, opt):
    st_act = opt.get("st_act", "sc1")
    st_u = opt.get("st_u", "")
    st_wt = opt.get("st_wt", "")
    ld_x = opt.get("ld_x", "")
    ld_w = opt.get("ld_w", "")
    a.begin_kernel("k1_kernel")
    a("s_cmp_ge_u32 s2, 256\ns_cbranch_scc1 K1_end")
    if opt.get("stamp"): a("s_memrealtime s[90:91]")
    a("""s_load_dwordx8 s[4:11], s[0:1], 0
s_load_dwordx8 s[12:19], s[0:1], 32
s_load_dwordx2 s[20:21], s[0:1], 72
v_lshrrev_b32 v1, 6, v0
v_lshlrev_b32 v35, 1, v0           ; tid*2 (bias load)
v_readfirstlane_b32 s48, v1        ; wave
v_lshlrev_b32 v36, 4, v0           ; tid*16
v_and_b32 v0, 63, v0               ; lane
s_and_b32 s59, s2, 7               ; xcd
s_lshr_b32 s60, s2, 3              ; idx
s_and_b32 s49, s59, 1
s_lshl_b32 s49, s49, 3
s_and_b32 s61, s60, 7
s_add_u32 s49, s49, s61            ; rb
s_lshr_b32 s50, s59, 1
s_lshl_b32 s50, s50, 2
s_lshr_b32 s61, s60, 3
s_add_u32 s50, s50, s61            ; cg
s_and_b32 s51, s48, 3              ; q
s_lshr_b32 s52, s48, 2             ; type
v_lshrrev_b32 v40, 3, v0           ; r
v_and_b32 v41, 7, v0               ; c'
v_lshrrev_b32 v42, 1, v40
v_xor_b32 v42, v42, v41
v_lshlrev_b32 v42, 4, v42
v_mul_u32_u24 v32, 73728, v40
v_xor_b32 v33, 64, v42
v_add_u32 v33, v33, v32
v_add_u32 v32, v42, v32
""" + f"v_add_u32 v33, {8*73728-1024}, v33" + """
s_lshl_b32 s53, s49, 2
s_lshr_b32 s59, s48, 1
s_add_u32 s53, s53, s59
s_mul_i32 s53, s53, 1152
s_and_b32 s59, s48, 1
""" + f"s_mul_i32 s59, s59, {16*73728}" + """
s_add_u32 s53, s53, s59            ; x soffset base
s_lshl_b32 s56, s48, 10            ; wave*1024
s_lshl_b32 s57, s48, 11            ; wave*2048
v_mul_u32_u24 v5, 9216, v40
v_lshlrev_b32 v42, 1, v40
v_and_b32 v42, 4, v42
v_xor_b32 v42, v42, v41
v_lshl_add_u32 v5, v42, 4, v5      ; W voffset
v_lshrrev_b32 v34, 2, v0
v_mul_u32_u24 v34, 9216, v34
v_and_b32 v41, 3, v0
v_lshl_add_u32 v34, v41, 4, v34    ; H voffset
s_mul_i32 s63, s50, 576            ; cg*576 bytes
s_and_b32 s64, s50, 1              ; cg&1
s_lshl_b32 s59, s64, 6
s_add_u32 s54, s63, s59
""" + f"s_mul_i32 s59, s48, {8*9216}" + """
s_add_u32 s54, s54, s59            ; W soffset base
s_xor_b32 s60, s64, 1
s_lshl_b32 s60, s60, 9
s_add_u32 s55, s63, s60
s_lshl_b32 s59, s59, 1
s_add_u32 s55, s55, s59            ; H soffset base
""" + f"s_mov_b32 s26, {T*D*2}\ns_mov_b32 s27, 0x20000\ns_mov_b32 s30, {D*F*2}\ns_mov_b32 s31, 0x20000" + """
s_waitcnt lgkmcnt(0)
s_mov_b32 s24, s4
s_mov_b32 s25, s5
s_mov_b32 s28, s12
s_mov_b32 s29, s13""")
    def dma_x(c):
        a(f"s_add_u32 m0, s57, {XBUF(c % 5)}")
        a(f"s_add_u32 s59, s53, {c*128}")
        a.vmop(f"buffer_load_dwordx4 v32, s[24:27], s59 offen {ld_x} lds", ("x", c))
        a.vmop(f"buffer_load_dwordx4 v33, s[24:27], s59 offen offset:1024 {ld_x} lds", ("x", c))
    def dma_h(i):
        a(f"s_add_u32 m0, s56, {H_OFF + i*8192}")
        a(f"s_add_u32 s59, s55, {i*128*9216}")
        a.vmop(f"buffer_load_dwordx4 v34, s[28:31], s59 offen {ld_w} lds", ("h", i))
    frame_of = {}
    def dma_w(u, fr):
        frame_of[u] = fr
        a(f"s_add_u32 m0, s56, {fr*8192}")
        a(f"s_add_u32 s59, s54, {(u % 9)*64*9216 + (u // 9)*128}")
        a.vmop(f"buffer_load_dwordx4 v5, s[28:31], s59 offen {ld_w} lds", ("w", u))
    dma_x(0); dma_h(0); dma_x(1)
    if opt.get("codepf", 1):
        a("""s_getpc_b64 s[80:81]
s_mov_b32 s82, 0x10000
s_mov_b32 s83, 0x20000
v_lshlrev_b32 v40, 3, v36""")
        a.vmop("buffer_load_dword v41, v40, s[80:83], 0 offen", "pf")
    a("""v_and_b32 v38, 31, v0              ; n
v_lshrrev_b32 v39, 5, v0           ; h
s_mov_b32 s70, s50                 ; tau
""" + f"s_mov_b32 s71, {F_OFF}" + """
v_lshlrev_b32 v7, 4, v0            ; lane*16
K1_fgen:
s_lshl_b32 s59, s70, 5
""" + f"s_sub_u32 s60, s59, {288-1}" + """
s_cmp_lt_u32 s70, 9
s_cselect_b32 s59, s59, s60        ; jb
v_and_b32 v112, 30, v38
v_add_u32 v112, s59, v112          ; j
v_and_b32 v113, 1, v38
v_cvt_f32_u32 v113, v113
v_mul_f32 v113, 0.25, v113         ; phase
s_lshl_b32 s60, s70, 5
v_add_u32 v114, s60, v38           ; c
v_cmp_eq_u32 vcc, 1, v114
v_mov_b32 v115, 288
v_mov_b32 v116, 0
v_cndmask_b32 v112, v112, v115, vcc
v_cndmask_b32 v113, v113, v116, vcc
v_cvt_f32_u32 v112, v112
""".replace("0.25", fbits(0.25)) + f"v_mul_f32 v112, {fbits(1/576)}, v112       ; kf" + """
s_mov_b32 s72, s48                 ; frag idx
K1_fgen_fr:
s_lshl_b32 s59, s72, 4
v_lshl_add_u32 v114, v39, 3, s59
v_cvt_f32_u32 v114, v114
v_fma_f32 v116, v114, v112, v113""")
    for i in range(1, 8):
        a(f"v_add_f32 v{116+i}, v{115+i}, v112")
    for i in range(8):
        a(f"v_cos_f32 v{116+i}, v{116+i}")
    for i in range(4):
        a(f"v_cvt_pk_bf16_f32 v{124+i}, v{116+2*i}, v{117+2*i}")
    a("""s_lshl_b32 s59, s72, 10
s_add_u32 s59, s59, s71
v_add_u32 v114, s59, v7
ds_write_b128 v114, v[124:127]
s_add_u32 s72, s72, 8
s_cmp_lt_u32 s72, 20
s_cbranch_scc1 K1_fgen_fr
s_add_u32 s70, s70, 16
s_add_u32 s71, s71, 20480
s_cmp_lt_u32 s70, 18
s_cbranch_scc1 K1_fgen""")
    a.lg.append("fgen")
    dma_x(2); dma_h(1)
    a(f"""v_lshrrev_b32 v112, 2, v0
v_and_b32 v112, 3, v112            ; r
v_lshl_add_u32 v113, v39, 3, v112  ; 8h + r
v_lshrrev_b32 v114, 4, v0
v_and_b32 v114, 1, v114
v_xor_b32 v122, v114, v112
v_lshlrev_b32 v114, 5, v114
v_and_b32 v115, 3, v0
v_lshl_add_u32 v114, v115, 3, v114
v_lshl_add_u32 v116, v113, 6, v114
v_add_u32 v116, {H_OFF}, v116
v_lshrrev_b32 v112, 1, v112
v_xor_b32 v112, s52, v112
v_lshl_add_u32 v114, v112, 6, v114
v_lshl_add_u32 v117, v113, 7, v114
s_lshl_b32 s59, s51, 12
v_lshl_add_u32 v118, v38, 7, s59
v_lshrrev_b32 v119, 1, v38
v_and_b32 v119, 7, v119
v_xor_b32 v119, v119, v39          ; swz ^ h
s_xor_b32 s60, s52, 1
s_mul_i32 s60, s60, 20480
s_add_u32 s60, s60, {F_OFF}
v_add_u32 v120, s60, v7
v_and_b32 v122, 1, v122
v_add_u32 v122, -1, v122
v_and_b32 v{SEL}, 0x3f803f80, v122
v_mov_b32 v{SEL+1}, v{SEL}
v_mov_b32 v{SEL+2}, v{SEL}
v_mov_b32 v{SEL+3}, v{SEL}""")
    for i in range(4):
        a(f"""s_xor_b32 s59, s51, {i}
s_lshl_b32 s60, s59, 11
v_add_u32 v{1+i}, s60, v117
s_lshl_b32 s60, s59, 10
v_add_u32 v{100+i}, s60, v116
v_add_u32 v{104+i}, s60, v120
s_lshl_b32 s60, s59, 1
v_xor_b32 v121, s60, v119
v_lshl_add_u32 v{96+i}, v121, 4, v118""")
    dma_x(3)
    a.srd(44, 14, F*2)
    a.vmop("buffer_load_ushort v35, v35, s[44:47], s63 offen", "bias")
    a.srd(32, 20, 0x10000000)
    a.srd(36, 6, T*289*2)
    a.srd(40, 8, T*289*2)
    a(f"""s_lshl_b32 s73, s49, 2
s_add_u32 s73, s73, s51            ; G
s_mul_i32 s58, s73, {144*2048}
s_mul_i32 s59, s50, 9
s_xor_b32 s60, s64, 1
s_lshl_b32 s60, s60, 3
s_add_u32 s60, s60, s59
s_lshl_b32 s60, s60, 11
s_add_u32 s62, s58, s60
s_add_u32 s59, s59, s64
s_add_u32 s59, s59, s52
s_lshl_b32 s59, s59, 11
s_add_u32 s58, s58, s59
s_xor_b32 s74, s52, 1
s_lshl_b32 s74, s74, 4
s_add_u32 s74, s74, s50
s_cmp_lt_u32 s74, 9
s_cselect_b32 s75, 1.0, -1.0       ; sgn
s_mov_b32 s76, 0
s_cmp_eq_u32 s74, 0
s_cselect_b32 s76, 0x4410, s76
s_cmp_eq_u32 s74, 2
s_cselect_b32 s76, 0xbe80, s76
s_cmp_eq_u32 s74, 4
s_cselect_b32 s76, 0xbe80, s76
s_cmp_eq_u32 s74, 8
s_cselect_b32 s76, 0xbe80, s76
s_lshl_b32 s77, s74, 17
s_lshl_b32 s59, s73, 6
s_add_u32 s77, s77, s59
s_add_u32 s77, s77, {WS_U}         ; U store base
s_mov_b32 s78, 0x3f803f80
v_mov_b32 v37, 0
s_lshr_b32 s65, s2, 4              ; u
s_lshr_b32 s66, s2, 2
s_and_b32 s66, s66, 3
s_lshl_b32 s66, s66, 3
s_add_u32 s66, s66, s48            ; k1
s_lshl_b32 s67, s65, 7
s_add_u32 s67, s67, s66
s_mul_i32 s67, s67, 578
s_and_b32 s68, s2, 3
s_lshl_b32 s69, s65, 9
s_lshl_b32 s66, s66, 4
s_add_u32 s69, s69, s66
s_add_u32 s69, s69, {WS_WT}        ; WT dest base (col 0)""")
    dma_x(4); dma_h(2); dma_h(3)
    a("s_cmp_lg_u32 s52, 0\ns_cbranch_scc1 K1_typeB")
    vm0 = list(a.vm); lg0 = list(a.lg)
    TJOIN = 44
    join_state = {}

    def body(typ):
        A = typ == "A"
        a.vm = list(vm0); a.lg = list(lg0)
        if A: dma_h(4)
        frame_of.clear()
        win = [0]; xwin = [0]
        def xreads(c):
            want = 65536 if XBUF(c % 5) >= 65536 else 0
            if want != xwin[0]:
                for i in range(4):
                    a(f"v_add_u32 v{96+i}, {(want - xwin[0]) & 0xffffffff:#x}, v{96+i}")
                xwin[0] = want
            for i in range(4):
                a.lgop(f"ds_read_b128 {r4(X0+16*c+4*i)}, v{96+i} offset:{XBUF(c % 5) - xwin[0]}", ("xr", c))
        def hread(c, i):
            b = FR + 4*i
            a.lgop(f"ds_read_b64_tr_b16 v[{b}:{b+1}], v{100+i} offset:{c*4096}", ("f", "p", c, i))
            a.lgop(f"ds_read_b64_tr_b16 v[{b+2}:{b+3}], v{100+i} offset:{c*4096+256}", ("f", "p", c, i))
        def fread(c, i, base, track=True):
            off = (4*c if c < 5 else 4*c - 18)*1024
            s = f"ds_read_b128 {r4(base+4*i)}, v{104+i} offset:{off}"
            if track: a.lgop(s, ("f", "p", c, i))
            else: a(s)
        def wread(t):
            u = t // 4; i = t % 4
            base = frame_of[u]*8192
            if not (win[0] <= base and base + 512 - win[0] <= 65535):
                for k in range(4):
                    a(f"v_add_u32 v{1+k}, {(base - win[0]) & 0xffffffff:#x}, v{1+k}")
                win[0] = base
            b = FR + 4*i
            a.lgop(f"ds_read_b64_tr_b16 v[{b}:{b+1}], v{1+i} offset:{base - win[0]}", ("f", t))
            a.lgop(f"ds_read_b64_tr_b16 v[{b+2}:{b+3}], v{1+i} offset:{base - win[0] + 512}", ("f", t))
        def csm(b, first):
            a(f"{M16} {r4(CA)}, {r4(SEL)}, {r4(b)}, " + ("0" if first else r4(CA)))
        def cspub(addr, off):
            return [lambda: a(f"v_cvt_pk_bf16_f32 v{CA+1}, v{CA}, v{CA}"),
                    lambda: a(f"v_lshlrev_b32 v{CA+1}, 16, v{CA+1}"),
                    lambda: a(f"v_sub_f32 v{CA+1}, v{CA}, v{CA+1}"),
                    lambda: a(f"v_cvt_pk_bf16_f32 v{CA+1}, v{CA}, v{CA+1}"),
                    lambda: a.lgop(f"ds_write_b32 v{addr}, v{CA+1} offset:{off}", "pub")]
        def pro_mfma(c, nxt):
            if not A and c == 5:
                for j in range(16): a(f"v_mul_f32 v{ACCX+j}, s75, v{ACCX+j}")
            for k in range(16):
                x = X0 + 16*c + k
                a(f"v_dot2c_f32_bf16 v37, s78, v{x}" if A else f"v_dot2c_f32_bf16 v37, v{x}, v{x}")
            for i in range(4):
                a.wait(lg=("f", "p", c, i))
                b = FR + 4*i; x = X0 + 16*c + 4*i
                cc = r16(ACCX) if (c or i) else "0"
                if A:
                    a(f"{M32} {r16(ACCX)}, {r4(b)}, {r4(x)}, {cc}")
                    if i == 0: csm(b, c == 0)
                else:
                    a(f"{M32} {r16(ACCX)}, {r4(x)}, {r4(b)}, {cc}")
                nxt(i)
            if A:
                lab = f"K1_nosp{c}"
                a(f"s_cmp_ge_u32 s50, 2\ns_cbranch_scc1 {lab}")
                for i in range(4): fread(c, i, STG, track=False)
                if c == 5:
                    for j in range(16): a(f"v_mul_f32 v{ACCZ+j}, s75, v{ACCZ+j}")
                for i in range(4):
                    a(f"s_waitcnt lgkmcnt({3-i})")
                    x = X0 + 16*c + 4*i
                    a(f"{M32} {r16(ACCZ)}, {r4(x)}, {r4(STG+4*i)}, " + (r16(ACCZ) if (c or i) else "0"))
                a(f"{lab}:")
        first_read = (lambda c, i: hread(c, i)) if A else (lambda c, i: fread(c, i, FR))
        for i in range(9):
            if i == 0: mark(a, opt, 0)
            a.wait(vm=[("x", i), ("h", i//2)], lg=("fgen" if i == 0 else ("xr", i-1)))
            a("s_barrier")
            if i == 0: mark(a, opt, 1)
            if i == 5: mark(a, opt, 2)
            xreads(i)
            if i == 0:
                for k in range(4): first_read(0, k)
            else:
                pro_mfma(i-1, lambda k: first_read(i, k))
            if 1 <= i <= 4: dma_x(i + 4)
            if i >= 5:
                bf = (i - 1) % 5
                dma_w(2*(i-5), 2*bf); dma_w(2*(i-5)+1, 2*bf+1)
        a.wait(vm=[("w", 0), ("w", 1), ("w", 2)], lg="all")
        a("s_barrier")
        mark(a, opt, 3)
        pend = [(8, 6), (9, 7)] + [(10+k, 10+k) for k in range(6)]
        nextu = [16]
        pro_mfma(8, wread)
        a(f"""s_lshl_b32 s59, s48, 8
s_add_u32 s59, s59, {STAT}
v_lshl_add_u32 v40, v0, 2, s59
v_add_u32 v36, {BI_OFF}, v36
v_mov_b32 v40+1, 0""".replace("v40+1", "v41"))
        a.lgop("ds_write_b32 v40, v37", "pub")
        a("v_mov_b32 v40, v35\nv_mov_b32 v42, 0\nv_mov_b32 v43, 0")
        a.lgop("ds_write_b128 v36, v[40:43]", "pub")
        a(f"""s_add_u32 s59, s64, s52
s_lshl_b32 s59, s59, 9
s_add_u32 s59, s59, {CS_OFF}
v_lshl_add_u32 v65, v38, 4, s59
v_lshlrev_b32 v64, 13, v39
v_add_u32 v64, v64, v65
s_lshl_b32 s59, s51, 2
v_add_u32 v65, s59, v65""")
        if A:
            a("""s_xor_b32 s59, s64, 1
s_mul_i32 s79, s59, 9
s_sub_u32 s79, s79, 1
s_lshl_b32 s79, s79, 9
v_add_u32 v66, s79, v65""")
            for o in cspub(66, 0): o()
            a("v_add_u32 v66, s79, v64")
        else:
            a.lgop("ds_read_b32 v66, v65", "pub")

        def stats_ops():
            o = []
            t = TMP
            def rd():
                a(f"s_lshl_b32 s59, s51, 8\ns_add_u32 s59, s59, {STAT}")
                a(f"v_and_b32 v67, 31, v0\nv_lshl_add_u32 v67, v67, 2, s59")
                a.lgop(f"ds_read2_b32 v[{t}:{t+1}], v67 offset0:0 offset1:32", "st")
                a(f"v_add_u32 v67, 1024, v67")
                a.lgop(f"ds_read2_b32 v[{t+2}:{t+3}], v67 offset0:0 offset1:32", "st")
            o.append((40, rd))
            o.append((0, lambda: a.wait(lg="st")))
            seq = f"""v_add_f32 v{t}, v{t}, v{t+1}
v_add_f32 v{t+2}, v{t+2}, v{t+3}
v_mul_f32 v{t}, {fbits(-1/576)}, v{t}
v_mul_f32 v{t+2}, {fbits(1/576)}, v{t+2}
v_fma_f32 v{t+2}, -v{t}, v{t}, v{t+2}
v_cvt_pk_bf16_f32 v{t}, v{t}, v{t}
v_max_f32 v{t+2}, 0, v{t+2}
v_cvt_pk_bf16_f32 v{t+2}, v{t+2}, v{t+2}
v_cmp_gt_u32 vcc, 32, v0
v_lshlrev_b32 v{t+2}, 16, v{t+2}
v_add_f32 v{t+2}, {fbits(1e-5)}, v{t+2}
v_cvt_pk_bf16_f32 v{t+2}, v{t+2}, v{t+2}
v_lshlrev_b32 v{t+2}, 16, v{t+2}
v_sqrt_f32 v{t+2}, v{t+2}
v_cndmask_b32 v{TF+1}, 0, v{t}, vcc
v_cvt_pk_bf16_f32 v{t+2}, v{t+2}, 0
v_mov_b32 v{TF+2}, v{TF+1}
v_cndmask_b32 v{TF}, v{t+2}, v{t}, vcc
v_lshlrev_b32 v{t+2}, 16, v{t+2}
v_rcp_f32 v{t+2}, v{t+2}
v_mov_b32 v{TF+3}, v{TF+1}
v_mul_f32 v6, {fbits(LOG2E)}, v{t+2}"""
            for l in seq.split("\n"):
                o.append((4, lambda l=l: a(l)))
            return o
        def u_ops(acc, track, rb_):
            lg = (lambda s, tag: a.lgop(s, tag)) if track else (lambda s, tag: a(s))
            vm = (lambda s, tag: a.vmop(s, tag)) if track else (lambda s, tag: a(s))
            wt = (lambda tag: a.wait(lg=tag)) if track else (lambda tag: a("s_waitcnt lgkmcnt(0)"))
            t = TMP
            o = []
            def pre():
                a(f"""v_mul_f32 v{t+3}, s75, v{t+2}
s_lshl_b32 s59, s48, 7
s_add_u32 s59, s59, {RM}
v_and_b32 v{t+4}, 31, v0
v_lshl_add_u32 v67, v{t+4}, 2, s59
v_cmp_eq_u32 vcc, 0, v0""")
                lg(f"ds_write_b32 v67, v{t+3}", "rmw")
                a(f"""v_mov_b32 v{t+5}, s76
v_mov_b32 v{CF+1}, 0
v_cndmask_b32 v{CF}, 0, v{t+5}, vcc
v_mov_b32 v{CF+2}, 0
v_mov_b32 v{CF+3}, 0
v_lshrrev_b32 v67, 5, v0
v_lshlrev_b32 v{t+5}, 4, v67
v_add_u32 v67, s59, v{t+5}
{M32} {r16(acc)}, {r4(TF)}, {r4(CF)}, {r16(acc)}
v_lshl_add_u32 v{t+7}, v{t+4}, 12, v{t+5}""")
                for g in range(4): lg(f"ds_read_b128 {r4(rb_+4*g)}, v67 offset:{g*32}", "rm")
            o.append((120, pre))
            o.append((0, lambda: wt("rm")))
            for g in range(4):
                for k in range(4): o.append((4, lambda k=k, g=g: a(f"v_mul_f32 v{rb_+4*g+k}, v{acc+4*g+k}, v{rb_+4*g+k}")))
                for k in range(2): o.append((4, lambda k=k, g=g: a(f"v_cvt_pk_bf16_f32 v{PK+2*g+k}, v{rb_+4*g+2*k}, v{rb_+4*g+2*k+1}")))
                if g % 2 == 1:
                    o.append((4, lambda g=g: vm(f"buffer_store_dwordx4 {r4(PK+4*(g//2))}, v{t+7}, s[32:35], s77 offen offset:{32*(g//2)} {st_u}", "st")))
            return o
        def corr_ops(acc, areg, off):
            return [(0, lambda: a.lgop(f"ds_read_b128 {r4(CF)}, v{areg} offset:{off}", "cr"))], \
                   [(8, lambda: (a.wait(lg="cr"), a(f"{M32} {r16(acc)}, {r4(CF)}, {r4(TF)}, {r16(acc)}")))]
        def mish_ops(acc, sbase):
            o = []
            stages = []
            for p in range(8):
                Tt = TMP + 4*(p % 2); E = Tt + 2; s = acc + 2*p
                st = []
                st.append([(4, f"v_mul_f32 v{Tt}, v{s}, v6"), (4, f"v_mul_f32 v{Tt+1}, v{s+1}, v6")])
                st.append([(8, f"v_exp_f32 v{E}, v{Tt}"), (8, f"v_exp_f32 v{E+1}, v{Tt+1}")])
                st.append([(4, f"v_fma_f32 v{s}, v{E}, -0.5, -1.0"), (4, f"v_fma_f32 v{s+1}, v{E+1}, -0.5, -1.0")])
                st.append([(4, f"v_fma_f32 v{E}, v{E}, v{s}, -1.0"), (4, f"v_fma_f32 v{E+1}, v{E+1}, v{s+1}, -1.0")])
                st.append([(8, f"v_rcp_f32 v{E}, v{E}"), (8, f"v_rcp_f32 v{E+1}, v{E+1}")])
                st.append([(4, f"v_fmac_f32 v{Tt}, v{Tt}, v{E}"), (4, f"v_fmac_f32 v{Tt+1}, v{Tt+1}, v{E+1}")])
                st.append([(4, f"v_cvt_pk_bf16_f32 v{PK+p}, v{Tt}, v{Tt+1}")])
                stages.append(st)
            seq = []
            for p in range(9):
                f = [x for st in stages[p][:4] for x in st] if p < 8 else []
                s_ = [x for st in stages[p-1][4:] for x in st] if p > 0 else []
                if f and s_:
                    seq += [f[0], s_[0], f[1], s_[1], f[2], s_[2], f[3], s_[3], f[4], f[5], s_[4], f[6], f[7]]
                else:
                    seq += f + s_
                if p in (4, 8):
                    seq.append(("st", (p//4) - 1))
            for it in seq:
                if it[0] == "st":
                    def st(k=it[1]):
                        a(sbase)
                        a.vmop(f"buffer_store_dwordx4 {r4(PK+4*k)}, v7, s[32:35], s60 offen offset:{1024*k} {st_act}", "st")
                    o.append((4, st))
                else:
                    o.append((it[0], lambda l=it[1]: a(l)))
            return o
        sched = {}
        def spread(ops, t0, t1):
            tot = sum(c for c, _ in ops); cum = 0
            for c, o in ops:
                sched.setdefault(t0 + min(t1 - t0 - 1, int(cum*(t1 - t0)/max(tot, 1))), []).append(o)
                cum += c
        accs = [ACCY, ACCX, ACCY, ACCX]
        so = stats_ops()
        if A:
            c1, c2 = corr_ops(ACCX, 66, 0)
            def special():
                a("s_cmp_ge_u32 s50, 2\ns_cbranch_scc1 K1_nospU")
                uo = u_ops_small(ACCZ)
                a("K1_nospU:")
            def u_ops_small(acc):
                t = TMP
                a(f"""v_mul_f32 v{t+3}, s75, v{t+2}
s_lshl_b32 s59, s48, 7
s_add_u32 s59, s59, {RM}
v_and_b32 v{t+4}, 31, v0
v_lshl_add_u32 v67, v{t+4}, 2, s59
ds_write_b32 v67, v{t+3}
v_lshrrev_b32 v67, 5, v0
v_lshlrev_b32 v{t+5}, 4, v67
v_add_u32 v67, s59, v{t+5}
v_lshl_add_u32 v{t+7}, v{t+4}, 12, v{t+5}""")
                for g in range(4):
                    a(f"ds_read_b128 {r4(68)}, v67 offset:{g*32}\ns_waitcnt lgkmcnt(0)")
                    for k in range(4): a(f"v_mul_f32 v{68+k}, v{acc+4*g+k}, v{68+k}")
                    for k in range(2): a(f"v_cvt_pk_bf16_f32 v{PK+2*g+k}, v{68+2*k}, v{68+2*k+1}")
                    if g % 2 == 1:
                        a(f"buffer_store_dwordx4 {r4(PK+4*(g//2))}, v{t+7}, s[32:35], s77 offen offset:{32*(g//2)} {st_u}")
                a("s_nop 1")
            spread(c1 + so + [(0, special)] + c2, 8, 14)
            spread(mish_ops(ACCX, "s_mov_b32 s60, s62"), 16, 36)
        else:
            spread(so, 8, 14)
            spread(u_ops(ACCX, True, ACCZ), 14, 30)
        for s in range(3):
            b = 36*(s+1)
            c1, c2 = corr_ops(accs[s], 64, s*1024)
            spread(c1, b+8, b+9); spread(c2, b+10, b+11)
            spread(mish_ops(accs[s], f"s_add_u32 s60, s58, {s*4096}"), b+12, b+36)
        for s in range(4):
            spread([(4, o) for o in cspub(65, s*1024)], 36*s+34, 36*s+36)
        def wt_load(k, sec):
            def f():
                if k == 0:
                    if sec: a("s_add_u32 s61, s67, 512")
                    else: a("s_lshl_b32 s61, s68, 7\ns_add_u32 s61, s61, s67\nv_lshlrev_b32 v66, 1, v0")
                else: a(f"s_add_u32 s61, s61, {32*578}")
                op = a if sec else (lambda s: a.vmop(s, "wt"))
                op(f"buffer_load_ushort v{48+8*sec+k}, v66, s[36:39], s61 offen")
                op(f"buffer_load_ushort v{52+8*sec+k}, v66, s[40:43], s61 offen")
            return f
        def wt_load2():
            a("s_cmp_lg_u32 s68, 0\ns_cbranch_scc1 K1_nowt2")
            for k in range(4): wt_load(k, 1)()
            a("K1_nowt2:")
        def wt_store():
            a.wait(vm="wt")
            a("s_lshl_b32 s61, s68, 19\ns_add_u32 s61, s61, s69\nv_lshlrev_b32 v66, 13, v0")
            for k in range(4): a(f"v_lshl_or_b32 v{48+k}, v{52+k}, 16, v{48+k}")
            a.vmop(f"buffer_store_dwordx4 v[48:51], v66, s[32:35], s61 offen {st_wt}", "wts")
            a(f"s_cmp_lg_u32 s68, 0\ns_cbranch_scc1 K1_nowts")
            a(f"s_add_u32 s61, s69, {256*8192}")
            for k in range(4): a(f"v_lshl_or_b32 v{56+k}, v{60+k}, 16, v{56+k}")
            a(f"buffer_store_dwordx4 v[56:59], v66, s[32:35], s61 offen {st_wt}")
            a(f"K1_nowts:")
        sched.setdefault(72, []).append(lambda: a("v_lshlrev_b32 v66, 1, v0"))
        sched.setdefault(72, []).append(wt_load2)
        for k in range(4): sched.setdefault(73+k, []).append(wt_load(k, 0))
        sched.setdefault(110, []).append(wt_store)
        for t in range(144):
            if t == TJOIN:
                if A:
                    a("K1_join:")
                    a.vm = [x for x in a.vm if x != "st"]
                    join_state["vm"] = list(a.vm); join_state["lg"] = list(a.lg); join_state["win"] = win[0]
                else:
                    assert len(join_state["vm"]) <= len(a.vm) or True
                    ja, jb = join_state["vm"], a.vm
                    for tag in set(x for x in ja if x != "st"):
                        ia = len(ja) - 1 - max(i for i, x in enumerate(ja) if x == tag)
                        if tag in jb:
                            ib = len(jb) - 1 - max(i for i, x in enumerate(jb) if x == tag)
                            assert ib >= ia, (tag, ja, jb)
                    assert set(x for x in jb if x != "st") <= set(ja), (ja, jb)
                    assert join_state["lg"] == a.lg, (join_state["lg"], a.lg)
                    assert join_state["win"] == win[0]
                    a("s_nop 7\ns_nop 3\ns_branch K1_join")
                    return
            s = t // 36; ks = t % 36; acc = accs[s]
            if t == 72: mark(a, opt, 4)
            if t == 143: mark(a, opt, 5)
            if (t + 4) % 12 == 0 and t + 4 < 144:
                g = (t + 4) // 12
                a.wait(vm=[("w", 3*g), ("w", 3*g+1), ("w", 3*g+2)], lg="pub")
                a("s_barrier")
                fr = [frame_of[u] for u in range(3*g-4, 3*g-1) if u >= 0]
                if g == 1: fr = [18] + fr
                for f in fr:
                    if nextu[0] < 36:
                        pend.append((nextu[0], f)); nextu[0] += 1
            a.wait(lg=("f", t))
            b = FR + 4*(t % 4); x = X0 + 4*ks
            a(f"{M32} {r16(acc)}, {r4(b)}, {r4(x)}, " + (r16(acc) if ks else "0"))
            if t % 4 == 0: csm(b, ks == 0)
            if t + 4 < 144: wread(t + 4)
            if pend: dma_w(*pend.pop(0))
            for o in sched.get(t, []): o()
        a.wait(lg="pub")
        a("s_barrier")
        c1, c2 = corr_ops(accs[3], 64, 3*1024)
        for c, o in c1 + c2 + mish_ops(accs[3], f"s_add_u32 s60, s58, {3*4096}"): o()
        if opt.get("stamp"):
            a.wait(vm="all")
            stamp_out(a, 0, "s48", 32, "K1_end")
        a("s_endpgm")
    body("A")
    a("K1_typeB:")
    body("B")
    a("K1_end:\ns_endpgm")
    a.end_kernel("k1_kernel", 256, 96)
    a.launch("k1_kernel", 256, 512, 163840)
```

```python
from fw import *
from common import *
import numpy as np
M32 = "v_mfma_f32_32x32x16_bf16"; M16 = "v_mfma_f32_16x16x32_bf16"
def r4(x): return f"v[{x}:{x+3}]"
def r16(x): return f"v[{x}:{x+15}]"
UNIT = 20480; NRING = 8; NU = 36
T_C32, T_S32, T_C64, T_S64, T_TW1, T_TW2, T_END = 0, 2048, 4096, 12288, 20480, 36864, 53248
VIMG = 53248

def f2bf(x):
    u = np.ascontiguousarray(x, dtype=np.float32).view(np.uint32)
    return ((u + 0x7FFF + ((u >> 16) & 1)) >> 16).astype(np.uint16)
def fft_tables():
    lane = np.arange(64); n = lane & 31; h = lane >> 5
    i8 = np.arange(8); perm = (i8 & 3) + 8*(i8 >> 2)
    out = []
    def frag(N, lanebase, ks, fn):
        b = 16*ks + 4*h[:, None] + perm[None, :]
        return f2bf(fn(2*np.pi*(((lanebase + n)[:, None]*b) % N)/N)).tobytes()
    for fn in (np.cos, np.sin):
        for ks in range(2): out.append(frag(32, 0, ks, fn))
    for fn in (np.cos, np.sin):
        for p in range(2):
            for ks in range(4): out.append(frag(64, 32*p, ks, fn))
    j4 = np.arange(4)
    for tw in range(2):
        for p in range(2):
            for jg in range(4):
                r = 8*jg + 4*h[:, None] + j4[None, :]
                prod = (32*p + r)*n[:, None] if tw == 0 else (32*p + n[:, None])*r
                for fn in (np.cos, np.sin):
                    out.append(fn(2*np.pi*prod/2048).astype(np.float32).tobytes())
    b = b"".join(out); assert len(b) == T_END
    return np.frombuffer(b, np.uint32)

def gen_k2(a, opt):
    st_p = opt.get("st_p", "sc1"); st_v = opt.get("st_v", "sc1"); st_g = opt.get("st_g", "sc1")
    ld_w2 = opt.get("ld_w2", ""); ld_act = opt.get("ld_act", "")
    a.begin_kernel("k2_kernel")
    a("s_cmp_ge_u32 s2, 256\ns_cbranch_scc1 K2_end")
    if opt.get("stamp"): a("s_memrealtime s[90:91]")
    a(f"""s_load_dwordx2 s[24:25], s[0:1], 48
s_load_dwordx2 s[32:33], s[0:1], 72
v_lshrrev_b32 v1, 6, v0
v_and_b32 v0, 63, v0
v_readfirstlane_b32 s48, v1        ; wave
s_and_b32 s49, s2, 7               ; xcd
s_lshr_b32 s50, s2, 3              ; idx
s_mov_b32 s26, {F*D*2}
s_mov_b32 s27, 0x20000
s_mov_b32 s34, 0x10000000
s_mov_b32 s35, 0x20000
v_lshlrev_b32 v7, 4, v0            ; lane*16
s_cmp_lt_u32 s50, 8
s_cbranch_scc1 K2_fft
s_sub_u32 s50, s50, 8
s_lshr_b32 s51, s49, 1             ; split
s_and_b32 s52, s49, 1
s_lshl_b32 s52, s52, 3
s_and_b32 s59, s50, 7
s_add_u32 s52, s52, s59            ; rb
s_lshr_b32 s53, s50, 3             ; cb
s_cmp_lt_u32 s48, 4
s_cbranch_scc1 K2_comp""")
    a(f"""s_sub_u32 s54, s48, 4              ; lw
s_lshl_b32 s55, s52, 2
s_add_u32 s55, s55, s54            ; G
s_mul_i32 s55, s55, {144*2048}
s_mul_i32 s59, s51, {36*2048}
s_add_u32 s55, s55, s59
s_mul_i32 s56, s51, {1152*1152}
s_mul_i32 s59, s54, {8*1152}
s_add_u32 s56, s56, s59
s_mul_i32 s59, s53, 384
s_add_u32 s56, s56, s59
v_lshrrev_b32 v2, 3, v0            ; r
v_and_b32 v3, 7, v0
v_and_b32 v4, 6, v2
v_xor_b32 v3, v3, v4
v_mul_u32_u24 v2, 1152, v2
v_lshl_add_u32 v2, v3, 4, v2       ; w2 voffset
s_lshl_b32 s57, s54, 11
s_mul_i32 s58, s54, 3072
s_add_u32 s58, s58, 8192
s_waitcnt lgkmcnt(0)""")
    def load_unit(u):
        base = (u % NRING)*UNIT
        a(f"s_add_u32 m0, s57, {base}\ns_add_u32 s59, s55, {u*2048}")
        a.vmop(f"buffer_load_dwordx4 v7, s[32:35], s59 offen {ld_act} lds", ("u", u))
        a.vmop(f"buffer_load_dwordx4 v7, s[32:35], s59 offen offset:1024 {ld_act} lds", ("u", u))
        for j in range(3):
            a(f"s_add_u32 m0, s58, {base + j*1024}\ns_add_u32 s59, s56, {u*32*1152 + j*128}")
            a.vmop(f"buffer_load_dwordx4 v2, s[24:27], s59 offen {ld_w2} lds", ("u", u))
    a.vm = []
    for u in range(NRING): load_unit(u)
    for g in range(NU//2):
        a.wait(vm=[("u", 2*g), ("u", 2*g+1)])
        a("s_barrier")
        if g >= 1:
            for u in (2*g+6, 2*g+7):
                if u < NU: load_unit(u)
    a("s_endpgm")
    ACC = 16; FB = 112
    a(f"""K2_comp:
s_and_b32 s54, s48, 1
s_lshr_b32 s55, s48, 1             ; b : d tiles 6b..6b+5
v_lshrrev_b32 v8, 4, v0            ; g
v_and_b32 v9, 15, v0
v_lshlrev_b32 v10, 9, v8
v_lshl_add_u32 v10, v9, 4, v10
s_lshl_b32 s59, s54, 12
v_add_u32 v5, s59, v10
v_lshrrev_b32 v10, 2, v9           ; r
v_and_b32 v11, 1, v8
v_lshl_add_u32 v10, v11, 2, v10
v_lshrrev_b32 v11, 1, v8
v_mul_u32_u24 v11, 6144, v11
v_lshl_add_u32 v11, v10, 7, v11
v_and_b32 v12, 3, v0
v_lshl_add_u32 v11, v12, 3, v11
v_add_u32 v11, 8192, v11
v_lshrrev_b32 v10, 1, v10          ; swizzle
s_mul_i32 s56, s55, 6""")
    for k in range(4):
        a(f"""s_add_u32 s59, s56, {k}
s_and_b32 s60, s59, 3
s_lshr_b32 s59, s59, 2
s_lshl_b32 s59, s59, 10
v_xor_b32 v12, s60, v10
v_lshl_add_u32 v12, v12, 5, v11
v_add_u32 v{1+k}, s59, v12""")
    a(f"""s_mul_i32 s57, s51, {64*18*2048}
s_lshl_b32 s59, s52, 2
s_lshl_b32 s60, s54, 1
s_add_u32 s59, s59, s60
s_mul_i32 s59, s59, {18*2048}
s_add_u32 s57, s57, s59
s_mul_i32 s59, s53, 6
s_mul_i32 s60, s55, 3
s_add_u32 s59, s59, s60
s_lshl_b32 s59, s59, 10
s_add_u32 s57, s57, s59
s_add_u32 s57, s57, {WS_PART}
s_waitcnt lgkmcnt(0)""")
    a.vm = []; a.lg = []
    win = [0]
    def reads(u):
        base = (u % NRING)*UNIT
        fb = FB + (u % 2)*40
        ops = []
        def setwin():
            if not (win[0] <= base and base + 8192 - win[0] <= 65535):
                for k in range(5):
                    a(f"v_add_u32 v{1+k}, {(base - win[0]) & 0xffffffff:#x}, v{1+k}")
                win[0] = base
        def act(i):
            setwin()
            a.lgop(f"ds_read_b128 {r4(fb+4*i)}, v5 offset:{base - win[0] + (i//2)*2048 + (i%2)*256}", ("a", u))
        def w(j, t):
            d = fb + 16 + 4*j + 2*t
            a.lgop(f"ds_read_b64_tr_b16 v[{d}:{d+1}], v{1+j%4} offset:{base - win[0] + (j//4)*1024 + t*3072}", ("w", u, j))
        for i in range(4): ops.append(lambda i=i: act(i))
        for j in range(6):
            for t in range(2): ops.append(lambda j=j, t=t: w(j, t))
        return ops
    mark(a, opt, 0)
    a("s_barrier")
    mark(a, opt, 1)
    for o in reads(0): o()
    for u in range(NU):
        if u == 18: mark(a, opt, 2)
        fb = FB + (u % 2)*40
        nxt = reads(u+1) if u + 1 < NU else []
        bar = (u % 2 == 1 and u + 1 < NU)
        n = 0
        for j in range(6):
            for i in range(4):
                if i == 0:
                    if bar and j == 0: a.wait(lg="all")
                    else: a.wait(lg=[("a", u), ("w", u, j)])
                d = ACC + (i*6 + j)*4
                a(f"{M16} {r4(d)}, {r4(fb+16+4*j)}, {r4(fb+4*i)}, " + (r4(d) if u else "0"))
                if bar and n == 0: a("s_barrier")
                elif nxt: nxt.pop(0)()
                n += 1
    mark(a, opt, 3)
    for i in range(4):
        for jp in range(3):
            pk = FB + 4*((i*3 + jp) % 8)
            for t in range(2):
                d = ACC + (i*6 + 2*jp + t)*4
                a(f"v_cvt_pk_bf16_f32 v{pk+2*t}, v{d}, v{d+1}\nv_cvt_pk_bf16_f32 v{pk+2*t+1}, v{d+2}, v{d+3}")
            if jp == 0: a(f"s_add_u32 s59, s57, {i*18*1024}")
            a.vmop(f"buffer_store_dwordx4 {r4(pk)}, v7, s[32:35], s59 offen offset:{jp*1024} {st_p}", "st")
    if opt.get("stamp"):
        a.wait(vm="all")
        stamp_out(a, 1, "s48", 32, "K2_end")
    a("s_endpgm")
    PR, PI, PN = 16, 32, 48
    AR, AI = 64, 96
    C32, S32, C64, S64, WR, TWS = 128, 136, 144, 176, 208, 240
    a(f"""K2_fft:
s_lshl_b32 s51, s50, 3
s_add_u32 s51, s51, s49            ; f
s_and_b32 s52, s48, 3              ; wq
s_mov_b32 s53, s51                 ; group
s_mov_b32 s61, 0
s_mov_b32 s62, {VIMG}
s_cmp_lt_u32 s48, 4
s_cbranch_scc1 K2_fft_go
s_add_u32 s53, s51, 8
s_mov_b32 s62, {VIMG + 32768}
s_cmp_ge_u32 s51, 56
s_cbranch_scc1 K2_fft_go
s_mov_b32 s53, 0
s_mov_b32 s61, 2
s_mov_b32 s62, {VIMG}
s_lshl_b32 s59, s51, 2
s_add_u32 s59, s59, s52
s_cmp_eq_u32 s59, 0
s_cbranch_scc1 K2_fft_go
s_sub_u32 s59, s59, 1
v_and_b32 v2, 15, v0               ; m
v_lshrrev_b32 v3, 4, v0            ; g
s_waitcnt lgkmcnt(0)
K2_gt:
s_mul_i32 s60, s59, 3641
s_lshr_b32 s60, s60, 16
s_mul_i32 s63, s60, 18
s_sub_u32 s63, s59, s63            ; kk
s_lshl_b32 s64, s60, 4
v_add_u32 v4, s64, v2              ; d
v_cvt_f32_u32 v4, v4
v_mul_f32 v4, {fbits(1/576)}, v4   ; d/576
s_lshl_b32 s64, s63, 5
s_sub_u32 s65, s64, 287
s_cmp_lt_u32 s63, 9
s_cselect_b32 s64, s64, s65        ; j base
v_lshl_add_u32 v5, v3, 3, s64
v_cvt_f32_u32 v6, v5
v_mul_f32 v8, v6, v4
v_add_f32 v6, v4, v4""")
    for i in range(1, 4): a(f"v_add_f32 v{8+2*i}, v{6+2*i}, v6")
    for i in range(4): a(f"v_add_f32 v{9+2*i}, {fbits(0.25)}, v{8+2*i}")
    a(f"""v_cmp_eq_u32 vcc, 0, v5
v_mul_f32 v6, {fbits(288.0)}, v4
v_cndmask_b32 v9, v9, v6, vcc
v_mov_b32 v6, 0.5
v_cndmask_b32 v6, 1.0, v6, vcc""")
    for i in range(8): a(f"v_cos_f32 v{8+i}, v{8+i}")
    a("v_mul_f32 v8, v8, v6\nv_mul_f32 v9, v9, v6")
    for i in range(4): a(f"v_cvt_pk_bf16_f32 v{16+i}, v{8+2*i}, v{9+2*i}")
    a(f"""s_lshl_b32 s60, s59, 10
s_add_u32 s60, s60, {WS_GT}
buffer_store_dwordx4 v[16:19], v7, s[32:35], s60 offen {st_g}
s_add_u32 s59, s59, 223
s_cmp_lt_u32 s59, 324
s_cbranch_scc1 K2_gt
s_endpgm
K2_fft_go:
s_getpc_b64 s[28:29]
s_add_u32 s28, s28, fft_tab@rel32@lo+4
s_addc_u32 s29, s29, fft_tab@rel32@hi+12
s_mov_b32 s30, {T_END}
s_mov_b32 s31, 0x20000
s_lshl_b32 s54, s53, 2
s_add_u32 s54, s54, s52            ; sigma
s_lshl_b32 s55, s54, 1
s_sub_u32 s59, s55, 287
s_cmp_lt_u32 s54, 144
s_cselect_b32 s56, s55, s59        ; j
s_lshl_b32 s57, s54, 13
s_add_u32 s57, s57, {WS_U}
s_add_u32 s58, s57, 4096
s_cmp_lg_u32 s54, 0
s_cbranch_scc1 K2_fft_ns
s_max_u32 s61, s61, 1
s_cmp_eq_u32 s61, 2
s_cselect_b32 s57, s58, s57
s_cselect_b32 s56, 288, s56
s_mov_b32 s58, 0x10000000
K2_fft_ns:
s_lshl_b32 s56, s56, 13
s_add_u32 s56, s56, {WS_WT}
v_and_b32 v2, 31, v0               ; n
v_lshrrev_b32 v3, 5, v0            ; h
v_lshlrev_b32 v4, 4, v3
v_lshl_add_u32 v4, v2, 6, v4       ; U voffset
s_waitcnt lgkmcnt(0)""")
    a.vm = []; a.lg = []
    for p in range(2):
        for ks in range(2):
            a.vmop(f"buffer_load_dwordx4 {r4(PR+8*p+4*ks)}, v4, s[32:35], s57 offen offset:{p*2048+ks*32}", "z")
            a.vmop(f"buffer_load_dwordx4 {r4(PI+8*p+4*ks)}, v4, s[32:35], s58 offen offset:{p*2048+ks*32}", "z")
    a("s_cmp_ge_u32 s48, 4\ns_cbranch_scc1 K2_fft_notab")
    a("s_lshl_b32 s59, s48, 10")
    for k in range(13):
        a("s_mov_b32 m0, s59")
        a("s_nop 0")
        a("buffer_load_dwordx4 v7, s[28:31], s59 offen lds")
        a("s_add_u32 s59, s59, 4096")
    a("K2_fft_notab:")
    a("s_add_u32 s59, s56, 4096")
    for k in range(8):
        a.vmop(f"buffer_load_dwordx4 {r4(WR+4*k)}, v7, s[32:35], s{56 if k < 4 else 59} offen offset:{(k%4)*1024}", "w")
    a("s_waitcnt vmcnt(8)"); a.vm = ["w"]*8
    a("s_barrier")
    for k in range(4): a.lgop(f"ds_read_b128 {r4(C32+4*k)}, v7 offset:{k*1024}", "t32")
    for k in range(16): a(f"v_xor_b32 v{PN+k}, 0x80008000, v{PR+k}")
    def twread(tw, k):
        s = TWS + 8*(k % 2)
        off = (T_TW1 if tw == 0 else T_TW2) + k*2048
        a.lgop(f"ds_read_b128 {r4(s)}, v7 offset:{off}", ("tw", k))
        a.lgop(f"ds_read_b128 {r4(s+4)}, v7 offset:{off+1024}", ("tw", k))
    twread(0, 0); twread(0, 1)
    a.wait(lg="t32")
    def stage_small(X1, X2, X3, X4):
        for p in range(2):
            for (D, Xa, Xb) in ((AR, X1, X2), (AI, X3, X4)):
                d = D + 16*p
                for ks in range(2):
                    a(f"{M32} {r16(d)}, {r4(Xa+8*p+4*ks)}, {r4(C32+4*ks)}, " + (r16(d) if ks else "0"))
                    a(f"{M32} {r16(d)}, {r4(Xb+8*p+4*ks)}, {r4(S32+4*ks)}, {r16(d)}")
    def stage_big(X1, X2, X3, X4, dataA):
        for p in range(2):
            for (D, Xa, Xb) in ((AR, X1, X2), (AI, X3, X4)):
                d = D + 16*p
                for ks in range(4):
                    for (X, Tb, first) in ((Xa, C64, ks == 0), (Xb, S64, False)):
                        x, tb = r4(X+4*ks), r4(Tb+16*p+4*ks)
                        A_, B_ = (x, tb) if dataA else (tb, x)
                        a(f"{M32} {r16(d)}, {A_}, {B_}, " + ("0" if first else r16(d)))
    def cmul4(k, cr, sr, sgn):
        n1, n2 = ("-", "") if sgn > 0 else ("", "-")
        for e in range(4): a(f"v_mul_f32 v{8+e}, v{AR+4*k+e}, v{cr+e}")
        for e in range(4): a(f"v_fma_f32 v{8+e}, {n1}v{AI+4*k+e}, v{sr+e}, v{8+e}")
        for e in range(4): a(f"v_mul_f32 v{AI+4*k+e}, v{AI+4*k+e}, v{cr+e}")
        for e in range(4): a(f"v_fma_f32 v{AI+4*k+e}, {n2}v{AR+4*k+e}, v{sr+e}, v{AI+4*k+e}")
    def pack4(k, negre):
        for e in range(2):
            a(f"v_cvt_pk_bf16_f32 v{PR+2*k+e}, v{8+2*e}, v{9+2*e}")
            a(f"v_cvt_pk_bf16_f32 v{PI+2*k+e}, v{AI+4*k+2*e}, v{AI+4*k+2*e+1}")
        for e in range(2):
            a(f"v_xor_b32 v{PN+2*k+e}, 0x80008000, v{(PR if negre else PI)+2*k+e}")
    stage_small(PR, PI, PI, PN)
    for k in range(16): a.lgop(f"ds_read_b128 {r4(C64+4*k)}, v7 offset:{T_C64+k*1024}", "t64")
    for k in range(8):
        a.wait(lg=("tw", k))
        s = TWS + 8*(k % 2)
        cmul4(k, s, s+4, -1)
        if k + 2 < 8: twread(0, k+2)
        pack4(k, True)
    a.wait(lg="t64")
    twread(1, 0); twread(1, 1)
    stage_big(PR, PI, PI, PN, False)
    a.wait(vm="w")
    for k in range(8):
        for e in range(4):
            a(f"v_lshlrev_b32 v{12+e}, 16, v{WR+4*k+e}")
            a(f"v_and_b32 v{WR+4*k+e}, 0xffff0000, v{WR+4*k+e}")
        cmul4(k, 12, WR+4*k, +1)
        pack4(k, False)
    stage_big(PR, PN, PI, PR, True)
    for k in range(8):
        a.wait(lg=("tw", k))
        s = TWS + 8*(k % 2)
        cmul4(k, s, s+4, +1)
        if k + 2 < 8: twread(1, k+2)
        pack4(k, False)
    stage_small(PR, PN, PI, PR)
    a(f"""v_lshlrev_b32 v4, 11, v3
v_lshl_add_u32 v4, v2, 4, v4
s_lshl_b32 s59, s52, 2
s_add_u32 s59, s59, s62
v_add_u32 v4, s59, v4
s_cmp_lg_u32 s61, 0
s_cbranch_scc1 K2_fft_spw""")
    off = lambda p, j: (32*p + (j & 3) + 8*(j >> 2))*512
    for p in range(2):
        for j in range(16):
            a(f"v_cvt_pk_bf16_f32 v{8+j%8}, v{AR+16*p+j}, v{AI+16*p+j}")
            a(f"ds_write_b32 v4, v{8+j%8} offset:{off(p, j)}")
    a("s_branch K2_fft_out\nK2_fft_spw:\ns_sub_u32 s59, s61, 1\ns_lshl_b32 s59, s59, 1\nv_add_u32 v4, s59, v4")
    for p in range(2):
        for j in range(16):
            a(f"v_cvt_pk_bf16_f32 v{8+j%8}, v{AR+16*p+j}, v{AR+16*p+j}")
            a(f"ds_write_b16 v4, v{8+j%8} offset:{off(p, j)}")
    a(f"""K2_fft_out:
s_waitcnt lgkmcnt(0)
s_barrier
s_cmp_eq_u32 s61, 2
s_cbranch_scc1 K2_end
s_lshl_b32 s59, s52, 13
s_add_u32 s59, s59, s62
v_add_u32 v4, s59, v7
v_mul_u32_u24 v5, 36864, v3
v_lshl_add_u32 v5, v2, 4, v5
s_mul_i32 s59, s52, {16*36864}
s_lshl_b32 s60, s53, 9
s_add_u32 s59, s59, s60
s_add_u32 s59, s59, {WS_V}""")
    a.lg = []
    for k in range(8): a.lgop(f"ds_read_b128 {r4(16+4*k)}, v4 offset:{k*1024}", ("o", k))
    for k in range(8):
        a.wait(lg=("o", k))
        a(f"buffer_store_dwordx4 {r4(16+4*k)}, v5, s[32:35], s59 offen {st_v}")
        if k < 7: a(f"s_add_u32 s59, s59, {2*36864}")
    if opt.get("stamp"):
        a("s_waitcnt vmcnt(0)")
        for k in range(6): a(f"s_mov_b32 s{84+k}, 0")
        mark(a, opt, 5)
        stamp_out(a, 1, "s48", 32, "K2_end")
    a("K2_end:\ns_endpgm")
    a.end_kernel("k2_kernel", 256, 96)
    a.launch("k2_kernel", 256, 512, 163840)
    tab = fft_tables()
    t = [".p2align 8", ".type fft_tab,@object", "fft_tab:"]
    for i in range(0, len(tab), 8):
        t.append(".long " + ",".join("0x%x" % x for x in tab[i:i+8]))
    a.tail += t
```

```python
from fw import *
from common import *
M16 = "v_mfma_f32_16x16x32_bf16"
def r4(x): return f"v[{x}:{x+3}]"

def gen_k3(a, opt):
    st_o = opt.get("st_o", "")
    a.begin_kernel("k3_kernel")
    a("s_cmp_ge_u32 s2, 192\ns_cbranch_scc1 K3_end")
    if opt.get("stamp"): a("s_memrealtime s[90:91]")
    GB = 32
    PB = 104
    XB = 136
    VB = 144
    ACC = 16
    a(f"""s_load_dwordx2 s[24:25], s[0:1], 0
s_load_dwordx2 s[28:29], s[0:1], 56
s_load_dwordx2 s[32:33], s[0:1], 72
v_lshrrev_b32 v1, 6, v0
v_and_b32 v0, 63, v0
v_readfirstlane_b32 s48, v1        ; wave
s_and_b32 s49, s2, 7
s_lshl_b32 s49, s49, 3
s_lshr_b32 s50, s2, 3
s_and_b32 s59, s50, 7
s_add_u32 s49, s49, s59            ; G
s_lshr_b32 s50, s50, 3             ; third
s_cmp_ge_u32 s48, 3
s_cselect_b32 s51, 1, 0            ; par
s_mul_i32 s59, s51, 3
s_sub_u32 s52, s48, s59
s_mul_i32 s59, s50, 3
s_add_u32 s52, s52, s59            ; dp (0..8)
s_mov_b32 s26, {T*D*2}
s_mov_b32 s27, 0x20000
s_mov_b32 s30, {T*D*2}
s_mov_b32 s31, 0x20000
s_mov_b32 s34, 0x10000000
s_mov_b32 s35, 0x20000
v_lshlrev_b32 v7, 4, v0
s_mul_i32 s53, s49, 36864
s_mul_i32 s59, s48, 6144
s_add_u32 s54, s53, s59
s_add_u32 s54, s54, {WS_V}
s_mov_b32 m0, s59
s_mul_i32 s55, s52, {2*18*1024}
s_mul_i32 s60, s51, {9*1024}
s_add_u32 s55, s55, s60
s_add_u32 s55, s55, {WS_GT}
s_mul_i32 s60, s51, 9
s_add_u32 s56, s52, s60
s_lshl_b32 s57, s56, 10
s_add_u32 s57, s57, s53
s_add_u32 s57, s57, {WS_PART}
v_and_b32 v2, 15, v0               ; n16
v_lshrrev_b32 v3, 4, v0            ; g
v_mul_u32_u24 v4, 73728, v2
v_and_b32 v5, 1, v3
v_lshl_add_u32 v4, v5, 5, v4
v_lshrrev_b32 v5, 1, v3
v_lshl_add_u32 v4, v5, 4, v4
s_mul_i32 s58, s49, 1152
s_lshl_b32 s60, s56, 6
s_add_u32 s58, s58, s60
s_add_u32 s61, s58, {16*73728}
s_waitcnt lgkmcnt(0)""")
    for k in range(4):
        a.vmop(f"buffer_load_dwordx4 v7, s[32:35], s54 offen offset:{k*1024} lds", "v")
    a("s_add_u32 m0, m0, 4096\ns_add_u32 s54, s54, 4096")
    for k in range(2):
        a.vmop(f"buffer_load_dwordx4 v7, s[32:35], s54 offen offset:{k*1024} lds", "v")
    for kk in range(9):
        for t in range(2):
            o = t*18*1024 + kk*1024
            a(f"s_add_u32 s59, s55, {o & ~4095}")
            a.vmop(f"buffer_load_dwordx4 {r4(GB+8*kk+4*t)}, v7, s[32:35], s59 offen offset:{o & 4095}", ("g", kk))
    for s in range(4):
        for th in range(2):
            a(f"s_add_u32 s59, s57, {s*64*18*2048 + th*18*1024}")
            a.vmop(f"buffer_load_dwordx4 {r4(PB+8*s+4*th)}, v7, s[32:35], s59 offen", "p")
    a.vmop(f"buffer_load_dwordx4 {r4(XB)}, v4, s[24:27], s58 offen", "x")
    a.vmop(f"buffer_load_dwordx4 {r4(XB+4)}, v4, s[24:27], s61 offen", "x")
    a(f"""v_lshlrev_b32 v5, 9, v3
v_lshl_add_u32 v5, v2, 4, v5
s_mul_i32 s59, s51, {9*2048}
v_add_u32 v5, s59, v5              ; V read base
s_lshl_b32 s59, s48, 12
s_add_u32 s59, s59, 36864
v_add_u32 v6, s59, v7              ; exchange write addr
s_add_u32 s60, s48, 3
s_sub_u32 s62, s48, 3
s_cmp_ge_u32 s48, 3
s_cselect_b32 s60, s62, s60
s_lshl_b32 s60, s60, 12
s_add_u32 s60, s60, 36864
v_add_u32 v8, s60, v7              ; exchange read addr
s_cselect_b32 s62, -1.0, 1.0""".replace("s_lshl_b32 s60, s60, 12\ns_add_u32 s60, s60, 36864\nv_add_u32 v8, s60, v7              ; exchange read addr\ns_cselect_b32 s62, -1.0, 1.0", "s_cselect_b32 s62, -1.0, 1.0\ns_lshl_b32 s60, s60, 12\ns_add_u32 s60, s60, 36864\nv_add_u32 v8, s60, v7              ; exchange read addr"))
    a.wait(vm="v")
    a("s_barrier")
    for kk in range(9):
        for th in range(2):
            a.lgop(f"ds_read_b128 {r4(VB+8*kk+4*th)}, v5 offset:{kk*2048+th*256}", ("v", kk))
    for kk in range(9):
        a.wait(vm=("g", kk), lg=("v", kk))
        for th in range(2):
            for t in range(2):
                d = ACC + 8*th + 4*t
                a(f"{M16} {r4(d)}, {r4(GB+8*kk+4*t)}, {r4(VB+8*kk+4*th)}, " + (r4(d) if kk else "0"))
    for k in range(4): a.lgop(f"ds_write_b128 v6, {r4(ACC+4*k)} offset:{k*1024}", "e")
    a.wait(vm="p")
    for th in range(2):
        for e in range(4):
            lo, hi = 32 + 8*th + 2*e, 33 + 8*th + 2*e
            for s in range(4):
                src = PB + 8*s + 4*th + e
                if s == 0:
                    a(f"v_lshlrev_b32 v{lo}, 16, v{src}\nv_and_b32 v{hi}, 0xffff0000, v{src}")
                else:
                    a(f"v_lshlrev_b32 v9, 16, v{src}\nv_and_b32 v10, 0xffff0000, v{src}\nv_add_f32 v{lo}, v{lo}, v9\nv_add_f32 v{hi}, v{hi}, v10")
    a.wait(lg="e")
    a("s_barrier")
    for k in range(4): a.lgop(f"ds_read_b128 {r4(48+4*k)}, v8 offset:{k*1024}", "e2")
    a(f"s_mov_b32 s63, {fbits(2/(576*2048))}\ns_mov_b32 s64, {fbits(LN2)}")
    a.wait(lg="e2")
    for k in range(16):
        a(f"v_fma_f32 v{48+k}, v{ACC+k}, s62, v{48+k}")
    for k in range(16):
        a(f"v_mul_f32 v{48+k}, s63, v{48+k}")
    for k in range(16):
        a(f"v_fma_f32 v{48+k}, v{32+k}, s64, v{48+k}")
    for th in range(2):
        for e in range(4):
            a(f"v_permlane16_swap_b32 v{48+8*th+e}, v{52+8*th+e}")
    a.wait(vm="x")
    for th in range(2):
        for e in range(4):
            src = XB + 4*th + e
            a(f"v_lshlrev_b32 v9, 16, v{src}\nv_and_b32 v10, 0xffff0000, v{src}")
            a(f"v_add_f32 v9, v9, v{48+8*th+2*e}\nv_add_f32 v10, v10, v{49+8*th+2*e}")
            a(f"v_cvt_pk_bf16_f32 v{src}, v9, v10")
        a.vmop(f"buffer_store_dwordx4 {r4(XB+4*th)}, v4, s[28:31], s{58 if th == 0 else 61} offen {st_o}", "o")
    if opt.get("stamp"):
        a.wait(vm="all")
        for k in range(6): a(f"s_mov_b32 s{84+k}, 0")
        stamp_out(a, 2, "s48", 32, "K3_end")
    a("K3_end:\ns_endpgm")
    a.end_kernel("k3_kernel", 216, 96)
    a.launch("k3_kernel", 192, 384, 36864 + 6*4096)
```

```python
import sys, json
from fw import *
from common import *
from k1 import gen_k1
def build(path, opt):
    a = Asm()
    ks = opt.get("kernels", "123")
    if "1" in ks: gen_k1(a, opt)
    if "2" in ks:
        from k2 import gen_k2
        gen_k2(a, opt)
    if "3" in ks:
        from k3 import gen_k3
        gen_k3(a, opt)
    if opt.get('cyc'): a.lines = [l.replace('s_memrealtime', 's_memtime') for l in a.lines]
    for pat in opt.get('drop', []): a.lines = [l for l in a.lines if pat not in l]
    a.write(path)
if __name__ == "__main__":
    opt = json.loads(sys.argv[2]) if len(sys.argv) > 2 else {}
    build(sys.argv[1], opt)
```

```python
from fw import *
from common import *

XBUF = lambda c: (c % 7)*16384
F_OFF = 131072
E_OFF = F_OFF + 20480
ESTR = 1168
CS_OFF = 131072
BI_OFF = 139264
STAT = 159744
SCR = STAT + 2048
X0 = 112
ACCX, ACCY, ACCZ = 16, 32, 48
FR = 80
TMP = 96; PK = 104
M32 = "v_mfma_f32_32x32x16_bf16"; M16 = "v_mfma_f32_16x16x32_bf16"
CA = 8
SEL = 12
EA = 68
TF = 72; CF = 76

def r4(x): return f"v[{x}:{x+3}]"
def r16(x): return f"v[{x}:{x+15}]"

def gen_k1(a, opt):
    st_act = opt.get("st_act", "sc1")
    st_u = opt.get("st_u", "")
    st_wt = opt.get("st_wt", "sc1")
    ld_x = opt.get("ld_x", "")
    ld_w = opt.get("ld_w", "")
    a.begin_kernel("k1_kernel")
    a("s_cmp_ge_u32 s2, 256\ns_cbranch_scc1 K1_end")
    if opt.get("stamp"): a("s_memrealtime s[90:91]")
    a("""s_load_dwordx8 s[4:11], s[0:1], 0
s_load_dwordx8 s[12:19], s[0:1], 32
s_load_dwordx2 s[32:33], s[0:1], 72
s_lshr_b32 s60, s2, 3              ; idx""")
    if opt.get("codepf", 1):
        a("""s_getpc_b64 s[80:81]
s_mov_b32 s82, 0x10000
s_mov_b32 s83, 0x20000
v_lshrrev_b32 v1, 5, v0
v_lshlrev_b32 v1, 7, v1
s_lshl_b32 s59, s60, 11""")
        a.vmop("buffer_load_dword v34, v1, s[80:83], s59 offen", "pf")
    a(f"""v_lshrrev_b32 v1, 6, v0
v_mov_b32 v36, v0
v_readfirstlane_b32 s48, v1        ; wave
v_and_b32 v0, 63, v0               ; lane
s_and_b32 s49, s2, 1
s_lshl_b32 s49, s49, 3
s_and_b32 s61, s60, 7
s_add_u32 s49, s49, s61            ; rb
s_mov_b32 s22, 73728
v_lshrrev_b32 v40, 3, v0           ; r
v_lshrrev_b32 v42, 4, v0
v_xor_b32 v42, v42, v0
v_and_b32 v42, 7, v42
v_lshlrev_b32 v42, 4, v42
v_mad_u32_u24 v32, v40, s22, v42
s_lshl_b32 s53, s49, 2
s_lshr_b32 s59, s48, 1
s_add_u32 s53, s53, s59
s_mul_i32 s53, s53, 1152
s_and_b32 s59, s48, 1
v_xor_b32 v33, 64, v32
s_mul_i32 s59, s59, {16*73728}
v_add_u32 v33, {8*73728-1024}, v33
s_add_u32 s53, s53, s59            ; x soffset base
s_lshr_b32 s3, s60, 3              ; cq = cg&3
s_and_b32 s71, s3, {opt.get("rotmask", 1)}
s_mul_i32 s71, s71, {opt.get("rot", 4)}      ; chunk rotation
s_lshl_b32 s20, s71, 7
s_add_u32 s20, s20, s53            ; running x soffset
s_add_u32 s21, s53, 1152
s_lshl_b32 s57, s48, 11            ; wave*2048
s_mov_b32 s26, {T*D*2}
s_mov_b32 s27, 0x20000
s_mov_b32 m0, s57
s_waitcnt lgkmcnt(0)
s_mov_b64 s[24:25], s[4:5]""".replace("s_lshl_b32 s20, s71, 31", "s_mov_b32 s20, 0"))
    def dma_x(c):
        if c: a(f"s_add_u32 m0, s57, {XBUF(c)}\ns_add_u32 s20, s20, 128\ns_cmp_eq_u32 s20, s21\ns_cselect_b32 s20, s53, s20")
        a.vmop(f"buffer_load_dwordx4 v32, s[24:27], s20 offen {ld_x} lds", ("x", c))
        a.vmop(f"buffer_load_dwordx4 v33, s[24:27], s20 offen offset:1024 {ld_x} lds", ("x", c))
    n0 = opt.get("k1_n0", 2); nfirst = opt.get("k1_first", 4)
    if opt.get("m2"): mark(a, opt, 0)
    for c in range(n0): dma_x(c)
    if opt.get("m2"):
        mark(a, opt, 1)
        a("s_waitcnt vmcnt(4)"); mark(a, opt, 2)
        a("s_waitcnt vmcnt(2)"); mark(a, opt, 3)
        a("s_waitcnt vmcnt(0)"); mark(a, opt, 4)
    a(f"""s_bfe_u32 s50, s2, 0x20001
s_lshl_b32 s50, s50, 2
s_add_u32 s50, s50, s3             ; cg
s_mul_i32 s63, s50, 576
s_and_b32 s64, s50, 1
s_lshl_b32 s59, s64, 6
s_add_u32 s54, s63, s59            ; first full slab (bytes)""")
    spf = opt.get("spf", 0)
    if spf:
        a(f"""s_lshl_b32 s59, s49, 3
s_add_u32 s59, s59, s48
s_mul_i32 s59, s59, 9
s_lshr_b32 s59, s59, 1
s_mul_i32 s59, s59, 9216
s_add_u32 s59, s59, s54
s_add_u32 s96, s12, s59
s_addc_u32 s97, s13, 0""")
        for sl in range(spf):
            for r in range(5):
                a(f"s_load_dword s95, s[96:97], {r*9216 + sl*128}")
    XV = X0; XP = X0 + 32
    tlb = ""
    span = 64 << opt.get("tlbsh", 20)
    for reg, size in ((12, D*F*2), (32, WS_END), (16, D*F*2), (6, T*578), (8, T*578), (14, F*2), (18, T*D*2)):
        tlb += f"s_mov_b64 s[80:81], s[{reg}:{reg+1}]\ns_mov_b32 s82, {size}\n"
        for o in range(0, size, span):
            tlb += f"s_mov_b32 s59, {o}\nbuffer_load_dword v16, s[80:83], s59 offen lds\n"
    a(f"""s_and_b32 s51, s48, 3              ; q
s_lshr_b32 s52, s48, 2             ; type
v_and_b32 v38, 31, v0              ; n
v_lshrrev_b32 v39, 5, v0           ; h
v_lshlrev_b32 v7, 4, v0            ; lane*16
s_cmp_lt_u32 s50, 9
s_cselect_b32 s75, 1.0, -1.0       ; sgn
s_cmp_ge_u32 s48, 5
s_cbranch_scc1 K1_egen
s_lshl_b32 s61, s50, 5
s_sub_u32 s60, s61, 287
s_cmp_lt_u32 s50, 9
s_cselect_b32 s59, s61, s60        ; jb
s_cselect_b32 s60, 0, 2
v_and_b32 v16, 30, v38
v_add_u32 v16, s59, v16            ; j
v_and_or_b32 v17, v38, 1, s60      ; quarter turns (+2: sign of odd tiles)
v_add_u32 v18, s61, v38            ; c
v_cmp_eq_u32 vcc, 1, v18
v_mov_b32 v19, 288
v_lshrrev_b32 v18, 5, v36          ; seg
v_mov_b32 v20, -1
v_cndmask_b32 v16, v16, v19, vcc
v_cndmask_b32_e64 v17, v17, 0, vcc
v_lshlrev_b32 v19, 11, v18
v_lshl_add_u32 v19, v38, 4, v19
v_add_u32 v19, {F_OFF}, v19
s_movk_i32 s70, 512
s_branch K1_gen
K1_tlb:
v_lshlrev_b32 v16, {opt.get("tlbsh", 20)}, v0
s_mov_b32 m0, {SCR}
s_mov_b32 s83, 0x20000
{tlb}
s_branch K1_gend
K1_egen:
s_cmp_eq_u32 s48, 7
s_cbranch_scc1 {"K1_tlb" if opt.get("tlb", 0) else "K1_gend"}
v_subrev_u32 v18, 320, v36
v_mul_u32_u24 v21, 3641, v18
v_lshrrev_b32 v21, 16, v21         ; row
v_mul_u32_u24 v19, 18, v21
v_sub_u32 v18, v18, v19            ; seg
v_mul_u32_u24 v19, {ESTR}, v21
v_lshl_add_u32 v19, v18, 6, v19
v_add_u32 v19, {E_OFF}, v19
s_lshl_b32 s59, s50, 2
s_add_u32 s59, s59, 225
v_and_b32 v16, 2, v21
v_add_u32 v16, s59, v16            ; j = 225 + 4cg + (row&2)
v_cmp_gt_u32 vcc, 4, v21
v_and_b32 v17, 1, v21
s_movk_i32 s70, 16
v_cndmask_b32 v16, 0, v16, vcc     ; row 4: ones
v_cmp_ne_u32 vcc, 5, v21
s_nop 1
v_cndmask_b32_e64 v20, 0, -1, vcc  ; row 5: zeros
K1_gen:
s_lshl_b32 s59, s71, 6
v_lshl_add_u32 v18, v18, 5, s59    ; d0
v_cvt_f32_u32 v16, v16
v_cvt_f32_u32 v17, v17
v_cvt_f32_u32 v18, v18
v_mul_f32 v16, {fbits(1/576)}, v16
v_mul_f32 v17, {fbits(0.25)}, v17
v_fma_f32 v17, v18, v16, v17
v_fract_f32 v17, v17
v_add_f32 v18, v17, v16
v_cos_f32 v{XV}, v17
v_cos_f32 v{XV+1}, v18
v_cos_f32 v16, v16
v_and_b32 v{XV}, v20, v{XV}
v_and_b32 v{XV+1}, v20, v{XV+1}
v_add_f32 v16, v16, v16""".replace("s_lshl_b32 s59, s71, 31", "s_mov_b32 s59, 0"))
    for k in range(2, 32):
        a(f"v_fma_f32 v{XV+k}, v16, v{XV+k-1}, -v{XV+k-2}")
        if k % 2 == 0: a(f"v_cvt_pk_bf16_f32 v{XP+k//2-1}, v{XV+k-2}, v{XV+k-1}")
        if k % 8 == 0:
            a(f"ds_write_b128 v19, {r4(XP + k//2 - 4)}\nv_add_u32 v19, s70, v19")
    a(f"v_cvt_pk_bf16_f32 v{XP+15}, v{XV+30}, v{XV+31}\nds_write_b128 v19, {r4(XP+12)}")
    a("K1_gend:")
    a.lg.append("fgen")
    for c in range(n0, nfirst): dma_x(c)
    a(f"""s_lshl_b32 s59, s51, 12
v_lshl_add_u32 v22, v38, 7, s59
v_bfe_u32 v23, v38, 1, 3
v_xor_b32 v23, v23, v39
s_lshl_b32 s59, s51, 1
v_xor_b32 v23, s59, v23
v_lshl_add_u32 v96, v23, 4, v22
v_xor_b32 v97, 32, v96
v_xor_b32 v98, 64, v96
v_xor_b32 v99, 0x60, v96
v_lshrrev_b32 v26, 2, v0
v_xor_b32 v26, v26, v0
v_bfe_u32 v26, v26, 2, 1           ; ((l>>4)^(l>>2))&1
v_mov_b32 v37, 0
v_mov_b32 v35, 0""")
    late_setup = f"""v_bfe_u32 v16, v0, 2, 2            ; r
v_lshl_add_u32 v17, v39, 3, v16    ; 8h + r
v_bfe_u32 v18, v0, 4, 1
v_lshlrev_b32 v18, 5, v18
v_and_b32 v19, 3, v0
v_lshl_add_u32 v18, v19, 3, v18
v_lshrrev_b32 v16, 1, v16
v_xor_b32 v16, s52, v16
v_lshl_add_u32 v18, v16, 6, v18
v_lshl_add_u32 v21, v17, 7, v18
s_lshl_b32 s59, s51, 11
v_add_u32 v1, s59, v21
v_xor_b32 v2, 0x800, v1
v_xor_b32 v3, 0x1000, v1
v_xor_b32 v4, 0x1800, v1
v_add_u32 v27, -1, v26
v_and_b32 v{SEL}, 0x3f803f80, v27
v_mov_b32 v{SEL+1}, v{SEL}
v_mov_b32 v{SEL+2}, v{SEL}
v_mov_b32 v{SEL+3}, v{SEL}"""
    w_setup = f"""v_lshrrev_b32 v40, 3, v0
v_mul_u32_u24 v5, 9216, v40
v_lshlrev_b32 v42, 1, v40
v_and_b32 v42, 4, v42
v_and_b32 v41, 7, v0
v_xor_b32 v42, v42, v41
v_lshl_add_u32 v5, v42, 4, v5      ; W voffset
s_lshl_b32 s56, s48, 10
s_mul_i32 s59, s48, {8*9216}
s_add_u32 s54, s54, s59
s_mul_i32 s72, s71, {64*9216}
s_add_u32 s36, s54, s72
s_add_u32 s99, s54, {576*9216}
s_add_u32 s37, s36, {64*9216}
s_cmp_eq_u32 s37, s99
s_cselect_b32 s37, s54, s37
s_add_u32 s38, s37, {64*9216}
s_cmp_eq_u32 s38, s99
s_cselect_b32 s38, s54, s38
s_add_u32 s39, s38, {64*9216}
s_cmp_eq_u32 s39, s99
s_cselect_b32 s39, s54, s39
s_add_u32 s40, s39, {64*9216}
s_cmp_eq_u32 s40, s99
s_cselect_b32 s40, s54, s40
s_add_u32 s41, s40, {64*9216}
s_cmp_eq_u32 s41, s99
s_cselect_b32 s41, s54, s41
s_add_u32 s42, s41, {64*9216}
s_cmp_eq_u32 s42, s99
s_cselect_b32 s42, s54, s42
s_add_u32 s43, s42, {64*9216}
s_cmp_eq_u32 s43, s99
s_cselect_b32 s43, s54, s43
s_add_u32 s44, s43, {64*9216}
s_cmp_eq_u32 s44, s99
s_cselect_b32 s44, s54, s44
s_xor_b32 s60, s64, 1
s_lshl_b32 s60, s60, 9
s_add_u32 s55, s63, s60
s_mul_i32 s59, s51, {16*9216}
s_add_u32 s55, s55, s59
s_add_u32 s101, s55, {576*9216}
s_mul_i32 s59, s52, {64*9216}
s_add_u32 s100, s55, s59
s_add_u32 s100, s100, s72
s_and_b32 s45, s49, {opt.get("srotmask", 3)}
s_mul_i32 s45, s45, {opt.get("srot", 1)}
s_mov_b32 s30, {D*F*2}
s_mov_b32 s31, 0x20000"""
    a("s_cmp_lg_u32 s52, 0\ns_cbranch_scc1 K1_typeB")
    vm0 = list(a.vm); lg0 = list(a.lg)
    frame_of = {}
    issued = []
    def dma_w(u, fr, mid=None):
        frame_of[u] = fr
        issued.append(u)
        if u % 9 == 0 and u <= 36:
            if u < 36: a(f"s_add_u32 s23, s45, {u//9}\ns_and_b32 s23, s23, 3\ns_lshl_b32 s23, s23, 7\ns_add_u32 s28, s12, s23\ns_addc_u32 s29, s13, 0")
            else: a("s_mov_b64 s[28:29], s[12:13]")
        if u < 36:
            a(f"s_add_u32 m0, s56, {fr*8192}")
            if mid: mid()
            a.vmop(f"buffer_load_dwordx4 v5, s[28:31], s{36 + u % 9} offen {ld_w} lds", ("w", u))
        else:
            a(f"s_add_u32 m0, s56, {fr*8192}")
            if mid: mid()
            a.vmop(f"buffer_load_dwordx4 v{EA}, s[28:31], s100 offen {ld_w} lds", ("w", u))
            a(f"s_add_u32 s100, s100, {128*9216}\ns_sub_u32 s23, s100, {576*9216}\ns_cmp_ge_u32 s100, s101\ns_cselect_b32 s100, s23, s100")
    def touch_w1(l0, nl, tmp):
        a(f"""v_min_u32 v{tmp}, {9*nl-1}, v0
v_mul_u32_u24 v{tmp+1}, 7282, v{tmp}
v_lshrrev_b32 v{tmp+1}, 16, v{tmp+1}
v_mul_u32_u24 v{tmp+2}, 9, v{tmp+1}
v_sub_u32 v{tmp}, v{tmp}, v{tmp+2}
v_mul_u32_u24 v{tmp}, 9216, v{tmp}
v_add_u32 v{tmp+1}, s64, v{tmp+1}
v_add_u32 v{tmp+1}, {l0}, v{tmp+1}
v_cmp_eq_u32 s[94:95], 5, v{tmp+1}
s_and_b32 s59, s49, 7
s_lshl_b32 s59, s59, 3
s_add_u32 s59, s59, s48
s_mul_i32 s59, s59, {9*9216}
v_cndmask_b32_e64 v{tmp+1}, v{tmp+1}, 0, s[94:95]
s_mov_b32 m0, {SCR}
s_and_b32 s60, s63, 0xffffff80
s_add_u32 s59, s59, s60
v_lshl_add_u32 v{tmp}, v{tmp+1}, 7, v{tmp}""")
        a(f"s_mov_b64 s[4:5], s[12:13]\ns_mov_b64 s[10:11], s[6:7]\ns_mov_b32 s6, {D*F*2}\ns_mov_b32 s7, 0x20000")
        a.vmop(f"buffer_load_dword v{tmp}, s[4:7], s59 offen lds", "pf")
        a("s_mov_b64 s[6:7], s[10:11]")
    BARS = sorted(set([36*k for k in range(5)] + [36*k + 20 for k in range(4)] + opt.get('xbars', [8])))
    TJOIN = 36; TSPLIT = 140; TW0 = opt.get('tw0', 111)
    join_state = {}

    def body(typ, part):
        A = typ == "A"
        if part == 0:
            a.vm = list(vm0); a.lg = list(lg0)
            frame_of.clear()
            st = dict(win=0, pend=[], nextu=0, freed=0)
            if A:
                a(f"""v_and_b32 v24, 8, v0
v_cmp_eq_u32 vcc, 0, v24
v_and_b32 v19, 3, v0
v_cmp_eq_u32 s[60:61], 0, v26
v_cndmask_b32 v24, 4, v19, vcc
v_cndmask_b32_e64 v24, 5, v24, s[60:61]
v_mul_u32_u24 v24, {ESTR}, v24
v_lshl_add_u32 v24, v39, 4, v24""")
                for i in range(4):
                    a(f"s_xor_b32 s59, s51, {i}\ns_lshl_b32 s59, s59, 5\ns_add_u32 s59, s59, {E_OFF}\nv_add_u32 v{100+i}, s59, v24")
            else:
                a(f"""s_lshl_b32 s59, s51, 10
s_add_u32 s59, s59, {F_OFF}
v_add_u32 v100, s59, v7
v_xor_b32 v101, 0x400, v100
v_xor_b32 v102, 0x800, v100
v_xor_b32 v103, 0xc00, v100""")
        else:
            st = dict(join_state["st2"]); st["pend"] = list(st["pend"])
            a.vm = list(join_state["vm2"]); a.lg = list(join_state["lg2"])
            frame_of.clear(); frame_of.update(join_state["fr2"])
        xwin = [0]
        def xreads(c):
            want = 65536 if XBUF(c) >= 65536 else 0
            if want != xwin[0]:
                for i in range(4):
                    a(f"v_add_u32 v{96+i}, {(want - xwin[0]) & 0xffffffff:#x}, v{96+i}")
                xwin[0] = want
            for i in range(4):
                a.lgop(f"ds_read_b128 {r4(X0+16*c+4*i)}, v{96+i} offset:{XBUF(c) - xwin[0]}", ("xr", c))
        def fread(c, i):
            off = c*128 if A else (4*c if c < 5 else 4*c - 18)*1024
            a.lgop(f"ds_read_b128 {r4(FR+4*i)}, v{100+i} offset:{off}", ("f", "p", c, i))
        def wread(t):
            i = t % 4; b = FR + 4*i
            if t < 144:
                base = frame_of[t // 4]*8192; second = 512
            else:
                base = frame_of[36 + (t - 144)//8]*8192 + (((t - 144)//4) % 2)*4096; second = 256
            if not (st["win"] <= base and base + second - st["win"] <= 65535):
                for k in range(4):
                    a(f"v_add_u32 v{1+k}, {(base - st['win']) & 0xffffffff:#x}, v{1+k}")
                st["win"] = base
            a.lgop(f"ds_read_b64_tr_b16 v[{b}:{b+1}], v{1+i} offset:{base - st['win']}", ("f", t))
            a.lgop(f"ds_read_b64_tr_b16 v[{b+2}:{b+3}], v{1+i} offset:{base - st['win'] + second}", ("f", t))
        def cspub(addr, off):
            return [(4, lambda: a(f"v_cvt_pk_bf16_f32 v{CA+1}, v{CA}, v{CA}")),
                    (4, lambda: a(f"v_lshlrev_b32 v{CA+1}, 16, v{CA+1}")),
                    (4, lambda: a(f"v_sub_f32 v{CA+1}, v{CA}, v{CA+1}")),
                    (4, lambda: a(f"v_cvt_pk_bf16_f32 v{CA+1}, v{CA}, v{CA+1}")),
                    (4, lambda: a.lgop(f"ds_write_b32 v{addr}, v{CA+1} offset:{off}", "pub"))]
        def pro_mfma(c, nxt):
            a.wait(lg=("xr", c))
            if not A and c == 5:
                for j in range(16): a(f"v_mul_f32 v{ACCZ+j}, s75, v{ACCZ+j}")
            if A:
                for k in range(16):
                    x = X0 + 16*c + k
                    a(f"v_dot2c_f32_bf16 v{37 if k % 2 else 35}, v{x}, v{x}")
            for i in range(4):
                a.wait(lg=("f", "p", c, i))
                b = FR + 4*i; x = X0 + 16*c + 4*i
                if A: a(f"{M16} {r4(EA)}, {r4(b)}, {r4(x)}, " + (r4(EA) if (c or i) else "0"))
                else: a(f"{M32} {r16(ACCZ)}, {r4(x)}, {r4(b)}, " + (r16(ACCZ) if (c or i) else "0"))
                nxt(i)
        def corr_ops(acc, areg, off):
            return [(0, lambda: a.lgop(f"ds_read_b128 {r4(CF)}, v{areg} offset:{off}", "cr"))], \
                   [(8, lambda: (a.wait(lg="cr"), a(f"{M32} {r16(acc)}, {r4(CF)}, {r4(TF)}, {r16(acc)}")))]
        def mish_ops(acc, sbase):
            o = []; stages = []
            for p in range(8):
                Tt = TMP + 4*(p % 2); E = Tt + 2; s = acc + 2*p
                stg = []
                stg.append([(4, f"v_mul_f32 v{Tt}, v{s}, v6"), (4, f"v_mul_f32 v{Tt+1}, v{s+1}, v6")])
                stg.append([(8, f"v_exp_f32 v{E}, v{Tt}"), (8, f"v_exp_f32 v{E+1}, v{Tt+1}")])
                stg.append([(4, f"v_fma_f32 v{s}, v{E}, -0.5, -1.0"), (4, f"v_fma_f32 v{s+1}, v{E+1}, -0.5, -1.0")])
                stg.append([(4, f"v_fma_f32 v{E}, v{E}, v{s}, -1.0"), (4, f"v_fma_f32 v{E+1}, v{E+1}, v{s+1}, -1.0")])
                stg.append([(8, f"v_rcp_f32 v{E}, v{E}"), (8, f"v_rcp_f32 v{E+1}, v{E+1}")])
                stg.append([(4, f"v_fmac_f32 v{Tt}, v{Tt}, v{E}"), (4, f"v_fmac_f32 v{Tt+1}, v{Tt+1}, v{E+1}")])
                stg.append([(4, f"v_cvt_pk_bf16_f32 v{PK+p}, v{Tt}, v{Tt+1}")])
                stages.append(stg)
            seq = []
            for p in range(9):
                f = [x for s_ in stages[p][:4] for x in s_] if p < 8 else []
                s_ = [x for z in stages[p-1][4:] for x in z] if p > 0 else []
                if f and s_:
                    seq += [f[0], s_[0], f[1], s_[1], f[2], s_[2], f[3], s_[3], f[4], f[5], s_[4], f[6], f[7]]
                else:
                    seq += f + s_
                if p in (4, 8): seq.append(("st", (p//4) - 1))
            for it in seq:
                if it[0] == "st":
                    def stf(k=it[1]):
                        a.vmop(f"buffer_store_dwordx4 {r4(PK+4*k)}, v7, s[32:35], {sbase} offen offset:{1024*k} {st_act}", "st")
                    o.append((4, stf))
                else:
                    o.append((it[0], lambda l=it[1]: a(l)))
            return o
        sched = {}
        def spread(ops, t0, t1):
            cap = [(opt.get("cap0", 1.0) if t % 4 == 0 else 1.0) for t in range(t0, t1)]
            tot = sum(c for c, _ in ops); ctot = sum(cap); cum = 0; k = 0; lim = cap[0]/ctot*tot
            for c, o in ops:
                while cum + c/2 > lim and k < len(cap) - 1:
                    k += 1; lim += cap[k]/ctot*tot
                sched.setdefault(t0 + k, []).append(o); cum += c
        def lines(txt, cost=4):
            return [((0 if l.strip().startswith("s_") else cost), (lambda l=l: a(l))) for l in txt.split("\n")]
        accs = [ACCX, ACCY, ACCX, ACCY, ACCX]
        if part == 0:
            steps = opt.get("steps", [[0, 1], [2, 3], [4], [5], [6], [7], [8]])
            plan = opt.get("plan", [["x4", "w", "w"], ["x5", "x6"], ["x7"], ["x8"], ["w", "w"], ["w", "w"], []])
            free = [14, 15]; consumed = set()
            for si, cs_ in enumerate(steps):
                if si == 0: (None if 'marks' in opt else mark(a, opt, 0))
                vmw = [("x", c) for c in cs_]
                if si == len(steps) - 1: vmw += [("w", 0)]
                a.wait(vm=vmw, lg=("fgen" if si == 0 else ("xr", steps[si-1][-1])))
                a("s_barrier")
                if opt.get("pm") and si >= 1: mark(a, opt, si - 1)
                if si == 0: (None if 'marks' in opt else mark(a, opt, 1))
                if si == len(steps) - 1: (None if 'marks' in opt else mark(a, opt, 2))
                if si:
                    for c in steps[si-1]:
                        consumed.add(c)
                        if c >= 2: free += [2*(c % 7), 2*(c % 7) + 1]
                for c in cs_:
                    xreads(c)
                    if c == 0:
                        for k in range(4): fread(0, k)
                        a(w_setup)
                    else:
                        pro_mfma(c-1, lambda k: fread(c, k))
                if si == 1: a(late_setup)
                for it in plan[si]:
                    if it == "w":
                        dma_w(st["nextu"], free.pop(0)); st["nextu"] += 1
                    else:
                        c = int(it[1:])
                        assert c < 7 or (c - 7) in consumed
                        dma_x(c)
            for f in free:
                st["pend"].append((st["nextu"], f)); st["nextu"] += 1
            st["last"] = [f for c in steps[-1] for f in (2*(c % 7), 2*(c % 7) + 1)]
            pro_mfma(8, wread)
            if A: a("v_add_f32 v37, v37, v35")
            (None if 'marks' in opt else mark(a, opt, 3))
            a.srd(96, 14, F*2)
            common = lines(f"""s_mov_b32 s34, 0x10000000
s_mov_b32 s35, 0x20000
s_lshl_b32 s73, s49, 2
s_add_u32 s73, s73, s51            ; G
s_mul_i32 s58, s73, {144*2048}
s_mul_i32 s59, s50, 9
s_xor_b32 s60, s64, 1
s_lshl_b32 s60, s60, 3
s_add_u32 s60, s60, s59
s_lshl_b32 s60, s60, 11
s_add_u32 s62, s58, s60            ; act base of H tile
s_add_u32 s59, s59, s64
s_add_u32 s59, s59, s52
s_lshl_b32 s59, s59, 11
s_add_u32 s58, s58, s59            ; act base slab 0
s_add_u32 s59, s45, 0
s_and_b32 s59, s59, 3
s_lshl_b32 s59, s59, 12
s_add_u32 s46, s58, s59
s_add_u32 s59, s45, 1
s_and_b32 s59, s59, 3
s_lshl_b32 s59, s59, 12
s_add_u32 s47, s58, s59
s_add_u32 s59, s45, 2
s_and_b32 s59, s59, 3
s_lshl_b32 s59, s59, 12
s_add_u32 s20, s58, s59
s_add_u32 s59, s45, 3
s_and_b32 s59, s59, 3
s_lshl_b32 s59, s59, 12
s_add_u32 s21, s58, s59
s_add_u32 s61, s64, s52
s_lshl_b32 s61, s61, 9
s_add_u32 s61, s61, {CS_OFF}
v_lshl_add_u32 v65, v38, 4, s61
v_lshlrev_b32 v64, 13, v39
v_add_u32 v64, v64, v65            ; corr read addr: h=0 cs, h=1 bias
s_lshl_b32 s61, s51, 2
v_add_u32 v65, s61, v65            ; cs write addr
s_lshl_b32 s74, s51, 9
s_add_u32 s74, s74, {STAT}
v_lshl_add_u32 v67, v0, 2, s74     ; stat addr
s_lshl_b32 s76, s64, 5
v_subrev_u32 v41, s76, v36         ; column inside the four full slabs
s_lshl_b32 s77, s45, 6
v_add_u32 v42, s77, v41
v_and_b32 v42, 255, v42
v_add_u32 v42, s76, v42
v_cmp_gt_u32 vcc, 256, v41
v_mov_b32 v43, 0
v_mov_b32 v41, 0
v_cndmask_b32 v35, v36, v42, vcc
v_lshlrev_b32 v35, 1, v35""") + [(4, lambda: a.vmop("buffer_load_ushort v40, v35, s[96:99], s63 offen", "bias"))] + \
                lines(f"""v_lshlrev_b32 v36, 4, v36
v_add_u32 v36, {BI_OFF}, v36
v_mov_b32 v42, 0""")
            biasw = [(4, lambda: (a.wait(vm="bias"), a.lgop("ds_write_b128 v36, v[40:43]", "pub")))]
            tt = TMP
            if A:
                stats = lines(f"""v_mov_b32 v{tt}, v37
v_mov_b32 v{tt+1}, v{EA}
v_mov_b32 v{tt+3}, v{EA}
v_permlane32_swap_b32 v37, v{tt}
v_permlane32_swap_b32 v{tt+1}, v{tt+3}
v_add_f32 v{tt+2}, v37, v{tt}
v_mul_f32 v{tt}, {fbits(-1/576)}, v{tt+3}
v_mul_f32 v{tt+2}, {fbits(1/576)}, v{tt+2}
v_fma_f32 v{tt+2}, -v{tt}, v{tt}, v{tt+2}
v_cvt_pk_bf16_f32 v{tt}, v{tt}, v{tt}
v_max_f32 v{tt+2}, 0, v{tt+2}
v_cvt_pk_bf16_f32 v{tt+2}, v{tt+2}, v{tt+2}
v_cmp_gt_u32 vcc, 32, v0
v_lshlrev_b32 v{tt+2}, 16, v{tt+2}
v_add_f32 v{tt+2}, {fbits(1e-5)}, v{tt+2}
v_cvt_pk_bf16_f32 v{tt+2}, v{tt+2}, v{tt+2}
v_lshlrev_b32 v{tt+2}, 16, v{tt+2}
v_sqrt_f32 v{tt+2}, v{tt+2}
v_cndmask_b32 v{TF+1}, 0, v{tt}, vcc
v_cvt_pk_bf16_f32 v{tt+2}, v{tt+2}, 0
v_mov_b32 v{TF+2}, v{TF+1}
v_cndmask_b32 v{TF}, v{tt+2}, v{tt}, vcc
v_lshlrev_b32 v{tt+2}, 16, v{tt+2}
v_rcp_f32 v{tt+2}, v{tt+2}
v_mov_b32 v{TF+3}, v{TF+1}
v_mul_f32 v6, {fbits(LOG2E)}, v{tt+2}""") + \
                    [(4, lambda: a.lgop(f"ds_write2st64_b32 v67, v{TF}, v{tt+2} offset0:0 offset1:1", "pub"))]
                def ex_store():
                    a("s_mov_b32 exec_hi, 0")
                    for j in range(4):
                        op = "buffer_store_short" if j % 2 == 0 else "buffer_store_short_d16_hi"
                        if j: a("s_add_u32 s77, s77, 4096")
                        a.vmop(f"{op} v{tt+4+j//2}, v{tt+6}, s[32:35], s77 offen {st_u}", "st")
                    a("s_mov_b32 exec_hi, -1")
                extra = lines("\n".join(f"v_mul_f32 v{EA+j}, v{EA+j}, v{tt+2}" for j in range(4)) + f"""
v_cvt_pk_bf16_f32 v{tt+4}, v{EA}, v{EA+1}
v_cvt_pk_bf16_f32 v{tt+5}, v{EA+2}, v{EA+3}
v_and_b32 v{tt+6}, 0x13, v38
v_and_b32 v{tt+7}, 4, v38
v_lshl_add_u32 v{tt+6}, v{tt+7}, 1, v{tt+6}
v_bfe_u32 v{tt+7}, v38, 3, 1
v_lshl_add_u32 v{tt+6}, v{tt+7}, 2, v{tt+6}
v_lshlrev_b32 v{tt+6}, 1, v{tt+6}
s_lshl_b32 s77, s50, 14
s_lshl_b32 s61, s73, 6
s_add_u32 s77, s77, s61
s_add_u32 s77, s77, {WS_U + 512*4096}""") + [(16, ex_store)]
                spread(common + stats, 0, 12)
                spread(extra, 12, 18)
                spread(biasw, 24, 25)
            else:
                uo = lines(f"""s_mov_b32 s76, 0
s_cmp_eq_u32 s50, 0
s_cselect_b32 s76, 0x4410, s76
s_cmp_eq_u32 s50, 2
s_cselect_b32 s76, 0xbe80, s76
s_cmp_eq_u32 s50, 4
s_cselect_b32 s76, 0xbe80, s76
s_cmp_eq_u32 s50, 8
s_cselect_b32 s76, 0xbe80, s76
s_lshl_b32 s77, s50, 17
s_lshl_b32 s61, s73, 6
s_add_u32 s77, s77, s61
s_add_u32 s77, s77, {WS_U}         ; U store base
v_cmp_eq_u32 vcc, 0, v0
v_mov_b32 v{tt+5}, s76
v_mov_b32 v{CF+1}, 0
v_mov_b32 v{CF+2}, 0
v_cndmask_b32 v{CF}, 0, v{tt+5}, vcc
v_mov_b32 v{CF+3}, 0
v_lshlrev_b32 v{tt+5}, 4, v39
v_lshl_add_u32 v{tt+7}, v38, 12, v{tt+5}
v_lshl_add_u32 v66, v39, 4, s74""")
                spread(common + uo, 0, 12)
                def rdst():
                    a.lgop(f"ds_read2st64_b32 v[{tt+2}:{tt+3}], v67 offset0:0 offset1:1", "st")
                def rdr(g):
                    s = (44, EA)[g % 2]
                    a.lgop(f"ds_read_b128 {r4(s)}, v66 offset:{256+g*32}", ("rm", g))
                u2 = [(4, rdst), (4, lambda: rdr(0)), (4, lambda: rdr(1)), (30, lambda: None), (0, lambda: a.wait(lg="st"))] + lines(f"""v_cmp_gt_u32 vcc, 32, v0
v_mov_b32 v{TF}, v{tt+2}
v_mul_f32 v6, {fbits(LOG2E)}, v{tt+3}
v_cndmask_b32 v{TF+1}, 0, v{tt+2}, vcc
v_mov_b32 v{TF+2}, v{TF+1}
v_mov_b32 v{TF+3}, v{TF+1}""") + [(8, lambda: None), (50, lambda: a(f"{M32} {r16(ACCZ)}, {r4(TF)}, {r4(CF)}, {r16(ACCZ)}"))]
                for g in range(4):
                    s = (44, EA)[g % 2]
                    u2.append((0, lambda g=g: a.wait(lg=("rm", g))))
                    u2 += lines("\n".join(f"v_mul_f32 v{ACCZ+4*g+k}, v{ACCZ+4*g+k}, v{s+k}" for k in range(4)))
                    if g < 2: u2.append((4, lambda g=g: rdr(g+2)))
                    u2 += lines("\n".join(f"v_cvt_pk_bf16_f32 v{PK+2*g+k}, v{ACCZ+4*g+2*k}, v{ACCZ+4*g+2*k+1}" for k in range(2)))
                    if g % 2 == 1:
                        u2.append((4, lambda g=g: a.vmop(f"buffer_store_dwordx4 {r4(PK+4*(g//2))}, v{tt+7}, s[32:35], s77 offen offset:{32*(g//2)} {st_u}", "st")))
                spread(u2, 20, 33)
                spread(biasw, 18, 19)
        for s in range(4):
            b = 36*(s+1)
            c1, c2 = corr_ops(accs[s], 64, s*1024)
            spread(c1, b, b+1); spread(c2, b+1, b+2)
            spread(mish_ops(accs[s], ("s46", "s47", "s20", "s21")[s]), b+4, b+36)
            spread(cspub(65, s*1024), 36*s+33, 36*s+35)
        if A: spread(cspub(66, 0), 144+33, 144+35)
        wt1 = [lambda l=l: a(l) for l in f"""s_mov_b64 s[24:25], s[6:7]
s_mov_b32 s26, {T*289*2}
s_mov_b64 s[96:97], s[8:9]
s_mov_b32 s98, {T*289*2}
v_and_b32 v66, 7, v0
v_lshrrev_b32 v67, 3, v0
v_mul_u32_u24 v56, 289, v66
v_mad_u32_u24 v56, v67, 5, v56
v_and_b32 v56, -2, v56
v_lshlrev_b32 v56, 1, v56
s_mul_i32 s67, s2, {8*578}
s_mul_i32 s68, s48, 80
s_add_u32 s67, s67, s68
v_lshlrev_b32 v66, 4, v66
v_lshl_add_u32 v66, v67, 16, v66
s_lshl_b32 s69, s48, 19
s_lshl_b32 s68, s2, 7
s_add_u32 s69, s69, s68
s_add_u32 s69, s69, {WS_WT}
s_add_u32 s68, s69, 32768""".split("\n")]
        def wt_load(z):
            a.vmop(f"buffer_load_dwordx4 {r4(48+4*z)}, v56, s[{24 if z == 0 else 96}:{27 if z == 0 else 99}], s67 offen", "wt")
        def wt_store(z):
            a.wait(vm="wt")
            a.vmop(f"buffer_store_dwordx4 {r4(48+4*z)}, v66, s[32:35], s{69-z} offen {st_wt}", "st")
        pf2a = [lambda l=l: a(l) for l in f"""s_mov_b32 s18, {F*D*2}
s_mov_b32 s19, 0x20000
s_bfe_u32 s65, s2, 0x20001
s_mul_i32 s65, s65, {1152*1152}
s_lshr_b32 s66, s2, 3
s_mul_i32 s66, s66, {324*128}
s_add_u32 s65, s65, s66
s_and_b32 s66, s2, {1 if opt.get("pfhalf", 1) else 0}
s_mul_i32 s66, s66, {21*128}
s_add_u32 s65, s65, s66
s_mul_i32 s66, s48, {42*128}
s_add_u32 s65, s65, s66
s_getpc_b64 s[80:81]|s_add_u32 s80, s80, fft_tab@rel32@lo+4|s_addc_u32 s81, s81, fft_tab@rel32@hi+12
s_mov_b32 s82, 53248
s_lshr_b32 s66, s2, 3
s_lshl_b32 s66, s66, 3
s_add_u32 s66, s66, s48
s_lshl_b32 s66, s66, 8""".replace("|", "@@").split("\n") if "2" in opt.get("kernels", "123") or "fft_tab" not in l]
        pf2a = [(lambda f=f: a(f.__defaults__[0].replace("@@", "\n"))) for f in pf2a]
        def pf2(k, tm):
            r = 32 if tm < 35 else 71
            a(f"s_mov_b32 m0, {SCR}\nv_min_u32 v{r}, {42//opt.get('npf2', 2) - 1}, v0\nv_lshlrev_b32 v{r}, 7, v{r}")
            a.vmop(f"buffer_load_dword v{r}, s[16:19], s65 offen lds", "pf")
            a(f"s_add_u32 s65, s65, {42//opt.get('npf2', 2)*128}")
        def pf3():
            r = 32 if opt.get("t_pf3", 30) < 35 else 71
            a(f"s_mov_b32 m0, {SCR}\nv_lshrrev_b32 v{r}, 5, v0\nv_lshlrev_b32 v{r}, 7, v{r}")
            a.vmop(f"buffer_load_dword v{r}, s[80:83], s66 offen lds", "pf")
        twt = opt.get("t_wt", 39)
        if not opt.get("nowt"):
            for k, o in enumerate(wt1): sched.setdefault(twt - (len(wt1) - k + 3)//4, []).append(o)
            for z in range(2):
                sched.setdefault(twt + 4*z, []).append(lambda z=z: wt_load(z))
                sched.setdefault(opt.get("t_wts", 112) + 4*z, []).append(lambda z=z: wt_store(z))
        for (tm, l0, nl) in opt.get("tw2", [[46, 4, 1]]):
            sched.setdefault(tm, []).append(lambda l0=l0, nl=nl, tm=tm: touch_w1(l0, nl, 32 if tm < 35 else 69))
        if opt.get("pf2", 1):
            tp = opt.get("t_pf2", [26])
            for k, o in enumerate(pf2a): sched.setdefault(max(0, tp[0] - (len(pf2a) - k + 1)//2), []).append(o)
            if opt.get("pf2w"):
                def pf2w(w):
                    a(f"s_cmp_lg_u32 s48, {w}\ns_cbranch_scc1 K1_pw{w}\ns_mov_b32 m0, {SCR}\ns_nop 0")
                    a(f"buffer_load_dword v71, s[16:19], s65 offen lds\nK1_pw{w}:")
                for w in range(8): sched.setdefault(tp[0] + w*opt["pf2w"], []).append(lambda w=w: pf2w(w))
            else:
              for k, tm in enumerate(tp):
                sched.setdefault(tm, []).append(lambda k=k, tm=tm: pf2(k, tm))
            if "2" in opt.get("kernels", "123"): sched.setdefault(opt.get("t_pf3", 30), []).append(pf3)
        sched.setdefault(70, []).append(lambda: a(f"v_lshrrev_b32 v{EA}, 2, v0\nv_mul_u32_u24 v{EA}, 9216, v{EA}"))
        sched.setdefault(71, []).append(lambda: a(f"v_and_b32 v{EA+2}, 3, v0\nv_lshl_add_u32 v{EA}, v{EA+2}, 4, v{EA}"))
        def barrier_at(t):
            nb = min([x for x in BARS if x > t] + [999])
            if t >= 144: need = []
            else:
                need = [u for u in range((t+4)//4, min(36, (nb+4)//4))]
                if nb + 4 > 144: need += [36]
            if t == 144: need = [37, 38, 39, 40]
            for u in need: assert u in frame_of, (t, u)
            a.wait(vm=[("w", u) for u in need], lg=["pub", ("xr", 8)])
            if "wtmark" in st and need and max(need) > st["wtmark"]: st["wtdone"] = True
            a("s_barrier")
            fr = list(st["last"]) if t == 0 else []
            while st["freed"] < min(t//4, 36):
                fr.append(frame_of[st["freed"]]); st["freed"] += 1
            for f in fr:
                if st["nextu"] < 41:
                    st["pend"].append((st["nextu"], f)); st["nextu"] += 1
        t0, t1 = (0, TSPLIT) if part == 0 else (TSPLIT, 180 if A else 144)
        for t in range(t0, t1):
            if t == TJOIN:
                if A:
                    a("K1_join:")
                    a.vm = [x for x in a.vm if x != "st"]
                    join_state["vm"] = list(a.vm); join_state["lg"] = list(a.lg); join_state["win"] = st["win"]
                else:
                    ja, jb = join_state["vm"], [x for x in a.vm if x != "st"]
                    assert ja[-len(jb):] == jb or jb[-len(ja):] == ja, (ja, jb)
                    assert len(jb) <= len(ja), (ja, jb)
                    assert join_state["lg"] == a.lg, (join_state["lg"], a.lg)
                    assert join_state["win"] == st["win"]
                    a("s_nop 7\ns_nop 3\ns_branch K1_join")
                    return
            s = t // 36; ks = t % 36; acc = accs[s]
            for k, tm in enumerate(opt.get("marks", [-1, -1, -1, -1, 72, 143])):
                if t == tm: mark(a, opt, k)
            if t in BARS: barrier_at(t)
            pr = opt.get("prio")
            if pr and t < 144:
                lo, hi = (0, 20) if ks < 20 else (20, 36)
                rem = hi - ks
                if ks == lo: a("s_setprio 3")
                for lvl, r_ in zip((2, 1, 0), pr):
                    if rem == r_: a(f"s_setprio {lvl}")
            a.wait(lg=("f", t))
            b = FR + 4*(t % 4); x = X0 + 4*ks
            if t % 4 == 0: a(f"{M16} {r4(CA)}, {r4(SEL)}, {r4(b)}, " + (r4(CA) if ks else "0"))
            a(f"{M32} {r16(acc)}, {r4(b)}, {r4(x)}, " + (r16(acc) if ks else "0"))
            if t + 4 < 144 or (A and t + 4 < 180):
                if t + 4 == 144:
                    a(f"""v_bfe_u32 v66, v0, 2, 2
v_lshrrev_b32 v67, 5, v0
v_lshl_add_u32 v66, v67, 3, v66
v_lshlrev_b32 v66, 6, v66
v_bfe_u32 v67, v0, 4, 1
v_lshl_add_u32 v66, v67, 5, v66
v_and_b32 v67, 3, v0
v_lshl_add_u32 v66, v67, 3, v66""")
                    for i in range(4):
                        a(f"s_xor_b32 s59, s51, {i}\ns_lshl_b32 s59, s59, 10\nv_add_u32 v{1+i}, s59, v66")
                    st["win"] = 0
                    a("""s_xor_b32 s59, s64, 1
s_mul_i32 s79, s59, 9
s_sub_u32 s79, s79, 1
s_lshl_b32 s79, s79, 9
v_add_u32 v66, s79, v65
v_add_u32 v67, s79, v64""")
                rd = lambda: wread(t + 4)
            else: rd = None
            pace = opt.get("pace", 4) if t >= opt.get("pace_from", 24) else opt.get("pace0", 2)
            if st["pend"] and t % pace == pace - 1 - opt.get("pace_off", 0) % pace: dma_w(*st["pend"].pop(0), mid=rd)
            elif rd: rd()
            for o in sched.get(t, []): o()
        if part == 0:
            assert not st["pend"] and st["nextu"] == 41
            join_state["st2"] = dict(st); join_state["vm2"] = list(a.vm); join_state["lg2"] = list(a.lg); join_state["fr2"] = dict(frame_of)
            a("s_cmp_lg_u32 s52, 0\ns_cbranch_scc1 K1_tailB")
            return
        if A:
            a.wait(lg="pub")
            a("s_barrier")
            c1, c2 = corr_ops(accs[4], 67, 0)
            for c, o in c1 + c2 + mish_ops(accs[4], "s62"): o()
        else:
            barrier_at(144)
            for t in range(144, 180):
                for o in sched.get(t, []):
                    o()
        if opt.get("stamp"):
            a.wait(vm="all")
            stamp_out(a, 0, "s48", 32, "K1_end")
        a("s_endpgm")
    body("A", 0)
    body("A", 1)
    a("K1_tailB:")
    body("B", 1)
    a("K1_typeB:")
    body("B", 0)
    a("K1_end:\ns_endpgm")
    a.end_kernel("k1_kernel", 256, 102)
    a.launch("k1_kernel", 256, 512, 163840)
```

```python
from fw import *
from common import *
import numpy as np
M32 = "v_mfma_f32_32x32x16_bf16"; M16 = "v_mfma_f32_16x16x32_bf16"
def r4(x): return f"v[{x}:{x+3}]"
def r16(x): return f"v[{x}:{x+15}]"
UNIT = 20480; NRING = 8; NU = 36
T_C32, T_S32, T_C64, T_S64, T_TW1, T_TW2, T_END = 0, 2048, 4096, 12288, 20480, 36864, 53248
VIMG = 53248

def f2bf(x):
    u = np.ascontiguousarray(x, dtype=np.float32).view(np.uint32)
    return ((u + 0x7FFF + ((u >> 16) & 1)) >> 16).astype(np.uint16)
def fft_tables():
    lane = np.arange(64); n = lane & 31; h = lane >> 5
    i8 = np.arange(8); perm = (i8 & 3) + 8*(i8 >> 2)
    out = []
    def frag(N, lanebase, ks, fn):
        b = 16*ks + 4*h[:, None] + perm[None, :]
        return f2bf(fn(2*np.pi*(((lanebase + n)[:, None]*b) % N)/N)).tobytes()
    for fn in (np.cos, np.sin):
        for ks in range(2): out.append(frag(32, 0, ks, fn))
    for fn in (np.cos, np.sin):
        for p in range(2):
            for ks in range(4): out.append(frag(64, 32*p, ks, fn))
    j4 = np.arange(4)
    for tw in range(2):
        for p in range(2):
            for jg in range(4):
                r = 8*jg + 4*h[:, None] + j4[None, :]
                prod = (32*p + r)*n[:, None] if tw == 0 else (32*p + n[:, None])*r
                for fn in (np.cos, np.sin):
                    out.append(fn(2*np.pi*prod/2048).astype(np.float32).tobytes())
    b = b"".join(out); assert len(b) == T_END
    return np.frombuffer(b, np.uint32)

def gen_k2(a, opt):
    st_p = opt.get("st_p", "sc1"); st_v = opt.get("st_v", "sc1"); st_g = opt.get("st_g", "sc1")
    ld_w2 = opt.get("ld_w2", ""); ld_act = opt.get("ld_act", "")
    a.begin_kernel("k2_kernel")
    a("s_cmp_ge_u32 s2, 256\ns_cbranch_scc1 K2_end")
    if opt.get("stamp"): a("s_memrealtime s[90:91]")
    a(f"""s_load_dwordx2 s[24:25], s[0:1], 48
s_load_dwordx2 s[32:33], s[0:1], 72
v_lshrrev_b32 v1, 6, v0
v_and_b32 v0, 63, v0
v_readfirstlane_b32 s48, v1        ; wave
s_and_b32 s49, s2, 7               ; xcd
s_lshr_b32 s50, s2, 3              ; idx
s_mov_b32 s26, {F*D*2}
s_mov_b32 s27, 0x20000
s_mov_b32 s34, 0x10000000
s_mov_b32 s35, 0x20000
v_lshlrev_b32 v7, 4, v0            ; lane*16
s_cmp_lt_u32 s50, 8
s_cbranch_scc1 K2_fft
s_sub_u32 s50, s50, 8
s_lshr_b32 s51, s49, 1             ; split
s_and_b32 s52, s49, 1
s_lshl_b32 s52, s52, 3
s_and_b32 s59, s50, 7
s_add_u32 s52, s52, s59            ; rb
s_lshr_b32 s53, s50, 3             ; cb
s_cmp_lt_u32 s48, 4
s_cbranch_scc1 K2_comp""")
    a(f"""s_sub_u32 s54, s48, 4              ; lw
s_lshl_b32 s55, s52, 2
s_add_u32 s55, s55, s54            ; G
s_mul_i32 s55, s55, {144*2048}
s_mul_i32 s59, s51, {36*2048}
s_add_u32 s55, s55, s59
s_mul_i32 s56, s51, {1152*1152}
s_mul_i32 s59, s54, {8*1152}
s_add_u32 s56, s56, s59
s_mul_i32 s59, s53, 384
s_add_u32 s56, s56, s59
v_lshrrev_b32 v2, 3, v0            ; r
v_and_b32 v3, 7, v0
v_and_b32 v4, 6, v2
v_xor_b32 v3, v3, v4
v_mul_u32_u24 v2, 1152, v2
v_lshl_add_u32 v2, v3, 4, v2       ; w2 voffset
s_lshl_b32 s57, s54, 11
s_mul_i32 s58, s54, 3072
s_add_u32 s58, s58, 8192
s_and_b32 s60, s52, {opt.get("k2_rotmask", 0)}
s_mul_i32 s60, s60, {opt.get("k2_rot", 9)}
s_lshr_b32 s60, s60, 1
s_waitcnt lgkmcnt(0)""")
    def load_unit(u):
        base = (u % NRING)*UNIT
        a(f"s_lshl_b32 s59, s60, 11\ns_add_u32 s59, s59, s55\ns_mul_i32 s61, s60, {32*1152}\ns_add_u32 s61, s61, s56\ns_add_u32 m0, s57, {base}")
        a(f"s_add_u32 s60, s60, 1\ns_cmp_eq_u32 s60, 36\ns_cselect_b32 s60, 0, s60")
        a.vmop(f"buffer_load_dwordx4 v7, s[32:35], s59 offen {ld_act} lds", ("u", u))
        a.vmop(f"buffer_load_dwordx4 v7, s[32:35], s59 offen offset:1024 {ld_act} lds", ("u", u))
        for j in range(3):
            a(f"s_add_u32 m0, s58, {base + j*1024 - j*128}")
            a.vmop(f"buffer_load_dwordx4 v2, s[24:27], s61 offen offset:{j*128} {ld_w2} lds", ("u", u))
    a.vm = []
    first = opt.get("k2_first", 4)
    for u in range(first): load_unit(u)
    nu = first
    for g in range(NU//2):
        a.wait(vm=[("u", 2*g), ("u", 2*g+1)])
        a("s_barrier")
        lim = min(NU, 2*g + NRING, nu + opt.get("k2_ramp", 2))
        while nu < lim:
            load_unit(nu); nu += 1
    a("s_endpgm")
    ACC = 16; FB = 112
    a(f"""K2_comp:
s_and_b32 s54, s48, 1
s_lshr_b32 s55, s48, 1             ; b : d tiles 6b..6b+5
v_lshrrev_b32 v8, 4, v0            ; g
v_and_b32 v9, 15, v0
v_lshlrev_b32 v10, 9, v8
v_lshl_add_u32 v10, v9, 4, v10
s_lshl_b32 s59, s54, 12
v_add_u32 v5, s59, v10
v_lshrrev_b32 v10, 2, v9           ; r
v_and_b32 v11, 1, v8
v_lshl_add_u32 v10, v11, 2, v10
v_lshrrev_b32 v11, 1, v8
v_mul_u32_u24 v11, 6144, v11
v_lshl_add_u32 v11, v10, 7, v11
v_and_b32 v12, 3, v0
v_lshl_add_u32 v11, v12, 3, v11
v_add_u32 v11, 8192, v11
v_lshrrev_b32 v10, 1, v10          ; swizzle
s_mul_i32 s56, s55, 6""")
    for k in range(4):
        a(f"""s_add_u32 s59, s56, {k}
s_and_b32 s60, s59, 3
s_lshr_b32 s59, s59, 2
s_lshl_b32 s59, s59, 10
v_xor_b32 v12, s60, v10
v_lshl_add_u32 v12, v12, 5, v11
v_add_u32 v{1+k}, s59, v12""")
    a(f"""s_mul_i32 s57, s51, {64*18*2048}
s_lshl_b32 s59, s52, 2
s_lshl_b32 s60, s54, 1
s_add_u32 s59, s59, s60
s_mul_i32 s59, s59, {18*2048}
s_add_u32 s57, s57, s59
s_mul_i32 s59, s53, 6
s_mul_i32 s60, s55, 3
s_add_u32 s59, s59, s60
s_lshl_b32 s59, s59, 10
s_add_u32 s57, s57, s59
s_add_u32 s57, s57, {WS_PART}
s_waitcnt lgkmcnt(0)""")
    a.vm = []; a.lg = []
    win = [0]
    def reads(u):
        base = (u % NRING)*UNIT
        fb = FB + (u % 2)*40
        ops = []
        def setwin():
            if not (win[0] <= base and base + 8192 - win[0] <= 65535):
                for k in range(5):
                    a(f"v_add_u32 v{1+k}, {(base - win[0]) & 0xffffffff:#x}, v{1+k}")
                win[0] = base
        def act(i):
            setwin()
            a.lgop(f"ds_read_b128 {r4(fb+4*i)}, v5 offset:{base - win[0] + (i//2)*2048 + (i%2)*256}", ("a", u))
        def w(j, t):
            d = fb + 16 + 4*j + 2*t
            a.lgop(f"ds_read_b64_tr_b16 v[{d}:{d+1}], v{1+j%4} offset:{base - win[0] + (j//4)*1024 + t*3072}", ("w", u, j))
        for i in range(4): ops.append(lambda i=i: act(i))
        for j in range(6):
            for t in range(2): ops.append(lambda j=j, t=t: w(j, t))
        return ops
    mark(a, opt, 0)
    a("s_barrier")
    mark(a, opt, 1)
    for o in reads(0): o()
    for u in range(NU):
        if u == 18: mark(a, opt, 2)
        fb = FB + (u % 2)*40
        nxt = reads(u+1) if u + 1 < NU else []
        bar = (u % 2 == 1 and u + 1 < NU)
        n = 0
        for j in range(6):
            for i in range(4):
                if i == 0:
                    if bar and j == 0: a.wait(lg="all")
                    else: a.wait(lg=[("a", u), ("w", u, j)])
                d = ACC + (i*6 + j)*4
                a(f"{M16} {r4(d)}, {r4(fb+16+4*j)}, {r4(fb+4*i)}, " + (r4(d) if u else "0"))
                if bar and n == 0: a("s_barrier")
                elif nxt: nxt.pop(0)()
                n += 1
    mark(a, opt, 3)
    for i in range(4):
        for jp in range(3):
            pk = FB + 4*((i*3 + jp) % 8)
            for t in range(2):
                d = ACC + (i*6 + 2*jp + t)*4
                a(f"v_cvt_pk_bf16_f32 v{pk+2*t}, v{d}, v{d+1}\nv_cvt_pk_bf16_f32 v{pk+2*t+1}, v{d+2}, v{d+3}")
            a(f"v_permlane16_swap_b32 v{pk}, v{pk+2}\nv_permlane16_swap_b32 v{pk+1}, v{pk+3}")
            if jp == 0: a(f"s_add_u32 s59, s57, {i*18*1024}")
            a.vmop(f"buffer_store_dwordx4 {r4(pk)}, v7, s[32:35], s59 offen offset:{jp*1024} {st_p}", "st")
    if opt.get("stamp"):
        a.wait(vm="all")
        stamp_out(a, 1, "s48", 32, "K2_end")
    a("s_endpgm")
    PR, PI, PN = 16, 32, 48
    AR, AI = 64, 96
    C32, S32, C64, S64, TWS = 128, 136, 144, 176, 208
    WL = T_END
    xpf = f"""s_cmp_lt_u32 s48, 5
s_cbranch_scc1 K2_end
s_load_dwordx2 s[36:37], s[0:1], 0
s_mov_b32 s38, {T*D*2}
s_mov_b32 s39, 0x20000
v_and_b32 v2, 31, v0
v_mul_u32_u24 v2, 73728, v2
v_lshrrev_b32 v3, 5, v0
v_lshl_add_u32 v2, v3, 7, v2
s_mul_i32 s59, s51, 1152
s_sub_u32 s60, s48, 5
s_mul_i32 s60, s60, 384
s_add_u32 s59, s59, s60
s_waitcnt lgkmcnt(0)
buffer_load_dword v4, v2, s[36:39], s59 offen
buffer_load_dword v4, v2, s[36:39], s59 offen offset:128
s_waitcnt vmcnt(0)""" if opt.get("xpf", 1) else ""
    a(f"""K2_fft:
s_lshl_b32 s51, s49, 3
s_add_u32 s51, s51, s50            ; f
s_cmp_ge_u32 s51, 58
s_cbranch_scc1 K2_xpf
s_mul_i32 s52, s51, 5              ; j0
s_cmp_lt_u32 s48, 5
s_cbranch_scc1 K2_fft_go
s_getpc_b64 s[28:29]
s_add_u32 s28, s28, fft_tab@rel32@lo+4
s_addc_u32 s29, s29, fft_tab@rel32@hi+12
s_mov_b32 s30, {T_END}
s_mov_b32 s31, 0x20000
s_sub_u32 s53, s48, 5
s_lshl_b32 s59, s53, 10
K2_tl:
s_mov_b32 m0, s59
s_nop 0
buffer_load_dwordx4 v7, s[28:31], s59 offen lds
s_add_u32 s59, s59, 3072
s_cmp_lt_u32 s59, {T_END}
s_cbranch_scc1 K2_tl
s_lshl_b32 s54, s51, 16
s_add_u32 s54, s54, {WS_WT}
s_lshl_b32 s53, s53, 10
s_waitcnt vmcnt(0) lgkmcnt(0)
s_barrier
K2_wl:
s_add_u32 m0, s53, {WL}
s_add_u32 s59, s53, s54
buffer_load_dwordx4 v7, s[32:35], s59 offen lds
s_add_u32 s53, s53, 3072
s_cmp_lt_u32 s53, 65536
s_cbranch_scc1 K2_wl
s_waitcnt vmcnt(0)
s_barrier
K2_xpf:
{xpf}
s_endpgm
K2_fft_go:
s_add_u32 s56, s52, s48            ; j
s_cmp_gt_u32 s56, 288
s_cbranch_scc1 K2_end
s_lshr_b32 s54, s56, 1
s_and_b32 s59, s56, 1
s_mul_i32 s59, s59, 144
s_add_u32 s54, s54, s59            ; sigma
s_mov_b32 s61, 0                   ; 0 normal, 1: j=0, 2: j=288
s_cmp_eq_u32 s56, 0
s_cselect_b32 s61, 1, s61
s_cmp_eq_u32 s56, 288
s_cselect_b32 s61, 2, s61
s_cselect_b32 s54, 0, s54
s_cselect_b32 s59, 4096, 0
s_lshl_b32 s62, s54, 13
s_add_u32 s57, s62, {WS_U}
s_add_u32 s58, s57, 4096
s_add_u32 s57, s57, s59
s_cmp_lg_u32 s61, 0
s_cselect_b32 s58, 0x10000000, s58
v_and_b32 v2, 31, v0               ; n
v_lshrrev_b32 v3, 5, v0            ; h
v_lshlrev_b32 v4, 4, v3
v_lshl_add_u32 v4, v2, 6, v4       ; U voffset
s_waitcnt lgkmcnt(0)""")
    a.vm = []; a.lg = []
    for p in range(2):
        for ks in range(2):
            a.vmop(f"buffer_load_dwordx4 {r4(PR+8*p+4*ks)}, v4, s[32:35], s57 offen offset:{p*2048+ks*32}", "z")
            a.vmop(f"buffer_load_dwordx4 {r4(PI+8*p+4*ks)}, v4, s[32:35], s58 offen offset:{p*2048+ks*32}", "z")
    a(f"""v_add_u32 v5, s52, v2
v_and_b32 v5, 1, v5
v_add_u32 v5, s48, v5
v_lshlrev_b32 v5, 1, v5
v_lshl_add_u32 v5, v2, 4, v5
v_lshl_add_u32 v5, v3, 11, v5
v_add_u32 v5, {WL}, v5
v_lshlrev_b32 v6, 2, v2
v_lshl_add_u32 v6, v3, 9, v6       ; V voffset
s_add_u32 s62, s62, {WS_V}
s_barrier""")
    for k in range(4): a.lgop(f"ds_read_b128 {r4(C32+4*k)}, v7 offset:{k*1024}", "t32")
    NB = 4
    def twread(tw, k):
        s = TWS + 8*(k % NB)
        off = (T_TW1 if tw == 0 else T_TW2) + k*2048
        a.lgop(f"ds_read_b128 {r4(s)}, v7 offset:{off}", ("tw", k))
        a.lgop(f"ds_read_b128 {r4(s+4)}, v7 offset:{off+1024}", ("tw", k))
    def wread(k):
        s = TWS + 8*(k % NB)
        for arr in range(2):
            for e in range(4):
                a.lgop(f"ds_read_u16 v{s+4*arr+e}, v5 offset:{arr*32768 + (8*k + e)*512}", ("tw", k))
    for k in range(NB): twread(0, k)
    a.wait(vm="z")
    for k in range(16): a(f"v_xor_b32 v{PN+k}, 0x80008000, v{PR+k}")
    a.wait(lg="t32")
    def stage_small(X1, X2, X3, X4):
        for p in range(2):
            for (D, Xa, Xb) in ((AR, X1, X2), (AI, X3, X4)):
                d = D + 16*p
                for ks in range(2):
                    a(f"{M32} {r16(d)}, {r4(Xa+8*p+4*ks)}, {r4(C32+4*ks)}, " + (r16(d) if ks else "0"))
                    a(f"{M32} {r16(d)}, {r4(Xb+8*p+4*ks)}, {r4(S32+4*ks)}, {r16(d)}")
    def stage_big(X1, X2, X3, X4, dataA, fill=()):
        fill = list(fill)
        for p in range(2):
            for (D, Xa, Xb) in ((AR, X1, X2), (AI, X3, X4)):
                d = D + 16*p
                for ks in range(4):
                    for (X, Tb, first) in ((Xa, C64, ks == 0), (Xb, S64, False)):
                        x, tb = r4(X+4*ks), r4(Tb+16*p+4*ks)
                        A_, B_ = (x, tb) if dataA else (tb, x)
                        a(f"{M32} {r16(d)}, {A_}, {B_}, " + ("0" if first else r16(d)))
                if fill: fill.pop(0)()
    def p2(x): return f"v[{x}:{x+1}]"
    def cmul4(k, cr, sr, sgn):
        ng = " neg_lo:[1,0,0] neg_hi:[1,0,0]"
        n1, n2 = (ng, "") if sgn > 0 else ("", ng)
        for e in (0, 2): a(f"v_pk_mul_f32 {p2(8+e)}, {p2(AR+4*k+e)}, {p2(cr+e)}")
        for e in (0, 2): a(f"v_pk_mul_f32 {p2(12+e)}, {p2(AI+4*k+e)}, {p2(cr+e)}")
        for e in (0, 2): a(f"v_pk_fma_f32 {p2(8+e)}, {p2(AI+4*k+e)}, {p2(sr+e)}, {p2(8+e)}{n1}")
        for e in (0, 2): a(f"v_pk_fma_f32 {p2(12+e)}, {p2(AR+4*k+e)}, {p2(sr+e)}, {p2(12+e)}{n2}")
    def pack4(k, negre):
        for e in range(2): a(f"v_cvt_pk_bf16_f32 v{PR+2*k+e}, v{8+2*e}, v{9+2*e}")
        for e in range(2): a(f"v_cvt_pk_bf16_f32 v{PI+2*k+e}, v{12+2*e}, v{13+2*e}")
        for e in range(2): a(f"v_xor_b32 v{PN+2*k+e}, 0x80008000, v{(PR if negre else PI)+2*k+e}")
    stage_small(PR, PI, PI, PN)
    t64 = [lambda k=k: a.lgop(f"ds_read_b128 {r4(C64+4*k)}, v7 offset:{T_C64+k*1024}", "t64") for k in range(16)]
    for k in range(8):
        a.wait(lg=("tw", k))
        s = TWS + 8*(k % NB)
        cmul4(k, s, s+4, -1)
        if k + NB < 8: twread(0, k+NB)
        t64.pop(0)(); t64.pop(0)()
        pack4(k, True)
    a.wait(lg="t64")
    mark(a, opt, 0)
    stage_big(PR, PI, PI, PN, False)
    mark(a, opt, 1)
    a("s_barrier")
    mark(a, opt, 2)
    wread(0); wread(1)
    for k in range(8):
        a.wait(lg=("tw", k))
        if k + 2 < 8: wread(k+2)
        s = TWS + 8*(k % NB)
        for e in range(8): a(f"v_lshlrev_b32 v{s+e}, 16, v{s+e}")
        cmul4(k, s, s+4, +1)
        pack4(k, False)
    stage_big(PR, PN, PI, PR, True, fill=[lambda k=k: twread(1, k) for k in range(NB)])
    for k in range(8):
        a.wait(lg=("tw", k))
        s = TWS + 8*(k % NB)
        cmul4(k, s, s+4, +1)
        if k + NB < 8: twread(1, k+NB)
        pack4(k, False)
    stage_small(PR, PN, PI, PR)
    mark(a, opt, 4)
    a("s_add_u32 s63, s62, 4096\ns_cmp_lg_u32 s61, 0\ns_cbranch_scc1 K2_fft_spw")
    off = lambda j: ((j & 3) + 8*(j >> 2))*128
    for p in range(2):
        for j in range(16):
            a(f"v_cvt_pk_bf16_f32 v{16+16*p+j}, v{AR+16*p+j}, v{AI+16*p+j}")
            a(f"buffer_store_dword v{16+16*p+j}, v6, s[32:35], s{62+p} offen offset:{off(j)} {st_v}")
    a("s_branch K2_fft_out\nK2_fft_spw:\ns_sub_u32 s59, s61, 1\ns_lshl_b32 s59, s59, 1\nv_add_u32 v6, s59, v6")
    for p in range(2):
        for j in range(16):
            a(f"v_cvt_pk_bf16_f32 v{16+16*p+j}, v{AR+16*p+j}, v{AR+16*p+j}")
            a(f"buffer_store_short v{16+16*p+j}, v6, s[32:35], s{62+p} offen offset:{off(j)} {st_v}")
    a("K2_fft_out:")
    if opt.get("stamp"):
        a("s_waitcnt vmcnt(0)")
        a("s_mov_b32 s87, 0")
        mark(a, opt, 5)
        stamp_out(a, 3, "s48", 32, "K2_end")
    a("K2_end:\ns_endpgm")
    a.end_kernel("k2_kernel", 256, 96)
    a.launch("k2_kernel", 256, 512, 163840)
    tab = fft_tables()
    t = [".p2align 8", ".type fft_tab,@object", "fft_tab:"]
    for i in range(0, len(tab), 8):
        t.append(".long " + ",".join("0x%x" % x for x in tab[i:i+8]))
    a.tail += t
```

```python
from fw import *
from common import *
M16 = "v_mfma_f32_16x16x32_bf16"
def r4(x): return f"v[{x}:{x+3}]"

def gen_k3(a, opt):
    st_o = opt.get("st_o", "")
    a.begin_kernel("k3_kernel")
    a("s_cmp_ge_u32 s2, 192\ns_cbranch_scc1 K3_end")
    if opt.get("stamp"): a("s_memrealtime s[90:91]")
    GB = 32
    PB = 104
    XB = 136
    VB = 144
    RC = 216
    ACC = 16
    a(f"""s_load_dwordx2 s[32:33], s[0:1], 72
s_load_dwordx2 s[24:25], s[0:1], 0
s_load_dwordx2 s[28:29], s[0:1], 56
v_lshrrev_b32 v1, 6, v0
v_and_b32 v0, 63, v0
v_readfirstlane_b32 s48, v1        ; wave
s_and_b32 s49, s2, 7
s_lshl_b32 s49, s49, 3
s_bfe_u32 s59, s2, 0x30003
s_add_u32 s49, s49, s59            ; G
s_mov_b32 s34, 0x10000000
s_mov_b32 s35, 0x20000
v_lshlrev_b32 v7, 4, v0
s_mul_i32 s53, s49, 36864
s_mul_i32 s59, s48, 6144
s_mov_b32 m0, s59
s_mul_i32 s54, s48, {48*8192}
s_lshl_b32 s59, s49, 7
s_add_u32 s54, s54, s59
s_add_u32 s54, s54, {WS_V}
v_lshrrev_b32 v5, 3, v0
v_and_b32 v6, 4, v5
v_xor_b32 v6, v6, v0
v_and_b32 v6, 7, v6
v_lshlrev_b32 v6, 4, v6
v_lshl_add_u32 v6, v5, 13, v6
s_lshr_b32 s50, s2, 6              ; third
s_cmp_ge_u32 s48, 3
s_cselect_b32 s51, 1, 0            ; par
s_cselect_b32 s62, -1.0, 1.0
s_cselect_b32 s60, -3, 3
s_add_u32 s65, s48, s60
s_mul_i32 s59, s51, 3
s_sub_u32 s52, s48, s59
s_mul_i32 s59, s50, 3
s_add_u32 s52, s52, s59            ; dp (0..8)
v_and_b32 v2, 15, v0               ; n16
v_lshrrev_b32 v3, 4, v0            ; g
s_waitcnt lgkmcnt(0)""")
    for k in range(6):
        a.vmop(f"buffer_load_dwordx4 v6, s[32:35], s54 offen lds", "v")
        if k < 5: a("s_add_u32 m0, m0, 1024\ns_add_u32 s54, s54, 65536")
    a(f"""s_mov_b32 s26, {T*D*2}
s_mov_b32 s27, 0x20000
s_mov_b32 s30, {T*D*2}
s_mov_b32 s31, 0x20000
s_mul_i32 s60, s51, 9
s_add_u32 s56, s52, s60
s_lshl_b32 s57, s56, 10
s_add_u32 s57, s57, s53
s_add_u32 s57, s57, {WS_PART}
v_mul_u32_u24 v4, 73728, v2
v_and_b32 v5, 1, v3
v_lshl_add_u32 v4, v5, 5, v4
v_lshrrev_b32 v5, 1, v3
v_lshl_add_u32 v4, v5, 4, v4
s_mul_i32 s58, s49, 1152
s_lshl_b32 s60, s56, 6
s_add_u32 s58, s58, s60
s_add_u32 s61, s58, {16*73728}""")
    loads = [lambda: a.vmop(f"buffer_load_dwordx4 {r4(XB)}, v4, s[24:27], s58 offen", "x"),
             lambda: a.vmop(f"buffer_load_dwordx4 {r4(XB+4)}, v4, s[24:27], s61 offen", "x")]
    for s in range(4):
        for th in range(2):
            def ld(s=s, th=th):
                a(f"s_add_u32 s59, s57, {s*64*18*2048 + th*18*1024}")
                a.vmop(f"buffer_load_dwordx4 {r4(PB+8*s+4*th)}, v7, s[32:35], s59 offen", ("p", s))
            loads.append(ld)
    g = []
    g += f"""v_lshl_add_u32 v9, v3, 3, s51
v_cvt_f32_u32 v9, v9               ; j0
v_cmp_eq_f32 vcc, 0, v9
s_lshl_b32 s63, s52, 5""".split("\n")
    P, Q = RC, RC + 8
    for t in range(2):
        g += f"""v_add_u32 v10, s63, v2
v_cvt_f32_u32 v11, v10
v_mul_f32 v11, {fbits(1/576)}, v11
v_mul_f32 v{P}, v9, v11
v_add_f32 v12, v11, v11
v_mul_f32 v13, {fbits(32.0)}, v11""".split("\n")
        g += [f"v_add_f32 v{P+4}, v{P}, v12", f"v_add_f32 v{P+2}, v{P+4}, v12", f"v_add_f32 v{P+6}, v{P+2}, v12"]
        for q in range(4): g.append(f"v_add_f32 v{P+2*q+1}, {fbits(0.25)}, v{P+2*q}")
        for i in range(8): g.append(f"v_add_f32 v{Q+i}, v{P+i}, v13")
        g.append("v_cos_f32 v13, v13")
        for i in range(16): g.append(f"v_cos_f32 v{P+i}, v{P+i}")
        g.append("v_add_f32 v13, v13, v13")
        g += ["v_lshlrev_b32 v14, 31, v10", "v_or_b32 v14, 0x3f003f00, v14"]
        for kk in range(9):
            cur = (P, Q)[kk % 2]; oth = (Q, P)[kk % 2]
            if kk >= 2:
                for i in range(8): g.append(f"v_fma_f32 v{cur+i}, v13, v{oth+i}, -v{cur+i}")
            for i in range(4): g.append(f"v_cvt_pk_bf16_f32 v{GB+8*kk+4*t+i}, v{cur+2*i}, v{cur+2*i+1}")
            if kk == 0: g.append(f"v_cndmask_b32 v{GB+4*t}, v{GB+4*t}, v14, vcc")
        if t == 0: g.append("s_add_u32 s63, s63, 16")
    g += f"""v_lshlrev_b32 v5, 9, v3
v_lshl_add_u32 v5, v2, 2, v5
v_and_b32 v9, 1, v3
v_lshl_add_u32 v5, v9, 6, v5
s_mul_i32 s59, s51, {9*2048}
v_add_u32 v12, s59, v5             ; V read addr th=0, q even
v_xor_b32 v13, 64, v12             ; th=1
v_add_u32 v14, 128, v12
v_add_u32 v15, 128, v13
s_lshl_b32 s59, s48, 12
s_add_u32 s59, s59, 36864
v_add_u32 v6, s59, v7              ; exchange write addr
s_lshl_b32 s59, s65, 12
s_add_u32 s59, s59, 36864
v_add_u32 v8, s59, v7              ; exchange read addr
s_mov_b32 s63, {fbits(2/(576*2048))}
s_mov_b32 s64, {fbits(LN2)}""".split("\n")
    npre = opt.get("k3_pre", 6)
    start = opt.get("k3_start", 100); step = opt.get("k3_step", 25)
    for k, l in enumerate(g):
        a(l)
        if k >= start and (k - start) % step == 0 and npre and k < len(g) - 20:
            loads.pop(0)(); npre -= 1
    mark(a, opt, 0)
    a.wait(vm="v")
    a("s_barrier")
    mark(a, opt, 1)
    def vread(kk, n):
        th, z = n // 2, n % 2
        d = VB + 8*kk + 4*th + 2*z
        a.lgop(f"ds_read2st64_b32 v[{d}:{d+1}], v{12+th+2*z} offset0:{8*kk} offset1:{8*kk+1}", ("v", kk))
    LA = 3
    for kk in range(LA):
        for n in range(4): vread(kk, n)
    for kk in range(9):
        a.wait(lg=("v", kk))
        for th in range(2):
            for t in range(2):
                d = ACC + 8*th + 4*t
                a(f"{M16} {r4(d)}, {r4(GB+8*kk+4*t)}, {r4(VB+8*kk+4*th)}, " + (r4(d) if kk else "0"))
                if kk + LA < 9: vread(kk + LA, 2*th + t)
        if loads and kk % 2 == 1 and opt.get("k3_mid", 1): loads.pop(0)()
    if loads: loads.pop(0)()
    for k in range(4): a.lgop(f"ds_write_b128 v6, {r4(ACC+4*k)} offset:{k*1024}", "e")
    if loads: loads.pop(0)()
    a.wait(lg="e")
    a("s_barrier")
    for k in range(4): a.lgop(f"ds_read_b128 {r4(48+4*k)}, v8 offset:{k*1024}", "e2")
    while loads: loads.pop(0)()
    mark(a, opt, 2)
    a.wait(vm="x")
    for k in range(8):
        a(f"v_lshlrev_b32 v{32+2*k}, 16, v{XB+k}\nv_and_b32 v{33+2*k}, 0xffff0000, v{XB+k}")
    a.wait(lg="e2")
    for k in range(16):
        a(f"v_fma_f32 v{48+k}, v{ACC+k}, s62, v{48+k}")
    for th in range(2):
        for e in range(4):
            a(f"v_permlane16_swap_b32 v{48+8*th+e}, v{52+8*th+e}")
    for k in range(16):
        a(f"v_fmac_f32 v{32+k}, s63, v{48+k}")
    mark(a, opt, 3)
    for s in range(4):
        a.wait(vm=("p", s))
        if s == 3: mark(a, opt, 4)
        for th in range(2):
            for e in range(4):
                src = PB + 8*s + 4*th + e
                a(f"v_lshlrev_b32 v{48+2*e}, 16, v{src}\nv_and_b32 v{49+2*e}, 0xffff0000, v{src}")
            for e in range(8):
                a(f"v_fmac_f32 v{32+8*th+e}, s64, v{48+e}")
            if s == 3:
                for e in range(4): a(f"v_cvt_pk_bf16_f32 v{XB+4*th+e}, v{32+8*th+2*e}, v{33+8*th+2*e}")
                a.vmop(f"buffer_store_dwordx4 {r4(XB+4*th)}, v4, s[28:31], s{58 if th == 0 else 61} offen {st_o}", "o")
    if opt.get("stamp"):
        mark(a, opt, 5)
        a.wait(vm="all")
        stamp_out(a, 2, "s48", 32, "K3_end")
    a("K3_end:\ns_endpgm")
    a.end_kernel("k3_kernel", 232, 96)
    a.launch("k3_kernel", 192, 384, 36864 + 6*4096)
```

```python
from fw import *
from common import *

NXB = 5
XBUF = lambda c: (c % NXB)*16384
F_OFF = 131072
E_OFF = F_OFF + 20480
ESTR = 1168
CS_OFF = 131072
BI_OFF = 139264
WR_OFF = 147456
STAT = 159744
SCR = STAT + 2048
X0 = 112
ACCX, ACCY, ACCZ = 16, 32, 48
FR = 80
TB = [72, 76, 104, 108]
TMP = 96; PK = 104
M32 = "v_mfma_f32_32x32x16_bf16"; M16 = "v_mfma_f32_16x16x32_bf16"
CA = 8
SEL = 12
EA = 68
TF = 72; CF = 76
HB = 48

def r4(x): return f"v[{x}:{x+3}]"
def r16(x): return f"v[{x}:{x+15}]"

def gen_k1(a, opt):
    st_act = opt.get("st_act", "sc1"); st_u = opt.get("st_u", ""); st_wt = opt.get("st_wt", "sc1")
    ld_x = opt.get("ld_x", ""); ld_w = opt.get("ld_w", "")
    a.begin_kernel("k1_kernel")
    a("s_cmp_ge_u32 s2, 256\ns_cbranch_scc1 K1_end")
    if opt.get("stamp"): a("s_memrealtime s[90:91]")
    a("""s_load_dwordx8 s[4:11], s[0:1], 0
s_load_dwordx8 s[12:19], s[0:1], 32
s_load_dwordx2 s[32:33], s[0:1], 72
s_lshr_b32 s60, s2, 3              ; idx
s_getpc_b64 s[80:81]
s_mov_b32 s82, 0x10000
s_mov_b32 s83, 0x20000
v_lshrrev_b32 v1, 5, v0
v_lshlrev_b32 v1, 7, v1
s_lshl_b32 s59, s60, 11""")
    a.vmop("buffer_load_dword v34, v1, s[80:83], s59 offen", "pf")
    a(f"""v_lshrrev_b32 v1, 6, v0
v_mov_b32 v36, v0
v_readfirstlane_b32 s48, v1        ; wave
v_and_b32 v0, 63, v0               ; lane
s_and_b32 s49, s2, 1
s_lshl_b32 s49, s49, 3
s_and_b32 s61, s60, 7
s_add_u32 s49, s49, s61            ; rb
s_mov_b32 s22, 73728
v_lshrrev_b32 v40, 3, v0           ; r
v_lshrrev_b32 v42, 4, v0
v_xor_b32 v42, v42, v0
v_and_b32 v42, 7, v42
v_lshlrev_b32 v42, 4, v42
v_mad_u32_u24 v32, v40, s22, v42
s_lshl_b32 s53, s49, 2
s_lshr_b32 s59, s48, 1
s_add_u32 s53, s53, s59
s_mul_i32 s53, s53, 1152
s_and_b32 s59, s48, 1
v_xor_b32 v33, 64, v32
s_mul_i32 s59, s59, {16*73728}
v_add_u32 v33, {8*73728-1024}, v33
s_add_u32 s53, s53, s59
s_lshr_b32 s3, s60, 3
s_lshr_b32 s71, s49, {opt.get("rotsh", 1)}
s_xor_b32 s71, s71, s3
s_and_b32 s71, s71, {opt.get("rotmask", 1)}
s_mul_i32 s71, s71, {opt.get("rot", 4)}
s_lshl_b32 s20, s71, 7
s_add_u32 s20, s20, s53
s_add_u32 s21, s53, 1152
s_lshl_b32 s57, s48, 11            ; wave*2048
s_mov_b32 s26, {T*D*2}
s_mov_b32 s27, 0x20000
s_mov_b32 m0, s57
s_bfe_u32 s50, s2, 0x20001
s_lshl_b32 s50, s50, 2
s_add_u32 s50, s50, s3             ; cg
s_mul_i32 s63, s50, 576
s_and_b32 s64, s50, 1
s_lshl_b32 s59, s64, 6
s_add_u32 s54, s63, s59            ; first full slab (bytes)
v_mul_u32_u24 v5, 9216, v40
v_lshlrev_b32 v42, 1, v40
v_and_b32 v42, 4, v42
v_and_b32 v41, 7, v0
v_xor_b32 v42, v42, v41
v_lshl_add_u32 v5, v42, 4, v5      ; W voffset
s_lshl_b32 s56, s48, 10
s_mul_i32 s59, s48, {8*9216}
s_add_u32 s54, s54, s59
s_mul_i32 s72, s71, {64*9216}
s_add_u32 s36, s54, s72
s_add_u32 s99, s54, {576*9216}
s_and_b32 s45, s49, {opt.get("srotmask", 1)}
s_mul_i32 s45, s45, {opt.get("srot", 2)}
s_mov_b32 s30, {D*F*2}
s_mov_b32 s31, 0x20000
s_waitcnt lgkmcnt(0)
s_mov_b64 s[24:25], s[4:5]""")
    frame_of = {}
    def dma_x(c, mid=None):
        if c: a(f"s_add_u32 m0, s57, {XBUF(c)}\ns_add_u32 s20, s20, 128\ns_cmp_eq_u32 s20, s21\ns_cselect_b32 s20, s53, s20")
        if mid: mid()
        a.vmop(f"buffer_load_dwordx4 v32, s[24:27], s20 offen {ld_x} lds", ("x", c))
        a.vmop(f"buffer_load_dwordx4 v33, s[24:27], s20 offen offset:1024 {ld_x} lds", ("x", c))
    def dma_w(u, fr, mid=None):
        frame_of[u] = fr
        if u % 9 == 0 and u <= 36:
            if u < 36: a(f"s_add_u32 s23, s45, {u//9}\ns_and_b32 s23, s23, 3\ns_lshl_b32 s23, s23, 7\ns_add_u32 s28, s12, s23\ns_addc_u32 s29, s13, 0")
            else: a("s_mov_b64 s[28:29], s[12:13]")
        a(f"s_add_u32 m0, s56, {fr*8192}")
        if mid: mid()
        if u < 36:
            a.vmop(f"buffer_load_dwordx4 v5, s[28:31], s{36 + u % 9} offen {ld_w} lds", ("w", u))
            if u < 8: a(f"s_add_u32 s{37+u}, s{36+u}, {64*9216}\ns_cmp_eq_u32 s{37+u}, s99\ns_cselect_b32 s{37+u}, s54, s{37+u}")
        else:
            a.vmop(f"buffer_load_dwordx4 v{EA}, s[28:31], s100 offen {ld_w} lds", ("w", u))
            a(f"s_add_u32 s100, s100, {128*9216}\ns_sub_u32 s23, s100, {576*9216}\ns_cmp_ge_u32 s100, s101\ns_cselect_b32 s100, s23, s100")
    seq0 = []
    for c in range(9): seq0 += [("x", c), ("w", c)]
    seq0 += [("w", u) for u in range(9, 41)]
    free0 = list(range(2*NXB, 16))
    def issue0(n):
        for _ in range(n):
            k, i = seq0.pop(0)
            if k == "x": dma_x(i)
            else: dma_w(i, free0.pop(0))
    issue0(opt.get("k1_n0", 3))
    XV = X0; XP = X0 + 32
    a(f"""s_and_b32 s51, s48, 3              ; q
s_lshr_b32 s52, s48, 2             ; type
v_and_b32 v38, 31, v0              ; n
v_lshrrev_b32 v39, 5, v0           ; h
v_lshlrev_b32 v7, 4, v0            ; lane*16
s_cmp_lt_u32 s50, 9
s_cselect_b32 s75, 1.0, -1.0       ; sgn
s_cmp_ge_u32 s48, 5
s_cbranch_scc1 K1_egen
s_lshl_b32 s61, s50, 5
s_sub_u32 s60, s61, 287
s_cmp_lt_u32 s50, 9
s_cselect_b32 s59, s61, s60        ; jb
s_cselect_b32 s60, 0, 2
v_and_b32 v16, 30, v38
v_add_u32 v16, s59, v16            ; j
v_and_or_b32 v17, v38, 1, s60
v_add_u32 v18, s61, v38            ; c
v_cmp_eq_u32 vcc, 1, v18
v_mov_b32 v19, 288
v_lshrrev_b32 v18, 5, v36          ; seg
v_mov_b32 v20, -1
v_cndmask_b32 v16, v16, v19, vcc
v_cndmask_b32_e64 v17, v17, 0, vcc
v_lshlrev_b32 v19, 11, v18
v_lshl_add_u32 v19, v38, 4, v19
v_add_u32 v19, {F_OFF}, v19
s_movk_i32 s70, 512
s_branch K1_gen
K1_egen:
s_cmp_eq_u32 s48, 7
s_cbranch_scc1 K1_gend
v_subrev_u32 v18, 320, v36
v_mul_u32_u24 v21, 3641, v18
v_lshrrev_b32 v21, 16, v21         ; row
v_mul_u32_u24 v19, 18, v21
v_sub_u32 v18, v18, v19            ; seg
v_mul_u32_u24 v19, {ESTR}, v21
v_lshl_add_u32 v19, v18, 6, v19
v_add_u32 v19, {E_OFF}, v19
s_lshl_b32 s59, s50, 2
s_add_u32 s59, s59, 225
v_and_b32 v16, 2, v21
v_add_u32 v16, s59, v16
v_cmp_gt_u32 vcc, 4, v21
v_and_b32 v17, 1, v21
s_movk_i32 s70, 16
v_cndmask_b32 v16, 0, v16, vcc
v_cmp_ne_u32 vcc, 5, v21
s_nop 1
v_cndmask_b32_e64 v20, 0, -1, vcc
K1_gen:
s_lshl_b32 s59, s71, 6
v_lshl_add_u32 v18, v18, 5, s59    ; d0
v_cvt_f32_u32 v16, v16
v_cvt_f32_u32 v17, v17
v_cvt_f32_u32 v18, v18
v_mul_f32 v16, {fbits(1/576)}, v16
v_mul_f32 v17, {fbits(0.25)}, v17
v_fma_f32 v17, v18, v16, v17
v_fract_f32 v17, v17
v_add_f32 v18, v17, v16
v_cos_f32 v{XV}, v17
v_cos_f32 v{XV+1}, v18
v_cos_f32 v16, v16
v_and_b32 v{XV}, v20, v{XV}
v_and_b32 v{XV+1}, v20, v{XV+1}
v_add_f32 v16, v16, v16""")
    for k in range(2, 32):
        a(f"v_fma_f32 v{XV+k}, v16, v{XV+k-1}, -v{XV+k-2}")
        if k % 2 == 0: a(f"v_cvt_pk_bf16_f32 v{XP+k//2-1}, v{XV+k-2}, v{XV+k-1}")
        if k % 8 == 0:
            a(f"ds_write_b128 v19, {r4(XP + k//2 - 4)}\nv_add_u32 v19, s70, v19")
    a(f"v_cvt_pk_bf16_f32 v{XP+15}, v{XV+30}, v{XV+31}\nds_write_b128 v19, {r4(XP+12)}")
    a("K1_gend:")
    a.lg.append("fgen")
    a(f"""s_lshl_b32 s59, s51, 12
v_lshl_add_u32 v22, v38, 7, s59
v_bfe_u32 v23, v38, 1, 3
v_xor_b32 v23, v23, v39
s_lshl_b32 s59, s51, 1
v_xor_b32 v23, s59, v23
v_lshl_add_u32 v96, v23, 4, v22
v_xor_b32 v97, 32, v96
v_xor_b32 v98, 64, v96
v_xor_b32 v99, 0x60, v96
v_lshrrev_b32 v26, 2, v0
v_xor_b32 v26, v26, v0
v_bfe_u32 v26, v26, 2, 1           ; ((l>>4)^(l>>2))&1
v_bfe_u32 v16, v0, 2, 2            ; r
v_lshl_add_u32 v17, v39, 3, v16    ; 8h + r
v_bfe_u32 v18, v0, 4, 1
v_lshlrev_b32 v18, 5, v18
v_and_b32 v19, 3, v0
v_lshl_add_u32 v18, v19, 3, v18
v_lshrrev_b32 v16, 1, v16
v_xor_b32 v16, s52, v16
v_lshl_add_u32 v18, v16, 6, v18
v_lshl_add_u32 v21, v17, 7, v18
s_lshl_b32 s59, s51, 11
s_add_u32 s59, s59, 65536
v_add_u32 v1, s59, v21
v_xor_b32 v2, 0x800, v1
v_xor_b32 v3, 0x1000, v1
v_xor_b32 v4, 0x1800, v1
v_add_u32 v27, -1, v26
v_and_b32 v{SEL}, 0x3f803f80, v27
v_mov_b32 v{SEL+1}, v{SEL}
v_mov_b32 v{SEL+2}, v{SEL}
v_mov_b32 v{SEL+3}, v{SEL}
s_cmp_lg_u32 s52, 0
s_cbranch_scc1 K1_typeB""")
    vm0 = list(a.vm); lg0 = list(a.lg); fr0 = dict(frame_of)
    BARS = sorted(set(opt.get("bars0", [0, 4, 8, 12, 16, 20, 24, 28]) + [32, 36] + opt.get("bars1", [44, 56]) + [72, 92, 108, 128, 144]))
    TJOIN = 72; TSPLIT = 128
    join_state = {}

    def body(typ, part):
        A = typ == "A"
        if part == 0:
            a.vm = list(vm0); a.lg = list(lg0)
            frame_of.clear(); frame_of.update(fr0)
            st = dict(win=65536, hwin=0, seq=list(seq0), free=list(free0), freed=0, xdone=-1, xread=-1)
            if A:
                a(f"""v_and_b32 v24, 8, v0
v_cmp_eq_u32 vcc, 0, v24
v_cmp_eq_u32 s[60:61], 0, v26
v_mov_b32 v37, 0
v_mov_b32 v35, 0
v_cndmask_b32 v24, 4, v19, vcc
v_cndmask_b32_e64 v24, 5, v24, s[60:61]
v_mul_u32_u24 v24, {ESTR}, v24
v_lshl_add_u32 v24, v39, 4, v24""")
                for i in range(4):
                    a(f"s_xor_b32 s59, s51, {i}\ns_lshl_b32 s59, s59, 5\ns_add_u32 s59, s59, {E_OFF}\nv_add_u32 v{100+i}, s59, v24")
            else:
                a(f"""s_lshl_b32 s59, s51, 10
s_add_u32 s59, s59, {F_OFF}
v_add_u32 v100, s59, v7
v_xor_b32 v101, 0x400, v100
v_xor_b32 v102, 0x800, v100
v_xor_b32 v103, 0xc00, v100""")
        else:
            st = dict(join_state["st2"])
            a.vm = list(join_state["vm2"]); a.lg = list(join_state["lg2"])
            frame_of.clear(); frame_of.update(join_state["fr2"])
        def try_issue(mid=None):
            if not st["seq"]: return False
            k, i = st["seq"][0]
            if k == "x":
                if i >= NXB and st["xdone"] < i - NXB: return False
                st["seq"].pop(0); dma_x(i, mid)
            else:
                if not st["free"]: return False
                st["seq"].pop(0); dma_w(i, st["free"].pop(0), mid)
            return True
        xwin = [0]
        def xreads(c):
            want = 65536 if XBUF(c) >= 65536 else 0
            if want != xwin[0]:
                for i in range(4):
                    a(f"v_add_u32 v{96+i}, {(want - xwin[0]) & 0xffffffff:#x}, v{96+i}")
                xwin[0] = want
            for i in range(4):
                a.lgop(f"ds_read_b128 {r4(X0+16*c+4*i)}, v{96+i} offset:{XBUF(c) - xwin[0]}", ("xr", c))
            st["xread"] = c
        def fread(c, i):
            off = c*128 if A else (4*c if c < 5 else 4*c - 18)*1024
            a.lgop(f"ds_read_b128 {r4(TB[i])}, v{100+i} offset:{off}", ("tb", c, i))
        def extra(c, i):
            a.wait(lg=[("xr", c), ("tb", c, i)])
            if not A and c == 5 and i == 0:
                for j in range(16): a(f"v_mul_f32 v{ACCZ+j}, s75, v{ACCZ+j}")
            x = X0 + 16*c + 4*i
            if A:
                sq = opt.get("sq", "dot16")
                if sq == "dot8" and i % 2 == 0:
                    for k in range(8): a(f"v_dot2c_f32_bf16 v{37 if k % 2 else 35}, v{x+k}, v{x+k}")
                if sq == "dot16" and i == 0:
                    for k in range(16): a(f"v_dot2c_f32_bf16 v{37 if k % 2 else 35}, v{x+k}, v{x+k}")
                a(f"{M16} {r4(EA)}, {r4(TB[i])}, {r4(x)}, " + (r4(EA) if (c or i) else "0"))
                if sq == "valu":
                    for k in range(4): a(f"v_lshlrev_b32 v{56+2*k}, 16, v{x+k}\nv_and_b32 v{57+2*k}, 0xffff0000, v{x+k}")
                    for k in range(8): a(f"v_fmac_f32 v{37 if k % 2 else 35}, v{56+k}, v{56+k}")
            else: a(f"{M32} {r16(ACCZ)}, {r4(x)}, {r4(TB[i])}, " + (r16(ACCZ) if (c or i) else "0"))
            if c < 8: fread(c + 1, i)
        def haddr(k):
            base = frame_of[36 + k//8]*8192 + ((k//4) % 2)*4096
            if not (st["hwin"] <= base and base + 256 - st["hwin"] <= 65535):
                nw = base & ~0xffff
                for j in range(4):
                    a(f"v_add_u32 v{HB+j}, {(nw - st['hwin']) & 0xffffffff:#x}, v{HB+j}")
                st["hwin"] = nw
            return base - st["hwin"]
        def wread(t):
            b = FR + 4*(t % 4)
            if t < 144:
                base = frame_of[t // 4]*8192
                nw = base & ~0xffff
                if nw != st["win"]:
                    for k in range(4): a(f"v_xor_b32 v{1+k}, 0x10000, v{1+k}")
                    st["win"] = nw
                reg = 1 + t % 4; off = base - nw; second = 512
            else:
                k = t - 144 + (0 if A else 18)
                off = haddr(k); reg = HB + k % 4; second = 256
            a.lgop(f"ds_read_b64_tr_b16 v[{b}:{b+1}], v{reg} offset:{off}", ("f", t))
            a.lgop(f"ds_read_b64_tr_b16 v[{b+2}:{b+3}], v{reg} offset:{off + second}", ("f", t))
        def cspub(addr, off, ca=CA):
            return [(4, lambda: a(f"v_cvt_pk_bf16_f32 v{ca+1}, v{ca}, v{ca}")),
                    (4, lambda: a(f"v_lshlrev_b32 v{ca+1}, 16, v{ca+1}")),
                    (4, lambda: a(f"v_sub_f32 v{ca+1}, v{ca}, v{ca+1}")),
                    (4, lambda: a(f"v_cvt_pk_bf16_f32 v{ca+1}, v{ca}, v{ca+1}")),
                    (4, lambda: a.lgop(f"ds_write_b32 v{addr}, v{ca+1} offset:{off}", "pub"))]
        def corr_ops(acc, areg, off):
            return [(0, lambda: a.lgop(f"ds_read_b128 {r4(CF)}, v{areg} offset:{off}", "cr"))], \
                   [(8, lambda: (a.wait(lg="cr"), a(f"{M32} {r16(acc)}, {r4(CF)}, {r4(TF)}, {r16(acc)}")))]
        def mish_ops(acc, sbase, npair=8, k0=0):
            o = []; stages = []
            for p in range(npair):
                Tt = TMP + 4*(p % 2); E = Tt + 2; s = acc + 2*p
                stg = []
                stg.append([(4, f"v_mul_f32 v{Tt}, v{s}, v6"), (4, f"v_mul_f32 v{Tt+1}, v{s+1}, v6")])
                stg.append([(8, f"v_exp_f32 v{E}, v{Tt}"), (8, f"v_exp_f32 v{E+1}, v{Tt+1}")])
                stg.append([(4, f"v_fma_f32 v{s}, v{E}, -0.5, -1.0"), (4, f"v_fma_f32 v{s+1}, v{E+1}, -0.5, -1.0")])
                stg.append([(4, f"v_fma_f32 v{E}, v{E}, v{s}, -1.0"), (4, f"v_fma_f32 v{E+1}, v{E+1}, v{s+1}, -1.0")])
                stg.append([(8, f"v_rcp_f32 v{E}, v{E}"), (8, f"v_rcp_f32 v{E+1}, v{E+1}")])
                stg.append([(4, f"v_fmac_f32 v{Tt}, v{Tt}, v{E}"), (4, f"v_fmac_f32 v{Tt+1}, v{Tt+1}, v{E+1}")])
                stg.append([(4, f"v_cvt_pk_bf16_f32 v{PK+p}, v{Tt}, v{Tt+1}")])
                stages.append(stg)
            seq = []
            for p in range(npair + 1):
                f = [x for s_ in stages[p][:4] for x in s_] if p < npair else []
                s_ = [x for z in stages[p-1][4:] for x in z] if p > 0 else []
                if f and s_:
                    seq += [f[0], s_[0], f[1], s_[1], f[2], s_[2], f[3], s_[3], f[4], f[5], s_[4], f[6], f[7]]
                else:
                    seq += f + s_
                if p in (4, 8): seq.append(("st", (p//4) - 1))
            for it in seq:
                if it[0] == "st":
                    o.append((4, lambda k=it[1]: a.vmop(f"buffer_store_dwordx4 {r4(PK+4*k)}, v7, s[32:35], {sbase} offen offset:{1024*(k+k0)} {st_act}", "st")))
                else:
                    o.append((it[0], lambda l=it[1]: a(l)))
            return o
        sched = {}
        def spread(ops, t0, t1):
            tot = sum(c for c, _ in ops); n = t1 - t0; cum = 0; k = 0
            for c, o in ops:
                while cum + c/2 > (k + 1)*tot/n and k < n - 1: k += 1
                sched.setdefault(t0 + k, []).append(o); cum += c
        def at(t, f): sched.setdefault(t, []).append(f)
        def lines(txt, scost=0):
            return [((scost if l.strip().startswith("s_") else 4), (lambda l=l: a(l.replace("|", "\n")))) for l in txt.split("\n")]
        accs = [ACCX, ACCY, ACCX, ACCY, ACCX]
        tt = 44
        if part == 0:
            for c in range(1, 9):
                for i in range(4): at(min(4*(c-1) + 1 + i, 31), lambda c=c, i=i: extra(c, i))
            common = lines(f"""s_mov_b32 s34, 0x10000000
s_mov_b32 s35, 0x20000
s_mov_b64 s[96:97], s[14:15]
s_mov_b32 s98, {F*2}
s_lshl_b32 s73, s49, 2
s_add_u32 s73, s73, s51            ; G
s_mul_i32 s58, s73, {144*2048}
s_mul_i32 s65, s50, 9
s_xor_b32 s66, s64, 1
s_lshl_b32 s66, s66, 3
s_add_u32 s66, s66, s65
s_lshl_b32 s66, s66, 11
s_add_u32 s62, s58, s66            ; act base of H tile
s_add_u32 s65, s65, s64
s_add_u32 s65, s65, s52
s_lshl_b32 s65, s65, 11
s_add_u32 s58, s58, s65            ; act base slab 0
""" + "".join(f"""s_add_u32 s65, s45, {k}
s_and_b32 s65, s65, 3
s_lshl_b32 s65, s65, 12
s_add_u32 s{r}, s58, s65
""" for k, r in enumerate((46, 47, 78, 95))) + f"""s_add_u32 s65, s64, s52
s_lshl_b32 s65, s65, 9
s_add_u32 s65, s65, {CS_OFF}
v_lshl_add_u32 v65, v38, 4, s65
v_lshlrev_b32 v64, 13, v39
v_add_u32 v64, v64, v65            ; corr read addr: h=0 cs, h=1 bias
s_lshl_b32 s65, s51, 2
v_add_u32 v65, s65, v65            ; cs write addr
s_lshl_b32 s74, s51, 9
s_add_u32 s74, s74, {STAT}
v_lshl_add_u32 v67, v0, 2, s74     ; stat addr
s_xor_b32 s65, s64, 1
s_lshl_b32 s65, s65, 9
s_add_u32 s55, s63, s65
s_mul_i32 s65, s51, {16*9216}
s_add_u32 s55, s55, s65            ; H soffset base
s_add_u32 s101, s55, {576*9216}
s_mul_i32 s65, s52, {64*9216}
s_add_u32 s100, s55, s65
s_add_u32 s100, s100, s72          ; running H soffset
s_lshl_b32 s76, s64, 5
v_subrev_u32 v41, s76, v36         ; column inside the four full slabs
s_lshl_b32 s77, s45, 6
v_add_u32 v42, s77, v41
v_and_b32 v42, 255, v42
v_add_u32 v42, s76, v42
v_cmp_gt_u32 vcc, 256, v41
v_mov_b32 v43, 0
v_mov_b32 v41, 0
v_cndmask_b32 v34, v36, v42, vcc
v_lshlrev_b32 v34, 1, v34
v_lshlrev_b32 v36, 4, v36
v_add_u32 v36, {BI_OFF}, v36
v_mov_b32 v42, 0""", 1)
            tb = opt.get("t_bias", 24)
            spread(common, 0, 20)
            at(tb, lambda: (a("s_mov_b32 s99, 0x20000"), a.vmop("buffer_load_ushort v40, v34, s[96:99], s63 offen", "bias")))
            at(34, lambda: (a.wait(vm="bias"), a.lgop("ds_write_b128 v36, v[40:43]", "pub")))
            if A:
                stats = lines(f"""v_add_f32 v37, v37, v35
v_mov_b32 v{tt+1}, v{EA}
v_mov_b32 v{tt+3}, v{EA}
v_mov_b32 v{tt}, v37
v_cmp_gt_u32 vcc, 32, v0
v_permlane32_swap_b32 v{tt+1}, v{tt+3}
v_permlane32_swap_b32 v37, v{tt}
v_add_f32 v{tt+2}, v37, v{tt}
v_mul_f32 v{tt}, {fbits(-1/576)}, v{tt+3}
v_mul_f32 v{tt+2}, {fbits(1/576)}, v{tt+2}
v_fma_f32 v{tt+2}, -v{tt}, v{tt}, v{tt+2}
v_cvt_pk_bf16_f32 v{tt}, v{tt}, v{tt}
v_max_f32 v{tt+2}, 0, v{tt+2}
v_cvt_pk_bf16_f32 v{tt+2}, v{tt+2}, v{tt+2}
v_lshlrev_b32 v{tt+2}, 16, v{tt+2}
v_add_f32 v{tt+2}, {fbits(1e-5)}, v{tt+2}
v_cvt_pk_bf16_f32 v{tt+2}, v{tt+2}, v{tt+2}
v_lshlrev_b32 v{tt+2}, 16, v{tt+2}
v_sqrt_f32 v{tt+2}, v{tt+2}
v_cndmask_b32 v{TF+1}, 0, v{tt}, vcc
v_cvt_pk_bf16_f32 v{tt+2}, v{tt+2}, 0
v_mov_b32 v{TF+2}, v{TF+1}
v_cndmask_b32 v{TF}, v{tt+2}, v{tt}, vcc
v_lshlrev_b32 v{tt+2}, 16, v{tt+2}
v_rcp_f32 v48, v{tt+2}
v_mov_b32 v{TF+3}, v{TF+1}""") + \
                    [(4, lambda: a.lgop(f"ds_write2st64_b32 v67, v{TF}, v48 offset0:0 offset1:1", "pub"))] + lines(f"v_mul_f32 v6, {fbits(LOG2E)}, v48")
                spread(stats, 32, 36)
                def ex_store(j):
                    op = "buffer_store_short" if j % 2 == 0 else "buffer_store_short_d16_hi"
                    a("s_mov_b32 exec_hi, 0")
                    a.vmop(f"{op} v{49+j//2}, v51, s[32:35], s77 offen {st_u}", "st")
                    a("s_mov_b32 exec_hi, -1\ns_add_u32 s77, s77, 4096")
                ex = lines("\n".join(f"v_mul_f32 v{EA+j}, v{EA+j}, v48" for j in range(4)) + f"""
v_cvt_pk_bf16_f32 v49, v{EA}, v{EA+1}
v_cvt_pk_bf16_f32 v50, v{EA+2}, v{EA+3}
v_and_b32 v51, 0x13, v0
v_and_b32 v52, 4, v0
v_lshl_add_u32 v51, v52, 1, v51
v_bfe_u32 v52, v0, 3, 1
v_lshl_add_u32 v51, v52, 2, v51
v_lshlrev_b32 v51, 1, v51
s_lshl_b32 s77, s50, 14
s_lshl_b32 s76, s73, 6
s_add_u32 s77, s77, s76
s_add_u32 s77, s77, {WS_U + 512*4096}""") + [(12, lambda j=j: ex_store(j)) for j in range(4)]
                spread(ex, 40, 68)
                m0 = 40
            else:
                uo = lines(f"""s_mov_b32 s76, 0
s_cmp_eq_u32 s50, 0|s_cselect_b32 s76, 0x4410, s76
s_cmp_eq_u32 s50, 2|s_cselect_b32 s76, 0xbe80, s76
s_cmp_eq_u32 s50, 4|s_cselect_b32 s76, 0xbe80, s76
s_cmp_eq_u32 s50, 8|s_cselect_b32 s76, 0xbe80, s76
s_lshl_b32 s77, s50, 17
s_lshl_b32 s65, s73, 6
s_add_u32 s77, s77, s65
s_add_u32 s77, s77, {WS_U}         ; U store base
v_cmp_eq_u32 vcc, 0, v0
v_mov_b32 v{tt}, s76
v_mov_b32 v{EA+1}, 0
v_mov_b32 v{EA+2}, 0
v_cndmask_b32 v{EA}, 0, v{tt}, vcc
v_mov_b32 v{EA+3}, 0
v_lshlrev_b32 v{tt}, 4, v39
v_lshl_add_u32 v66, v38, 12, v{tt}
v_cmp_gt_u32 vcc, 32, v0""", 1)
                spread(uo, 21, 31)
                at(36, lambda: a.lgop(f"ds_read2st64_b32 v[{TMP}:{TMP+1}], v67 offset0:0 offset1:1", "stt"))
                at(36, lambda: a(f"v_lshrrev_b32 v67, 5, v0\nv_lshl_add_u32 v67, v67, 4, s74"))
                spread([(0, lambda: a.wait(lg="stt"))] + lines(f"""v_mov_b32 v{TF}, v{TMP}
v_cndmask_b32 v{TF+1}, 0, v{TMP}, vcc
v_mul_f32 v6, {fbits(LOG2E)}, v{TMP+1}
v_mov_b32 v{TF+2}, v{TF+1}
v_mov_b32 v{TF+3}, v{TF+1}"""), 37, 38)
                at(39, lambda: a(f"{M32} {r16(ACCZ)}, {r4(TF)}, {r4(EA)}, {r16(ACCZ)}"))
                def rdr(g):
                    a.lgop(f"ds_read_b128 {r4((EA, CF)[g % 2])}, v67 offset:{256+g*32}", ("rm", g))
                u2 = [(4, lambda: rdr(0)), (12, lambda: rdr(1))]
                for g in range(4):
                    s = (EA, CF)[g % 2]
                    u2.append((0, lambda g=g: a.wait(lg=("rm", g))))
                    u2 += lines("\n".join(f"v_mul_f32 v{ACCZ+4*g+k}, v{ACCZ+4*g+k}, v{s+k}" for k in range(4)))
                    if g < 2: u2.append((4, lambda g=g: rdr(g+2)))
                    u2 += lines("\n".join(f"v_cvt_pk_bf16_f32 v{ACCZ+8*(g//2)+2*(g%2)+k}, v{ACCZ+4*g+2*k}, v{ACCZ+4*g+2*k+1}" for k in range(2)))
                    if g % 2 == 1:
                        u2.append((8, lambda g=g: a.vmop(f"buffer_store_dwordx4 {r4(ACCZ+8*(g//2))}, v66, s[32:35], s77 offen offset:{32*(g//2)} {st_u}", "st")))
                spread(u2, 41, 68)
                m0 = 41
            twt = opt.get("t_wt", 37)
            src = 6 if A else 8
            spread(lines(f"""s_mov_b64 s[24:25], s[{src}:{src+1}]
s_mov_b32 s26, {T*289*2}
s_mul_i32 s67, s2, {8*578}
s_lshl_b32 s68, s51, 10
s_add_u32 s67, s67, s68
s_add_u32 s68, s68, {WR_OFF + (0 if A else 5120)}""", 1), twt - 3, twt)
            def wt_load():
                assert not any(k == "x" for k, _ in st["seq"])
                a(f"s_mov_b32 m0, s68\ns_cmp_lg_u32 s51, 0\ns_cbranch_scc1 K1_wt{typ}\ns_add_u32 m0, s68, 1024\ns_add_u32 s69, s67, 1024")
                a(f"buffer_load_dwordx4 v7, s[24:27], s69 offen offset:3072 lds\ns_mov_b32 m0, s68\ns_nop 0\nK1_wt{typ}:")
                a.vmop("buffer_load_dwordx4 v7, s[24:27], s67 offen lds", "wt")
            if not opt.get("nowt"): at(twt, wt_load)
            if opt.get("pf2", 1):
                tp = opt.get("t_pf2", 30)
                spread(lines(f"""s_mov_b32 s18, {F*D*2}
s_mov_b32 s19, 0x20000
s_bfe_u32 s69, s2, 0x20001
s_mul_i32 s69, s69, {1152*1152}
s_lshr_b32 s70, s2, 3
s_mul_i32 s70, s70, {324*128}
s_add_u32 s69, s69, s70
s_and_b32 s70, s2, 1
s_mul_i32 s70, s70, {21*128}
s_add_u32 s69, s69, s70
s_mul_i32 s70, s48, {42*128}
s_add_u32 s69, s69, s70
v_min_u32 v47, 20, v0
v_lshlrev_b32 v47, 7, v47""", 1), tp - 8, tp)
                assert tp < 32
                at(tp, lambda: (a(f"s_mov_b32 m0, {SCR}\ns_nop 0"), a.vmop("buffer_load_dword v47, s[16:19], s69 offen lds", "pf")))
                th_ = opt.get("t_pfh", 26)
                spread(lines(f"""v_min_u32 v46, 8, v0
v_mul_u32_u24 v46, 9216, v46
s_and_b32 s79, s49, 7
s_lshl_b32 s79, s79, 3
s_add_u32 s79, s79, s48
s_mul_i32 s79, s79, {9*9216}
s_xor_b32 s94, s64, 1
s_lshl_b32 s94, s94, 9
s_add_u32 s79, s79, s94
s_add_u32 s79, s79, s63
s_mov_b64 s[80:81], s[12:13]
s_mov_b32 s82, {D*F*2}""", 1), th_ - 5, th_)
                at(th_, lambda: (a(f"s_mov_b32 m0, {SCR}\ns_nop 0"), a.vmop("buffer_load_dword v46, s[80:83], s79 offen lds", "pf")))
                if "2" in opt.get("kernels", "123"):
                    spread(lines(f"""s_getpc_b64 s[80:81]|s_add_u32 s80, s80, fft_tab@rel32@lo+4|s_addc_u32 s81, s81, fft_tab@rel32@hi+12
s_mov_b32 s82, 45056
s_lshr_b32 s79, s2, 3
s_lshl_b32 s79, s79, 3
s_add_u32 s79, s79, s48
s_lshl_b32 s79, s79, 8
v_lshlrev_b32 v46, 7, v39""", 1), th_ + 1, th_ + 3)
                    at(th_ + 3, lambda: (a(f"s_mov_b32 m0, {SCR}\ns_nop 0"), a.vmop("buffer_load_dword v46, s[80:83], s79 offen lds", "pf")))
        sb = ("s46", "s47", "s78", "s95")
        for s in range(4):
            b = 36*(s+1)
            c1, c2 = corr_ops(accs[s], 64, s*1024)
            d = 1 if (s == 0 and not A) else 0
            spread(c1, b, b+1); spread(c2, b+1+d, b+2+d)
            mo = mish_ops(accs[s], sb[s])
            if s < 3: spread(mo, b+4+d, b+36)
            else:
                nh = int(len(mo)*opt.get("hfrac", 0.9))
                spread(mo[:nh], b+3, b+18); left = mo[nh:]
            spread(cspub(65, s*1024), 36*s+33, 36*s+35)
        tws = opt.get("t_wts", 78)
        if not opt.get("nowt"):
            w2 = lines(f"""v_and_b32 v66, 7, v0
v_lshrrev_b32 v67, 3, v0
v_mul_u32_u24 v56, 289, v66
v_mad_u32_u24 v56, v67, 5, v56
v_and_b32 v56, -2, v56
s_mul_i32 s68, s48, 80
s_add_u32 s68, s68, {WR_OFF}
v_lshl_add_u32 v56, v56, 1, s68
v_add_u32 v57, 5120, v56""", 1)
            for z in range(2):
                for y in range(2):
                    w2.append((4, lambda z=z, y=y: a.lgop(f"ds_read2_b32 v[{48+4*z+2*y}:{49+4*z+2*y}], v{56+z} offset0:{2*y} offset1:{2*y+1}", "wr")))
            w2 += lines(f"""v_lshlrev_b32 v66, 4, v66
v_lshl_add_u32 v66, v67, 16, v66
s_lshl_b32 s69, s48, 19
s_lshl_b32 s68, s2, 7
s_add_u32 s69, s69, s68
s_add_u32 s69, s69, {WS_WT}
s_add_u32 s68, s69, 32768""", 1)
            for z in range(2):
                w2.append((16, lambda z=z: (a.wait(lg="wr"), a.vmop(f"buffer_store_dwordx4 {r4(48+4*z)}, v66, s[32:35], s{69-z} offen {st_wt}", "st"))))
            spread(w2, tws, tws + 24)
        at(72, lambda: a(f"v_lshrrev_b32 v{EA}, 2, v0\nv_mul_u32_u24 v{EA}, 9216, v{EA}"))
        at(73, lambda: a(f"v_and_b32 v{EA+2}, 3, v0\nv_lshl_add_u32 v{EA}, v{EA+2}, 4, v{EA}"))
        spread(lines(f"""v_bfe_u32 v66, v0, 2, 2
v_lshrrev_b32 v67, 5, v0
v_lshl_add_u32 v66, v67, 3, v66
v_lshlrev_b32 v66, 6, v66
v_bfe_u32 v67, v0, 4, 1
v_lshl_add_u32 v66, v67, 5, v66
v_and_b32 v67, 3, v0
v_lshl_add_u32 v66, v67, 3, v66
s_lshl_b32 s65, s51, 10
v_add_u32 v{HB}, s65, v66
v_xor_b32 v{HB+1}, 0x400, v{HB}
v_xor_b32 v{HB+2}, 0x800, v{HB}
v_xor_b32 v{HB+3}, 0xc00, v{HB}""", 1), 112, 126)
        if part == 1:
            ch = list(range(5)) if A else list(range(5, 9))
            CH = HB + 12
            def hrd(j):
                off = haddr(4*ch[j]); b = HB + 4 + 4*(j % 2)
                a.lgop(f"ds_read_b64_tr_b16 v[{b}:{b+1}], v{HB} offset:{off}", ("hc", j))
                a.lgop(f"ds_read_b64_tr_b16 v[{b+2}:{b+3}], v{HB} offset:{off+256}", ("hc", j))
            def hcs(j):
                a.wait(lg=("hc", j))
                a(f"{M16} {r4(CH)}, {r4(SEL)}, {r4(HB + 4 + 4*(j % 2))}, " + (r4(CH) if j else "0"))
                if j + 2 < len(ch): hrd(j + 2)
            at(128, lambda: hrd(0)); at(129, lambda: hrd(1))
            for j in range(len(ch)): at(130 + 2*j - (1 if j == 4 else 0), lambda j=j: hcs(j))
            fh = [frame_of[u] for u in range(36, 41)]
            fx = [f for f in range(0, 15) if f not in fh and f + 1 not in fh][0]
            if A:
                spread(lines(f"""s_xor_b32 s65, s64, 1
s_mul_i32 s79, s65, 9
s_sub_u32 s79, s79, 1
s_lshl_b32 s79, s79, 9
v_add_u32 v67, s79, v64
v_add_u32 v66, s79, v65""", 1), 131, 136)
            else:
                spread(lines(f"""v_and_b32 v67, 31, v0
v_lshlrev_b32 v67, 4, v67
v_add_u32 v67, {CS_OFF + 9*512}, v67
s_lshl_b32 s65, s51, 2
v_add_u32 v66, s65, v67""", 1), 131, 136)
            spread(cspub(66, 0, CH), 139, 141)
            C2 = HB + 4; RX = HB + 8
            spread(lines("\n".join(f"v_mov_b32 v{C2+k}, 0" for k in range(4))), 142, 144)
            def hcorr_rd():
                if not A: a("s_mov_b32 exec_hi, 0")
                a.lgop(f"ds_read_b128 {r4(C2)}, v67", "c2")
                if not A: a("s_mov_b32 exec_hi, -1")
            at(144, hcorr_rd)
            at(146, lambda: (a.wait(lg="c2"), a(f"{M32} {r16(accs[4])}, {r4(C2)}, {r4(TF)}, {r16(accs[4])}")))
            spread(lines(f"s_add_u32 s65, s57, {fx*8192}\nv_add_u32 v70, s65, v7\nv_add_u32 v71, {8192 if A else -8192}, v70", 1), 150, 152)
        def barrier_at(t):
            nb = min([x for x in BARS if x > t] + [999])
            need = [("w", u) for u in range((t+4)//4, min(36, (nb+4)//4))] if t < 144 else []
            need += [("x", c) for c in range((t+4)//4, min(9, (nb+4)//4))]
            if t == 128: need += [("w", u) for u in range(36, 41)]
            if t == 72: need += ["wt"]
            for k in need: assert k == "wt" or k not in st["seq"], (t, k)
            a.wait(vm=need, lg=["pub", "fgen", ("xr", st["xread"])])
            a("s_barrier")
            while st["xdone"] < st["xread"]:
                st["xdone"] += 1
                c = st["xdone"]
                if c + NXB > 8: st["free"] += [2*(c % NXB), 2*(c % NXB) + 1]
            while st["freed"] < min(max(t, 0)//4, 36):
                st["free"].append(frame_of[st["freed"]]); st["freed"] += 1
        def domark(t):
            for k, tm in enumerate(opt.get("marks", [-5, -4, 16, 36, 72, 143])):
                if t == tm: mark(a, opt, k)
        if part == 0:
            for _ in range(opt.get("k1_n1", 2)): try_issue()
            domark(-5)
            barrier_at(-4)
            domark(-4)
            xreads(0)
            for k in range(4): fread(0, k)
            for k in range(4): wread(k)
            for _ in range(opt.get("k1_n2", 2)): try_issue()
            for k in range(4): extra(0, k)
        t0, t1 = (0, TSPLIT) if part == 0 else (TSPLIT, 162)
        for t in range(t0, t1):
            if t == TJOIN:
                if A:
                    a("K1_join:")
                    a.vm = [x for x in a.vm if x != "st"]
                    if len(join_state["dry"]) > len(a.vm): a.vm = list(join_state["dry"])
                    join_state["vm"] = list(a.vm); join_state["lg"] = list(a.lg); join_state["win"] = st["win"]
                elif "dry" not in join_state:
                    join_state["dry"] = [x for x in a.vm if x != "st"]
                    return
                else:
                    ja, jb = join_state["vm"], [x for x in a.vm if x != "st"]
                    assert ja[len(ja)-len(jb):] == jb, (ja, jb)
                    assert join_state["lg"] == a.lg, (join_state["lg"], a.lg)
                    assert join_state["win"] == st["win"]
                    a("s_nop 7\ns_nop 3\ns_branch K1_join")
                    return
            s = t // 36; ks = t % 36; acc = accs[s]
            domark(t)
            if t in BARS: barrier_at(t)
            if t % 4 == 0 and t < 32: xreads(t//4 + 1)
            a.wait(lg=("f", t))
            kx = ks + (18 if (t >= 144 and not A) else 0)
            b = FR + 4*(t % 4); x = X0 + 4*kx
            if t % 4 == 0 and t < 144: a(f"{M16} {r4(CA)}, {r4(SEL)}, {r4(b)}, " + (r4(CA) if ks else "0"))
            a(f"{M32} {r16(acc)}, {r4(b)}, {r4(x)}, " + (r16(acc) if ks else "0"))
            rd = (lambda: wread(t + 4)) if t + 4 < 162 else None
            pace = opt.get("pace", 4) if t >= opt.get("pace_from", 64) else 2
            if not (t % pace == pace - 1 and try_issue(rd)) and rd: rd()
            for o in sched.get(t, []): o()
        if part == 0:
            assert not st["seq"]
            join_state["st2"] = dict(st); join_state["vm2"] = list(a.vm); join_state["lg2"] = list(a.lg); join_state["fr2"] = dict(frame_of)
            a("s_cmp_lg_u32 s52, 0\ns_cbranch_scc1 K1_tailB")
            return
        H = accs[4]; keep = H + (0 if A else 8); send = H + (8 if A else 0)
        nl = len(left)//2
        for c, o in left[:nl]: o()
        a.lgop(f"ds_write_b128 v70, {r4(send)}", "pub")
        a.lgop(f"ds_write_b128 v70, {r4(send+4)} offset:1024", "pub")
        a.wait(lg="pub")
        a("s_barrier")
        a.lgop(f"ds_read_b128 {r4(RX)}, v71", "rx")
        a.lgop(f"ds_read_b128 {r4(RX+4)}, v71 offset:1024", "rx")
        for c, o in left[nl:]: o()
        a.wait(lg="rx")
        for k in range(8): a(f"v_add_f32 v{keep+k}, v{keep+k}, v{RX+k}")
        for c, o in mish_ops(keep, "s62", 4, 0 if A else 1): o()
        if opt.get("stamp"):
            a.wait(vm="all")
            stamp_out(a, 0, "s48", 32, "K1_end")
        a("s_endpgm")
    nl0 = len(a.lines)
    body("B", 0)
    del a.lines[nl0:]
    body("A", 0)
    body("A", 1)
    a("K1_tailB:")
    body("B", 1)
    a("K1_typeB:")
    body("B", 0)
    a("K1_end:\ns_endpgm")
    a.end_kernel("k1_kernel", 256, 102)
    a.launch("k1_kernel", 256, 512, 163840)
```

```python
from fw import *
from common import *
M16 = "v_mfma_f32_16x16x32_bf16"
def r4(x): return f"v[{x}:{x+3}]"
def p2(x): return f"v[{x}:{x+1}]"
WU = 18432
W_OFF = 0; NW = 4
X_OFF = NW*WU
NX = 3
F_OFF = X_OFF + NX*16384
E_OFF = F_OFF + 18432
ESTR = 1168
WR_OFF = 149504
CSB = 159744
BIAS = CSB + 1280
STAT = BIAS + 1280
SCR = E_OFF + 6*ESTR + 160
RS = 0
NS = 18

def gen_k1b(a, opt):
    st_act = opt.get("st_act", "sc1"); st_u = opt.get("st_u", ""); st_wt = opt.get("st_wt", "sc1")
    a.begin_kernel("k1_kernel")
    a("s_cmp_ge_u32 s2, 256\ns_cbranch_scc1 K1_end")
    if opt.get("stamp"): a("s_memrealtime s[90:91]")
    a(f"""s_load_dwordx8 s[4:11], s[0:1], 0
s_load_dwordx8 s[12:19], s[0:1], 32
s_load_dwordx2 s[32:33], s[0:1], 72
v_lshrrev_b32 v1, 6, v0
s_lshr_b32 s60, s2, 3              ; idx
v_readfirstlane_b32 s48, v1        ; wave
v_mov_b32 v2, v0                   ; tid
v_and_b32 v0, 63, v0               ; lane
s_and_b32 s49, s2, 1
s_lshl_b32 s49, s49, 3
s_and_b32 s61, s60, 7
s_add_u32 s49, s49, s61            ; rb
s_lshr_b32 s3, s60, 3              ; cq
s_bfe_u32 s50, s2, 0x20001
s_lshl_b32 s50, s50, 2
s_add_u32 s50, s50, s3             ; cg
s_add_u32 s71, s3, s49
s_and_b32 s71, s71, {opt.get("rotmask", 1)}
s_mul_i32 s71, s71, {opt.get("rot", 4)}
s_mul_i32 s63, s50, 576
s_and_b32 s64, s50, 1
s_mov_b32 s34, 0x10000000
s_mov_b32 s35, 0x20000
v_lshlrev_b32 v7, 4, v0
s_cmp_lt_u32 s48, 4
s_cbranch_scc1 K1_comp""")
    a(f"""s_sub_u32 s51, s48, 4              ; lw
v_lshrrev_b32 v8, 3, v0            ; r
v_lshrrev_b32 v9, 4, v0
v_xor_b32 v9, v9, v0
v_and_b32 v9, 7, v9
v_lshlrev_b32 v9, 4, v9
s_mov_b32 s22, 73728
v_mad_u32_u24 v3, v8, s22, v9
v_xor_b32 v4, 64, v3
v_add_u32 v4, {16*73728-1024}, v4
s_lshl_b32 s53, s49, 2
s_add_u32 s53, s53, s51
s_mul_i32 s53, s53, 1152           ; x base
s_lshl_b32 s20, s71, 7
s_add_u32 s20, s20, s53
s_add_u32 s21, s53, 1152
s_lshl_b32 s57, s51, 12            ; lw*4096
s_mov_b32 s26, {T*D*2}
s_mov_b32 s27, 0x20000
s_waitcnt lgkmcnt(0)
s_mov_b64 s[24:25], s[4:5]""")
    wsetup = f"""v_and_b32 v9, 2, v8
s_and_b32 s59, s51, 1
s_lshl_b32 s59, s59, 2
v_or_b32 v9, s59, v9
v_xor_b32 v9, v9, v0
v_and_b32 v9, 7, v9
v_lshlrev_b32 v9, 4, v9
v_mul_u32_u24 v5, 9216, v8
v_add_u32 v5, v5, v9               ; W voffset
v_lshrrev_b32 v8, 2, v0
v_mul_u32_u24 v6, 9216, v8
s_lshr_b32 s59, s59, 1
v_xor_b32 v9, s59, v0
v_and_b32 v9, 3, v9
v_lshl_add_u32 v6, v9, 4, v6       ; H voffset
s_mul_i32 s54, s51, {8*9216}
s_add_u32 s54, s54, s63
s_mul_i32 s59, s71, {64*9216}
s_add_u32 s36, s54, s59
s_add_u32 s37, s54, {576*9216}
s_lshl_b32 s38, s64, 6
s_xor_b32 s39, s64, 1
s_lshl_b32 s39, s39, 9
s_lshl_b32 s58, s51, 9
s_mov_b32 s30, {D*F*2}
s_mov_b32 s31, 0x20000
s_mov_b64 s[28:29], s[12:13]"""
    a.vm = []; a.lg = []
    def x_items(c, th):
        def f0():
            a(f"s_add_u32 m0, s57, {X_OFF + (c % NX)*16384 + th*2048}")
            if th: a(f"s_add_u32 s23, s20, {8*73728}")
            else: a("s_mov_b32 s23, s20")
            a.vmop("buffer_load_dwordx4 v3, s[24:27], s23 offen lds", ("x", c))
        def f1():
            a(f"s_add_u32 m0, s57, {X_OFF + (c % NX)*16384 + th*2048}\ns_nop 0")
            a.vmop("buffer_load_dwordx4 v4, s[24:27], s23 offen offset:1024 lds", ("x", c))
            if th: a("s_add_u32 s20, s20, 128\ns_cmp_eq_u32 s20, s21\ns_cselect_b32 s20, s53, s20")
        return [f0, f1]
    def w_items(u):
        base = W_OFF + (u % NW)*WU
        it = []
        for j in range(4):
            def f(j=j):
                a(f"s_add_u32 m0, s57, {base + j*1024 - j*128}")
                if j == 0: a("s_add_u32 s40, s36, s38")
                else: a("s_nop 0")
                a.vmop(f"buffer_load_dwordx4 v5, s[28:31], s40 offen offset:{j*128} lds", ("w", u))
            it.append(f)
        def fh():
            a(f"s_add_u32 m0, s58, {base + 16384}\ns_add_u32 s41, s36, s39\ns_mov_b32 exec_hi, 0")
            a.vmop("buffer_load_dwordx4 v6, s[28:31], s41 offen lds", ("w", u))
            a(f"s_mov_b32 exec_hi, -1\ns_add_u32 s36, s36, {32*9216}\ns_cmp_eq_u32 s36, s37\ns_cselect_b32 s36, s54, s36")
        it.append(fh)
        return it
    for f in x_items(0, 0) + x_items(0, 1): f()
    a(wsetup)
    for f in w_items(0): f()
    a(f"""s_mov_b64 s[44:45], s[14:15]
s_mov_b32 s46, {F*2}
s_mov_b32 s47, 0x20000
v_subrev_u32 v10, 256, v2
v_lshlrev_b32 v11, 1, v10
v_lshlrev_b32 v10, 2, v10
v_add_u32 v10, {BIAS}, v10""")
    for f in w_items(1): f()
    a.vmop("buffer_load_ushort v12, v11, s[44:47], s63 offen", "bias")
    a.vmop("buffer_load_ushort v13, v11, s[44:47], s63 offen offset:512", "bias")
    XV = 64; XP = 96
    def recur():
        a(f"""s_lshl_b32 s59, s71, 6
v_lshl_add_u32 v18, v18, 5, s59    ; d0
v_cvt_f32_u32 v16, v16
v_cvt_f32_u32 v17, v17
v_cvt_f32_u32 v18, v18
v_mul_f32 v16, {fbits(1/576)}, v16
v_mul_f32 v17, {fbits(0.25)}, v17
v_fma_f32 v17, v18, v16, v17
v_fract_f32 v17, v17
v_add_f32 v18, v17, v16
v_cos_f32 v{XV}, v17
v_cos_f32 v{XV+1}, v18
v_cos_f32 v16, v16
v_and_b32 v{XV}, v20, v{XV}
v_and_b32 v{XV+1}, v20, v{XV+1}
v_add_f32 v16, v16, v16""")
    def recur2():
        for k in range(2, 32):
            a(f"v_fma_f32 v{XV+k}, v16, v{XV+k-1}, -v{XV+k-2}")
            if k % 2 == 0: a(f"v_cvt_pk_bf16_f32 v{XP+k//2-1}, v{XV+k-2}, v{XV+k-1}")
            if k % 8 == 0: a(f"ds_write_b128 v19, {r4(XP + k//2 - 4)}\nv_add_u32 v19, s72, v19")
        a(f"v_cvt_pk_bf16_f32 v{XP+15}, v{XV+30}, v{XV+31}\nds_write_b128 v19, {r4(XP+12)}")
    a(f"""v_and_b32 v8, 31, v0
v_lshrrev_b32 v9, 5, v0
v_bfe_u32 v14, v8, 1, 3
v_xor_b32 v14, v14, v9
v_lshlrev_b32 v14, 4, v14
v_lshl_add_u32 v14, v8, 7, v14
s_add_u32 s59, s57, {X_OFF}
v_add_u32 v24, s59, v14
v_xor_b32 v25, 32, v24
v_xor_b32 v26, 64, v24
v_xor_b32 v27, 0x60, v24
v_mov_b32 v28, 0
v_mov_b32 v29, 0""")
    side = {}
    def sq_ops(c):
        o = [lambda: [a.lgop(f"ds_read_b128 {r4(32+4*i)}, v{24+i} offset:{(c % NX)*16384}", ("sq", i)) for i in range(4)]]
        for i in range(4):
            def f(i=i):
                a.wait(lg=("sq", i))
                for hh in range(2):
                    for k in range(2): a(f"v_lshlrev_b32 v{48+2*k}, 16, v{32+4*i+2*hh+k}\nv_and_b32 v{49+2*k}, 0xffff0000, v{32+4*i+2*hh+k}")
                    for k in range(4): a(f"v_fmac_f32 v{28+k%2}, v{48+k}, v{48+k}")
            o.append(f)
        return o
    def bias_w():
        a.wait(vm="bias")
        a(f"v_lshlrev_b32 v12, 16, v12\nv_lshlrev_b32 v13, 16, v13\nv_mul_f32 v12, {fbits(LOG2E)}, v12\nv_mul_f32 v13, {fbits(LOG2E)}, v13")
        a.lgop("ds_write_b32 v10, v12", "pub")
        a("s_cmp_lg_u32 s51, 0\ns_cbranch_scc1 K1_nb\nds_write_b32 v10, v13 offset:1024\nK1_nb:")
    side.setdefault(1, []).append(bias_w)
    fol = opt.get("fol", 0)
    nlab = [0]
    def guarded(f):
        def g():
            if not fol: return f(True)
            nlab[0] += 1
            a(f"s_cmp_lg_u32 s71, 0\ns_cbranch_scc1 K1_sj{nlab[0]}")
            f(False)
            a(f"K1_sj{nlab[0]}:")
        return g
    def vm(track, txt, tag):
        if track: a.vmop(txt, tag)
        else: a(txt)
    spf = opt.get("s_pf2", [8])
    nl = -(-(82 if fol else 41) // len(spf))
    def pf2_setup(tr):
        a(f"""s_mov_b32 s18, {F*D*2}
s_mov_b32 s19, 0x20000
s_bfe_u32 s65, s2, 0x20001
s_mul_i32 s65, s65, {1152*1152}
s_and_b32 s66, s60, {30 if fol else 31}
s_mul_i32 s66, s66, {324*128}
s_add_u32 s65, s65, s66
s_lshl_b32 s66, s51, 1
s_and_b32 s67, s2, 1
s_add_u32 s66, s66, s67
s_mul_i32 s66, s66, {(82 if fol else 41)*128}
s_add_u32 s95, s65, s66
v_min_u32 v52, {nl-1}, v0
v_lshlrev_b32 v52, 7, v52""")
        if "2" in opt.get("kernels", "123"):
            a(f"""s_getpc_b64 s[80:81]
s_add_u32 s80, s80, fft_tab@rel32@lo+4
s_addc_u32 s81, s81, fft_tab@rel32@hi+12
s_mov_b32 s82, 53248
s_mov_b32 s83, 0x20000
s_lshr_b32 s65, s60, 1
s_lshl_b32 s65, s65, 2
s_add_u32 s65, s65, s51
s_lshl_b32 s65, s65, 10
v_lshrrev_b32 v8, 3, v0
v_lshlrev_b32 v8, 7, v8
s_mov_b32 m0, {SCR}
s_nop 0""")
            vm(tr, "buffer_load_dword v8, s[80:83], s65 offen lds", "pf")
    def pf2(tr):
        a(f"s_mov_b32 m0, {SCR}\ns_nop 0")
        vm(tr, "buffer_load_dword v52, s[16:19], s95 offen lds", "pf")
        a(f"s_add_u32 s95, s95, {nl*128}")
    if opt.get("pf2", 1):
        side.setdefault(spf[0], []).append(lambda: pf2_setup(True))
        for k in spf: side.setdefault(k, []).append(guarded(pf2))
    def wt_setup():
        a(f"""s_mov_b64 s[72:73], s[6:7]
s_mov_b32 s74, {T*289*2}
s_mov_b32 s75, 0x20000
s_mov_b64 s[76:77], s[8:9]
s_mov_b32 s78, {T*289*2}
s_mov_b32 s79, 0x20000
v_and_b32 v8, 7, v0
v_lshrrev_b32 v9, 3, v0
v_mul_u32_u24 v30, 289, v8
v_mad_u32_u24 v30, v9, 5, v30
v_and_b32 v30, -2, v30
v_lshlrev_b32 v30, 1, v30
s_andn2_b32 s96, s2, {8 if fol else 0}
s_mul_i32 s67, s96, {8*578}
s_mul_i32 s68, s51, 160
s_add_u32 s67, s67, s68
v_lshlrev_b32 v8, 4, v8
v_lshl_add_u32 v31, v9, 16, v8
s_lshl_b32 s69, s51, 20
s_lshl_b32 s68, s96, 7
s_add_u32 s69, s69, s68
s_add_u32 s69, s69, {WS_WT}""")
    def wt_load(y):
        def f(tr):
            for z in range(4):
                vm(tr, f"buffer_load_dwordx4 {r4(112+16*y+4*z)}, v30, s[{72+4*(z%2)}:{75+4*(z%2)}], s67 offen offset:{80*(z//2)}", "wt")
            a(f"s_add_u32 s67, s67, {64*578}")
        return f
    def wt_store(y):
        def f(tr):
            for z in range(4):
                a(f"s_add_u32 s68, s69, {(z % 2)*32768 + (z//2)*8*65536 + y*1024}")
                vm(tr, f"buffer_store_dwordx4 {r4(112+16*y+4*z)}, v31, s[32:35], s68 offen {st_wt}", "st")
        return f
    if not opt.get("nowt"):
        swt = opt.get("s_wt", [11]); sws = opt.get("s_wts", [17]*len(swt))
        assert len(swt) == (2 if fol else 1)
        side.setdefault(swt[0], []).append(wt_setup)
        for y in range(len(swt)):
            side.setdefault(swt[y], []).append(guarded(wt_load(y)))
            if sws[y] == 17: side.setdefault(17, []).append(lambda: (a("s_waitcnt vmcnt(0)"), a.vm.clear()))
            else: assert sws[y] >= swt[y] + 3 and swt[y] + 1 + 2 < NS
            side.setdefault(sws[y], []).append(guarded(wt_store(y)))
    xq = [(c, th) for c in range(1, 9) for th in range(2)]
    nw = 2
    sq = []
    for k in range(NS):
        a.wait(vm=[("w", k), ("x", k//2)], lg="all")
        a("s_barrier")
        items = []
        nx = 2 if k == 0 else 1
        while nx and xq and (xq[0][0] < NX or 2*(xq[0][0] - NX) + 2 <= k):
            items += x_items(*xq.pop(0)); nx -= 1
        while nw < NS and nw - NW <= k - 2 and nw <= k + 2:
            items += w_items(nw); nw += 1
        if k % 2 == 0: sq = sq_ops(k//2)
        fill = [sq.pop(0) for _ in range(3 if k % 2 == 0 else 2)]
        if k == NS - 2: fill += [sq.pop(0), sq.pop(0)]; sq = [lambda: None]*2
        if fill and k % 2 == 0: fill.pop(0)()
        n = len(items)
        for i, f in enumerate(items):
            f()
            if fill and (i + 1) % 3 == 0: fill.pop(0)()
        for f in fill: f()
        if k < NS - 1:
            for f in side.get(k, []): f()
    assert not xq and nw == NS
    a(f"""v_add_f32 v28, v28, v29
v_and_b32 v8, 31, v0
v_lshrrev_b32 v9, 5, v0
v_lshlrev_b32 v8, 2, v8
v_lshl_add_u32 v8, v9, 9, v8
s_lshl_b32 s59, s51, 7
s_add_u32 s59, s59, {STAT + 512}
v_add_u32 v8, s59, v8
ds_write_b32 v8, v28
s_waitcnt lgkmcnt(0)
s_barrier""")
    for f in side.get(NS - 1, []): f()
    a("s_endpgm")
    ACC = 16
    CS = 176
    XF = 204; WF = 236; ONE = 252
    a(f"""K1_comp:
s_getpc_b64 s[80:81]
K1_pc:
s_sub_u32 s80, s80, K1_pc-k1_kernel
s_subb_u32 s81, s81, 0
s_mov_b32 s82, code_end-k1_kernel
s_mov_b32 s83, 0x20000
v_mul_u32_u24 v8, 5, v2
v_lshrrev_b32 v8, 6, v8
v_lshlrev_b32 v8, 7, v8
s_mul_i32 s59, s60, 2560
s_mov_b32 m0, {SCR}
s_movk_i32 s72, 256
buffer_load_dword v8, s[80:83], s59 offen lds
s_and_b32 s51, s48, 1              ; a
s_lshr_b32 s52, s48, 1             ; b
v_and_b32 v8, 31, v0
s_lshl_b32 s61, s50, 5
s_sub_u32 s60, s61, 287
s_cmp_lt_u32 s50, 9
s_cselect_b32 s75, 1.0, -1.0       ; sgn
s_cselect_b32 s59, s61, s60        ; jb
s_cselect_b32 s60, 0, 2
v_and_b32 v12, 30, v8
v_add_u32 v12, s59, v12            ; j
v_and_or_b32 v13, v8, 1, s60
v_add_u32 v18, s61, v8
v_cmp_eq_u32 vcc, 1, v18
v_mov_b32 v19, 288
v_lshrrev_b32 v14, 5, v2           ; kk
v_mov_b32 v20, -1
v_cndmask_b32 v12, v12, v19, vcc
v_cndmask_b32_e64 v13, v13, 0, vcc
v_lshrrev_b32 v19, 4, v8
v_mul_u32_u24 v19, 9216, v19
v_and_b32 v9, 15, v0               ; n16
v_lshl_add_u32 v19, v9, 4, v19
v_add_u32 v15, {F_OFF}, v19
s_mov_b32 s70, 0
K1_fg0:
v_mov_b32 v16, v12
v_mov_b32 v17, v13
v_mov_b32 v18, v14
v_lshl_add_u32 v19, v14, 10, v15
K1_fg:""")
    recur(); recur2()
    a(f"""s_cmp_lg_u32 s70, 0
s_cbranch_scc1 K1_fgd
s_mov_b32 s70, 1
v_mov_b32 v14, 8
s_cmp_eq_u32 s48, 0
s_cbranch_scc1 K1_fg0
s_cmp_eq_u32 s48, 3
s_cbranch_scc1 K1_fgd
v_subrev_u32 v18, 64, v2
v_mul_u32_u24 v21, 3641, v18
v_lshrrev_b32 v21, 16, v21         ; row
v_mul_u32_u24 v19, 18, v21
v_sub_u32 v18, v18, v19            ; seg
v_mul_u32_u24 v19, {ESTR}, v21
v_lshl_add_u32 v19, v18, 6, v19
v_add_u32 v19, {E_OFF}, v19
s_lshl_b32 s59, s50, 2
s_add_u32 s59, s59, 225
v_and_b32 v16, 2, v21
v_add_u32 v16, s59, v16
v_cmp_gt_u32 vcc, 4, v21
v_and_b32 v17, 1, v21
s_movk_i32 s72, 16
v_cndmask_b32 v16, 0, v16, vcc
v_cmp_ne_u32 vcc, 5, v21
s_nop 1
v_cndmask_b32_e64 v20, 0, -1, vcc
s_branch K1_fg
K1_fgd:
v_lshrrev_b32 v10, 4, v0           ; g
v_bfe_u32 v11, v0, 2, 2            ; r
v_and_b32 v12, 3, v0
v_lshlrev_b32 v13, 12, v10
v_lshl_add_u32 v13, v11, 7, v13
v_lshl_add_u32 v13, v12, 3, v13
s_lshl_b32 s59, s52, 11
v_add_u32 v13, s59, v13
v_lshrrev_b32 v14, 1, v11
v_and_b32 v15, 1, v10
v_lshl_add_u32 v14, v15, 1, v14    ; swizzle
s_lshl_b32 s59, s51, 1
v_xor_b32 v14, s59, v14
v_lshl_add_u32 v1, v14, 5, v13
v_xor_b32 v2, 32, v1
v_xor_b32 v3, 64, v1
v_xor_b32 v4, 0x60, v1
v_lshrrev_b32 v14, 1, v9
v_xor_b32 v14, v14, v10
v_lshlrev_b32 v14, 4, v14
v_lshl_add_u32 v14, v9, 7, v14
s_lshl_b32 s59, s51, 13
s_add_u32 s59, s59, {X_OFF}
v_add_u32 v8, s59, v14
v_xor_b32 v14, 64, v8
v_min_u32 v13, 5, v9
v_mul_u32_u24 v13, {ESTR}, v13
v_lshl_add_u32 v13, v10, 4, v13
v_add_u32 v13, {E_OFF}, v13        ; E read
v_mov_b32 v{ONE}, 0x3f803f80
v_mov_b32 v{ONE+1}, v{ONE}
v_mov_b32 v{ONE+2}, v{ONE}
v_mov_b32 v{ONE+3}, v{ONE}
s_lshl_b32 s73, s49, 2
s_lshl_b32 s59, s51, 1
s_add_u32 s73, s73, s59
s_waitcnt lgkmcnt(0)
s_cmp_lg_u32 s52, 0
s_cbranch_scc1 K1_c1""")
    def comp(b):
        a.vm = []; a.lg = []
        EA = CS + (24 if b == 0 else 16)
        etok = [0] if b == 0 else [1, 2, 3]
        if b == 0:
            a(f"""v_lshlrev_b32 v5, 9, v10
v_lshl_add_u32 v5, v11, 6, v5
v_lshl_add_u32 v5, v12, 3, v5
v_lshl_add_u32 v5, v15, 5, v5
v_add_u32 v5, 16384, v5
v_xor_b32 v6, 32, v5""")
        else:
            a(f"v_add_u32 v5, {F_OFF}, v7")
        win = [0]
        NF = 11
        def frag(s, j, d):
            base = W_OFF + (s % NW)*WU
            tag = ("f", s, j)
            def setwin():
                want = 0
                if want != win[0]:
                    for k in ([1, 2, 3, 4] + ([5, 6] if b == 0 else [])):
                        a(f"v_add_u32 v{k}, {(want - win[0]) & 0xffffffff:#x}, v{k}")
                    win[0] = want
            def tr(reg, off, t):
                def f():
                    setwin()
                    a.lgop(f"ds_read_b64_tr_b16 v[{d+2*t}:{d+2*t+1}], v{reg} offset:{base - win[0] + off}", tag)
                return f
            if j < 8: return [tr(1 + j % 4, (j//4)*1024 + t*512, t) for t in range(2)]
            if j < 10:
                if b == 0: return [tr(5 + j - 8, t*256, t) for t in range(2)]
                return [lambda: a.lgop(f"ds_read_b128 {r4(d)}, v5 offset:{(j-8)*9216 + (s % 9)*1024}", tag)]
            return [lambda: a.lgop(f"ds_read_b128 {r4(d)}, v13 offset:{s*64}", tag)]
        def xrd(s, i):
            d = XF + 16*(s % 2) + 4*i
            return lambda: a.lgop(f"ds_read_b128 {r4(d)}, v{8 if s % 2 == 0 else 14} offset:{((s//2) % NX)*16384 + i*2048}", ("x", s))
        LA = 3
        order = [10, 0, 1, 4, 5, 2, 3, 6, 7, 8, 9]
        NBAR = opt.get("nbar", 6)
        slot = lambda s, n: WF + 4*((s*NF + n) % 4)
        mark(a, opt, 0)
        a("s_barrier")
        mark(a, opt, 1)
        for i in range(4): xrd(0, i)()
        for n in range(LA):
            for f in frag(0, order[n], slot(0, n)): f()
        T0 = XF
        RR = XF + 8
        t = T0
        L = lambda txt: [(lambda l=l: a(l.replace("|", "\n"))) for l in txt.split("\n")]
        pub = L(f"""s_lshl_b32 s59, s52, 9|s_lshl_b32 s60, s51, 7|s_add_u32 s59, s59, s60|s_add_u32 s59, s59, {CSB}
v_lshl_add_u32 v{t+4}, v10, 4, s59
s_lshl_b32 s59, s51, 8|s_add_u32 s59, s59, {STAT}
v_lshl_add_u32 v{t+5}, v9, 2, s59
v_lshl_add_u32 v{t+6}, v0, 2, s59
s_lshl_b32 s59, s48, 10
v_lshl_add_u32 v8, v0, 3, s59
v_lshl_add_u32 v{t+7}, v9, 3, s59
v_lshl_add_u32 v14, v0, 2, s59
v_lshl_add_u32 v15, v10, 4, s59""")
        def pub_sum():
            a("s_mov_b32 exec_lo, 0xffff0000\ns_mov_b32 exec_hi, 0")
            for k, i in enumerate(etok): a.lgop(f"ds_write_b32 v{t+5}, v{EA+4*k} offset:{64*i}", "pub")
            a("s_mov_b64 exec, -1")
        def pub_cs(k):
            a("s_mov_b32 exec_lo, 0x10001\ns_mov_b32 exec_hi, 0x10001")
            a.lgop(f"ds_write_b128 v{t+4}, {r4(CS+4*k)} offset:{(k//2)*256 + (k%2)*64}", "pub")
            a("s_mov_b64 exec, -1")
        post = [lambda: a.lgop(f"ds_read_b32 v{t}, v{t+6}", "st"),
                lambda: a.lgop(f"ds_read2st64_b32 v[{t+2}:{t+3}], v{t+6} offset0:2 offset1:4", "st")] + L(f"""s_mul_i32 s58, s73, {144*2048}|s_mul_i32 s59, s50, 9
s_xor_b32 s61, s64, 1|s_lshl_b32 s61, s61, 3
s_add_u32 s61, s61, s59|s_lshl_b32 s61, s61, 11
s_add_u32 s40, s58, s61|s_add_u32 s59, s59, s64
s_lshl_b32 s61, s52, 2|s_add_u32 s59, s59, s61
s_lshl_b32 s59, s59, 11|s_add_u32 s58, s58, s59
s_lshl_b32 s59, s51, 11|s_add_u32 s36, s58, s59
s_xor_b32 s59, s59, 2048|s_add_u32 s37, s58, s59""") + [lambda: a.wait(lg="st")] + L(f"""v_add_f32 v{t+2}, v{t+2}, v{t+3}|v_mul_f32 v{t}, {fbits(-1/576)}, v{t}
v_mul_f32 v{t+2}, {fbits(1/576)}, v{t+2}|v_fma_f32 v{t+2}, -v{t}, v{t}, v{t+2}
v_max_f32 v{t+2}, 0, v{t+2}|v_cvt_pk_bf16_f32 v{t}, v{t}, v{t+2}
v_and_b32 v{t+2}, 0xffff0000, v{t}|v_lshlrev_b32 v{t}, 16, v{t}
v_add_f32 v{t+2}, {fbits(1e-5)}, v{t+2}|v_cvt_pk_bf16_f32 v{t+2}, v{t+2}, v{t+2}
v_lshlrev_b32 v{t+2}, 16, v{t+2}|v_sqrt_f32 v{t+2}, v{t+2}
v_cvt_pk_bf16_f32 v{t+2}, v{t+2}, v{t+2}|v_lshlrev_b32 v{t+2}, 16, v{t+2}
v_rcp_f32 v{t+1}, v{t+2}
v_mul_f32 v{t+2}, {fbits(LOG2E)}, v{t+1}|v_mul_f32 v{t+3}, v{t}, v{t+2}""") + \
               [lambda: (a.lgop(f"ds_write_b64 v8, v[{t+2}:{t+3}]", "rw"), a.lgop(f"ds_write2st64_b32 v14, v{t+1}, v{t} offset0:2 offset1:3", "rw"))] + \
               [lambda i=i: a.lgop(f"ds_read_b64 {p2(RR+2*i)}, v{t+7} offset:{128*i}", "rr") for i in range(4)]
        for s in range(NS):
            if s == 9: mark(a, opt, 2)
            last = s == NS - 1
            xf = XF + 16*(s % 2)
            xo = list(pub) if last else []
            for n, j in enumerate(order):
                d = slot(s, n)
                nn = n + LA
                rds = frag(s, order[nn], slot(s, nn)) if nn < NF else (frag(s + 1, order[nn - NF], slot(s + 1, nn - NF)) if not last else [])
                bar = n == NBAR
                if last:
                    if n == 3: xo += [pub_sum, lambda: pub_cs(0), lambda: pub_cs(1)]
                    if n == 5: xo += [lambda: pub_cs(2), lambda: pub_cs(3)]
                if bar:
                    for f in xo: f()
                    xo = [xrd(s + 1, i) for i in range(4)] if not last else list(post)
                a.wait(lg=[("f", s, j), ("x", s)])
                if b == 1 and s == 9 and j in (8, 9):
                    for k in range(16): a(f"v_mul_f32 v{ACC + j*16 + k}, s75, v{ACC + j*16 + k}")
                ms = []
                c = lambda r: (r4(r) if s else "0")
                if j < 10:
                    if j < 8 and j % 4 < 2:
                        r = CS + 4*((j//4)*2 + j % 4); ms.append(f"{M16} {r4(r)}, {r4(d)}, {r4(ONE)}, {c(r)}")
                    if b == 0 and j >= 8:
                        r = CS + 16 + 4*(j - 8); ms.append(f"{M16} {r4(r)}, {r4(d)}, {r4(ONE)}, {c(r)}")
                    for i in range(4):
                        r = ACC + (j*4 + i)*4
                        if b == 1 and j >= 8: ms.append(f"{M16} {r4(r)}, {r4(xf+4*i)}, {r4(d)}, {c(r)}")
                        else: ms.append(f"{M16} {r4(r)}, {r4(d)}, {r4(xf+4*i)}, {c(r)}")
                else:
                    for k, i in enumerate(etok):
                        r = EA + 4*k; ms.append(f"{M16} {r4(r)}, {r4(d)}, {r4(xf+4*i)}, {c(r)}")
                for q, m in enumerate(ms):
                    a(m)
                    if bar and q == 0:
                        if last: a.wait(lg="pub")
                        a("s_barrier")
                    elif rds: rds.pop(0)()
                    elif xo:
                        xo.pop(0)()
                    if last and n > NBAR and xo and not rds and q % 2: xo.pop(0)()
                for f in rds: f()
            for f in xo: f()
        mark(a, opt, 3)
        a(f"""s_lshl_b32 s59, s52, 9
s_add_u32 s59, s59, {CSB}
v_lshl_add_u32 v4, v10, 4, s59
v_add_u32 v1, s60, v4
s_xor_b32 s60, s60, 128
v_add_u32 v2, s60, v4
s_lshl_b32 s61, s64, 7
v_add_u32 v5, s61, v1
v_add_u32 v6, s61, v2
s_xor_b32 s61, s64, 1
s_lshl_b32 s61, s61, 10
s_add_u32 s61, s61, {BIAS}
v_lshl_add_u32 v11, v10, 4, s61
s_add_u32 s38, s36, 4096
s_add_u32 s39, s37, 4096""")
        CB = XF + 16
        npair = 5 if b == 0 else 4
        def cbread(p, tl):
            s = CB + 8*((2*p + tl) % 2)
            if p < 4:
                a.lgop(f"ds_read_b128 {r4(s)}, v{1 + p % 2} offset:{(p//2)*256 + tl*64}", ("cb", p, tl))
                a.lgop(f"ds_read_b128 {r4(s+4)}, v{5 + p % 2} offset:{BIAS - CSB + (p//2)*256 + tl*64}", ("cb", p, tl))
            else:
                a.lgop(f"ds_read_b128 {r4(s+4)}, v11 offset:{tl*64}", ("cb", p, tl))
        K1c, K2c = 244, 246
        a(f"v_mov_b32 v{K1c}, -0.5\nv_mov_b32 v{K1c+1}, -0.5\nv_mov_b32 v{K2c}, -1.0\nv_mov_b32 v{K2c+1}, -1.0")
        cbread(0, 0); cbread(0, 1)
        a.wait(lg="rr")
        E = WF
        def tstage(p, tl):
            a.wait(lg=("cb", p, tl))
            a(".p2align 3")
            s = CB + 8*((2*p + tl) % 2)
            cs = s if p < 4 else CS + 16 + 4*tl
            for i in range(4):
                r = ACC + ((2*p + tl)*4 + i)*4
                for h in (0, 2): a(f"v_pk_fma_f32 {p2(E+h+4*(i%2))}, {p2(cs+h)}, {p2(RR+2*i)}, {p2(s+4+h)} op_sel:[0,1,0] op_sel_hi:[1,1,1]")
                for h in (0, 2): a(f"v_pk_fma_f32 {p2(r+h)}, {p2(r+h)}, {p2(RR+2*i)}, {p2(E+h+4*(i%2))} op_sel_hi:[1,0,1]")
            if p + 1 < npair: cbread(p + 1, tl)
        P = ONE - 4
        def mish8(p, i):
            rs = [ACC + ((2*p + tl)*4 + i)*4 for tl in range(2)]
            reg = lambda k: rs[k//4] + k % 4
            a(".p2align 3")
            for k in range(8): a(f"v_exp_f32 v{E+k}, v{reg(k)}")
            for k in range(0, 8, 2): a(f"v_pk_fma_f32 {p2(P+k)}, {p2(E+k)}, {p2(K1c)}, {p2(K2c)}")
            for k in range(0, 8, 2): a(f"v_pk_fma_f32 {p2(E+k)}, {p2(E+k)}, {p2(P+k)}, {p2(K2c)}")
            for k in range(8): a(f"v_rcp_f32 v{E+k}, v{E+k}")
            for k in range(0, 8, 2): a(f"v_pk_fma_f32 {p2(reg(k))}, {p2(reg(k))}, {p2(E+k)}, {p2(reg(k))}")
            for k in range(4): a(f"v_cvt_pk_bf16_f32 v{rs[0]+k}, v{reg(2*k)}, v{reg(2*k+1)}")
            if i == 2: a(f"s_add_u32 s{36+p}, s{36+p}, {144*2048}")
            a.vmop(f"buffer_store_dwordx4 {r4(rs[0])}, v7, s[32:35], s{36+p} offen offset:{(i%2)*1024} {st_act}", "st")
        for p in range(npair):
            tstage(p, 0); tstage(p, 1)
            for i in range(4): mish8(p, i)
        mark(a, opt, 4)
        a(f"""v_lshrrev_b32 v{E}, 2, v9
v_lshlrev_b32 v{E}, 4, v{E}
v_and_b32 v{E+1}, 3, v9
v_lshl_add_u32 v{E}, v{E+1}, 1, v{E}
s_lshl_b32 s77, s50, 14
s_lshl_b32 s76, s73, 6
s_add_u32 s77, s77, s76
s_add_u32 s77, s77, {WS_U + 512*4096}""")
        for k, i in enumerate(etok):
            a(f"v_mul_f32 v{E+2}, {fbits(LN2)}, v{RR+2*i}")
            for j in range(4): a(f"v_mul_f32 v{EA+4*k+j}, v{EA+4*k+j}, v{E+2}")
            a(f"v_cvt_pk_bf16_f32 v{EA+4*k}, v{EA+4*k}, v{EA+4*k+1}\nv_cvt_pk_bf16_f32 v{EA+4*k+1}, v{EA+4*k+2}, v{EA+4*k+3}")
        a("s_mov_b64 exec, 0xffff")
        for j in range(4):
            for k, i in enumerate(etok):
                op = "buffer_store_short" if j % 2 == 0 else "buffer_store_short_d16_hi"
                a.vmop(f"{op} v{EA+4*k+j//2}, v{E}, s[32:35], s77 offen offset:{(i//2)*64 + (i%2)*8} {st_u}", "st")
            if j < 3: a("s_add_u32 s77, s77, 4096")
        a("s_mov_b64 exec, -1")
        if b == 1:
            a(f"""s_mov_b32 s78, 0
s_cmp_eq_u32 s50, 0
s_cselect_b32 s78, {fbits(576.0)}, s78
s_cmp_eq_u32 s50, 2
s_cselect_b32 s78, {fbits(-0.25)}, s78
s_cmp_eq_u32 s50, 4
s_cselect_b32 s78, {fbits(-0.25)}, s78
s_cmp_eq_u32 s50, 8
s_cselect_b32 s78, {fbits(-0.25)}, s78
v_cmp_eq_u32 vcc, 0, v9
v_mov_b32 v{E+1}, s78
s_lshl_b32 s77, s50, 17
s_add_u32 s77, s77, s76
s_add_u32 s77, s77, {WS_U}
v_cndmask_b32 v{E+1}, 0, v{E+1}, vcc
v_lshlrev_b32 v{E+2}, 4, v10
v_lshl_add_u32 v{E+2}, v9, 12, v{E+2}
s_add_u32 s78, s77, 65536""")
            R2 = ACC
            for i in range(4):
                a.lgop(f"ds_read_b128 {r4(R2+8*i)}, v15 offset:{512 + 64*i}", ("r2", i))
                a.lgop(f"ds_read_b128 {r4(R2+8*i+4)}, v15 offset:{768 + 64*i}", ("r2", i))
            for i in range(4):
                a.wait(lg=("r2", i))
                for ct in range(2):
                    r = ACC + ((8 + ct)*4 + i)*4
                    if ct == 0:
                        for j in range(4): a(f"v_fmac_f32 v{r+j}, v{R2+8*i+4+j}, v{E+1}")
                    for h in (0, 2): a(f"v_pk_mul_f32 {p2(r+h)}, {p2(r+h)}, {p2(R2+8*i+h)}")
                    d = ACC + ((8 + ct)*4 + (i & 2))*4 + 2*(i % 2)
                    for h in range(2): a(f"v_cvt_pk_bf16_f32 v{d+h}, v{r+2*h}, v{r+2*h+1}")
                    if i % 2 == 1:
                        a.vmop(f"buffer_store_dwordx4 {r4(d-2)}, v{E+2}, s[32:35], s{77+ct} offen offset:{(i//2)*64} {st_u}", "st")
        if opt.get("stamp"):
            mark(a, opt, 5)
            a.wait(vm="all")
            stamp_out(a, 0, "s48", 32, "K1_end")
        a("s_endpgm")
    comp(0)
    a("K1_c1:")
    comp(1)
    a("K1_end:\ns_endpgm")
    a.end_kernel("k1_kernel", 256, 102)
    a.launch("k1_kernel", 256, 512, 163840)
```

```python
from fw import *
from common import *
import numpy as np
M32 = "v_mfma_f32_32x32x16_bf16"; M16 = "v_mfma_f32_16x16x32_bf16"
def r4(x): return f"v[{x}:{x+3}]"
def r16(x): return f"v[{x}:{x+15}]"
UNIT = 20480; NRING = 8; NU = 36
T_C32, T_S32, T_C64, T_S64, T_TW1, T_TW2, T_END = 0, 2048, 4096, 12288, 20480, 36864, 53248
VIMG = 53248

def f2bf(x):
    u = np.ascontiguousarray(x, dtype=np.float32).view(np.uint32)
    return ((u + 0x7FFF + ((u >> 16) & 1)) >> 16).astype(np.uint16)
def fft_tables():
    lane = np.arange(64); n = lane & 31; h = lane >> 5
    i8 = np.arange(8); perm = (i8 & 3) + 8*(i8 >> 2)
    out = []
    def frag(N, lanebase, ks, fn):
        b = 16*ks + 4*h[:, None] + perm[None, :]
        return f2bf(fn(2*np.pi*(((lanebase + n)[:, None]*b) % N)/N)).tobytes()
    for fn in (np.cos, np.sin):
        for ks in range(2): out.append(frag(32, 0, ks, fn))
    for fn in (np.cos, np.sin):
        for p in range(2):
            for ks in range(4): out.append(frag(64, 32*p, ks, fn))
    j4 = np.arange(4)
    for tw in range(2):
        for p in range(2):
            for jg in range(4):
                r = 8*jg + 4*h[:, None] + j4[None, :]
                prod = (32*p + r)*n[:, None] if tw == 0 else (32*p + n[:, None])*r
                for fn in (np.cos, np.sin):
                    out.append(fn(2*np.pi*prod/2048).astype(np.float32).tobytes())
    b = b"".join(out); assert len(b) == T_END
    return np.frombuffer(b, np.uint32)

def gen_k2(a, opt):
    st_p = opt.get("st_p", "sc1"); st_v = opt.get("st_v", "sc1"); st_g = opt.get("st_g", "sc1")
    ld_w2 = opt.get("ld_w2", ""); ld_act = opt.get("ld_act", "")
    B1 = opt.get("k1b")
    vpos = "v_lshlrev_b32 v6, 2, v2" if not B1 else """v_and_b32 v6, 7, v2
v_bfe_u32 v8, v2, 3, 1
v_lshl_add_u32 v6, v8, 4, v6
v_bfe_u32 v8, v2, 4, 1
v_lshl_add_u32 v6, v8, 3, v6
v_lshlrev_b32 v6, 2, v6"""
    a.begin_kernel("k2_kernel")
    a("s_cmp_ge_u32 s2, 256\ns_cbranch_scc1 K2_end")
    if opt.get("stamp"): a("s_memrealtime s[90:91]")
    a(f"""s_load_dwordx2 s[24:25], s[0:1], 48
s_load_dwordx2 s[32:33], s[0:1], 72
v_lshrrev_b32 v1, 6, v0
v_and_b32 v0, 63, v0
v_readfirstlane_b32 s48, v1        ; wave
s_and_b32 s49, s2, 7               ; xcd
s_lshr_b32 s50, s2, 3              ; idx
s_mov_b32 s26, {F*D*2}
s_mov_b32 s27, 0x20000
s_mov_b32 s34, 0x10000000
s_mov_b32 s35, 0x20000
v_lshlrev_b32 v7, 4, v0            ; lane*16
s_cmp_lt_u32 s50, 8
s_cbranch_scc1 K2_fft
s_sub_u32 s50, s50, 8
s_lshr_b32 s51, s49, 1             ; split
s_and_b32 s52, s49, 1
s_lshl_b32 s52, s52, 3
s_and_b32 s59, s50, 7
s_add_u32 s52, s52, s59            ; rb
s_lshr_b32 s53, s50, 3             ; cb
s_cmp_lt_u32 s48, 4
s_cbranch_scc1 K2_comp""")
    a(f"""s_sub_u32 s54, s48, 4              ; lw
s_lshl_b32 s55, s52, 2
s_add_u32 s55, s55, s54            ; G
s_mul_i32 s55, s55, {144*2048}
s_mul_i32 s59, s51, {36*2048}
s_add_u32 s55, s55, s59
s_mul_i32 s56, s51, {1152*1152}
s_mul_i32 s59, s54, {8*1152}
s_add_u32 s56, s56, s59
s_mul_i32 s59, s53, 384
s_add_u32 s56, s56, s59
v_lshrrev_b32 v2, 3, v0            ; r
v_and_b32 v3, 7, v0
v_and_b32 v4, 6, v2
v_xor_b32 v3, v3, v4
v_mul_u32_u24 v2, 1152, v2
v_lshl_add_u32 v2, v3, 4, v2       ; w2 voffset
s_lshl_b32 s57, s54, 11
s_mul_i32 s58, s54, 3072
s_add_u32 s58, s58, 8192
s_and_b32 s60, s52, {opt.get("k2_rotmask", 0)}
s_mul_i32 s60, s60, {opt.get("k2_rot", 9)}
s_lshr_b32 s60, s60, 1
s_waitcnt lgkmcnt(0)""")
    def load_unit(u):
        base = (u % NRING)*UNIT
        a(f"s_lshl_b32 s59, s60, 11\ns_add_u32 s59, s59, s55\ns_mul_i32 s61, s60, {32*1152}\ns_add_u32 s61, s61, s56\ns_add_u32 m0, s57, {base}")
        a(f"s_add_u32 s60, s60, 1\ns_cmp_eq_u32 s60, 36\ns_cselect_b32 s60, 0, s60")
        a.vmop(f"buffer_load_dwordx4 v7, s[32:35], s59 offen {ld_act} lds", ("u", u))
        a.vmop(f"buffer_load_dwordx4 v7, s[32:35], s59 offen offset:1024 {ld_act} lds", ("u", u))
        for j in range(3):
            a(f"s_add_u32 m0, s58, {base + j*1024 - j*128}")
            a.vmop(f"buffer_load_dwordx4 v2, s[24:27], s61 offen offset:{j*128} {ld_w2} lds", ("u", u))
    a.vm = []
    first = opt.get("k2_first", 4)
    for u in range(first): load_unit(u)
    nu = first
    for g in range(NU//2):
        a.wait(vm=[("u", 2*g), ("u", 2*g+1)])
        a("s_barrier")
        lim = min(NU, 2*g + NRING, nu + opt.get("k2_ramp", 2))
        while nu < lim:
            load_unit(nu); nu += 1
    a("s_endpgm")
    ACC = 16; FB = 112
    a(f"""K2_comp:
s_and_b32 s54, s48, 1
s_lshr_b32 s55, s48, 1             ; b : d tiles 6b..6b+5
v_lshrrev_b32 v8, 4, v0            ; g
v_and_b32 v9, 15, v0
v_lshlrev_b32 v10, {8 if B1 else 9}, v8
v_lshl_add_u32 v10, v9, 4, v10
s_lshl_b32 s59, s54, 12
v_add_u32 v5, s59, v10
v_lshrrev_b32 v10, 2, v9           ; r
v_and_b32 v11, 1, v8
v_lshl_add_u32 v10, v11, 2, v10
v_lshrrev_b32 v11, 1, v8
v_mul_u32_u24 v11, {3072 if B1 else 6144}, v11
v_lshl_add_u32 v11, v10, 7, v11
v_and_b32 v12, 3, v0
v_lshl_add_u32 v11, v12, 3, v11
v_add_u32 v11, 8192, v11
v_lshrrev_b32 v10, 1, v10          ; swizzle
s_mul_i32 s56, s55, 6""")
    for k in range(4):
        a(f"""s_add_u32 s59, s56, {k}
s_and_b32 s60, s59, 3
s_lshr_b32 s59, s59, 2
s_lshl_b32 s59, s59, 10
v_xor_b32 v12, s60, v10
v_lshl_add_u32 v12, v12, 5, v11
v_add_u32 v{1+k}, s59, v12""")
    a(f"""s_mul_i32 s57, s51, {64*18*2048}
s_lshl_b32 s59, s52, 2
s_lshl_b32 s60, s54, 1
s_add_u32 s59, s59, s60
s_mul_i32 s59, s59, {18*2048}
s_add_u32 s57, s57, s59
s_mul_i32 s59, s53, 6
s_mul_i32 s60, s55, 3
s_add_u32 s59, s59, s60
s_lshl_b32 s59, s59, 10
s_add_u32 s57, s57, s59
s_add_u32 s57, s57, {WS_PART}
s_waitcnt lgkmcnt(0)""")
    a.vm = []; a.lg = []
    win = [0]
    def reads(u):
        base = (u % NRING)*UNIT
        fb = FB + (u % 2)*40
        ops = []
        def setwin():
            if not (win[0] <= base and base + 8192 - win[0] <= 65535):
                for k in range(5):
                    a(f"v_add_u32 v{1+k}, {(base - win[0]) & 0xffffffff:#x}, v{1+k}")
                win[0] = base
        def act(i):
            setwin()
            a.lgop(f"ds_read_b128 {r4(fb+4*i)}, v5 offset:{base - win[0] + (i//2)*2048 + (i%2)*(1024 if B1 else 256)}", ("a", u))
        def w(j, t):
            d = fb + 16 + 4*j + 2*t
            a.lgop(f"ds_read_b64_tr_b16 v[{d}:{d+1}], v{1+j%4} offset:{base - win[0] + (j//4)*1024 + t*(6144 if B1 else 3072)}", ("w", u, j))
        for i in range(4): ops.append(lambda i=i: act(i))
        for j in range(6):
            for t in range(2): ops.append(lambda j=j, t=t: w(j, t))
        return ops
    mark(a, opt, 0)
    a("s_barrier")
    mark(a, opt, 1)
    for o in reads(0): o()
    for u in range(NU):
        if u == 18: mark(a, opt, 2)
        fb = FB + (u % 2)*40
        nxt = reads(u+1) if u + 1 < NU else []
        bar = (u % 2 == 1 and u + 1 < NU)
        n = 0
        for j in range(6):
            for i in range(4):
                if i == 0:
                    if bar and j == 0: a.wait(lg="all")
                    else: a.wait(lg=[("a", u), ("w", u, j)])
                d = ACC + (i*6 + j)*4
                a(f"{M16} {r4(d)}, {r4(fb+16+4*j)}, {r4(fb+4*i)}, " + (r4(d) if u else "0"))
                if bar and n == 0: a("s_barrier")
                elif nxt: nxt.pop(0)()
                n += 1
    mark(a, opt, 3)
    for i in range(4):
        for jp in range(3):
            pk = FB + 4*((i*3 + jp) % 8)
            for t in range(2):
                d = ACC + (i*6 + 2*jp + t)*4
                a(f"v_cvt_pk_bf16_f32 v{pk+2*t}, v{d}, v{d+1}\nv_cvt_pk_bf16_f32 v{pk+2*t+1}, v{d+2}, v{d+3}")
            a(f"v_permlane16_swap_b32 v{pk}, v{pk+2}\nv_permlane16_swap_b32 v{pk+1}, v{pk+3}")
            if jp == 0: a(f"s_add_u32 s59, s57, {i*18*1024}")
            a.vmop(f"buffer_store_dwordx4 {r4(pk)}, v7, s[32:35], s59 offen offset:{jp*1024} {st_p}", "st")
    if opt.get("stamp"):
        a.wait(vm="all")
        stamp_out(a, 1, "s48", 32, "K2_end")
    a("s_endpgm")
    PR, PI, PN = 16, 32, 48
    AR, AI = 64, 96
    C32, S32, C64, S64, TWS = 128, 136, 144, 176, 208
    WL = T_END
    xpf = f"""s_cmp_lt_u32 s48, 5
s_cbranch_scc1 K2_end
s_load_dwordx2 s[36:37], s[0:1], 0
s_mov_b32 s38, {T*D*2}
s_mov_b32 s39, 0x20000
v_and_b32 v2, 31, v0
v_mul_u32_u24 v2, 73728, v2
v_lshrrev_b32 v3, 5, v0
v_lshl_add_u32 v2, v3, 7, v2
s_mul_i32 s59, s51, 1152
s_sub_u32 s60, s48, 5
s_mul_i32 s60, s60, 384
s_add_u32 s59, s59, s60
s_waitcnt lgkmcnt(0)
buffer_load_dword v4, v2, s[36:39], s59 offen
buffer_load_dword v4, v2, s[36:39], s59 offen offset:128
s_waitcnt vmcnt(0)""" if opt.get("xpf", 1) else ""
    a(f"""K2_fft:
s_lshl_b32 s51, s49, 3
s_add_u32 s51, s51, s50            ; f
s_cmp_ge_u32 s51, {opt.get("nfft", 58)}
s_cbranch_scc1 K2_xpf
s_mul_i32 s52, s51, 5              ; j0
s_cmp_lt_u32 s48, 5
s_cbranch_scc1 K2_fft_go
s_getpc_b64 s[28:29]
s_add_u32 s28, s28, fft_tab@rel32@lo+4
s_addc_u32 s29, s29, fft_tab@rel32@hi+12
s_mov_b32 s30, {T_END}
s_mov_b32 s31, 0x20000
s_sub_u32 s53, s48, 5
s_lshl_b32 s59, s53, 10
K2_tl:
s_mov_b32 m0, s59
s_nop 0
buffer_load_dwordx4 v7, s[28:31], s59 offen lds
s_add_u32 s59, s59, 3072
s_cmp_lt_u32 s59, {T_END}
s_cbranch_scc1 K2_tl
s_lshl_b32 s54, s51, 16
s_add_u32 s54, s54, {WS_WT}
s_lshl_b32 s53, s53, 10
s_waitcnt vmcnt(0) lgkmcnt(0)
s_barrier
K2_wl:
s_add_u32 m0, s53, {WL}
s_add_u32 s59, s53, s54
buffer_load_dwordx4 v7, s[32:35], s59 offen lds
s_add_u32 s53, s53, 3072
s_cmp_lt_u32 s53, 65536
s_cbranch_scc1 K2_wl
s_waitcnt vmcnt(0)
s_barrier
K2_xpf:
{xpf}
s_endpgm
K2_fft_go:
s_add_u32 s56, s52, s48            ; j
s_cmp_gt_u32 s56, 288
s_cbranch_scc1 K2_end
s_lshr_b32 s54, s56, 1
s_and_b32 s59, s56, 1
s_mul_i32 s59, s59, 144
s_add_u32 s54, s54, s59            ; sigma
s_mov_b32 s61, 0                   ; 0 normal, 1: j=0, 2: j=288
s_cmp_eq_u32 s56, 0
s_cselect_b32 s61, 1, s61
s_cmp_eq_u32 s56, 288
s_cselect_b32 s61, 2, s61
s_cselect_b32 s54, 0, s54
s_cselect_b32 s59, 4096, 0
s_lshl_b32 s62, s54, 13
s_add_u32 s57, s62, {WS_U}
s_add_u32 s58, s57, 4096
s_add_u32 s57, s57, s59
s_cmp_lg_u32 s61, 0
s_cselect_b32 s58, 0x10000000, s58
v_and_b32 v2, 31, v0               ; n
v_lshrrev_b32 v3, 5, v0            ; h
v_lshlrev_b32 v4, 4, v3
v_lshl_add_u32 v4, v2, 6, v4       ; U voffset
s_waitcnt lgkmcnt(0)""")
    a.vm = []; a.lg = []
    for p in range(2):
        for ks in range(2):
            a.vmop(f"buffer_load_dwordx4 {r4(PR+8*p+4*ks)}, v4, s[32:35], s57 offen offset:{p*2048+ks*32}", "z")
            a.vmop(f"buffer_load_dwordx4 {r4(PI+8*p+4*ks)}, v4, s[32:35], s58 offen offset:{p*2048+ks*32}", "z")
    a(f"""v_add_u32 v5, s52, v2
v_and_b32 v5, 1, v5
v_add_u32 v5, s48, v5
v_lshlrev_b32 v5, 1, v5
v_lshl_add_u32 v5, v2, 4, v5
v_lshl_add_u32 v5, v3, 11, v5
v_add_u32 v5, {WL}, v5
{vpos}
v_lshl_add_u32 v6, v3, 9, v6       ; V voffset
s_add_u32 s62, s62, {WS_V}
s_barrier""")
    for k in range(4): a.lgop(f"ds_read_b128 {r4(C32+4*k)}, v7 offset:{k*1024}", "t32")
    NB = 4
    def twread(tw, k):
        s = TWS + 8*(k % NB)
        off = (T_TW1 if tw == 0 else T_TW2) + k*2048
        a.lgop(f"ds_read_b128 {r4(s)}, v7 offset:{off}", ("tw", k))
        a.lgop(f"ds_read_b128 {r4(s+4)}, v7 offset:{off+1024}", ("tw", k))
    def wread(k):
        s = TWS + 8*(k % NB)
        for arr in range(2):
            for e in range(4):
                a.lgop(f"ds_read_u16 v{s+4*arr+e}, v5 offset:{arr*32768 + (8*k + e)*512}", ("tw", k))
    for k in range(NB): twread(0, k)
    a.wait(vm="z")
    for k in range(16): a(f"v_xor_b32 v{PN+k}, 0x80008000, v{PR+k}")
    a.wait(lg="t32")
    def stage_small(X1, X2, X3, X4):
        for p in range(2):
            for (D, Xa, Xb) in ((AR, X1, X2), (AI, X3, X4)):
                d = D + 16*p
                for ks in range(2):
                    a(f"{M32} {r16(d)}, {r4(Xa+8*p+4*ks)}, {r4(C32+4*ks)}, " + (r16(d) if ks else "0"))
                    a(f"{M32} {r16(d)}, {r4(Xb+8*p+4*ks)}, {r4(S32+4*ks)}, {r16(d)}")
    def stage_big(X1, X2, X3, X4, dataA, fill=()):
        fill = list(fill)
        for p in range(2):
            for (D, Xa, Xb) in ((AR, X1, X2), (AI, X3, X4)):
                d = D + 16*p
                for ks in range(4):
                    for (X, Tb, first) in ((Xa, C64, ks == 0), (Xb, S64, False)):
                        x, tb = r4(X+4*ks), r4(Tb+16*p+4*ks)
                        A_, B_ = (x, tb) if dataA else (tb, x)
                        a(f"{M32} {r16(d)}, {A_}, {B_}, " + ("0" if first else r16(d)))
                if fill: fill.pop(0)()
    def p2(x): return f"v[{x}:{x+1}]"
    def cmul4(k, cr, sr, sgn):
        ng = " neg_lo:[1,0,0] neg_hi:[1,0,0]"
        n1, n2 = (ng, "") if sgn > 0 else ("", ng)
        for e in (0, 2): a(f"v_pk_mul_f32 {p2(8+e)}, {p2(AR+4*k+e)}, {p2(cr+e)}")
        for e in (0, 2): a(f"v_pk_mul_f32 {p2(12+e)}, {p2(AI+4*k+e)}, {p2(cr+e)}")
        for e in (0, 2): a(f"v_pk_fma_f32 {p2(8+e)}, {p2(AI+4*k+e)}, {p2(sr+e)}, {p2(8+e)}{n1}")
        for e in (0, 2): a(f"v_pk_fma_f32 {p2(12+e)}, {p2(AR+4*k+e)}, {p2(sr+e)}, {p2(12+e)}{n2}")
    def pack4(k, negre):
        for e in range(2): a(f"v_cvt_pk_bf16_f32 v{PR+2*k+e}, v{8+2*e}, v{9+2*e}")
        for e in range(2): a(f"v_cvt_pk_bf16_f32 v{PI+2*k+e}, v{12+2*e}, v{13+2*e}")
        for e in range(2): a(f"v_xor_b32 v{PN+2*k+e}, 0x80008000, v{(PR if negre else PI)+2*k+e}")
    stage_small(PR, PI, PI, PN)
    t64 = [lambda k=k: a.lgop(f"ds_read_b128 {r4(C64+4*k)}, v7 offset:{T_C64+k*1024}", "t64") for k in range(16)]
    for k in range(8):
        a.wait(lg=("tw", k))
        s = TWS + 8*(k % NB)
        cmul4(k, s, s+4, -1)
        if k + NB < 8: twread(0, k+NB)
        t64.pop(0)(); t64.pop(0)()
        pack4(k, True)
    a.wait(lg="t64")
    mark(a, opt, 0)
    stage_big(PR, PI, PI, PN, False)
    mark(a, opt, 1)
    a("s_barrier")
    mark(a, opt, 2)
    wread(0); wread(1)
    for k in range(8):
        a.wait(lg=("tw", k))
        if k + 2 < 8: wread(k+2)
        s = TWS + 8*(k % NB)
        for e in range(8): a(f"v_lshlrev_b32 v{s+e}, 16, v{s+e}")
        cmul4(k, s, s+4, +1)
        pack4(k, False)
    stage_big(PR, PN, PI, PR, True, fill=[lambda k=k: twread(1, k) for k in range(NB)])
    for k in range(8):
        a.wait(lg=("tw", k))
        s = TWS + 8*(k % NB)
        cmul4(k, s, s+4, +1)
        if k + NB < 8: twread(1, k+NB)
        pack4(k, False)
    stage_small(PR, PN, PI, PR)
    mark(a, opt, 4)
    a("s_add_u32 s63, s62, 4096\ns_cmp_lg_u32 s61, 0\ns_cbranch_scc1 K2_fft_spw")
    off = lambda j: ((j & 3) + 8*(j >> 2))*128
    for p in range(2):
        for j in range(16):
            a(f"v_cvt_pk_bf16_f32 v{16+16*p+j}, v{AR+16*p+j}, v{AI+16*p+j}")
            a(f"buffer_store_dword v{16+16*p+j}, v6, s[32:35], s{62+p} offen offset:{off(j)} {st_v}")
    a("s_branch K2_fft_out\nK2_fft_spw:\ns_sub_u32 s59, s61, 1\ns_lshl_b32 s59, s59, 1\nv_add_u32 v6, s59, v6")
    for p in range(2):
        for j in range(16):
            a(f"v_cvt_pk_bf16_f32 v{16+16*p+j}, v{AR+16*p+j}, v{AR+16*p+j}")
            a(f"buffer_store_short v{16+16*p+j}, v6, s[32:35], s{62+p} offen offset:{off(j)} {st_v}")
    a("K2_fft_out:")
    if opt.get("stamp"):
        a("s_waitcnt vmcnt(0)")
        a("s_mov_b32 s87, 0")
        mark(a, opt, 5)
        stamp_out(a, 3, "s48", 32, "K2_end")
    a("K2_end:\ns_endpgm")
    a.end_kernel("k2_kernel", 256, 96)
    a.launch("k2_kernel", 256, 512, 163840)
    tab = fft_tables()
    t = [".p2align 8", ".type fft_tab,@object", "fft_tab:"]
    for i in range(0, len(tab), 8):
        t.append(".long " + ",".join("0x%x" % x for x in tab[i:i+8]))
    a.tail += t
```

```python
from fw import *
from common import *
M16 = "v_mfma_f32_16x16x32_bf16"
def r4(x): return f"v[{x}:{x+3}]"

def gen_k3(a, opt):
    st_o = opt.get("st_o", "")
    rowc = "v_mul_u32_u24 v4, 73728, v2" if not opt.get("k1b") else "v_and_b32 v4, 8, v2\nv_add_u32 v4, v4, v2\nv_mul_u32_u24 v4, 73728, v4"
    a.begin_kernel("k3_kernel")
    a("s_cmp_ge_u32 s2, 192\ns_cbranch_scc1 K3_end")
    if opt.get("stamp"): a("s_memrealtime s[90:91]")
    GB = 32
    PB = 104
    XB = 136
    VB = 144
    RC = 216
    ACC = 16
    a(f"""s_load_dwordx2 s[32:33], s[0:1], 72
s_load_dwordx2 s[24:25], s[0:1], 0
s_load_dwordx2 s[28:29], s[0:1], 56
v_lshrrev_b32 v1, 6, v0
v_and_b32 v0, 63, v0
v_readfirstlane_b32 s48, v1        ; wave
s_and_b32 s49, s2, 7
s_lshl_b32 s49, s49, 3
s_bfe_u32 s59, s2, 0x30003
s_add_u32 s49, s49, s59            ; G
s_mov_b32 s34, 0x10000000
s_mov_b32 s35, 0x20000
v_lshlrev_b32 v7, 4, v0
s_mul_i32 s53, s49, 36864
s_mul_i32 s59, s48, 6144
s_mov_b32 m0, s59
s_mul_i32 s54, s48, {48*8192}
s_lshl_b32 s59, s49, 7
s_add_u32 s54, s54, s59
s_add_u32 s54, s54, {WS_V}
v_lshrrev_b32 v5, 3, v0
v_and_b32 v6, 4, v5
v_xor_b32 v6, v6, v0
v_and_b32 v6, 7, v6
v_lshlrev_b32 v6, 4, v6
v_lshl_add_u32 v6, v5, 13, v6
s_lshr_b32 s50, s2, 6              ; third
s_cmp_ge_u32 s48, 3
s_cselect_b32 s51, 1, 0            ; par
s_cselect_b32 s62, -1.0, 1.0
s_cselect_b32 s60, -3, 3
s_add_u32 s65, s48, s60
s_mul_i32 s59, s51, 3
s_sub_u32 s52, s48, s59
s_mul_i32 s59, s50, 3
s_add_u32 s52, s52, s59            ; dp (0..8)
v_and_b32 v2, 15, v0               ; n16
v_lshrrev_b32 v3, 4, v0            ; g
s_waitcnt lgkmcnt(0)""")
    for k in range(6):
        a.vmop(f"buffer_load_dwordx4 v6, s[32:35], s54 offen lds", "v")
        if k < 5: a("s_add_u32 m0, m0, 1024\ns_add_u32 s54, s54, 65536")
    a(f"""s_mov_b32 s26, {T*D*2}
s_mov_b32 s27, 0x20000
s_mov_b32 s30, {T*D*2}
s_mov_b32 s31, 0x20000
s_mul_i32 s60, s51, 9
s_add_u32 s56, s52, s60
s_lshl_b32 s57, s56, 10
s_add_u32 s57, s57, s53
s_add_u32 s57, s57, {WS_PART}
{rowc}
v_and_b32 v5, 1, v3
v_lshl_add_u32 v4, v5, 5, v4
v_lshrrev_b32 v5, 1, v3
v_lshl_add_u32 v4, v5, 4, v4
s_mul_i32 s58, s49, 1152
s_lshl_b32 s60, s56, 6
s_add_u32 s58, s58, s60
s_add_u32 s61, s58, {(8 if opt.get('k1b') else 16)*73728}""")
    loads = [lambda: a.vmop(f"buffer_load_dwordx4 {r4(XB)}, v4, s[24:27], s58 offen", "x"),
             lambda: a.vmop(f"buffer_load_dwordx4 {r4(XB+4)}, v4, s[24:27], s61 offen", "x")]
    for s in range(4):
        for th in range(2):
            def ld(s=s, th=th):
                a(f"s_add_u32 s59, s57, {s*64*18*2048 + th*18*1024}")
                a.vmop(f"buffer_load_dwordx4 {r4(PB+8*s+4*th)}, v7, s[32:35], s59 offen", ("p", s))
            loads.append(ld)
    g = []
    g += f"""v_lshl_add_u32 v9, v3, 3, s51
v_cvt_f32_u32 v9, v9               ; j0
v_cmp_eq_f32 vcc, 0, v9
s_lshl_b32 s63, s52, 5""".split("\n")
    P, Q = RC, RC + 8
    for t in range(2):
        g += f"""v_add_u32 v10, s63, v2
v_cvt_f32_u32 v11, v10
v_mul_f32 v11, {fbits(1/576)}, v11
v_mul_f32 v{P}, v9, v11
v_add_f32 v12, v11, v11
v_mul_f32 v13, {fbits(32.0)}, v11""".split("\n")
        g += [f"v_add_f32 v{P+4}, v{P}, v12", f"v_add_f32 v{P+2}, v{P+4}, v12", f"v_add_f32 v{P+6}, v{P+2}, v12"]
        for q in range(4): g.append(f"v_add_f32 v{P+2*q+1}, {fbits(0.25)}, v{P+2*q}")
        for i in range(8): g.append(f"v_add_f32 v{Q+i}, v{P+i}, v13")
        g.append("v_cos_f32 v13, v13")
        for i in range(16): g.append(f"v_cos_f32 v{P+i}, v{P+i}")
        g.append("v_add_f32 v13, v13, v13")
        g += ["v_lshlrev_b32 v14, 31, v10", "v_or_b32 v14, 0x3f003f00, v14"]
        for kk in range(9):
            cur = (P, Q)[kk % 2]; oth = (Q, P)[kk % 2]
            if kk >= 2:
                for i in range(8): g.append(f"v_fma_f32 v{cur+i}, v13, v{oth+i}, -v{cur+i}")
            for i in range(4): g.append(f"v_cvt_pk_bf16_f32 v{GB+8*kk+4*t+i}, v{cur+2*i}, v{cur+2*i+1}")
            if kk == 0: g.append(f"v_cndmask_b32 v{GB+4*t}, v{GB+4*t}, v14, vcc")
        if t == 0: g.append("s_add_u32 s63, s63, 16")
    g += f"""v_lshlrev_b32 v5, 9, v3
v_lshl_add_u32 v5, v2, 2, v5
v_and_b32 v9, 1, v3
v_lshl_add_u32 v5, v9, 6, v5
s_mul_i32 s59, s51, {9*2048}
v_add_u32 v12, s59, v5             ; V read addr th=0, q even
v_xor_b32 v13, 64, v12             ; th=1
v_add_u32 v14, 128, v12
v_add_u32 v15, 128, v13
s_lshl_b32 s59, s48, 12
s_add_u32 s59, s59, 36864
v_add_u32 v6, s59, v7              ; exchange write addr
s_lshl_b32 s59, s65, 12
s_add_u32 s59, s59, 36864
v_add_u32 v8, s59, v7              ; exchange read addr
s_mov_b32 s63, {fbits(2/(576*2048))}
s_mov_b32 s64, {fbits(LN2)}""".split("\n")
    npre = opt.get("k3_pre", 4)
    start = opt.get("k3_start", 0); step = opt.get("k3_step", 60)
    for k, l in enumerate(g):
        a(l)
        if k >= start and (k - start) % step == 0 and npre and k < len(g) - 20:
            loads.pop(0)(); npre -= 1
    mark(a, opt, 0)
    a.wait(vm="v")
    a("s_barrier")
    mark(a, opt, 1)
    def vread(kk, n):
        th, z = n // 2, n % 2
        d = VB + 8*kk + 4*th + 2*z
        a.lgop(f"ds_read2st64_b32 v[{d}:{d+1}], v{12+th+2*z} offset0:{8*kk} offset1:{8*kk+1}", ("v", kk))
    LA = 3
    for kk in range(LA):
        for n in range(4): vread(kk, n)
    for kk in range(9):
        a.wait(lg=("v", kk))
        for th in range(2):
            for t in range(2):
                d = ACC + 8*th + 4*t
                a(f"{M16} {r4(d)}, {r4(GB+8*kk+4*t)}, {r4(VB+8*kk+4*th)}, " + (r4(d) if kk else "0"))
                if kk + LA < 9: vread(kk + LA, 2*th + t)
        if loads and kk % 2 == 1 and opt.get("k3_mid", 1): loads.pop(0)()
    if loads: loads.pop(0)()
    for k in range(4): a.lgop(f"ds_write_b128 v6, {r4(ACC+4*k)} offset:{k*1024}", "e")
    if loads: loads.pop(0)()
    a.wait(lg="e")
    a("s_barrier")
    for k in range(4): a.lgop(f"ds_read_b128 {r4(48+4*k)}, v8 offset:{k*1024}", "e2")
    while loads: loads.pop(0)()
    mark(a, opt, 2)
    a.wait(vm="x")
    for k in range(8):
        a(f"v_lshlrev_b32 v{32+2*k}, 16, v{XB+k}\nv_and_b32 v{33+2*k}, 0xffff0000, v{XB+k}")
    a.wait(lg="e2")
    for k in range(16):
        a(f"v_fma_f32 v{48+k}, v{ACC+k}, s62, v{48+k}")
    for th in range(2):
        for e in range(4):
            a(f"v_permlane16_swap_b32 v{48+8*th+e}, v{52+8*th+e}")
    for k in range(16):
        a(f"v_fmac_f32 v{32+k}, s63, v{48+k}")
    mark(a, opt, 3)
    for s in range(4):
        a.wait(vm=("p", s))
        if s == 3: mark(a, opt, 4)
        for th in range(2):
            for e in range(4):
                src = PB + 8*s + 4*th + e
                a(f"v_lshlrev_b32 v{48+2*e}, 16, v{src}\nv_and_b32 v{49+2*e}, 0xffff0000, v{src}")
            for e in range(8):
                a(f"v_fmac_f32 v{32+8*th+e}, s64, v{48+e}")
            if s == 3:
                for e in range(4): a(f"v_cvt_pk_bf16_f32 v{XB+4*th+e}, v{32+8*th+2*e}, v{33+8*th+2*e}")
                a.vmop(f"buffer_store_dwordx4 {r4(XB+4*th)}, v4, s[28:31], s{58 if th == 0 else 61} offen {st_o}", "o")
    if opt.get("stamp"):
        mark(a, opt, 5)
        a.wait(vm="all")
        stamp_out(a, 2, "s48", 32, "K3_end")
    a("K3_end:\ns_endpgm")
    a.end_kernel("k3_kernel", 232, 96)
    a.launch("k3_kernel", 192, 384, 36864 + 6*4096)
```

```python
import sys, json
from fw import *
from common import *
from k1 import gen_k1
def build(path, opt):
    a = Asm()
    ks = opt.get("kernels", "123")
    if "1" in ks:
        if opt.get("k1b", 1):
            from k1b import gen_k1b
            gen_k1b(a, opt)
        else: gen_k1(a, opt)
    if "2" in ks:
        from k2 import gen_k2
        gen_k2(a, opt)
    if "3" in ks and not opt.get("merge", 1):
        from k3 import gen_k3
        gen_k3(a, opt)
    a('s_endpgm\n.fill 768, 4, 0xbf810000\ncode_end:\ns_endpgm')
    if opt.get('cyc'): a.lines = [l.replace('s_memrealtime', 's_memtime') for l in a.lines]
    for pat in opt.get('drop', []): a.lines = [l for l in a.lines if pat not in l]
    a.write(path)
if __name__ == "__main__":
    opt = json.loads(sys.argv[2]) if len(sys.argv) > 2 else {}
    build(sys.argv[1], opt)
```

```python
from fw import *
from common import *
M16 = "v_mfma_f32_16x16x32_bf16"
def r4(x): return f"v[{x}:{x+3}]"
def p2(x): return f"v[{x}:{x+1}]"
WU = 18432
W_OFF = 0; NW = 4
X_OFF = NW*WU
NX = 3
F_OFF = X_OFF + NX*16384
E_OFF = F_OFF + 18432
ESTR = 1168
WR_OFF = 149504
CSB = 159744
BIAS = CSB + 1280
STAT = BIAS + 1280
SCR = E_OFF + 6*ESTR + 160
RS = 0
NS = 18

def gen_k1b(a, opt):
    st_act = opt.get("st_act", "sc1"); st_u = opt.get("st_u", ""); st_wt = opt.get("st_wt", "sc1")
    a.begin_kernel("k1_kernel")
    a("s_cmp_ge_u32 s2, 256\ns_cbranch_scc1 K1_end")
    if opt.get("stamp"): a("s_memrealtime s[90:91]")
    a(f"""s_load_dwordx8 s[4:11], s[0:1], 0
s_load_dwordx8 s[12:19], s[0:1], 32
s_load_dwordx2 s[32:33], s[0:1], 72
v_lshrrev_b32 v1, 6, v0
s_lshr_b32 s60, s2, 3              ; idx
v_readfirstlane_b32 s48, v1        ; wave
v_mov_b32 v2, v0                   ; tid
v_and_b32 v0, 63, v0               ; lane
s_and_b32 s49, s2, 1
s_lshl_b32 s49, s49, 3
s_and_b32 s61, s60, 7
s_add_u32 s49, s49, s61            ; rb
s_lshr_b32 s3, s60, 3              ; cq
s_bfe_u32 s50, s2, 0x20001
s_lshl_b32 s50, s50, 2
s_add_u32 s50, s50, s3             ; cg
s_add_u32 s71, s3, s49
s_and_b32 s71, s71, {opt.get("rotmask", 0)}
s_mul_i32 s71, s71, {opt.get("rot", 4)}
s_mul_i32 s63, s50, 576
s_and_b32 s64, s50, 1
s_mov_b32 s34, 0x10000000
s_mov_b32 s35, 0x20000
v_lshlrev_b32 v7, 4, v0
s_cmp_lt_u32 s48, 4
s_cbranch_scc1 K1_comp""")
    a(f"""s_sub_u32 s51, s48, 4              ; lw
v_lshrrev_b32 v8, 3, v0            ; r
v_lshrrev_b32 v9, 4, v0
v_xor_b32 v9, v9, v0
v_and_b32 v9, 7, v9
v_lshlrev_b32 v9, 4, v9
s_mov_b32 s22, 73728
v_mad_u32_u24 v3, v8, s22, v9
v_xor_b32 v4, 64, v3
v_add_u32 v4, {16*73728-1024}, v4
s_lshl_b32 s53, s49, 2
s_add_u32 s53, s53, s51
s_mul_i32 s53, s53, 1152           ; x base
s_lshl_b32 s20, s71, 7
s_add_u32 s20, s20, s53
s_add_u32 s21, s53, 1152
s_lshl_b32 s57, s51, 12            ; lw*4096
s_mov_b32 s26, {T*D*2}
s_mov_b32 s27, 0x20000
s_waitcnt lgkmcnt(0)
s_mov_b64 s[24:25], s[4:5]""")
    wsetup = f"""v_and_b32 v9, 2, v8
s_and_b32 s59, s51, 1
s_lshl_b32 s59, s59, 2
v_or_b32 v9, s59, v9
v_xor_b32 v9, v9, v0
v_and_b32 v9, 7, v9
v_lshlrev_b32 v9, 4, v9
v_mul_u32_u24 v5, 9216, v8
v_add_u32 v5, v5, v9               ; W voffset
v_lshrrev_b32 v8, 2, v0
v_mul_u32_u24 v6, 9216, v8
s_lshr_b32 s59, s59, 1
v_xor_b32 v9, s59, v0
v_and_b32 v9, 3, v9
v_lshl_add_u32 v6, v9, 4, v6       ; H voffset
s_mul_i32 s54, s51, {8*9216}
s_add_u32 s54, s54, s63
s_mul_i32 s59, s71, {64*9216}
s_add_u32 s36, s54, s59
s_add_u32 s37, s54, {576*9216}
s_lshl_b32 s38, s64, 6
s_xor_b32 s39, s64, 1
s_lshl_b32 s39, s39, 9
s_lshl_b32 s58, s51, 9
s_mov_b32 s30, {D*F*2}
s_mov_b32 s31, 0x20000
s_mov_b64 s[28:29], s[12:13]"""
    a.vm = []; a.lg = []
    def x_items(c, th):
        def f0():
            a(f"s_add_u32 m0, s57, {X_OFF + (c % NX)*16384 + th*2048}")
            if th: a(f"s_add_u32 s23, s20, {8*73728}")
            else: a("s_mov_b32 s23, s20")
            a.vmop("buffer_load_dwordx4 v3, s[24:27], s23 offen lds", ("x", c))
        def f1():
            a(f"s_add_u32 m0, s57, {X_OFF + (c % NX)*16384 + th*2048}\ns_nop 0")
            a.vmop("buffer_load_dwordx4 v4, s[24:27], s23 offen offset:1024 lds", ("x", c))
            if th: a("s_add_u32 s20, s20, 128\ns_cmp_eq_u32 s20, s21\ns_cselect_b32 s20, s53, s20")
        return [f0, f1]
    def w_items(u):
        base = W_OFF + (u % NW)*WU
        it = []
        for j in range(4):
            def f(j=j):
                a(f"s_add_u32 m0, s57, {base + j*1024 - j*128}")
                if j == 0: a("s_add_u32 s40, s36, s38")
                else: a("s_nop 0")
                a.vmop(f"buffer_load_dwordx4 v5, s[28:31], s40 offen offset:{j*128} lds", ("w", u))
            it.append(f)
        def fh():
            a(f"s_add_u32 m0, s58, {base + 16384}\ns_add_u32 s41, s36, s39\ns_mov_b32 exec_hi, 0")
            a.vmop("buffer_load_dwordx4 v6, s[28:31], s41 offen lds", ("w", u))
            a(f"s_mov_b32 exec_hi, -1\ns_add_u32 s36, s36, {32*9216}\ns_cmp_eq_u32 s36, s37\ns_cselect_b32 s36, s54, s36")
        it.append(fh)
        return it
    for f in x_items(0, 0) + x_items(0, 1): f()
    a(wsetup)
    for f in w_items(0): f()
    a(f"""s_mov_b64 s[44:45], s[14:15]
s_mov_b32 s46, {F*2}
s_mov_b32 s47, 0x20000
v_subrev_u32 v10, 256, v2
v_lshlrev_b32 v11, 1, v10
v_lshlrev_b32 v10, 2, v10
v_add_u32 v10, {BIAS}, v10""")
    for f in w_items(1): f()
    a.vmop("buffer_load_ushort v12, v11, s[44:47], s63 offen", "bias")
    a.vmop("buffer_load_ushort v13, v11, s[44:47], s63 offen offset:512", "bias")
    XV = 64; XP = 96
    def recur():
        a(f"""s_lshl_b32 s59, s71, 6
v_lshl_add_u32 v18, v18, 5, s59    ; d0
v_cvt_f32_u32 v16, v16
v_cvt_f32_u32 v17, v17
v_cvt_f32_u32 v18, v18
v_mul_f32 v16, {fbits(1/576)}, v16
v_mul_f32 v17, {fbits(0.25)}, v17
v_fma_f32 v17, v18, v16, v17
v_fract_f32 v17, v17
v_add_f32 v18, v17, v16
v_cos_f32 v{XV}, v17
v_cos_f32 v{XV+1}, v18
v_cos_f32 v16, v16
v_and_b32 v{XV}, v20, v{XV}
v_and_b32 v{XV+1}, v20, v{XV+1}
v_add_f32 v16, v16, v16""")
    def recur2():
        for k in range(2, 32):
            a(f"v_fma_f32 v{XV+k}, v16, v{XV+k-1}, -v{XV+k-2}")
            if k % 2 == 0: a(f"v_cvt_pk_bf16_f32 v{XP+k//2-1}, v{XV+k-2}, v{XV+k-1}")
            if k % 8 == 0: a(f"ds_write_b128 v19, {r4(XP + k//2 - 4)}\nv_add_u32 v19, s72, v19")
        a(f"v_cvt_pk_bf16_f32 v{XP+15}, v{XV+30}, v{XV+31}\nds_write_b128 v19, {r4(XP+12)}")
    a(f"""v_and_b32 v8, 31, v0
v_lshrrev_b32 v9, 5, v0
v_bfe_u32 v14, v8, 1, 3
v_xor_b32 v14, v14, v9
v_lshlrev_b32 v14, 4, v14
v_lshl_add_u32 v14, v8, 7, v14
s_add_u32 s59, s57, {X_OFF}
v_add_u32 v24, s59, v14
v_xor_b32 v25, 32, v24
v_xor_b32 v26, 64, v24
v_xor_b32 v27, 0x60, v24
v_mov_b32 v28, 0
v_mov_b32 v29, 0""")
    side = {}
    def sq_ops(c):
        o = [lambda: [a.lgop(f"ds_read_b128 {r4(32+4*i)}, v{24+i} offset:{(c % NX)*16384}", ("sq", i)) for i in range(4)]]
        for i in range(4):
            def f(i=i):
                a.wait(lg=("sq", i))
                for hh in range(2):
                    for k in range(2): a(f"v_lshlrev_b32 v{48+2*k}, 16, v{32+4*i+2*hh+k}\nv_and_b32 v{49+2*k}, 0xffff0000, v{32+4*i+2*hh+k}")
                    for k in range(4): a(f"v_fmac_f32 v{28+k%2}, v{48+k}, v{48+k}")
            o.append(f)
        return o
    def bias_w():
        a.wait(vm="bias")
        a(f"v_lshlrev_b32 v12, 16, v12\nv_lshlrev_b32 v13, 16, v13\nv_mul_f32 v12, {fbits(LOG2E)}, v12\nv_mul_f32 v13, {fbits(LOG2E)}, v13")
        a.lgop("ds_write_b32 v10, v12", "pub")
        a("s_cmp_lg_u32 s51, 0\ns_cbranch_scc1 K1_nb\nds_write_b32 v10, v13 offset:1024\nK1_nb:")
    side.setdefault(1, []).append(bias_w)
    def zero_sync():
        a(f"""s_lshl_b32 s59, s2, 2
s_or_b32 s59, s59, s51
s_cmp_lg_u32 s59, 0
s_cbranch_scc1 K1_nz
v_lshlrev_b32 v8, 7, v0
v_mov_b32 v9, 0
s_mov_b32 s59, {WS_SYNC}
buffer_store_dword v9, v8, s[32:35], s59 offen sc1
K1_nz:""")
    if opt.get("merge", 1): side.setdefault(2, []).append(zero_sync)
    fol = opt.get("fol", 0)
    nlab = [0]
    def guarded(f):
        def g():
            if not fol: return f(True)
            nlab[0] += 1
            a(f"s_cmp_lg_u32 s71, 0\ns_cbranch_scc1 K1_sj{nlab[0]}")
            f(False)
            a(f"K1_sj{nlab[0]}:")
        return g
    def vm(track, txt, tag):
        if track: a.vmop(txt, tag)
        else: a(txt)
    spf = opt.get("s_pf2", [15])
    full = opt.get('pffull', 0)
    nl = -(-(82 if (fol or full) else 41) // len(spf))
    def pf2_setup(tr):
        a(f"""s_mov_b32 s18, {F*D*2}
s_mov_b32 s19, 0x20000
s_bfe_u32 s65, s2, 0x20001
s_mul_i32 s65, s65, {1152*1152}
s_and_b32 s66, s60, {30 if fol else 31}
s_mul_i32 s66, s66, {324*128}
s_add_u32 s65, s65, s66
s_lshl_b32 s66, s51, 1
s_and_b32 s67, s2, {0 if full else 1}
s_add_u32 s66, s66, s67
s_mul_i32 s66, s66, {(82 if fol else 41)*128}
s_add_u32 s95, s65, s66
v_min_u32 v52, {nl-1}, v0
v_lshlrev_b32 v52, 7, v52""")
        if "2" in opt.get("kernels", "123"):
            a(f"""s_getpc_b64 s[80:81]
s_add_u32 s80, s80, fft_tab@rel32@lo+4
s_addc_u32 s81, s81, fft_tab@rel32@hi+12
s_mov_b32 s82, 45056
s_mov_b32 s83, 0x20000
s_lshr_b32 s65, s60, 1
s_lshl_b32 s65, s65, 2
s_add_u32 s65, s65, s51
s_lshl_b32 s65, s65, 10
v_lshrrev_b32 v8, 3, v0
v_lshlrev_b32 v8, 7, v8
s_mov_b32 m0, {SCR}
s_nop 0""")
            vm(tr, "buffer_load_dword v8, s[80:83], s65 offen lds", "pf")
    def pf2(tr):
        a(f"s_mov_b32 m0, {SCR}\ns_nop 0")
        vm(tr, "buffer_load_dword v52, s[16:19], s95 offen lds", "pf")
        a(f"s_add_u32 s95, s95, {nl*128}")
    if opt.get("pf2", 1):
        side.setdefault(spf[0], []).append(lambda: pf2_setup(True))
        for k in spf: side.setdefault(k, []).append(guarded(pf2))
    def wt_setup():
        a(f"""s_mov_b64 s[72:73], s[6:7]
s_mov_b32 s74, {T*289*2}
s_mov_b32 s75, 0x20000
s_mov_b64 s[76:77], s[8:9]
s_mov_b32 s78, {T*289*2}
s_mov_b32 s79, 0x20000
v_and_b32 v8, 7, v0
v_lshrrev_b32 v9, 3, v0
v_mul_u32_u24 v30, 289, v8
v_mad_u32_u24 v30, v9, 5, v30
v_and_b32 v30, -2, v30
v_lshlrev_b32 v30, 1, v30
s_andn2_b32 s96, s2, {8 if fol else 0}
s_mul_i32 s67, s96, {8*578}
s_mul_i32 s68, s51, 160
s_add_u32 s67, s67, s68
v_lshlrev_b32 v8, 4, v8
v_lshl_add_u32 v31, v9, 16, v8
s_lshl_b32 s69, s51, 20
s_lshl_b32 s68, s96, 7
s_add_u32 s69, s69, s68
s_add_u32 s69, s69, {WS_WT}""")
    def wt_load(y):
        def f(tr):
            for z in range(4):
                vm(tr, f"buffer_load_dwordx4 {r4(112+16*y+4*z)}, v30, s[{72+4*(z%2)}:{75+4*(z%2)}], s67 offen offset:{80*(z//2)}", "wt")
            a(f"s_add_u32 s67, s67, {64*578}")
        return f
    def wt_store(y):
        def f(tr):
            for z in range(4):
                a(f"s_add_u32 s68, s69, {(z % 2)*32768 + (z//2)*8*65536 + y*1024}")
                vm(tr, f"buffer_store_dwordx4 {r4(112+16*y+4*z)}, v31, s[32:35], s68 offen {st_wt}", "st")
        return f
    if not opt.get("nowt"):
        swt = opt.get("s_wt", [15]); sws = opt.get("s_wts", [17]*len(swt))
        assert len(swt) == (2 if fol else 1)
        side.setdefault(swt[0], []).append(wt_setup)
        for y in range(len(swt)):
            side.setdefault(swt[y], []).append(guarded(wt_load(y)))
            if sws[y] == 17: side.setdefault(17, []).append(lambda: (a("s_waitcnt vmcnt(0)"), a.vm.clear()))
            else: assert sws[y] >= swt[y] + 3 and swt[y] + 1 + 2 < NS
            side.setdefault(sws[y], []).append(guarded(wt_store(y)))
    xq = [(c, th) for c in range(1, 9) for th in range(2)]
    nw = 2
    sq = []
    for k in range(NS):
        a.wait(vm=[("w", k), ("x", k//2)], lg="all")
        a("s_barrier")
        items = []
        nx = 2 if k == 0 else 1
        while nx and xq and (xq[0][0] < NX or 2*(xq[0][0] - NX) + 2 <= k):
            items += x_items(*xq.pop(0)); nx -= 1
        while nw < NS and nw - NW <= k - 2 and nw <= k + 2:
            items += w_items(nw); nw += 1
        if k % 2 == 0: sq = sq_ops(k//2)
        fill = [sq.pop(0) for _ in range(3 if k % 2 == 0 else 2)]
        if k == NS - 2: fill += [sq.pop(0), sq.pop(0)]; sq = [lambda: None]*2
        if fill and k % 2 == 0: fill.pop(0)()
        n = len(items)
        for i, f in enumerate(items):
            f()
            if fill and (i + 1) % 3 == 0: fill.pop(0)()
        for f in fill: f()
        if k < NS - 1:
            for f in side.get(k, []): f()
    assert not xq and nw == NS
    a(f"""v_add_f32 v28, v28, v29
v_and_b32 v8, 31, v0
v_lshrrev_b32 v9, 5, v0
v_lshlrev_b32 v8, 2, v8
v_lshl_add_u32 v8, v9, 9, v8
s_lshl_b32 s59, s51, 7
s_add_u32 s59, s59, {STAT + 512}
v_add_u32 v8, s59, v8
ds_write_b32 v8, v28
s_waitcnt lgkmcnt(0)
s_barrier""")
    for f in side.get(NS - 1, []): f()
    if opt.get("pf2c", 1) and "2" in opt.get("kernels", "123"):
        a("""s_getpc_b64 s[80:81]
K1_pc2:
s_add_u32 s80, s80, k2_kernel-K1_pc2
s_addc_u32 s81, s81, 0
s_mov_b32 s82, code_end-k2_kernel
s_mov_b32 s83, 0x20000
v_lshrrev_b32 v8, 4, v0
v_lshlrev_b32 v8, 7, v8
s_lshl_b32 s59, s60, 2
s_add_u32 s59, s59, s51
s_lshl_b32 s59, s59, 9
buffer_load_dword v9, v8, s[80:83], s59 offen""")
    a("s_endpgm")
    ACC = 16
    CS = 176
    XF = 204; WF = 236; ONE = 252
    a(f"""K1_comp:
s_getpc_b64 s[80:81]
K1_pc:
s_sub_u32 s80, s80, K1_pc-k1_kernel
s_subb_u32 s81, s81, 0
s_mov_b32 s82, code_end-k1_kernel
s_mov_b32 s83, 0x20000
v_mul_u32_u24 v8, 5, v2
v_lshrrev_b32 v8, 6, v8
v_lshlrev_b32 v8, 7, v8
s_mul_i32 s59, s60, 2560
s_mov_b32 m0, {SCR}
s_movk_i32 s72, 256
buffer_load_dword v8, s[80:83], s59 offen lds
s_and_b32 s51, s48, 1              ; a
s_lshr_b32 s52, s48, 1             ; b
v_and_b32 v8, 31, v0
s_lshl_b32 s61, s50, 5
s_sub_u32 s60, s61, 287
s_cmp_lt_u32 s50, 9
s_cselect_b32 s75, 1.0, -1.0       ; sgn
s_cselect_b32 s59, s61, s60        ; jb
s_cselect_b32 s60, 0, 2
v_and_b32 v12, 30, v8
v_add_u32 v12, s59, v12            ; j
v_and_or_b32 v13, v8, 1, s60
v_add_u32 v18, s61, v8
v_cmp_eq_u32 vcc, 1, v18
v_mov_b32 v19, 288
v_lshrrev_b32 v14, 5, v2           ; kk
v_mov_b32 v20, -1
v_cndmask_b32 v12, v12, v19, vcc
v_cndmask_b32_e64 v13, v13, 0, vcc
v_lshrrev_b32 v19, 4, v8
v_mul_u32_u24 v19, 9216, v19
v_and_b32 v9, 15, v0               ; n16
v_lshl_add_u32 v19, v9, 4, v19
v_add_u32 v15, {F_OFF}, v19
s_mov_b32 s70, 0
K1_fg0:
v_mov_b32 v16, v12
v_mov_b32 v17, v13
v_mov_b32 v18, v14
v_lshl_add_u32 v19, v14, 10, v15
K1_fg:""")
    recur(); recur2()
    a(f"""s_cmp_lg_u32 s70, 0
s_cbranch_scc1 K1_fgd
s_mov_b32 s70, 1
v_mov_b32 v14, 8
s_cmp_eq_u32 s48, 0
s_cbranch_scc1 K1_fg0
s_cmp_eq_u32 s48, 3
s_cbranch_scc1 K1_fgd
v_subrev_u32 v18, 64, v2
v_mul_u32_u24 v21, 3641, v18
v_lshrrev_b32 v21, 16, v21         ; row
v_mul_u32_u24 v19, 18, v21
v_sub_u32 v18, v18, v19            ; seg
v_mul_u32_u24 v19, {ESTR}, v21
v_lshl_add_u32 v19, v18, 6, v19
v_add_u32 v19, {E_OFF}, v19
s_lshl_b32 s59, s50, 2
s_add_u32 s59, s59, 225
v_and_b32 v16, 2, v21
v_add_u32 v16, s59, v16
v_cmp_gt_u32 vcc, 4, v21
v_and_b32 v17, 1, v21
s_movk_i32 s72, 16
v_cndmask_b32 v16, 0, v16, vcc
v_cmp_ne_u32 vcc, 5, v21
s_nop 1
v_cndmask_b32_e64 v20, 0, -1, vcc
s_branch K1_fg
K1_fgd:
v_lshrrev_b32 v10, 4, v0           ; g
v_bfe_u32 v11, v0, 2, 2            ; r
v_and_b32 v12, 3, v0
v_lshlrev_b32 v13, 12, v10
v_lshl_add_u32 v13, v11, 7, v13
v_lshl_add_u32 v13, v12, 3, v13
s_lshl_b32 s59, s52, 11
v_add_u32 v13, s59, v13
v_lshrrev_b32 v14, 1, v11
v_and_b32 v15, 1, v10
v_lshl_add_u32 v14, v15, 1, v14    ; swizzle
s_lshl_b32 s59, s51, 1
v_xor_b32 v14, s59, v14
v_lshl_add_u32 v1, v14, 5, v13
v_xor_b32 v2, 32, v1
v_xor_b32 v3, 64, v1
v_xor_b32 v4, 0x60, v1
v_lshrrev_b32 v14, 1, v9
v_xor_b32 v14, v14, v10
v_lshlrev_b32 v14, 4, v14
v_lshl_add_u32 v14, v9, 7, v14
s_lshl_b32 s59, s51, 13
s_add_u32 s59, s59, {X_OFF}
v_add_u32 v8, s59, v14
v_xor_b32 v14, 64, v8
v_min_u32 v13, 5, v9
v_mul_u32_u24 v13, {ESTR}, v13
v_lshl_add_u32 v13, v10, 4, v13
v_add_u32 v13, {E_OFF}, v13        ; E read
v_mov_b32 v{ONE}, 0x3f803f80
v_mov_b32 v{ONE+1}, v{ONE}
v_mov_b32 v{ONE+2}, v{ONE}
v_mov_b32 v{ONE+3}, v{ONE}
s_lshl_b32 s73, s49, 2
s_lshl_b32 s59, s51, 1
s_add_u32 s73, s73, s59
s_waitcnt lgkmcnt(0)
s_cmp_lg_u32 s52, 0
s_cbranch_scc1 K1_c1""")
    def comp(b):
        a.vm = []; a.lg = []
        EA = CS + (24 if b == 0 else 16)
        etok = [0] if b == 0 else [1, 2, 3]
        if b == 0:
            a(f"""v_lshlrev_b32 v5, 9, v10
v_lshl_add_u32 v5, v11, 6, v5
v_lshl_add_u32 v5, v12, 3, v5
v_lshl_add_u32 v5, v15, 5, v5
v_add_u32 v5, 16384, v5
v_xor_b32 v6, 32, v5""")
        else:
            a(f"v_add_u32 v5, {F_OFF}, v7")
        win = [0]
        NF = 11
        def frag(s, j, d):
            base = W_OFF + (s % NW)*WU
            tag = ("f", s, j)
            def setwin():
                want = 0
                if want != win[0]:
                    for k in ([1, 2, 3, 4] + ([5, 6] if b == 0 else [])):
                        a(f"v_add_u32 v{k}, {(want - win[0]) & 0xffffffff:#x}, v{k}")
                    win[0] = want
            def tr(reg, off, t):
                def f():
                    setwin()
                    a.lgop(f"ds_read_b64_tr_b16 v[{d+2*t}:{d+2*t+1}], v{reg} offset:{base - win[0] + off}", tag)
                return f
            if j < 8: return [tr(1 + j % 4, (j//4)*1024 + t*512, t) for t in range(2)]
            if j < 10:
                if b == 0: return [tr(5 + j - 8, t*256, t) for t in range(2)]
                return [lambda: a.lgop(f"ds_read_b128 {r4(d)}, v5 offset:{(j-8)*9216 + (s % 9)*1024}", tag)]
            return [lambda: a.lgop(f"ds_read_b128 {r4(d)}, v13 offset:{s*64}", tag)]
        def xrd(s, i):
            d = XF + 16*(s % 2) + 4*i
            return lambda: a.lgop(f"ds_read_b128 {r4(d)}, v{8 if s % 2 == 0 else 14} offset:{((s//2) % NX)*16384 + i*2048}", ("x", s))
        LA = 3
        order = [10, 0, 1, 4, 5, 2, 3, 6, 7, 8, 9]
        NBAR = opt.get("nbar", 6)
        slot = lambda s, n: WF + 4*((s*NF + n) % 4)
        if opt.get("cprio"): a(f"s_setprio {opt['cprio']}")
        mark(a, opt, 0)
        a("s_barrier")
        mark(a, opt, 1)
        for i in range(4): xrd(0, i)()
        for n in range(LA):
            for f in frag(0, order[n], slot(0, n)): f()
        T0 = XF
        RR = XF + 8
        t = T0
        L = lambda txt: [(lambda l=l: a(l.replace("|", "\n"))) for l in txt.split("\n")]
        pub = L(f"""s_lshl_b32 s59, s52, 9|s_lshl_b32 s60, s51, 7|s_add_u32 s59, s59, s60|s_add_u32 s59, s59, {CSB}
v_lshl_add_u32 v{t+4}, v10, 4, s59
s_lshl_b32 s59, s51, 8|s_add_u32 s59, s59, {STAT}
v_lshl_add_u32 v{t+5}, v9, 2, s59
v_lshl_add_u32 v{t+6}, v0, 2, s59
s_lshl_b32 s59, s48, 10
v_lshl_add_u32 v8, v0, 3, s59
v_lshl_add_u32 v{t+7}, v9, 3, s59
v_lshl_add_u32 v14, v0, 2, s59
v_lshl_add_u32 v15, v10, 4, s59""")
        def pub_sum():
            a("s_mov_b32 exec_lo, 0xffff0000\ns_mov_b32 exec_hi, 0")
            for k, i in enumerate(etok): a.lgop(f"ds_write_b32 v{t+5}, v{EA+4*k} offset:{64*i}", "pub")
            a("s_mov_b64 exec, -1")
        def pub_cs(k):
            a("s_mov_b32 exec_lo, 0x10001\ns_mov_b32 exec_hi, 0x10001")
            a.lgop(f"ds_write_b128 v{t+4}, {r4(CS+4*k)} offset:{(k//2)*256 + (k%2)*64}", "pub")
            a("s_mov_b64 exec, -1")
        post = [lambda: a.lgop(f"ds_read_b32 v{t}, v{t+6}", "st"),
                lambda: a.lgop(f"ds_read2st64_b32 v[{t+2}:{t+3}], v{t+6} offset0:2 offset1:4", "st")] + L(f"""s_mul_i32 s58, s73, {144*2048}|s_mul_i32 s59, s50, 9
s_xor_b32 s61, s64, 1|s_lshl_b32 s61, s61, 3
s_add_u32 s61, s61, s59|s_lshl_b32 s61, s61, 11
s_add_u32 s40, s58, s61|s_add_u32 s59, s59, s64
s_lshl_b32 s61, s52, 2|s_add_u32 s59, s59, s61
s_lshl_b32 s59, s59, 11|s_add_u32 s58, s58, s59
s_lshl_b32 s59, s51, 11|s_add_u32 s36, s58, s59
s_xor_b32 s59, s59, 2048|s_add_u32 s37, s58, s59""") + [lambda: a.wait(lg="st")] + L(f"""v_add_f32 v{t+2}, v{t+2}, v{t+3}|v_mul_f32 v{t}, {fbits(-1/576)}, v{t}
v_mul_f32 v{t+2}, {fbits(1/576)}, v{t+2}|v_fma_f32 v{t+2}, -v{t}, v{t}, v{t+2}
v_max_f32 v{t+2}, 0, v{t+2}|v_cvt_pk_bf16_f32 v{t}, v{t}, v{t+2}
v_and_b32 v{t+2}, 0xffff0000, v{t}|v_lshlrev_b32 v{t}, 16, v{t}
v_add_f32 v{t+2}, {fbits(1e-5)}, v{t+2}|v_cvt_pk_bf16_f32 v{t+2}, v{t+2}, v{t+2}
v_lshlrev_b32 v{t+2}, 16, v{t+2}|v_sqrt_f32 v{t+2}, v{t+2}
v_cvt_pk_bf16_f32 v{t+2}, v{t+2}, v{t+2}|v_lshlrev_b32 v{t+2}, 16, v{t+2}
v_rcp_f32 v{t+1}, v{t+2}
v_mul_f32 v{t+2}, {fbits(LOG2E)}, v{t+1}|v_mul_f32 v{t+3}, v{t}, v{t+2}""") + \
               [lambda: (a.lgop(f"ds_write_b64 v8, v[{t+2}:{t+3}]", "rw"), a.lgop(f"ds_write2st64_b32 v14, v{t+1}, v{t} offset0:2 offset1:3", "rw"))] + \
               [lambda i=i: a.lgop(f"ds_read_b64 {p2(RR+2*i)}, v{t+7} offset:{128*i}", "rr") for i in range(4)]
        for s in range(NS):
            if s == 9: mark(a, opt, 2)
            last = s == NS - 1
            xf = XF + 16*(s % 2)
            xo = list(pub) if last else []
            for n, j in enumerate(order):
                d = slot(s, n)
                nn = n + LA
                rds = frag(s, order[nn], slot(s, nn)) if nn < NF else (frag(s + 1, order[nn - NF], slot(s + 1, nn - NF)) if not last else [])
                bar = n == NBAR
                if last:
                    if n == 3: xo += [pub_sum, lambda: pub_cs(0), lambda: pub_cs(1)]
                    if n == 5: xo += [lambda: pub_cs(2), lambda: pub_cs(3)]
                if bar:
                    for f in xo: f()
                    xo = [xrd(s + 1, i) for i in range(4)] if not last else list(post)
                a.wait(lg=[("f", s, j), ("x", s)])
                if b == 1 and s == 9 and j in (8, 9):
                    for k in range(16): a(f"v_mul_f32 v{ACC + j*16 + k}, s75, v{ACC + j*16 + k}")
                ms = []
                c = lambda r: (r4(r) if s else "0")
                if j < 10:
                    if j < 8 and j % 4 < 2:
                        r = CS + 4*((j//4)*2 + j % 4); ms.append(f"{M16} {r4(r)}, {r4(d)}, {r4(ONE)}, {c(r)}")
                    if b == 0 and j >= 8:
                        r = CS + 16 + 4*(j - 8); ms.append(f"{M16} {r4(r)}, {r4(d)}, {r4(ONE)}, {c(r)}")
                    for i in range(4):
                        r = ACC + (j*4 + i)*4
                        if b == 1 and j >= 8: ms.append(f"{M16} {r4(r)}, {r4(xf+4*i)}, {r4(d)}, {c(r)}")
                        else: ms.append(f"{M16} {r4(r)}, {r4(d)}, {r4(xf+4*i)}, {c(r)}")
                else:
                    for k, i in enumerate(etok):
                        r = EA + 4*k; ms.append(f"{M16} {r4(r)}, {r4(d)}, {r4(xf+4*i)}, {c(r)}")
                for q, m in enumerate(ms):
                    a(m)
                    if bar and q == 0:
                        if last: a.wait(lg="pub")
                        a("s_barrier")
                    elif rds: rds.pop(0)()
                    elif xo:
                        xo.pop(0)()
                    if last and n > NBAR and xo and not rds and q % 2: xo.pop(0)()
                for f in rds: f()
            for f in xo: f()
        mark(a, opt, 3)
        a(f"""s_lshl_b32 s59, s52, 9
s_add_u32 s59, s59, {CSB}
v_lshl_add_u32 v4, v10, 4, s59
v_add_u32 v1, s60, v4
s_xor_b32 s60, s60, 128
v_add_u32 v2, s60, v4
s_lshl_b32 s61, s64, 7
v_add_u32 v5, s61, v1
v_add_u32 v6, s61, v2
s_xor_b32 s61, s64, 1
s_lshl_b32 s61, s61, 10
s_add_u32 s61, s61, {BIAS}
v_lshl_add_u32 v11, v10, 4, s61
s_add_u32 s38, s36, 4096
s_add_u32 s39, s37, 4096""")
        CB = XF + 16
        npair = 5 if b == 0 else 4
        def cbread(p, tl):
            s = CB + 8*((2*p + tl) % 2)
            if p < 4:
                a.lgop(f"ds_read_b128 {r4(s)}, v{1 + p % 2} offset:{(p//2)*256 + tl*64}", ("cb", p, tl))
                a.lgop(f"ds_read_b128 {r4(s+4)}, v{5 + p % 2} offset:{BIAS - CSB + (p//2)*256 + tl*64}", ("cb", p, tl))
            else:
                a.lgop(f"ds_read_b128 {r4(s+4)}, v11 offset:{tl*64}", ("cb", p, tl))
        K1c, K2c = 244, 246
        a(f"v_mov_b32 v{K1c}, -0.5\nv_mov_b32 v{K1c+1}, -0.5\nv_mov_b32 v{K2c}, -1.0\nv_mov_b32 v{K2c+1}, -1.0")
        cbread(0, 0); cbread(0, 1)
        a.wait(lg="rr")
        E = WF
        def tstage(p, tl):
            a.wait(lg=("cb", p, tl))
            a(".p2align 3")
            s = CB + 8*((2*p + tl) % 2)
            cs = s if p < 4 else CS + 16 + 4*tl
            for i in range(4):
                r = ACC + ((2*p + tl)*4 + i)*4
                for h in (0, 2): a(f"v_pk_fma_f32 {p2(E+h+4*(i%2))}, {p2(cs+h)}, {p2(RR+2*i)}, {p2(s+4+h)} op_sel:[0,1,0] op_sel_hi:[1,1,1]")
                for h in (0, 2): a(f"v_pk_fma_f32 {p2(r+h)}, {p2(r+h)}, {p2(RR+2*i)}, {p2(E+h+4*(i%2))} op_sel_hi:[1,0,1]")
            if p + 1 < npair: cbread(p + 1, tl)
        P = ONE - 4
        def mish8(p, i):
            rs = [ACC + ((2*p + tl)*4 + i)*4 for tl in range(2)]
            reg = lambda k: rs[k//4] + k % 4
            a(".p2align 3")
            for k in range(8): a(f"v_exp_f32 v{E+k}, v{reg(k)}")
            for k in range(0, 8, 2): a(f"v_pk_fma_f32 {p2(P+k)}, {p2(E+k)}, {p2(K1c)}, {p2(K2c)}")
            for k in range(0, 8, 2): a(f"v_pk_fma_f32 {p2(E+k)}, {p2(E+k)}, {p2(P+k)}, {p2(K2c)}")
            for k in range(8): a(f"v_rcp_f32 v{E+k}, v{E+k}")
            for k in range(0, 8, 2): a(f"v_pk_fma_f32 {p2(reg(k))}, {p2(reg(k))}, {p2(E+k)}, {p2(reg(k))}")
            for k in range(4): a(f"v_cvt_pk_bf16_f32 v{rs[0]+k}, v{reg(2*k)}, v{reg(2*k+1)}")
            if i == 2: a(f"s_add_u32 s{36+p}, s{36+p}, {144*2048}")
            a.vmop(f"buffer_store_dwordx4 {r4(rs[0])}, v7, s[32:35], s{36+p} offen offset:{(i%2)*1024} {st_act}", "st")
        for p in range(npair):
            tstage(p, 0); tstage(p, 1)
            for i in range(4): mish8(p, i)
        mark(a, opt, 4)
        a(f"""v_lshrrev_b32 v{E}, 2, v9
v_lshlrev_b32 v{E}, 4, v{E}
v_and_b32 v{E+1}, 3, v9
v_lshl_add_u32 v{E}, v{E+1}, 1, v{E}
s_lshl_b32 s77, s50, 14
s_lshl_b32 s76, s73, 6
s_add_u32 s77, s77, s76
s_add_u32 s77, s77, {WS_U + 512*4096}""")
        for k, i in enumerate(etok):
            a(f"v_mul_f32 v{E+2}, {fbits(LN2)}, v{RR+2*i}")
            for j in range(4): a(f"v_mul_f32 v{EA+4*k+j}, v{EA+4*k+j}, v{E+2}")
            a(f"v_cvt_pk_bf16_f32 v{EA+4*k}, v{EA+4*k}, v{EA+4*k+1}\nv_cvt_pk_bf16_f32 v{EA+4*k+1}, v{EA+4*k+2}, v{EA+4*k+3}")
        a("s_mov_b64 exec, 0xffff")
        for j in range(4):
            for k, i in enumerate(etok):
                op = "buffer_store_short" if j % 2 == 0 else "buffer_store_short_d16_hi"
                a.vmop(f"{op} v{EA+4*k+j//2}, v{E}, s[32:35], s77 offen offset:{(i//2)*64 + (i%2)*8} {st_u}", "st")
            if j < 3: a("s_add_u32 s77, s77, 4096")
        a("s_mov_b64 exec, -1")
        if b == 1:
            a(f"""s_mov_b32 s78, 0
s_cmp_eq_u32 s50, 0
s_cselect_b32 s78, {fbits(576.0)}, s78
s_cmp_eq_u32 s50, 2
s_cselect_b32 s78, {fbits(-0.25)}, s78
s_cmp_eq_u32 s50, 4
s_cselect_b32 s78, {fbits(-0.25)}, s78
s_cmp_eq_u32 s50, 8
s_cselect_b32 s78, {fbits(-0.25)}, s78
v_cmp_eq_u32 vcc, 0, v9
v_mov_b32 v{E+1}, s78
s_lshl_b32 s77, s50, 17
s_add_u32 s77, s77, s76
s_add_u32 s77, s77, {WS_U}
v_cndmask_b32 v{E+1}, 0, v{E+1}, vcc
v_lshlrev_b32 v{E+2}, 4, v10
v_lshl_add_u32 v{E+2}, v9, 12, v{E+2}
s_add_u32 s78, s77, 65536""")
            R2 = ACC
            for i in range(4):
                a.lgop(f"ds_read_b128 {r4(R2+8*i)}, v15 offset:{512 + 64*i}", ("r2", i))
                a.lgop(f"ds_read_b128 {r4(R2+8*i+4)}, v15 offset:{768 + 64*i}", ("r2", i))
            for i in range(4):
                a.wait(lg=("r2", i))
                for ct in range(2):
                    r = ACC + ((8 + ct)*4 + i)*4
                    if ct == 0:
                        for j in range(4): a(f"v_fmac_f32 v{r+j}, v{R2+8*i+4+j}, v{E+1}")
                    for h in (0, 2): a(f"v_pk_mul_f32 {p2(r+h)}, {p2(r+h)}, {p2(R2+8*i+h)}")
                    d = ACC + ((8 + ct)*4 + (i & 2))*4 + 2*(i % 2)
                    for h in range(2): a(f"v_cvt_pk_bf16_f32 v{d+h}, v{r+2*h}, v{r+2*h+1}")
                    if i % 2 == 1:
                        a.vmop(f"buffer_store_dwordx4 {r4(d-2)}, v{E+2}, s[32:35], s{77+ct} offen offset:{(i//2)*64} {st_u}", "st")
        if opt.get("stamp"):
            mark(a, opt, 5)
            a.wait(vm="all")
            stamp_out(a, 0, "s48", 32, "K1_end")
        a("s_endpgm")
    comp(0)
    a("K1_c1:")
    comp(1)
    a("K1_end:\ns_endpgm")
    a.end_kernel("k1_kernel", 256, 102)
    a.launch("k1_kernel", 256, 512, 163840)
```

```python
from fw import *
from common import *
import numpy as np
M32 = "v_mfma_f32_32x32x16_bf16"; M16 = "v_mfma_f32_16x16x32_bf16"
def r4(x): return f"v[{x}:{x+3}]"
def r16(x): return f"v[{x}:{x+15}]"
UNIT = 20480; NRING = 6; NU = 36
T_C32, T_S32, T_C64, T_S64, T_TW1, T_TW2, T_END = 0, 2048, 4096, 8192, 12288, 28672, 45056
VIMG = 53248

def f2bf(x):
    u = np.ascontiguousarray(x, dtype=np.float32).view(np.uint32)
    return ((u + 0x7FFF + ((u >> 16) & 1)) >> 16).astype(np.uint16)
def fft_tables():
    lane = np.arange(64); n = lane & 31; h = lane >> 5
    i8 = np.arange(8); perm = (i8 & 3) + 8*(i8 >> 2)
    out = []
    def frag(N, lanebase, ks, fn):
        b = 16*ks + 4*h[:, None] + perm[None, :]
        return f2bf(fn(2*np.pi*(((lanebase + n)[:, None]*b) % N)/N)).tobytes()
    for fn in (np.cos, np.sin):
        for ks in range(2): out.append(frag(32, 0, ks, fn))
    for fn in (np.cos, np.sin):
        for e in range(2):
            for p1 in range(2):
                j = 2*i8 + e
                b = 32*p1 + (j & 3)[None, :] + 8*(j >> 2)[None, :] + 4*h[:, None]
                out.append(f2bf(fn(2*np.pi*((n[:, None]*b) % 64)/64)).tobytes())
    j4 = np.arange(4)
    for tw in range(2):
        for p in range(2):
            for jg in range(4):
                r = 8*jg + 4*h[:, None] + j4[None, :]
                prod = (32*p + r)*n[:, None] if tw == 0 else (32*p + n[:, None])*r
                for fn in (np.cos, np.sin):
                    out.append(fn(2*np.pi*prod/2048).astype(np.float32).tobytes())
    b = b"".join(out); assert len(b) == T_END
    return np.frombuffer(b, np.uint32)

def gen_k2(a, opt):
    st_p = opt.get("st_p", "sc1"); st_v = opt.get("st_v", "sc1"); st_g = opt.get("st_g", "sc1")
    ld_w2 = opt.get("ld_w2", ""); ld_act = opt.get("ld_act", "")
    B1 = opt.get("k1b", 1); MG = opt.get("merge", 1)
    def p2(x): return f"v[{x}:{x+1}]"
    def poll(lab, voff, soff, vexp):
        a(f"""s_mov_b32 s72, 0x40000
{lab}:
buffer_load_dword v15, v{voff}, s[32:35], s{soff} offen sc1
s_waitcnt vmcnt(0)
v_cmp_ne_u32 vcc, v15, v{vexp}
s_sub_u32 s72, s72, 1
s_cbranch_scc1 {lab}_d
s_nop 2
s_cbranch_vccz {lab}_d
s_sleep 1
s_branch {lab}
{lab}_d:""")
    vpos = "v_lshlrev_b32 v6, 2, v2" if not B1 else """v_and_b32 v6, 7, v2
v_bfe_u32 v8, v2, 3, 1
v_lshl_add_u32 v6, v8, 4, v6
v_bfe_u32 v8, v2, 4, 1
v_lshl_add_u32 v6, v8, 3, v6
v_lshlrev_b32 v6, 2, v6"""
    a.begin_kernel("k2_kernel")
    a("s_cmp_ge_u32 s2, 256\ns_cbranch_scc1 K2_end")
    if opt.get("stamp"): a("s_memrealtime s[90:91]")
    a(f"""s_load_dwordx2 s[24:25], s[0:1], 48
s_load_dwordx2 s[32:33], s[0:1], 72
v_lshrrev_b32 v1, 6, v0
v_and_b32 v0, 63, v0
v_readfirstlane_b32 s48, v1        ; wave
s_and_b32 s49, s2, 7               ; xcd
s_lshr_b32 s50, s2, 3              ; idx
s_mov_b32 s26, {F*D*2}
s_mov_b32 s27, 0x20000
s_mov_b32 s34, 0x10000000
s_mov_b32 s35, 0x20000
v_lshlrev_b32 v7, 4, v0            ; lane*16
s_cmp_lt_u32 s50, 8
s_cbranch_scc1 K2_fft
s_sub_u32 s50, s50, 8
s_lshr_b32 s51, s49, 1             ; split
s_and_b32 s52, s49, 1
s_lshl_b32 s52, s52, 3
s_and_b32 s59, s50, 7
s_add_u32 s52, s52, s59            ; rb
s_lshr_b32 s53, s50, 3             ; cb
s_cmp_lt_u32 s48, 4
s_cbranch_scc1 K2_comp""")
    a(f"""s_sub_u32 s54, s48, 4              ; lw
s_lshl_b32 s55, s52, 2
s_add_u32 s55, s55, s54            ; G
s_mul_i32 s55, s55, {144*2048}
s_mul_i32 s59, s51, {36*2048}
s_add_u32 s55, s55, s59
s_mul_i32 s56, s51, {1152*1152}
s_mul_i32 s59, s54, {8*1152}
s_add_u32 s56, s56, s59
s_mul_i32 s59, s53, 384
s_add_u32 s56, s56, s59
v_lshrrev_b32 v2, 3, v0            ; r
v_and_b32 v3, 7, v0
v_and_b32 v4, 6, v2
v_xor_b32 v3, v3, v4
v_mul_u32_u24 v2, 1152, v2
v_lshl_add_u32 v2, v3, 4, v2       ; w2 voffset
s_lshl_b32 s57, s54, 11
s_mul_i32 s58, s54, 3072
s_add_u32 s58, s58, 8192
s_and_b32 s60, s52, {opt.get("k2_rotmask", 0)}
s_mul_i32 s60, s60, {opt.get("k2_rot", 9)}
s_lshr_b32 s60, s60, 1
s_waitcnt lgkmcnt(0)""")
    def load_unit(u):
        base = (u % NRING)*UNIT
        a(f"s_lshl_b32 s59, s60, 11\ns_add_u32 s59, s59, s55\ns_mul_i32 s61, s60, {32*1152}\ns_add_u32 s61, s61, s56\ns_add_u32 m0, s57, {base}")
        a(f"s_add_u32 s60, s60, 1\ns_cmp_eq_u32 s60, 36\ns_cselect_b32 s60, 0, s60")
        a.vmop(f"buffer_load_dwordx4 v7, s[32:35], s59 offen {ld_act} lds", ("u", u))
        a.vmop(f"buffer_load_dwordx4 v7, s[32:35], s59 offen offset:1024 {ld_act} lds", ("u", u))
        for j in range(3):
            a(f"s_add_u32 m0, s58, {base + j*1024 - j*128}")
            a.vmop(f"buffer_load_dwordx4 v2, s[24:27], s61 offen offset:{j*128} {ld_w2} lds", ("u", u))
    VL = NRING*UNIT
    FL = VL + 36864
    PA = 16; GB = 40; RC = 148; VB = 208
    g_ = []
    if MG:
        PQ = lambda t, k: RC + 16*t + 8*(k % 2)
        KK = lambda t: RC + 48 + 2*t
        R2 = RC + 54; SP = RC + 56
        g_ += f"""s_and_b32 s64, s54, 1              ; par
s_lshr_b32 s65, s54, 1             ; tile half
v_and_b32 v1, 15, v0
v_lshrrev_b32 v3, 4, v0
v_lshl_add_u32 v4, v3, 3, s64
v_cvt_f32_u32 v4, v4               ; j0
s_lshl_b32 s63, s53, 1
s_add_u32 s63, s63, s65
s_mul_i32 s63, s63, 48
v_add_u32 v10, s63, v1
v_cmp_eq_f32 s[70:71], 0, v4
v_cvt_f32_u32 v11, v10
v_lshlrev_b32 v{SP}, 31, v10
v_mul_f32 v11, {fbits(1/576)}, v11
v_or_b32 v{SP}, 0x3f003f00, v{SP}""".split("\n")
        def rot(dst, src, cs):
            g_.append(f"v_pk_mul_f32 {p2(dst)}, {p2(src)}, {p2(cs)} op_sel_hi:[1,0]")
            g_.append(f"v_pk_fma_f32 {p2(dst)}, {p2(src)}, {p2(cs)}, {p2(dst)} op_sel:[1,1,0] op_sel_hi:[0,1,1] neg_hi:[0,1,0]")
        for t in range(3):
            P, Q = PQ(t, 0), PQ(t, 1)
            if t: g_.append(f"v_add_f32 v11, {fbits(16/576)}, v11")
            g_ += f"""v_mul_f32 v12, v4, v11
v_add_f32 v13, v11, v11
v_mul_f32 v14, {fbits(32.0)}, v11
v_cos_f32 v{P}, v12
v_sin_f32_e64 v{P+1}, -v12
v_cos_f32 v{R2}, v13
v_sin_f32 v{R2+1}, v13
v_cos_f32 v{KK(t)}, v14
v_sin_f32 v{KK(t)+1}, v14""".split("\n")
            rot(P+4, P, R2); rot(Q, P, KK(t)); rot(P+2, P+4, R2); rot(Q+4, P+4, KK(t)); rot(P+6, P+2, R2); rot(Q+2, P+2, KK(t)); rot(Q+6, P+6, KK(t))
            g_.append(f"v_add_f32 v{KK(t)}, v{KK(t)}, v{KK(t)}")
        npk = opt.get("g_npk", 4)
        for kk in range(9):
            if kk >= 2:
                for t in range(3):
                    cur, oth = PQ(t, kk), PQ(t, kk + 1)
                    if kk < npk:
                        for i in range(0, 8, 2): g_.append(f"v_pk_fma_f32 {p2(cur+i)}, {p2(oth+i)}, {p2(KK(t))}, {p2(cur+i)} op_sel_hi:[1,0,1] neg_lo:[0,0,1] neg_hi:[0,0,1]")
                    else:
                        for i in range(8): g_.append(f"v_fma_f32 v{cur+i}, v{oth+i}, v{KK(t)}, -v{cur+i}")
            for t in range(3):
                cur = PQ(t, kk)
                for i in range(4): g_.append(f"v_cvt_pk_bf16_f32 v{GB+12*kk+4*t+i}, v{cur+2*i}, v{cur+2*i+1}")
                if kk == 0: g_.append(f"v_cndmask_b32_e64 v{GB+4*t}, v{GB+4*t}, v{SP}, s[70:71]")
            if kk == npk - 1: npre = len(g_)
        g_ += f"""v_min_u32 v8, 7, v0
v_cmp_eq_u32 vcc, 0, v8
v_lshlrev_b32 v8, 7, v8
v_mov_b32 v9, 36
s_mov_b32 s69, {WS_SYNC + 16*128}
v_addc_co_u32 v9, vcc, 0, v9, vcc
s_lshl_b32 s66, s52, 2
s_add_u32 s66, s66, s51            ; G of the final task
s_lshl_b32 s68, s64, 1
s_add_u32 s68, s68, s65            ; quarter of V this wave loads
s_mul_i32 s67, s68, {72*8192}
s_lshl_b32 s66, s66, 7
s_add_u32 s67, s67, s66
s_add_u32 s67, s67, {WS_V}
s_mul_i32 s68, s68, 9216
s_add_u32 s68, s68, {VL}
v_lshrrev_b32 v5, 3, v0
v_and_b32 v6, 4, v5
v_xor_b32 v6, v6, v0
v_and_b32 v6, 7, v6
v_lshlrev_b32 v6, 4, v6
v_lshl_add_u32 v6, v5, 13, v6      ; V dma voffset
v_lshlrev_b32 v10, 9, v3
v_lshl_add_u32 v10, v1, 2, v10
v_and_b32 v11, 1, v3
v_lshl_add_u32 v10, v11, 6, v10
s_mul_i32 s66, s64, 18432
s_add_u32 s66, s66, {VL}
v_add_u32 v10, s66, v10
v_xor_b32 v11, 64, v10
v_add_u32 v12, 128, v10
v_add_u32 v13, 128, v11
s_mul_i32 s66, s54, {UNIT}
v_add_u32 v14, s66, v7             ; exchange write""".split("\n")
        a(f"""s_lshl_b32 s59, s54, 2
s_add_u32 s59, s59, {FL}
v_mov_b32 v240, s59
v_xor_b32 v241, 8, v240
v_mov_b32 v242, 0
ds_write_b32 v240, v242
v_mov_b32 v242, 1""")
    def gen(n):
        for _ in range(n):
            if g_: a(g_.pop(0))
    a.vm = []
    first = opt.get("k2_first", 4)
    for u in range(first):
        load_unit(u)
        if MG and u >= 1: gen(-(-npre // (first - 1)))
    nu = first
    per = -(-len(g_) // opt.get("g_per", 12))
    for g in range(NU//2):
        if MG and g == NU//2 - 1:
            assert not g_
            a.vmop("buffer_load_dword v15, v8, s[32:35], s69 offen sc1", "flag")
        a.wait(vm=[("u", 2*g), ("u", 2*g+1)])
        if g == 0: a("s_waitcnt lgkmcnt(0)")
        a("s_barrier")
        lim = min(NU, 2*g + NRING, nu + opt.get("k2_ramp", 2))
        while nu < lim:
            load_unit(nu); nu += 1
            gen(-(-per // 2))
        if g == NU//2 - 3 and opt.get("pf3c", 1) and "3" in opt.get("kernels", "123") and not MG:
            a("""s_getpc_b64 s[40:41]
K2_pc:
s_add_u32 s40, s40, k3_kernel-K2_pc
s_addc_u32 s41, s41, 0
s_mov_b32 s42, code_end-k3_kernel
s_mov_b32 s43, 0x20000
v_lshrrev_b32 v8, 1, v0
v_lshlrev_b32 v8, 7, v8
s_lshl_b32 s59, s54, 12""")
            a.vmop("buffer_load_dword v9, v8, s[40:43], s59 offen", "pf")
            a(f"""s_load_dwordx2 s[36:37], s[0:1], 0
s_mov_b32 s38, {T*D*2}
s_mov_b32 s39, 0x20000
v_and_b32 v8, 7, v0
v_mul_u32_u24 v8, 73728, v8
v_lshrrev_b32 v10, 3, v0
v_min_u32 v10, 2, v10
v_lshl_add_u32 v8, v10, 7, v8
s_lshl_b32 s59, s49, 3
s_and_b32 s62, s50, 7
s_add_u32 s59, s59, s62
s_mul_i32 s59, s59, 1152
s_mul_i32 s62, s53, 384
s_add_u32 s59, s59, s62
s_mul_i32 s62, s54, {8*73728}
s_add_u32 s59, s59, s62
s_waitcnt lgkmcnt(0)""")
            a.vmop("buffer_load_dword v9, v8, s[36:39], s59 offen", "pf")
    if MG:
        mark(a, opt, 0)
        a("s_waitcnt vmcnt(0)\nv_cmp_ne_u32 vcc, v15, v9\ns_nop 4\ns_cbranch_vccz K2_pv_d")
        poll("K2_pv", 8, 69, 9)
        mark(a, opt, 1)
        a("s_mov_b32 m0, s68\ns_nop 0")
        for k in range(9):
            a(f"buffer_load_dwordx4 v6, s[32:35], s67 offen sc1 lds")
            if k < 8: a("s_add_u32 m0, m0, 1024\ns_add_u32 s67, s67, 65536")
        a("s_waitcnt vmcnt(0)")
        mark(a, opt, 2)
        a("""ds_write_b32 v240, v242
s_mov_b32 s72, 0x400000
K2_hs:
ds_read_b32 v243, v241
s_waitcnt lgkmcnt(0)
v_cmp_eq_u32 vcc, 0, v243
s_sub_u32 s72, s72, 1
s_cbranch_scc1 K2_hs_d
s_nop 2
s_cbranch_vccnz K2_hs
K2_hs_d:""")
        mark(a, opt, 3)
        a.lg = []
        def vread(kk, n):
            th, z = n // 2, n % 2
            d = VB + 8*(kk % 4) + 4*th + 2*z
            a.lgop(f"ds_read2st64_b32 v[{d}:{d+1}], v{10+th+2*z} offset0:{8*kk} offset1:{8*kk+1}", ("v", kk))
        for kk in range(3):
            for n in range(4): vread(kk, n)
        for kk in range(9):
            a.wait(lg=("v", kk))
            n = 0
            for t in range(3):
                for th in range(2):
                    d = PA + 8*t + 4*th
                    a(f"{M16} {r4(d)}, {r4(GB+12*kk+4*t)}, {r4(VB+8*(kk%4)+4*th)}, " + (r4(d) if kk else "0"))
                    if kk + 3 < 9 and n < 4: vread(kk + 3, n)
                    n += 1
        for k in range(6): a(f"ds_write_b128 v14, {r4(PA+4*k)} offset:{k*1024}")
        a("s_waitcnt lgkmcnt(0)")
        mark(a, opt, 4)
        a("s_barrier")
        mark(a, opt, 5)
        if opt.get("stamp"): stamp_out(a, 2, "s48", 32, "K2_end")
    a("s_endpgm")
    ACC = 16; FB = 112
    a(f"""K2_comp:
s_and_b32 s54, s48, 1
s_lshr_b32 s55, s48, 1             ; b : d tiles 6b..6b+5
v_lshrrev_b32 v8, 4, v0            ; g
v_and_b32 v9, 15, v0
v_lshlrev_b32 v10, {8 if B1 else 9}, v8
v_lshl_add_u32 v10, v9, 4, v10
s_lshl_b32 s59, s54, 12
v_add_u32 v5, s59, v10
v_lshrrev_b32 v10, 2, v9           ; r
v_and_b32 v11, 1, v8
v_lshl_add_u32 v10, v11, 2, v10
v_lshrrev_b32 v11, 1, v8
v_mul_u32_u24 v11, {3072 if B1 else 6144}, v11
v_lshl_add_u32 v11, v10, 7, v11
v_and_b32 v12, 3, v0
v_lshl_add_u32 v11, v12, 3, v11
v_add_u32 v11, 8192, v11
v_lshrrev_b32 v10, 1, v10          ; swizzle
s_mul_i32 s56, s55, 6""")
    for k in range(4):
        a(f"""s_add_u32 s59, s56, {k}
s_and_b32 s60, s59, 3
s_lshr_b32 s59, s59, 2
s_lshl_b32 s59, s59, 10
v_xor_b32 v12, s60, v10
v_lshl_add_u32 v12, v12, 5, v11
v_add_u32 v{1+k}, s59, v12""")
    a(f"""s_mul_i32 s57, s51, {64*18*2048}
s_lshl_b32 s59, s52, 2
s_lshl_b32 s60, s54, 1
s_add_u32 s59, s59, s60
s_mul_i32 s59, s59, {18*2048}
s_add_u32 s57, s57, s59
s_mul_i32 s59, s53, 6
s_mul_i32 s60, s55, 3
s_add_u32 s59, s59, s60
s_lshl_b32 s59, s59, 10
s_add_u32 s57, s57, s59
s_add_u32 s57, s57, {WS_PART}
s_waitcnt lgkmcnt(0)""")
    a.vm = []; a.lg = []
    win = [0]
    def reads(u):
        base = (u % NRING)*UNIT
        fb = FB + (u % 2)*40
        ops = []
        def setwin():
            if not (win[0] <= base and base + 8192 - win[0] <= 65535):
                for k in range(5):
                    a(f"v_add_u32 v{1+k}, {(base - win[0]) & 0xffffffff:#x}, v{1+k}")
                win[0] = base
        def act(i):
            setwin()
            a.lgop(f"ds_read_b128 {r4(fb+4*i)}, v5 offset:{base - win[0] + (i//2)*2048 + (i%2)*(1024 if B1 else 256)}", ("a", u))
        def w(j, t):
            d = fb + 16 + 4*j + 2*t
            a.lgop(f"ds_read_b64_tr_b16 v[{d}:{d+1}], v{1+j%4} offset:{base - win[0] + (j//4)*1024 + t*(6144 if B1 else 3072)}", ("w", u, j))
        for i in range(4): ops.append(lambda i=i: act(i))
        for j in range(6):
            for t in range(2): ops.append(lambda j=j, t=t: w(j, t))
        return ops
    if MG:
        st_o = opt.get("st_o", "")
        OUT = 192; XR = 216; EO = 16; PB = 64; U = 228
        a(f"""s_load_dwordx2 s[36:37], s[0:1], 0
s_load_dwordx2 s[40:41], s[0:1], 56
s_mov_b32 s38, {T*D*2}
s_mov_b32 s39, 0x20000
s_mov_b32 s42, {T*D*2}
s_mov_b32 s43, 0x20000
v_and_b32 v240, 8, v9
v_add_u32 v240, v240, v9
v_mul_u32_u24 v240, 73728, v240
v_and_b32 v241, 1, v8
v_lshl_add_u32 v240, v241, 5, v240
v_lshrrev_b32 v242, 1, v8
v_lshl_add_u32 v240, v242, 4, v240
s_lshl_b32 s66, s52, 2
s_add_u32 s66, s66, s51            ; G
s_mul_i32 s74, s54, 9
s_mul_i32 s59, s53, 3
s_add_u32 s74, s74, s59
s_mul_i32 s58, s66, 1152
s_lshl_b32 s59, s74, 6
s_add_u32 s58, s58, s59
s_mul_i32 s59, s55, {8*73728}
s_add_u32 s58, s58, s59
s_mul_i32 s73, s66, 36864
s_lshl_b32 s59, s74, 10
s_add_u32 s73, s73, s59
s_mul_i32 s59, s55, {18*1024}
s_add_u32 s73, s73, s59
s_add_u32 s73, s73, {WS_PART}
s_waitcnt lgkmcnt(0)""")
    mark(a, opt, 0)
    a("s_barrier")
    mark(a, opt, 1)
    for o in reads(0): o()
    for u in range(NU):
        if u == 18: mark(a, opt, 2)
        if MG and u == opt.get("u_x", 33):
            for w in range(3): a(f"buffer_load_dwordx4 {r4(XR+4*w)}, v240, s[36:39], s58 offen offset:{w*64}")
        fb = FB + (u % 2)*40
        nxt = reads(u+1) if u + 1 < NU else []
        bar = (u % 2 == 1 and u + 1 < NU)
        n = 0
        for j in range(6):
            for i in range(4):
                if i == 0:
                    if bar and j == 0: a.wait(lg="all")
                    else: a.wait(lg=[("a", u), ("w", u, j)])
                d = ACC + (i*6 + j)*4
                a(f"{M16} {r4(d)}, {r4(fb+16+4*j)}, {r4(fb+4*i)}, " + (r4(d) if u else "0"))
                if bar and n == 0: a("s_barrier")
                elif nxt: nxt.pop(0)()
                n += 1
    mark(a, opt, 3)
    for i in range(4):
        for jp in range(3):
            pk = FB + 4*((i*3 + jp) % 8)
            for t in range(2):
                d = ACC + (i*6 + 2*jp + t)*4
                a(f"v_cvt_pk_bf16_f32 v{pk+2*t}, v{d}, v{d+1}\nv_cvt_pk_bf16_f32 v{pk+2*t+1}, v{d+2}, v{d+3}")
            a(f"v_permlane16_swap_b32 v{pk}, v{pk+2}\nv_permlane16_swap_b32 v{pk+1}, v{pk+3}")
            if jp == 0: a(f"s_add_u32 s59, s57, {i*18*1024}")
            a.vmop(f"buffer_store_dwordx4 {r4(pk)}, v7, s[32:35], s59 offen offset:{jp*1024} {st_p}", "st")
    if MG:
        a(f"""v_lshlrev_b32 v10, 9, v242
v_lshl_add_u32 v10, v9, 4, v10
s_lshl_b32 s59, s55, 10
v_add_u32 v10, s59, v10
v_lshl_add_u32 v11, v241, 11, v10
v_mul_u32_u24 v12, {2*UNIT - 4096}, v241
v_add_u32 v12, v12, v10
s_mov_b32 s66, {fbits(LN2)}
s_mov_b32 s67, s66
s_mov_b32 s70, {fbits(2/(576*2048))}
s_mov_b32 s71, s70
s_lshl_b32 s68, s54, 31
s_xor_b32 s68, s68, s70
s_mov_b32 s69, s68
s_lshl_b32 s60, s52, 7
s_add_u32 s60, s60, {WS_SYNC}
v_mov_b32 v13, 0
v_mov_b32 v14, 1
s_waitcnt vmcnt(0)""")
        mark(a, opt, 4)
        a(f"""s_barrier
s_cmp_lg_u32 s48, 0
s_cbranch_scc1 K2_nosig
s_mov_b64 exec, 1
buffer_atomic_add v14, v13, s[32:35], s60 offen sc1
s_mov_b64 exec, -1
K2_nosig:""")
        a.lg = []; a.vm = []
        for w in range(3):
            reg, off = ((11, 0), (12, 4096), (11, 2*UNIT + 2048))[w]
            for par in range(2):
                for hf in range(2):
                    a.lgop(f"ds_read_b128 {r4(EO+16*w+8*par+4*hf)}, v{reg} offset:{off + par*UNIT + hf*256}", ("eo", w))
        for w in range(3):
            for e in range(4):
                a(f"v_lshlrev_b32 v{OUT+8*w+2*e}, 16, v{XR+4*w+e}\nv_and_b32 v{OUT+8*w+2*e+1}, 0xffff0000, v{XR+4*w+e}")
        for w in range(3):
            a.wait(lg=("eo", w))
            for e in range(0, 8, 2): a(f"v_pk_fma_f32 {p2(OUT+8*w+e)}, {p2(EO+16*w+e)}, s[70:71], {p2(OUT+8*w+e)}")
            for e in range(0, 8, 2): a(f"v_pk_fma_f32 {p2(OUT+8*w+e)}, {p2(EO+16*w+8+e)}, s[68:69], {p2(OUT+8*w+e)}")
        a("v_mov_b32 v14, 12")
        poll("K2_pp", 13, 60, 14)
        mark(a, opt, 5)
        for w in range(3):
            for s_ in range(4):
                a(f"s_add_u32 s59, s73, {s_*64*18*2048}")
                a.vmop(f"buffer_load_dwordx4 {r4(PB+16*w+4*s_)}, v7, s[32:35], s59 offen offset:{w*1024} sc1", ("p", w, s_))
        for w in range(3):
            for s_ in range(4):
                a.wait(vm=("p", w, s_))
                for e in range(4):
                    src = PB + 16*w + 4*s_ + e
                    a(f"v_lshlrev_b32 v{U+2*e}, 16, v{src}\nv_and_b32 v{U+2*e+1}, 0xffff0000, v{src}")
                for e in range(0, 8, 2): a(f"v_pk_fma_f32 {p2(OUT+8*w+e)}, {p2(U+e)}, s[66:67], {p2(OUT+8*w+e)}")
            for e in range(4): a(f"v_cvt_pk_bf16_f32 v{XR+4*w+e}, v{OUT+8*w+2*e}, v{OUT+8*w+2*e+1}")
            a.vmop(f"buffer_store_dwordx4 {r4(XR+4*w)}, v240, s[40:43], s58 offen offset:{w*64} {st_o}", "o")
    if opt.get("stamp"):
        a.wait(vm="all")
        stamp_out(a, 1, "s48", 32, "K2_end")
    a("s_endpgm")
    PR, PI, PN = 16, 32, 48
    AR, AI = 64, 96
    C32, S32, C64, S64, TWS = 128, 136, 144, 160, 176
    WL = T_END
    u0 = opt.get("apf0", 9)
    xpf = f"""s_cmp_lt_u32 s48, 5
s_cbranch_scc1 K2_end
s_and_b32 s59, s49, 1
s_lshl_b32 s59, s59, 3
s_add_u32 s59, s59, s50            ; rb
s_mul_i32 s59, s59, {4*144*2048}
s_lshr_b32 s60, s49, 1
s_mul_i32 s60, s60, {36*2048}
s_add_u32 s59, s59, s60
s_add_u32 s60, s48, {u0 - 5}
s_lshl_b32 s61, s60, 11
s_add_u32 s59, s59, s61
v_lshrrev_b32 v2, 4, v0
s_mov_b32 s61, {144*2048}
v_mul_lo_u32 v2, s61, v2
v_and_b32 v3, 15, v0
v_lshl_add_u32 v2, v3, 7, v2
s_waitcnt lgkmcnt(0)
K2_pfl:
buffer_load_dword v3, v2, s[32:35], s59 offen
s_add_u32 s59, s59, 6144
s_add_u32 s60, s60, 3
s_waitcnt vmcnt({opt.get("apfd", 0)})
s_cmp_lt_u32 s60, 36
s_cbranch_scc1 K2_pfl""" if opt.get("apf", 0) else ""
    a(f"""K2_fft:
s_lshl_b32 s51, s49, 3
s_add_u32 s51, s51, s50            ; f
s_cmp_ge_u32 s51, {opt.get("nfft", 58)}
s_cbranch_scc1 K2_xpf
s_mul_i32 s52, s51, 5              ; j0
s_cmp_lt_u32 s48, 5
s_cbranch_scc1 K2_fft_go
s_getpc_b64 s[28:29]
s_add_u32 s28, s28, fft_tab@rel32@lo+4
s_addc_u32 s29, s29, fft_tab@rel32@hi+12
s_mov_b32 s30, {T_END}
s_mov_b32 s31, 0x20000
s_sub_u32 s53, s48, 5
s_lshl_b32 s59, s53, 10
K2_tl:
s_mov_b32 m0, s59
s_nop 0
buffer_load_dwordx4 v7, s[28:31], s59 offen lds
s_add_u32 s59, s59, 3072
s_cmp_lt_u32 s59, {T_TW2}
s_cbranch_scc1 K2_tl
s_mov_b32 s60, s59
s_lshl_b32 s54, s51, 16
s_add_u32 s54, s54, {WS_WT}
s_lshl_b32 s53, s53, 10
s_waitcnt vmcnt(0) lgkmcnt(0)
s_barrier
K2_wl:
s_add_u32 m0, s53, {WL}
s_add_u32 s59, s53, s54
buffer_load_dwordx4 v7, s[32:35], s59 offen lds
s_add_u32 s53, s53, 3072
s_cmp_lt_u32 s53, 65536
s_cbranch_scc1 K2_wl
K2_tl2:
s_mov_b32 m0, s60
s_nop 0
buffer_load_dwordx4 v7, s[28:31], s60 offen lds
s_add_u32 s60, s60, 3072
s_cmp_lt_u32 s60, {T_END}
s_cbranch_scc1 K2_tl2
s_waitcnt vmcnt(0)
s_barrier
K2_xpf:
{xpf}
s_endpgm
K2_fft_go:
s_add_u32 s56, s52, s48            ; j
s_cmp_gt_u32 s56, 288
s_cbranch_scc1 K2_end
s_lshr_b32 s54, s56, 1
s_and_b32 s59, s56, 1
s_mul_i32 s59, s59, 144
s_add_u32 s54, s54, s59            ; sigma
s_mov_b32 s61, 0                   ; 0 normal, 1: j=0, 2: j=288
s_cmp_eq_u32 s56, 0
s_cselect_b32 s61, 1, s61
s_cmp_eq_u32 s56, 288
s_cselect_b32 s61, 2, s61
s_cselect_b32 s54, 0, s54
s_cselect_b32 s59, 4096, 0
s_lshl_b32 s62, s54, 13
s_add_u32 s57, s62, {WS_U}
s_add_u32 s58, s57, 4096
s_add_u32 s57, s57, s59
s_cmp_lg_u32 s61, 0
s_cselect_b32 s58, 0x10000000, s58
v_and_b32 v2, 31, v0               ; n
v_lshrrev_b32 v3, 5, v0            ; h
v_lshlrev_b32 v4, 4, v3
v_lshl_add_u32 v4, v2, 6, v4       ; U voffset
s_waitcnt lgkmcnt(0)""")
    a.vm = []; a.lg = []
    for p in range(2):
        for ks in range(2):
            a.vmop(f"buffer_load_dwordx4 {r4(PR+8*p+4*ks)}, v4, s[32:35], s57 offen offset:{p*2048+ks*32}", "z")
            a.vmop(f"buffer_load_dwordx4 {r4(PI+8*p+4*ks)}, v4, s[32:35], s58 offen offset:{p*2048+ks*32}", "z")
    a(f"""v_add_u32 v5, s52, v2
v_and_b32 v5, 1, v5
v_add_u32 v5, s48, v5
v_lshlrev_b32 v5, 1, v5
v_lshl_add_u32 v5, v2, 4, v5
v_lshl_add_u32 v5, v3, 11, v5
v_add_u32 v5, {WL}, v5
{vpos}
v_lshl_add_u32 v6, v3, 9, v6       ; V voffset
s_add_u32 s62, s62, {WS_V}
s_mov_b32 s64, -2.0
s_mov_b32 s65, -2.0
s_barrier""")
    for k in range(4): a.lgop(f"ds_read_b128 {r4(C32+4*k)}, v7 offset:{k*1024}", "t32")
    NB = 8
    def twread(tw, k):
        s = TWS + 8*(k % NB)
        off = (T_TW1 if tw == 0 else T_TW2) + k*2048
        a.lgop(f"ds_read_b128 {r4(s)}, v7 offset:{off}", ("tw", k))
        a.lgop(f"ds_read_b128 {r4(s+4)}, v7 offset:{off+1024}", ("tw", k))
    def wread(k):
        s = TWS + 8*(k % NB)
        for arr in range(2):
            for e in range(4):
                a.lgop(f"ds_read_u16 v{s+4*arr+e}, v5 offset:{arr*32768 + (8*k + e)*512}", ("tw", k))
    for k in range(4): twread(0, k)
    a.wait(vm="z")
    for k in range(16): a(f"v_xor_b32 v{PN+k}, 0x80008000, v{PR+k}")
    a.wait(lg="t32")
    def stage_small(X1, X2, X3, X4):
        for p in range(2):
            for (D, Xa, Xb) in ((AR, X1, X2), (AI, X3, X4)):
                d = D + 16*p
                for ks in range(2):
                    a(f"{M32} {r16(d)}, {r4(Xa+8*p+4*ks)}, {r4(C32+4*ks)}, " + (r16(d) if ks else "0"))
                    a(f"{M32} {r16(d)}, {r4(Xb+8*p+4*ks)}, {r4(S32+4*ks)}, {r16(d)}")
    def stage_big(X1, X2, X3, X4, dataA, fill=()):
        fill = list(fill)
        for (D, Xa, Xb) in ((AR, X1, X2), (AI, X3, X4)):
            for e in range(2):
                d = D + 16*e
                for p1 in range(2):
                    ks = 2*e + p1
                    for (X, Tb, first) in ((Xa, C64, p1 == 0), (Xb, S64, False)):
                        x, tb = r4(X+4*ks), r4(Tb+4*ks)
                        A_, B_ = (x, tb) if dataA else (tb, x)
                        a(f"{M32} {r16(d)}, {A_}, {B_}, " + ("0" if first else r16(d)))
                        if fill: fill.pop(0)()
        for D in (AR, AI):
            for k in range(0, 16, 2): a(f"v_pk_add_f32 {p2(D+k)}, {p2(D+k)}, {p2(D+16+k)}")
            for k in range(0, 16, 2): a(f"v_pk_fma_f32 {p2(D+16+k)}, {p2(D+16+k)}, s[64:65], {p2(D+k)}")
    def cmul4(k, cr, sr, sgn):
        ng = " neg_lo:[1,0,0] neg_hi:[1,0,0]"
        n1, n2 = (ng, "") if sgn > 0 else ("", ng)
        for e in (0, 2): a(f"v_pk_mul_f32 {p2(8+e)}, {p2(AR+4*k+e)}, {p2(cr+e)}")
        for e in (0, 2): a(f"v_pk_mul_f32 {p2(12+e)}, {p2(AI+4*k+e)}, {p2(cr+e)}")
        for e in (0, 2): a(f"v_pk_fma_f32 {p2(8+e)}, {p2(AI+4*k+e)}, {p2(sr+e)}, {p2(8+e)}{n1}")
        for e in (0, 2): a(f"v_pk_fma_f32 {p2(12+e)}, {p2(AR+4*k+e)}, {p2(sr+e)}, {p2(12+e)}{n2}")
    def pack4(k, negre, eo=False):
        dst = (lambda e: 8*e + k) if eo else (lambda e: 2*k + e)
        src = (lambda e: (e, e + 2)) if eo else (lambda e: (2*e, 2*e + 1))
        for e in range(2): a(f"v_cvt_pk_bf16_f32 v{PR+dst(e)}, v{8+src(e)[0]}, v{8+src(e)[1]}")
        for e in range(2): a(f"v_cvt_pk_bf16_f32 v{PI+dst(e)}, v{12+src(e)[0]}, v{12+src(e)[1]}")
        for e in range(2): a(f"v_xor_b32 v{PN+dst(e)}, 0x80008000, v{(PR if negre else PI)+dst(e)}")
    stage_small(PR, PI, PI, PN)
    t64 = [lambda k=k: a.lgop(f"ds_read_b128 {r4(C64+4*k)}, v7 offset:{T_C64+k*1024}", "t64") for k in range(8)]
    for k in range(8):
        a.wait(lg=("tw", k))
        s = TWS + 8*(k % NB)
        cmul4(k, s, s+4, -1)
        if k + 4 < 8: twread(0, k+4)
        t64.pop(0)()
        pack4(k, True, True)
    a.wait(lg="t64")
    mark(a, opt, 0)
    a("s_barrier")
    mark(a, opt, 1)
    def wr4(k, arr):
        for e in range(4):
            a.lgop(f"ds_read_u16 v{TWS+8*k+4*arr+e}, v5 offset:{arr*32768 + (8*k + e)*512}", ("tw", k))
    stage_big(PR, PI, PI, PN, False, fill=[lambda k=k, arr=arr: wr4(k, arr) for k in range(8) for arr in range(2)])
    mark(a, opt, 2)
    for k in range(8):
        a.wait(lg=("tw", k))
        s = TWS + 8*(k % NB)
        for e in range(8): a(f"v_lshlrev_b32 v{s+e}, 16, v{s+e}")
        cmul4(k, s, s+4, +1)
        pack4(k, False, True)
    stage_big(PR, PN, PI, PR, True, fill=[lambda k=k: twread(1, k) for k in range(NB)])
    for k in range(8):
        a.wait(lg=("tw", k))
        s = TWS + 8*(k % NB)
        cmul4(k, s, s+4, +1)
        if k + NB < 8: twread(1, k+NB)
        pack4(k, False)
    mark(a, opt, 4)
    a("s_add_u32 s63, s62, 4096\ns_cmp_lg_u32 s61, 0\ns_cbranch_scc1 K2_fft_spw")
    off = lambda j: ((j & 3) + 8*(j >> 2))*128
    def last(special):
        o = []
        for p in range(2):
            for j in range(16):
                d = TWS + 16*p + j
                if special: o.append(f"v_cvt_pk_bf16_f32 v{d}, v{AR+16*p+j}, v{AR+16*p+j}\nbuffer_store_short v{d}, v6, s[32:35], s{62+p} offen offset:{off(j)} {st_v}")
                else: o.append(f"v_cvt_pk_bf16_f32 v{d}, v{AR+16*p+j}, v{AI+16*p+j}\nbuffer_store_dword v{d}, v6, s[32:35], s{62+p} offen offset:{off(j)} {st_v}")
        n = 0
        for p in range(2):
            for (D, Xa, Xb) in ((AR, PR, PN), (AI, PI, PR)):
                if special and D == AI: continue
                d = D + 16*p
                for ks in range(2):
                    for (X, Tb, first) in ((Xa, C32, ks == 0), (Xb, S32, False)):
                        a(f"{M32} {r16(d)}, {r4(X+8*p+4*ks)}, {r4(Tb+4*ks)}, " + ("0" if first else r16(d)))
                        if p == 1 and not special:
                            n += 1
                            if n >= 2: a(o.pop(0)); a(o.pop(0))
        for l in o: a(l)
    last(False)
    a("s_branch K2_fft_out\nK2_fft_spw:\ns_sub_u32 s59, s61, 1\ns_lshl_b32 s59, s59, 1\nv_add_u32 v6, s59, v6")
    last(True)
    a("K2_fft_out:")
    if MG:
        a(f"""s_and_b32 s59, s56, 7
s_lshl_b32 s59, s59, 7
s_add_u32 s59, s59, {WS_SYNC + 16*128}
v_mov_b32 v4, 0
v_mov_b32 v5, 1
s_waitcnt vmcnt(0)
s_mov_b64 exec, 1
buffer_atomic_add v5, v4, s[32:35], s59 offen sc1
s_mov_b64 exec, -1""")
    if opt.get("stamp"):
        a("s_waitcnt vmcnt(0)")
        a("s_mov_b32 s87, 0")
        mark(a, opt, 5)
        stamp_out(a, 3, "s48", 32, "K2_end")
    a("K2_end:\ns_endpgm")
    a.end_kernel("k2_kernel", 256, 96)
    a.launch("k2_kernel", 256, 512, 163840)
    tab = fft_tables()
    t = [".p2align 8", ".type fft_tab,@object", "fft_tab:"]
    for i in range(0, len(tab), 8):
        t.append(".long " + ",".join("0x%x" % x for x in tab[i:i+8]))
    a.tail += t
```

```python
from fw import *
from common import *
M16 = "v_mfma_f32_16x16x32_bf16"
def r4(x): return f"v[{x}:{x+3}]"
def p2(x): return f"v[{x}:{x+1}]"

def gen_k3(a, opt):
    st_o = opt.get("st_o", "")
    rowc = "v_and_b32 v4, 8, v2\nv_add_u32 v4, v4, v2\nv_mul_u32_u24 v4, 73728, v4"
    a.begin_kernel("k3_kernel")
    a("s_cmp_ge_u32 s2, 192\ns_cbranch_scc1 K3_end")
    if opt.get("stamp"): a("s_memrealtime s[90:91]")
    ACC = 16
    GB = 40
    RC = 148
    VB = 208
    EX = 36864; PL = EX + 24576; XL = PL + 48*1024
    xaddr = f"""{rowc}
v_and_b32 v5, 1, v3
v_lshl_add_u32 v4, v5, 5, v4
v_lshrrev_b32 v6, 1, v3
v_lshl_add_u32 v4, v6, 4, v4
s_mul_i32 s56, s51, 9
s_mul_i32 s59, s50, 3
s_add_u32 s56, s56, s59
s_mul_i32 s58, s49, 1152
s_lshl_b32 s59, s56, 6
s_add_u32 s58, s58, s59
s_mul_i32 s59, s52, {8*73728}
s_add_u32 s58, s58, s59"""
    a(f"""s_load_dwordx2 s[32:33], s[0:1], 72
s_load_dwordx2 s[24:25], s[0:1], 0
s_load_dwordx2 s[28:29], s[0:1], 56
v_lshrrev_b32 v1, 6, v0
v_and_b32 v0, 63, v0
v_readfirstlane_b32 s48, v1        ; wave
s_and_b32 s49, s2, 7
s_lshl_b32 s49, s49, 3
s_bfe_u32 s59, s2, 0x30003
s_add_u32 s49, s49, s59            ; G
s_lshr_b32 s50, s2, 6              ; third
s_mov_b32 s34, 0x10000000
s_mov_b32 s35, 0x20000
v_lshlrev_b32 v7, 4, v0
v_and_b32 v2, 15, v0               ; n16
v_lshrrev_b32 v3, 4, v0            ; g
s_and_b32 s51, s48, 1
s_bfe_u32 s52, s48, 0x10001
s_and_b32 s53, s48, 3
s_cmp_lt_u32 s48, 4
s_cbranch_scc1 K3_comp
s_mul_i32 s59, s53, 9216
s_mov_b32 m0, s59
s_mul_i32 s54, s53, {72*8192}
s_lshl_b32 s59, s49, 7
s_add_u32 s54, s54, s59
s_add_u32 s54, s54, {WS_V}
v_lshrrev_b32 v5, 3, v0
v_and_b32 v8, 4, v5
v_xor_b32 v8, v8, v0
v_and_b32 v8, 7, v8
v_lshlrev_b32 v8, 4, v8
v_lshl_add_u32 v8, v5, 13, v8
s_waitcnt lgkmcnt(0)""")
    a.vm = []
    for k in range(9):
        a.vmop(f"buffer_load_dwordx4 v8, s[32:35], s54 offen lds", "v")
        if k < 8: a("s_add_u32 m0, m0, 1024\ns_add_u32 s54, s54, 65536")
    a(f"""s_mov_b32 s26, {T*D*2}
s_mov_b32 s27, 0x20000
{xaddr}
s_mul_i32 s57, s49, 36864
s_lshl_b32 s59, s56, 10
s_add_u32 s57, s57, s59
s_mul_i32 s59, s52, {18*1024}
s_add_u32 s57, s57, s59
s_add_u32 s57, s57, {WS_PART}
s_mul_i32 s60, s53, 12288
s_mul_i32 s61, s53, 3072""")
    lo = []
    for w in range(3):
        lo.append((f"s_add_u32 m0, s61, {XL + w*1024 - w*64}\ns_nop 0", f"buffer_load_dwordx4 v4, s[24:27], s58 offen offset:{w*64} lds"))
    for s_ in range(4):
        for w in range(3):
            lo.append((f"s_add_u32 m0, s60, {PL + s_*3072}\ns_add_u32 s59, s57, {s_*64*18*2048}" if w == 0 else "", f"buffer_load_dwordx4 v7, s[32:35], s59 offen offset:{w*1024} lds"))
    NE = opt.get("k3_ne", 1)
    nb1 = opt.get("k3_b1", 6)
    for k in range(len(lo)):
        if k == nb1:
            a.wait(vm="v"); a("s_barrier")
        a(lo[k][0]); a.vmop(lo[k][1], "p")
    a(f"s_waitcnt vmcnt({12 - 3*NE})\ns_barrier\ns_waitcnt vmcnt(0)\ns_barrier\ns_endpgm")
    a.vm = []; a.lg = []
    PQ = lambda t, k: RC + 16*t + 8*(k % 2)
    K2 = lambda t: RC + 48 + 2*t
    R2 = RC + 54; SP = RC + 56
    a(f"""K3_comp:
v_lshl_add_u32 v9, v3, 3, s51
v_cvt_f32_u32 v9, v9               ; j0
s_lshl_b32 s63, s50, 1
s_add_u32 s63, s63, s52
s_mul_i32 s63, s63, 48
v_add_u32 v10, s63, v2
v_cmp_eq_f32 vcc, 0, v9
v_cvt_f32_u32 v11, v10
v_lshlrev_b32 v{SP}, 31, v10
v_mul_f32 v11, {fbits(1/576)}, v11
v_or_b32 v{SP}, 0x3f003f00, v{SP}""")
    def rot(dst, src, cs):
        a(f"v_pk_mul_f32 {p2(dst)}, {p2(src)}, {p2(cs)} op_sel_hi:[1,0]")
        a(f"v_pk_fma_f32 {p2(dst)}, {p2(src)}, {p2(cs)}, {p2(dst)} op_sel:[1,1,0] op_sel_hi:[0,1,1] neg_hi:[0,1,0]")
    for t in range(3):
        P, Q = PQ(t, 0), PQ(t, 1)
        if t: a(f"v_add_f32 v11, {fbits(16/576)}, v11")
        a(f"""v_mul_f32 v12, v9, v11
v_add_f32 v13, v11, v11
v_mul_f32 v14, {fbits(32.0)}, v11
v_cos_f32 v{P}, v12
v_sin_f32_e64 v{P+1}, -v12
v_cos_f32 v{R2}, v13
v_sin_f32 v{R2+1}, v13
v_cos_f32 v{K2(t)}, v14
v_sin_f32 v{K2(t)+1}, v14
.p2align 3""")
        rot(P+4, P, R2); rot(Q, P, K2(t)); rot(P+2, P+4, R2); rot(Q+4, P+4, K2(t)); rot(P+6, P+2, R2); rot(Q+2, P+2, K2(t)); rot(Q+6, P+6, K2(t))
        a(f"v_add_f32 v{K2(t)}, v{K2(t)}, v{K2(t)}")
    a(".p2align 3")
    for kk in range(9):
        if kk >= 2:
            for t in range(3):
                cur, oth = PQ(t, kk), PQ(t, kk + 1)
                for i in range(0, 8, 2): a(f"v_pk_fma_f32 {p2(cur+i)}, {p2(oth+i)}, {p2(K2(t))}, {p2(cur+i)} op_sel_hi:[1,0,1] neg_lo:[0,0,1] neg_hi:[0,0,1]")
        for t in range(3):
            cur = PQ(t, kk)
            for i in range(4): a(f"v_cvt_pk_bf16_f32 v{GB+12*kk+4*t+i}, v{cur+2*i}, v{cur+2*i+1}")
            if kk == 0: a(f"v_cndmask_b32_e64 v{GB+4*t}, v{GB+4*t}, v{SP}, vcc")
    a(f"""v_lshlrev_b32 v8, 9, v3
v_lshl_add_u32 v8, v2, 2, v8
v_and_b32 v9, 1, v3
v_lshl_add_u32 v8, v9, 6, v8
s_mul_i32 s59, s51, {9*2048}
v_add_u32 v12, s59, v8
v_xor_b32 v13, 64, v12             ; th=1
v_add_u32 v14, 128, v12
v_add_u32 v15, 128, v13
{xaddr}
s_mov_b32 s30, {T*D*2}
s_mov_b32 s31, 0x20000
s_mul_i32 s59, s51, 12288
s_mul_i32 s60, s52, 6144
s_add_u32 s59, s59, s60
s_add_u32 s59, s59, {EX}
v_add_u32 v8, s59, v7
v_lshlrev_b32 v9, 11, v5
v_lshl_add_u32 v9, v6, 9, v9
v_lshl_add_u32 v9, v2, 4, v9
s_lshl_b32 s59, s52, 10
s_add_u32 s59, s59, {EX}
v_add_u32 v9, s59, v9
s_mul_i32 s59, s53, 12288
s_add_u32 s59, s59, {PL}
v_add_u32 v10, s59, v7
s_mul_i32 s59, s53, 3072
s_add_u32 s59, s59, {XL}
v_add_u32 v11, s59, v7
s_mov_b32 s66, {fbits(LN2)}
s_mov_b32 s67, {fbits(LN2)}
s_mov_b32 s70, {fbits(2/(576*2048))}
s_mov_b32 s71, s70
s_lshl_b32 s68, s51, 31
s_xor_b32 s68, s68, s70
s_mov_b32 s69, s68
s_waitcnt lgkmcnt(0)""")
    mark(a, opt, 0)
    a("s_barrier")
    mark(a, opt, 1)
    def vread(kk, n):
        th, z = n // 2, n % 2
        d = VB + 8*(kk % 4) + 4*th + 2*z
        a.lgop(f"ds_read2st64_b32 v[{d}:{d+1}], v{12+th+2*z} offset0:{8*kk} offset1:{8*kk+1}", ("v", kk))
    LA = 3
    for kk in range(LA):
        for n in range(4): vread(kk, n)
    for kk in range(9):
        a.wait(lg=("v", kk))
        n = 0
        for t in range(3):
            for th in range(2):
                d = ACC + 8*t + 4*th
                a(f"{M16} {r4(d)}, {r4(GB+12*kk+4*t)}, {r4(VB+8*(kk%4)+4*th)}, " + (r4(d) if kk else "0"))
                if kk + LA < 9 and n < 4: vread(kk + LA, n)
                n += 1
    for k in range(6): a.lgop(f"ds_write_b128 v8, {r4(ACC+4*k)} offset:{k*1024}", "e")
    a.wait(lg="e")
    a("s_barrier")
    EO = 40; OUT = 16; PB = 88; U = 148
    def prd(s, w):
        if s < 4: a.lgop(f"ds_read_b128 {r4(PB+12*s+4*w)}, v10 offset:{s*3072 + w*1024}", ("p", s, w))
        else: a.lgop(f"ds_read_b128 {r4(PB+48+4*w)}, v11 offset:{w*1024}", ("p", 4, w))
    def unpack(s, w, dst):
        a.wait(lg=("p", s, w))
        for e in range(4):
            src = PB + 12*s + 4*w + e
            a(f"v_lshlrev_b32 v{dst+2*e}, 16, v{src}\nv_and_b32 v{dst+2*e+1}, 0xffff0000, v{src}")
    def psum(s, w):
        unpack(s, w, U)
        for e in range(0, 8, 2): a(f"v_pk_fma_f32 {p2(OUT+8*w+e)}, {p2(U+e)}, s[66:67], {p2(OUT+8*w+e)}")
    for w in range(3):
        prd(4, w)
        for par in range(2):
            for hf in range(2):
                a.lgop(f"ds_read_b128 {r4(EO+16*w+8*par+4*hf)}, v9 offset:{par*12288 + w*4096 + hf*256}", ("eo", w))
    mark(a, opt, 2)
    for w in range(3):
        unpack(4, w, OUT + 8*w)
        for s in range(NE): prd(s, w)
        a.wait(lg=("eo", w))
        for e in range(0, 8, 2): a(f"v_pk_fma_f32 {p2(OUT+8*w+e)}, {p2(EO+16*w+e)}, s[70:71], {p2(OUT+8*w+e)}")
        for e in range(0, 8, 2): a(f"v_pk_fma_f32 {p2(OUT+8*w+e)}, {p2(EO+16*w+8+e)}, s[68:69], {p2(OUT+8*w+e)}")
    for w in range(3):
        for s in range(NE): psum(s, w)
    mark(a, opt, 3)
    a("s_barrier")
    mark(a, opt, 4)
    for w in range(3):
        for s in range(NE, 4): prd(s, w)
    for w in range(3):
        for s in range(NE, 4): psum(s, w)
        for e in range(4): a(f"v_cvt_pk_bf16_f32 v{EO+4*w+e}, v{OUT+8*w+2*e}, v{OUT+8*w+2*e+1}")
        a.vmop(f"buffer_store_dwordx4 {r4(EO+4*w)}, v4, s[28:31], s58 offen offset:{w*64} {st_o}", "o")
    if opt.get("stamp"):
        mark(a, opt, 5)
        a.wait(vm="all")
        stamp_out(a, 2, "s48", 32, "K3_end")
    a("K3_end:\ns_endpgm")
    a.end_kernel("k3_kernel", 240, 96)
    a.launch("k3_kernel", 192, 512, XL + 4*3072)
```

```python
import struct, math
T, D, F = 2048, 576, 4608
LOG2E = 1.4426950408889634; LN2 = 0.6931471805599453
def fbits(x): return "0x%08x" % struct.unpack("<I", struct.pack("<f", x))[0]
WS_ACT  = 0
WS_U    = 0x1200000
WS_WT   = WS_U + 576*4096
WS_V    = WS_WT + 64*65536
WS_PART = WS_V + 64*36*1024
WS_GT   = WS_PART + 4*64*18*2048
WS_END  = WS_GT + 9*36*1024
WS_SYNC = (WS_END + 8191) // 8192 * 8192
WS_STAMP = 0x4000000
assert WS_U == 64*144*2048


def mark(a, opt, k):
    if opt.get("stamp"):
        a(f"s_memrealtime s[92:93]\ns_waitcnt lgkmcnt(0)\ns_mov_b32 s{84+k}, s92")
        a.lg = []
def stamp_out(a, slot, wavereg, srd, endlab):
    a(f"""s_memrealtime s[92:93]
s_waitcnt lgkmcnt(0)
s_lshl_b32 s94, s2, 3
s_add_u32 s94, s94, {wavereg}
s_lshl_b32 s94, s94, 5
s_add_u32 s94, s94, {WS_STAMP + slot*131072}
v_mov_b32 v4, s90
v_mov_b32 v5, s84
v_mov_b32 v6, s85
v_mov_b32 v7, s86
v_mov_b32 v8, s87
v_mov_b32 v9, s88
v_mov_b32 v10, s89
v_mov_b32 v11, s92
v_mov_b32 v12, 0
s_mov_b64 exec, 1
buffer_store_dwordx4 v[4:7], v12, s[{srd}:{srd+3}], s94 offen
buffer_store_dwordx4 v[8:11], v12, s[{srd}:{srd+3}], s94 offen offset:16
s_waitcnt vmcnt(0)
s_mov_b64 exec, -1""")

def poll(a, lab, voff, soff, vexp, srd=32, tmp=15, sleep=1):
    a(f"""s_mov_b32 s72, 0x40000
{lab}:
buffer_load_dword v{tmp}, v{voff}, s[{srd}:{srd+3}], {soff} offen sc1
s_waitcnt vmcnt(0)
v_cmp_ne_u32 vcc, {vexp}, v{tmp}
s_sub_u32 s72, s72, 1
s_cbranch_scc1 {lab}_d
s_nop 2
s_cbranch_vccz {lab}_d
s_sleep {sleep}
s_branch {lab}
{lab}_d:""")
```

```python
from fw import *
from common import *
M16 = "v_mfma_f32_16x16x32_bf16"
def r4(x): return f"v[{x}:{x+3}]"
def p2(x): return f"v[{x}:{x+1}]"
WU = 18432
W_OFF = 0; NW = 4
X_OFF = NW*WU
NX = 3
F_OFF = X_OFF + NX*16384
E_OFF = F_OFF + 18432
ESTR = 1168
WR_OFF = 149504
CSB = 159744
BIAS = CSB + 1280
STAT = BIAS + 1280
SCR = E_OFF + 6*ESTR + 160
RS = 0
NS = 18
UI = F_OFF + 4096

def gen_k1b(a, opt):
    st_act = opt.get("st_act", "sc1"); st_u = opt.get("st_u", "sc1"); st_wt = opt.get("st_wt", "sc1")
    MONO = opt.get("mono", 1) and "2" in opt.get("kernels", "123")
    KN = NAME + "_kernel" if MONO else "k1_kernel"
    if MONO: st_u = opt.get("st_u", "sc1")
    def signal(base):
        a(f"""s_lshl_b32 s59, s49, 2
s_lshr_b32 s60, s50, 2
s_add_u32 s59, s59, s60
s_lshl_b32 s59, s59, 7
s_add_u32 s59, s59, {WS_SYNC + base*128}
v_mov_b32 v8, 0
v_mov_b32 v9, 1
s_waitcnt vmcnt(0)
s_mov_b64 exec, 1
buffer_atomic_add v9, v8, s[32:35], s59 offen sc1
s_mov_b64 exec, -1""")
    a.begin_kernel(KN)
    a("K1_start:")
    a("s_cmp_ge_u32 s2, 256\ns_cbranch_scc1 K1_end")
    if opt.get("stamp"): a("s_memrealtime s[90:91]")
    a(f"""s_load_dwordx8 s[4:11], s[0:1], 0
s_load_dwordx8 s[12:19], s[0:1], 32
s_load_dwordx2 s[32:33], s[0:1], 72
s_lshr_b32 s60, s2, 3              ; idx
s_getpc_b64 s[80:81]
K1_pc:
s_mov_b32 s82, code_end-K1_pc
s_mov_b32 s83, 0x20000
v_mul_u32_u24 v1, 3, v0
v_lshrrev_b32 v1, 6, v1
v_lshlrev_b32 v1, 7, v1
s_mul_i32 s59, s60, 3072
s_mov_b32 m0, {SCR}
s_nop 0
buffer_load_dword v1, s[80:83], s59 offen lds
v_lshrrev_b32 v1, 6, v0
v_readfirstlane_b32 s48, v1        ; wave
v_mov_b32 v2, v0                   ; tid
v_and_b32 v0, 63, v0               ; lane
s_and_b32 s49, s2, 1
s_lshl_b32 s49, s49, 3
s_and_b32 s61, s60, 7
s_add_u32 s49, s49, s61            ; rb
s_lshr_b32 s3, s60, 3              ; cq
s_bfe_u32 s50, s2, 0x20001
s_lshl_b32 s50, s50, 2
s_add_u32 s50, s50, s3             ; cg
s_add_u32 s71, s3, s49
s_and_b32 s71, s71, {opt.get("rotmask", 0)}
s_mul_i32 s71, s71, {opt.get("rot", 4)}
s_mul_i32 s63, s50, 576
s_and_b32 s64, s50, 1
s_mov_b32 s34, 0x10000000
s_mov_b32 s35, 0x20000
v_lshlrev_b32 v7, 4, v0
s_cmp_lt_u32 s48, 4
s_cbranch_scc1 K1_comp""")
    a(f"""s_sub_u32 s51, s48, 4              ; lw
v_lshrrev_b32 v8, 3, v0            ; r
v_lshrrev_b32 v9, 4, v0
v_xor_b32 v9, v9, v0
v_and_b32 v9, 7, v9
v_lshlrev_b32 v9, 4, v9
s_mov_b32 s22, 73728
v_mad_u32_u24 v3, v8, s22, v9
v_xor_b32 v4, 64, v3
v_add_u32 v4, {16*73728-1024}, v4
s_lshl_b32 s53, s49, 2
s_add_u32 s53, s53, s51
s_mul_i32 s53, s53, 1152           ; x base
s_lshl_b32 s20, s71, 7
s_add_u32 s20, s20, s53
s_add_u32 s21, s53, 1152
s_lshl_b32 s57, s51, 12            ; lw*4096
s_mov_b32 s26, {T*D*2}
s_mov_b32 s27, 0x20000
s_waitcnt lgkmcnt(0)
s_mov_b64 s[24:25], s[4:5]""")
    wsetup = f"""v_and_b32 v9, 2, v8
s_and_b32 s59, s51, 1
s_lshl_b32 s59, s59, 2
v_or_b32 v9, s59, v9
v_xor_b32 v9, v9, v0
v_and_b32 v9, 7, v9
v_lshlrev_b32 v9, 4, v9
v_mul_u32_u24 v5, 9216, v8
v_add_u32 v5, v5, v9               ; W voffset
v_lshrrev_b32 v8, 2, v0
v_mul_u32_u24 v6, 9216, v8
s_lshr_b32 s59, s59, 1
v_xor_b32 v9, s59, v0
v_and_b32 v9, 3, v9
v_lshl_add_u32 v6, v9, 4, v6       ; H voffset
s_mul_i32 s54, s51, {8*9216}
s_add_u32 s54, s54, s63
s_mul_i32 s59, s71, {64*9216}
s_add_u32 s36, s54, s59
s_add_u32 s37, s54, {576*9216}
s_lshl_b32 s38, s64, 6
s_xor_b32 s39, s64, 1
s_lshl_b32 s39, s39, 9
s_lshl_b32 s58, s51, 9
s_mov_b32 s30, {D*F*2}
s_mov_b32 s31, 0x20000
s_mov_b64 s[28:29], s[12:13]"""
    a.vm = []; a.lg = []
    def x_items(c, th):
        def f0():
            a(f"s_add_u32 m0, s57, {X_OFF + (c % NX)*16384 + th*2048}")
            if th: a(f"s_add_u32 s23, s20, {8*73728}")
            else: a("s_mov_b32 s23, s20")
            a.vmop("buffer_load_dwordx4 v3, s[24:27], s23 offen lds", ("x", c))
        def f1():
            a(f"s_add_u32 m0, s57, {X_OFF + (c % NX)*16384 + th*2048}\ns_nop 0")
            a.vmop("buffer_load_dwordx4 v4, s[24:27], s23 offen offset:1024 lds", ("x", c))
            if th: a("s_add_u32 s20, s20, 128\ns_cmp_eq_u32 s20, s21\ns_cselect_b32 s20, s53, s20")
        return [f0, f1]
    def w_items(u):
        base = W_OFF + (u % NW)*WU
        it = []
        for j in range(4):
            def f(j=j):
                a(f"s_add_u32 m0, s57, {base + j*1024 - j*128}")
                if j == 0: a("s_add_u32 s40, s36, s38")
                else: a("s_nop 0")
                a.vmop(f"buffer_load_dwordx4 v5, s[28:31], s40 offen offset:{j*128} lds", ("w", u))
            it.append(f)
        def fh():
            a(f"s_add_u32 m0, s58, {base + 16384}\ns_add_u32 s41, s36, s39\ns_mov_b32 exec_hi, 0")
            a.vmop("buffer_load_dwordx4 v6, s[28:31], s41 offen lds", ("w", u))
            a(f"s_mov_b32 exec_hi, -1\ns_add_u32 s36, s36, {32*9216}\ns_cmp_eq_u32 s36, s37\ns_cselect_b32 s36, s54, s36")
        it.append(fh)
        return it
    for f in x_items(0, 0) + x_items(0, 1): f()
    a(wsetup)
    for f in w_items(0): f()
    a(f"""s_mov_b64 s[44:45], s[14:15]
s_mov_b32 s46, {F*2}
s_mov_b32 s47, 0x20000
v_subrev_u32 v10, 256, v2
v_lshlrev_b32 v11, 1, v10
v_lshlrev_b32 v10, 2, v10
v_add_u32 v10, {BIAS}, v10""")
    for f in w_items(1): f()
    a.vmop("buffer_load_ushort v12, v11, s[44:47], s63 offen", "bias")
    a.vmop("buffer_load_ushort v13, v11, s[44:47], s63 offen offset:512", "bias")
    XV = 64; XP = 96
    def recur():
        a(f"""s_lshl_b32 s59, s71, 6
v_lshl_add_u32 v18, v18, 5, s59    ; d0
v_cvt_f32_u32 v16, v16
v_cvt_f32_u32 v17, v17
v_cvt_f32_u32 v18, v18
v_mul_f32 v16, {fbits(1/576)}, v16
v_mul_f32 v17, {fbits(0.25)}, v17
v_fma_f32 v17, v18, v16, v17
v_fract_f32 v17, v17
v_add_f32 v18, v17, v16
v_cos_f32 v{XV}, v17
v_cos_f32 v{XV+1}, v18
v_cos_f32 v16, v16
v_and_b32 v{XV}, v20, v{XV}
v_and_b32 v{XV+1}, v20, v{XV+1}
v_add_f32 v16, v16, v16""")
    def recur2():
        for k in range(2, 32):
            a(f"v_fma_f32 v{XV+k}, v16, v{XV+k-1}, -v{XV+k-2}")
            if k % 2 == 0: a(f"v_cvt_pk_bf16_f32 v{XP+k//2-1}, v{XV+k-2}, v{XV+k-1}")
            if k % 8 == 0: a(f"ds_write_b128 v19, {r4(XP + k//2 - 4)}\nv_add_u32 v19, s72, v19")
        a(f"v_cvt_pk_bf16_f32 v{XP+15}, v{XV+30}, v{XV+31}\nds_write_b128 v19, {r4(XP+12)}")
    a(f"""v_and_b32 v8, 31, v0
v_lshrrev_b32 v9, 5, v0
v_bfe_u32 v14, v8, 1, 3
v_xor_b32 v14, v14, v9
v_lshlrev_b32 v14, 4, v14
v_lshl_add_u32 v14, v8, 7, v14
s_add_u32 s59, s57, {X_OFF}
v_add_u32 v24, s59, v14
v_xor_b32 v25, 32, v24
v_xor_b32 v26, 64, v24
v_xor_b32 v27, 0x60, v24
v_mov_b32 v28, 0
v_mov_b32 v29, 0""")
    a("s_branch K1_hloop")
    cut0 = len(a.lines)
    a("K1_hloop:")
    side = {}
    def sq_ops(c):
        o = [lambda: [a.lgop(f"ds_read_b128 {r4(32+4*i)}, v{24+i} offset:{(c % NX)*16384}", ("sq", i)) for i in range(4)]]
        for i in range(4):
            def f(i=i):
                a.wait(lg=("sq", i))
                for hh in range(2):
                    for k in range(2): a(f"v_lshlrev_b32 v{48+2*k}, 16, v{32+4*i+2*hh+k}\nv_and_b32 v{49+2*k}, 0xffff0000, v{32+4*i+2*hh+k}")
                    for k in range(4): a(f"v_fmac_f32 v{28+k%2}, v{48+k}, v{48+k}")
            o.append(f)
        return o
    def bias_w():
        a.wait(vm="bias")
        a(f"v_lshlrev_b32 v12, 16, v12\nv_lshlrev_b32 v13, 16, v13\nv_mul_f32 v12, {fbits(LOG2E)}, v12\nv_mul_f32 v13, {fbits(LOG2E)}, v13")
        a.lgop("ds_write_b32 v10, v12", "pub")
        a("s_cmp_lg_u32 s51, 0\ns_cbranch_scc1 K1_nb\nds_write_b32 v10, v13 offset:1024\nK1_nb:")
    side.setdefault(1, []).append(bias_w)
    def zero_sync():
        a(f"""s_lshl_b32 s59, s2, 2
s_or_b32 s59, s59, s51
s_cmp_lg_u32 s59, 0
s_cbranch_scc1 K1_nz
v_lshlrev_b32 v8, 7, v0
v_mov_b32 v9, 0
s_mov_b32 s59, {WS_SYNC}
buffer_store_dword v9, v8, s[32:35], s59 offen sc1""")
        if MONO:
            a("""s_add_u32 s59, s59, 8192
buffer_store_dword v9, v8, s[32:35], s59 offen sc1
s_add_u32 s59, s59, 8192
buffer_store_dword v9, v8, s[32:35], s59 offen sc1
v_mov_b32 v8, 1
s_waitcnt vmcnt(0)
s_mov_b64 exec, 1
buffer_store_dword v8, v9, s[44:47], 0 offen sc1
s_mov_b64 exec, -1""")
        a("K1_nz:")
    def dbg_srd():
        a("s_load_dwordx2 s[44:45], s[0:1], 64\ns_mov_b32 s46, 256\ns_waitcnt lgkmcnt(0)")
        a.lg = []
    if MONO: side.setdefault(2, []).append(dbg_srd)
    if opt.get("merge", 1): side.setdefault(2, []).append(zero_sync)
    if MONO:
        side.setdefault(12, []).append(lambda: (a("v_mov_b32 v53, 0"), a.vmop("buffer_load_dword v54, v53, s[44:47], 0 offen sc1", "init")))
        def chk():
            a.wait(vm="init")
            a("v_cmp_ne_u32 vcc, 1, v54\ns_nop 4\ns_cbranch_vccz K1_in_d")
            poll(a, "K1_in", 53, "0", "1", srd=44, tmp=54)
        side.setdefault(15, []).insert(0, chk)
    fol = opt.get("fol", 0)
    nlab = [0]
    def guarded(f):
        def g():
            if not fol: return f(True)
            nlab[0] += 1
            a(f"s_cmp_lg_u32 s71, 0\ns_cbranch_scc1 K1_sj{nlab[0]}")
            f(False)
            a(f"K1_sj{nlab[0]}:")
        return g
    def vm(track, txt, tag):
        if track: a.vmop(txt, tag)
        else: a(txt)
    spf = opt.get("s_pf2", [15])
    full = opt.get('pffull', 0)
    nl = -(-(82 if (fol or full) else 41) // len(spf))
    def pf2_setup(tr):
        a(f"""s_mov_b32 s18, {F*D*2}
s_mov_b32 s19, 0x20000
s_bfe_u32 s65, s2, 0x20001
s_mul_i32 s65, s65, {1152*1152}
s_and_b32 s66, s60, {30 if fol else 31}
s_mul_i32 s66, s66, {324*128}
s_add_u32 s65, s65, s66
s_lshl_b32 s66, s51, 1
s_and_b32 s67, s2, {0 if full else 1}
s_add_u32 s66, s66, s67
s_mul_i32 s66, s66, {(82 if fol else 41)*128}
s_add_u32 s95, s65, s66
v_min_u32 v52, {nl-1}, v0
v_lshlrev_b32 v52, 7, v52""")
        if "2" in opt.get("kernels", "123"):
            a(f"""s_getpc_b64 s[80:81]
s_add_u32 s80, s80, fft_tab@rel32@lo+4
s_addc_u32 s81, s81, fft_tab@rel32@hi+12
s_mov_b32 s82, 45056
s_mov_b32 s83, 0x20000
s_lshr_b32 s65, s60, 1
s_lshl_b32 s65, s65, 2
s_add_u32 s65, s65, s51
s_lshl_b32 s65, s65, 10
v_lshrrev_b32 v8, 3, v0
v_lshlrev_b32 v8, 7, v8
s_mov_b32 m0, {SCR}
s_nop 0""")
            vm(tr, "buffer_load_dword v8, s[80:83], s65 offen lds", "pf")
    def pf2(tr):
        a(f"s_mov_b32 m0, {SCR}\ns_nop 0")
        vm(tr, "buffer_load_dword v52, s[16:19], s95 offen lds", "pf")
        a(f"s_add_u32 s95, s95, {nl*128}")
    def pf_first():
        a(f"""s_bfe_u32 s65, s2, 0x20001
s_mul_i32 s65, s65, {1152*1152}
s_lshl_b32 s66, s60, 2
s_add_u32 s66, s66, s51
s_mul_i32 s66, s66, {14*128}
s_add_u32 s65, s65, s66
v_min_u32 v8, 13, v0
v_lshlrev_b32 v8, 7, v8
s_mov_b32 m0, {SCR}
s_nop 0""")
        a.vmop("buffer_load_dword v8, s[16:19], s65 offen lds", "pf")
    if opt.get("pf2", 1):
        s0 = opt.get("s_pf0", 11) if MONO else spf[0]
        side.setdefault(s0, []).append(lambda: pf2_setup(True))
        if MONO: side.setdefault(s0, []).append(pf_first)
        for k in spf: side.setdefault(k, []).append(guarded(pf2))
    def wt_setup():
        a(f"""s_mov_b64 s[72:73], s[6:7]
s_mov_b32 s74, {T*289*2}
s_mov_b32 s75, 0x20000
s_mov_b64 s[76:77], s[8:9]
s_mov_b32 s78, {T*289*2}
s_mov_b32 s79, 0x20000
v_and_b32 v8, 7, v0
v_lshrrev_b32 v9, 3, v0
v_mul_u32_u24 v30, 289, v8
v_mad_u32_u24 v30, v9, 5, v30
v_and_b32 v30, -2, v30
v_lshlrev_b32 v30, 1, v30
s_andn2_b32 s96, s2, {8 if fol else 0}
s_mul_i32 s67, s96, {8*578}
s_mul_i32 s68, s51, 160
s_add_u32 s67, s67, s68
v_lshlrev_b32 v8, 4, v8
v_lshl_add_u32 v31, v9, 16, v8
s_lshl_b32 s69, s51, 20
s_lshl_b32 s68, s96, 7
s_add_u32 s69, s69, s68
s_add_u32 s69, s69, {WS_WT}""")
    def wt_load(y):
        def f(tr):
            for z in range(4):
                vm(tr, f"buffer_load_dwordx4 {r4(112+16*y+4*z)}, v30, s[{72+4*(z%2)}:{75+4*(z%2)}], s67 offen offset:{80*(z//2)}", "wt")
            a(f"s_add_u32 s67, s67, {64*578}")
        return f
    def wt_store(y):
        def f(tr):
            for z in range(4):
                a(f"s_add_u32 s68, s69, {(z % 2)*32768 + (z//2)*8*65536 + y*1024}")
                vm(tr, f"buffer_store_dwordx4 {r4(112+16*y+4*z)}, v31, s[32:35], s68 offen {st_wt}", "st")
        return f
    if not opt.get("nowt"):
        swt = opt.get("s_wt", [15]); sws = opt.get("s_wts", [17]*len(swt))
        assert len(swt) == (2 if fol else 1)
        side.setdefault(swt[0], []).append(wt_setup)
        for y in range(len(swt)):
            side.setdefault(swt[y], []).append(guarded(wt_load(y)))
            if sws[y] == 17: side.setdefault(17, []).append(lambda: (a("s_waitcnt vmcnt(2)"), a.vm.clear()))
            else: assert sws[y] >= swt[y] + 3 and swt[y] + 1 + 2 < NS
            side.setdefault(sws[y], []).append(guarded(wt_store(y)))
    xq = [(c, th) for c in range(1, 9) for th in range(2)]
    nw = 2
    sq = []
    for k in range(NS):
        a.wait(vm=[("w", k), ("x", k//2)], lg="all")
        a("s_barrier")
        items = []
        nx = 2 if k == 0 else 1
        while nx and xq and (xq[0][0] < NX or 2*(xq[0][0] - NX) + 2 <= k):
            items += x_items(*xq.pop(0)); nx -= 1
        while nw < NS and nw - NW <= k - 2 and nw <= k + 2:
            items += w_items(nw); nw += 1
        if k % 2 == 0: sq = sq_ops(k//2)
        fill = [sq.pop(0) for _ in range(3 if k % 2 == 0 else 2)]
        if k == NS - 2: fill += [sq.pop(0), sq.pop(0)]; sq = [lambda: None]*2
        if fill and k % 2 == 0: fill.pop(0)()
        n = len(items)
        for i, f in enumerate(items):
            f()
            if fill and (i + 1) % 3 == 0: fill.pop(0)()
        for f in fill: f()
        if k < NS - 1:
            for f in side.get(k, []): f()
    assert not xq and nw == NS
    a(f"""v_add_f32 v28, v28, v29
v_and_b32 v8, 31, v0
v_lshrrev_b32 v9, 5, v0
v_lshlrev_b32 v8, 2, v8
v_lshl_add_u32 v8, v9, 9, v8
s_lshl_b32 s59, s51, 7
s_add_u32 s59, s59, {STAT + 512}
v_add_u32 v8, s59, v8
ds_write_b32 v8, v28
s_waitcnt lgkmcnt(0)
s_barrier""")
    a(f"""s_lshl_b32 s59, s51, 11
s_add_u32 s59, s59, {UI}
v_add_u32 v10, s59, v7
v_lshrrev_b32 v8, 4, v0
v_and_b32 v9, 15, v0
v_lshlrev_b32 v9, 4, v9
v_lshl_add_u32 v11, v8, 12, v9
s_lshl_b32 s65, s50, 17
s_lshl_b32 s66, s49, 8
s_lshl_b32 s67, s51, 15
s_add_u32 s65, s65, s67
s_add_u32 s65, s65, s66
s_add_u32 s65, s65, {WS_U}
s_add_u32 s97, s65, 16384
s_lshl_b32 s68, s50, 14
s_add_u32 s68, s68, s66
s_add_u32 s68, s68, {WS_U + 512*4096}
s_barrier
s_barrier
ds_read_b128 v[32:35], v10
ds_read_b128 v[36:39], v10 offset:1024
ds_read_b128 v[40:43], v10 offset:8192
s_waitcnt lgkmcnt(0)
buffer_store_dwordx4 v[32:35], v11, s[32:35], s65 offen {st_u}
buffer_store_dwordx4 v[36:39], v11, s[32:35], s97 offen {st_u}
s_cmp_lg_u32 s51, 0
s_cbranch_scc1 K1_nex
buffer_store_dwordx4 v[40:43], v11, s[32:35], s68 offen {st_u}
K1_nex:""")
    for f in side.get(NS - 1, []): f()
    if MONO: a(f"s_lshl_b32 s98, s49, 2\ns_lshr_b32 s59, s50, 2\ns_add_u32 s98, s98, s59\ns_lshl_b32 s98, s98, 7\ns_add_u32 s98, s98, {WS_SYNC + 128*128}")
    if opt.get("pf2c", 1) and "2" in opt.get("kernels", "123"):
        a("""s_getpc_b64 s[80:81]
K1_pc2:
s_add_u32 s80, s80, K2_start-K1_pc2
s_addc_u32 s81, s81, 0
s_mov_b32 s82, code_end-K2_start
s_mov_b32 s83, 0x20000
v_lshrrev_b32 v8, 4, v0
v_lshlrev_b32 v8, 7, v8
s_lshr_b32 s59, s2, 3
s_lshl_b32 s59, s59, 2
s_add_u32 s59, s59, s51
s_lshl_b32 s59, s59, 9
buffer_load_dword v255, v8, s[80:83], s59 offen""")
    a("s_branch K2_start" if MONO else "s_endpgm")
    hl = a.lines[cut0:]; del a.lines[cut0:]
    ACC = 16
    CS = 176
    XF = 204; WF = 236; ONE = 252
    a(f"""K1_comp:
s_movk_i32 s72, 256
s_and_b32 s51, s48, 1              ; a
s_lshr_b32 s52, s48, 1             ; b
v_and_b32 v8, 31, v0
s_lshl_b32 s61, s50, 5
s_sub_u32 s60, s61, 287
s_cmp_lt_u32 s50, 9
s_cselect_b32 s75, 1.0, -1.0       ; sgn
s_cselect_b32 s59, s61, s60        ; jb
s_cselect_b32 s60, 0, 2
v_and_b32 v12, 30, v8
v_add_u32 v12, s59, v12            ; j
v_and_or_b32 v13, v8, 1, s60
v_add_u32 v18, s61, v8
v_cmp_eq_u32 vcc, 1, v18
v_mov_b32 v19, 288
v_lshrrev_b32 v14, 5, v2           ; kk
v_mov_b32 v20, -1
v_cndmask_b32 v12, v12, v19, vcc
v_cndmask_b32_e64 v13, v13, 0, vcc
v_lshrrev_b32 v19, 4, v8
v_mul_u32_u24 v19, 9216, v19
v_and_b32 v9, 15, v0               ; n16
v_lshl_add_u32 v19, v9, 4, v19
v_add_u32 v15, {F_OFF}, v19
s_mov_b32 s70, 0
K1_fg0:
v_mov_b32 v16, v12
v_mov_b32 v17, v13
v_mov_b32 v18, v14
v_lshl_add_u32 v19, v14, 10, v15
K1_fg:""")
    recur(); recur2()
    a(f"""s_cmp_lg_u32 s70, 0
s_cbranch_scc1 K1_fgd
s_mov_b32 s70, 1
v_mov_b32 v14, 8
s_cmp_eq_u32 s48, 0
s_cbranch_scc1 K1_fg0
s_cmp_eq_u32 s48, 3
s_cbranch_scc1 K1_fgd
v_subrev_u32 v18, 64, v2
v_mul_u32_u24 v21, 3641, v18
v_lshrrev_b32 v21, 16, v21         ; row
v_mul_u32_u24 v19, 18, v21
v_sub_u32 v18, v18, v19            ; seg
v_mul_u32_u24 v19, {ESTR}, v21
v_lshl_add_u32 v19, v18, 6, v19
v_add_u32 v19, {E_OFF}, v19
s_lshl_b32 s59, s50, 2
s_add_u32 s59, s59, 225
v_and_b32 v16, 2, v21
v_add_u32 v16, s59, v16
v_cmp_gt_u32 vcc, 4, v21
v_and_b32 v17, 1, v21
s_movk_i32 s72, 16
v_cndmask_b32 v16, 0, v16, vcc
v_cmp_ne_u32 vcc, 5, v21
s_nop 1
v_cndmask_b32_e64 v20, 0, -1, vcc
s_branch K1_fg
K1_fgd:
v_lshrrev_b32 v10, 4, v0           ; g
v_bfe_u32 v11, v0, 2, 2            ; r
v_and_b32 v12, 3, v0
v_lshlrev_b32 v13, 12, v10
v_lshl_add_u32 v13, v11, 7, v13
v_lshl_add_u32 v13, v12, 3, v13
s_lshl_b32 s59, s52, 11
v_add_u32 v13, s59, v13
v_lshrrev_b32 v14, 1, v11
v_and_b32 v15, 1, v10
v_lshl_add_u32 v14, v15, 1, v14    ; swizzle
s_lshl_b32 s59, s51, 1
v_xor_b32 v14, s59, v14
v_lshl_add_u32 v1, v14, 5, v13
v_xor_b32 v2, 32, v1
v_xor_b32 v3, 64, v1
v_xor_b32 v4, 0x60, v1
v_lshrrev_b32 v14, 1, v9
v_xor_b32 v14, v14, v10
v_lshlrev_b32 v14, 4, v14
v_lshl_add_u32 v14, v9, 7, v14
s_lshl_b32 s59, s51, 13
s_add_u32 s59, s59, {X_OFF}
v_add_u32 v8, s59, v14
v_xor_b32 v14, 64, v8
v_min_u32 v13, 5, v9
v_mul_u32_u24 v13, {ESTR}, v13
v_lshl_add_u32 v13, v10, 4, v13
v_add_u32 v13, {E_OFF}, v13        ; E read
v_mov_b32 v{ONE}, 0x3f803f80
v_mov_b32 v{ONE+1}, v{ONE}
v_mov_b32 v{ONE+2}, v{ONE}
v_mov_b32 v{ONE+3}, v{ONE}
s_lshl_b32 s73, s49, 2
s_lshl_b32 s59, s51, 1
s_add_u32 s73, s73, s59
s_waitcnt lgkmcnt(0)
s_cmp_lg_u32 s52, 0
s_cbranch_scc1 K1_c1""")
    def comp(b):
        a.vm = []; a.lg = []
        EA = CS + (24 if b == 0 else 16)
        etok = [0] if b == 0 else [1, 2, 3]
        if b == 0:
            a(f"""v_lshlrev_b32 v5, 9, v10
v_lshl_add_u32 v5, v11, 6, v5
v_lshl_add_u32 v5, v12, 3, v5
v_lshl_add_u32 v5, v15, 5, v5
v_add_u32 v5, 16384, v5
v_xor_b32 v6, 32, v5""")
        else:
            a(f"v_add_u32 v5, {F_OFF}, v7")
        win = [0]
        NF = 11
        def frag(s, j, d):
            base = W_OFF + (s % NW)*WU
            tag = ("f", s, j)
            def setwin():
                want = 0
                if want != win[0]:
                    for k in ([1, 2, 3, 4] + ([5, 6] if b == 0 else [])):
                        a(f"v_add_u32 v{k}, {(want - win[0]) & 0xffffffff:#x}, v{k}")
                    win[0] = want
            def tr(reg, off, t):
                def f():
                    setwin()
                    a.lgop(f"ds_read_b64_tr_b16 v[{d+2*t}:{d+2*t+1}], v{reg} offset:{base - win[0] + off}", tag)
                return f
            if j < 8: return [tr(1 + j % 4, (j//4)*1024 + t*512, t) for t in range(2)]
            if j < 10:
                if b == 0: return [tr(5 + j - 8, t*256, t) for t in range(2)]
                return [lambda: a.lgop(f"ds_read_b128 {r4(d)}, v5 offset:{(j-8)*9216 + (s % 9)*1024}", tag)]
            return [lambda: a.lgop(f"ds_read_b128 {r4(d)}, v13 offset:{s*64}", tag)]
        def xrd(s, i):
            d = XF + 16*(s % 2) + 4*i
            return lambda: a.lgop(f"ds_read_b128 {r4(d)}, v{8 if s % 2 == 0 else 14} offset:{((s//2) % NX)*16384 + i*2048}", ("x", s))
        LA = 3
        order = [10, 0, 1, 4, 5, 2, 3, 6, 7, 8, 9]
        NBAR = opt.get("nbar", 6)
        slot = lambda s, n: WF + 4*((s*NF + n) % 4)
        if opt.get("cprio"): a(f"s_setprio {opt['cprio']}")
        mark(a, opt, 0)
        a("s_barrier")
        mark(a, opt, 1)
        for i in range(4): xrd(0, i)()
        for n in range(LA):
            for f in frag(0, order[n], slot(0, n)): f()
        T0 = XF
        RR = XF + 8
        t = T0
        L = lambda txt: [(lambda l=l: a(l.replace("|", "\n"))) for l in txt.split("\n")]
        pub = L(f"""s_lshl_b32 s59, s52, 9|s_lshl_b32 s60, s51, 7|s_add_u32 s59, s59, s60|s_add_u32 s59, s59, {CSB}
v_lshl_add_u32 v{t+4}, v10, 4, s59
s_lshl_b32 s59, s51, 8|s_add_u32 s59, s59, {STAT}
v_lshl_add_u32 v{t+5}, v9, 2, s59
v_lshl_add_u32 v{t+6}, v0, 2, s59
s_lshl_b32 s59, s48, 10|s_add_u32 s59, s59, {F_OFF}
v_lshl_add_u32 v8, v0, 3, s59
v_lshl_add_u32 v{t+7}, v9, 3, s59
v_lshl_add_u32 v14, v0, 2, s59
v_lshl_add_u32 v15, v10, 4, s59""")
        def pub_sum():
            a("s_mov_b32 exec_lo, 0xffff0000\ns_mov_b32 exec_hi, 0")
            for k, i in enumerate(etok): a.lgop(f"ds_write_b32 v{t+5}, v{EA+4*k} offset:{64*i}", "pub")
            a("s_mov_b64 exec, -1")
        def pub_cs(k):
            a("s_mov_b32 exec_lo, 0x10001\ns_mov_b32 exec_hi, 0x10001")
            a.lgop(f"ds_write_b128 v{t+4}, {r4(CS+4*k)} offset:{(k//2)*256 + (k%2)*64}", "pub")
            a("s_mov_b64 exec, -1")
        post = [lambda: a.lgop(f"ds_read_b32 v{t}, v{t+6}", "st"),
                lambda: a.lgop(f"ds_read2st64_b32 v[{t+2}:{t+3}], v{t+6} offset0:2 offset1:4", "st")] + L(f"""s_mul_i32 s58, s73, {144*2048}|s_mul_i32 s59, s50, 9
s_xor_b32 s61, s64, 1|s_lshl_b32 s61, s61, 3
s_add_u32 s61, s61, s59|s_lshl_b32 s61, s61, 11
s_add_u32 s40, s58, s61|s_add_u32 s59, s59, s64
s_lshl_b32 s61, s52, 2|s_add_u32 s59, s59, s61
s_lshl_b32 s59, s59, 11|s_add_u32 s58, s58, s59
s_lshl_b32 s59, s51, 11|s_add_u32 s36, s58, s59
s_xor_b32 s59, s59, 2048|s_add_u32 s37, s58, s59""") + [lambda: a.wait(lg="st")] + L(f"""v_add_f32 v{t+2}, v{t+2}, v{t+3}|v_mul_f32 v{t}, {fbits(-1/576)}, v{t}
v_mul_f32 v{t+2}, {fbits(1/576)}, v{t+2}|v_fma_f32 v{t+2}, -v{t}, v{t}, v{t+2}
v_max_f32 v{t+2}, 0, v{t+2}|v_cvt_pk_bf16_f32 v{t}, v{t}, v{t+2}
v_and_b32 v{t+2}, 0xffff0000, v{t}|v_lshlrev_b32 v{t}, 16, v{t}
v_add_f32 v{t+2}, {fbits(1e-5)}, v{t+2}|v_cvt_pk_bf16_f32 v{t+2}, v{t+2}, v{t+2}
v_lshlrev_b32 v{t+2}, 16, v{t+2}|v_sqrt_f32 v{t+2}, v{t+2}
v_cvt_pk_bf16_f32 v{t+2}, v{t+2}, v{t+2}|v_lshlrev_b32 v{t+2}, 16, v{t+2}
v_rcp_f32 v{t+1}, v{t+2}
v_mul_f32 v{t+2}, {fbits(LOG2E)}, v{t+1}|v_mul_f32 v{t+3}, v{t}, v{t+2}""") + \
               [lambda: (a.lgop(f"ds_write_b64 v8, v[{t+2}:{t+3}]", "rw"), a.lgop(f"ds_write2st64_b32 v14, v{t+1}, v{t} offset0:2 offset1:3", "rw"))] + \
               [lambda i=i: a.lgop(f"ds_read_b64 {p2(RR+2*i)}, v{t+7} offset:{128*i}", "rr") for i in range(4)]
        for s in range(NS):
            if s == 9: mark(a, opt, 2)
            last = s == NS - 1
            xf = XF + 16*(s % 2)
            xo = list(pub) if last else []
            for n, j in enumerate(order):
                d = slot(s, n)
                nn = n + LA
                rds = frag(s, order[nn], slot(s, nn)) if nn < NF else (frag(s + 1, order[nn - NF], slot(s + 1, nn - NF)) if not last else [])
                bar = n == NBAR
                if last:
                    if n == 3: xo += [pub_sum, lambda: pub_cs(0), lambda: pub_cs(1)]
                    if n == 5: xo += [lambda: pub_cs(2), lambda: pub_cs(3)]
                if bar:
                    for f in xo: f()
                    xo = [xrd(s + 1, i) for i in range(4)] if not last else list(post)
                a.wait(lg=[("f", s, j), ("x", s)])
                if b == 1 and s == 9 and j in (8, 9):
                    for k in range(16): a(f"v_mul_f32 v{ACC + j*16 + k}, s75, v{ACC + j*16 + k}")
                ms = []
                c = lambda r: (r4(r) if s else "0")
                if j < 10:
                    if j < 8 and j % 4 < 2:
                        r = CS + 4*((j//4)*2 + j % 4); ms.append(f"{M16} {r4(r)}, {r4(d)}, {r4(ONE)}, {c(r)}")
                    if b == 0 and j >= 8:
                        r = CS + 16 + 4*(j - 8); ms.append(f"{M16} {r4(r)}, {r4(d)}, {r4(ONE)}, {c(r)}")
                    for i in range(4):
                        r = ACC + (j*4 + i)*4
                        if b == 1 and j >= 8: ms.append(f"{M16} {r4(r)}, {r4(xf+4*i)}, {r4(d)}, {c(r)}")
                        else: ms.append(f"{M16} {r4(r)}, {r4(d)}, {r4(xf+4*i)}, {c(r)}")
                else:
                    for k, i in enumerate(etok):
                        r = EA + 4*k; ms.append(f"{M16} {r4(r)}, {r4(d)}, {r4(xf+4*i)}, {c(r)}")
                for q, m in enumerate(ms):
                    a(m)
                    if bar and q == 0:
                        if last: a.wait(lg="pub")
                        a("s_barrier")
                    elif rds: rds.pop(0)()
                    elif xo:
                        xo.pop(0)()
                    if last and n > NBAR and xo and not rds and q % 2: xo.pop(0)()
                for f in rds: f()
            for f in xo: f()
        mark(a, opt, 3)
        a(f"""s_lshl_b32 s59, s52, 9
s_add_u32 s59, s59, {CSB}
v_lshl_add_u32 v4, v10, 4, s59
v_add_u32 v1, s60, v4
s_xor_b32 s60, s60, 128
v_add_u32 v2, s60, v4
s_lshl_b32 s61, s64, 7
v_add_u32 v5, s61, v1
v_add_u32 v6, s61, v2
s_xor_b32 s61, s64, 1
s_lshl_b32 s61, s61, 10
s_add_u32 s61, s61, {BIAS}
v_lshl_add_u32 v11, v10, 4, s61
s_add_u32 s38, s36, 4096
s_add_u32 s39, s37, 4096""")
        CB = XF + 16
        npair = 5 if b == 0 else 4
        def cbread(p, tl):
            s = CB + 8*((2*p + tl) % 2)
            if p < 4:
                a.lgop(f"ds_read_b128 {r4(s)}, v{1 + p % 2} offset:{(p//2)*256 + tl*64}", ("cb", p, tl))
                a.lgop(f"ds_read_b128 {r4(s+4)}, v{5 + p % 2} offset:{BIAS - CSB + (p//2)*256 + tl*64}", ("cb", p, tl))
            else:
                a.lgop(f"ds_read_b128 {r4(s+4)}, v11 offset:{tl*64}", ("cb", p, tl))
        K1c, K2c = 244, 246
        a(f"v_mov_b32 v{K1c}, -0.5\nv_mov_b32 v{K1c+1}, -0.5\nv_mov_b32 v{K2c}, -1.0\nv_mov_b32 v{K2c+1}, -1.0")
        cbread(0, 0); cbread(0, 1)
        a.wait(lg="rr")
        E = WF
        def tstage(p, tl):
            a.wait(lg=("cb", p, tl))
            a(".p2align 3")
            s = CB + 8*((2*p + tl) % 2)
            cs = s if p < 4 else CS + 16 + 4*tl
            for i in range(4):
                r = ACC + ((2*p + tl)*4 + i)*4
                for h in (0, 2): a(f"v_pk_fma_f32 {p2(E+h+4*(i%2))}, {p2(cs+h)}, {p2(RR+2*i)}, {p2(s+4+h)} op_sel:[0,1,0] op_sel_hi:[1,1,1]")
                for h in (0, 2): a(f"v_pk_fma_f32 {p2(r+h)}, {p2(r+h)}, {p2(RR+2*i)}, {p2(E+h+4*(i%2))} op_sel_hi:[1,0,1]")
            if p + 1 < npair: cbread(p + 1, tl)
        P = ONE - 4
        def mish8(p, i):
            rs = [ACC + ((2*p + tl)*4 + i)*4 for tl in range(2)]
            reg = lambda k: rs[k//4] + k % 4
            a(".p2align 3")
            for k in range(8): a(f"v_exp_f32 v{E+k}, v{reg(k)}")
            for k in range(0, 8, 2): a(f"v_pk_fma_f32 {p2(P+k)}, {p2(E+k)}, {p2(K1c)}, {p2(K2c)}")
            for k in range(0, 8, 2): a(f"v_pk_fma_f32 {p2(E+k)}, {p2(E+k)}, {p2(P+k)}, {p2(K2c)}")
            for k in range(8): a(f"v_rcp_f32 v{E+k}, v{E+k}")
            for k in range(0, 8, 2): a(f"v_pk_fma_f32 {p2(reg(k))}, {p2(reg(k))}, {p2(E+k)}, {p2(reg(k))}")
            for k in range(4): a(f"v_cvt_pk_bf16_f32 v{rs[0]+k}, v{reg(2*k)}, v{reg(2*k+1)}")
            if i == 2: a(f"s_add_u32 s{36+p}, s{36+p}, {144*2048}")
            a.vmop(f"buffer_store_dwordx4 {r4(rs[0])}, v7, s[32:35], s{36+p} offen offset:{(i%2)*1024} {st_act}", "st")
        a(f"""v_lshrrev_b32 v{E}, 2, v9
v_lshlrev_b32 v{E}, 4, v{E}
v_and_b32 v{E+1}, 3, v9
v_lshl_add_u32 v{E}, v{E+1}, 1, v{E}
s_lshl_b32 s76, s51, 7
s_add_u32 s76, s76, {UI}
v_add_u32 v{E}, s76, v{E}""")
        if b == 1:
            R2 = CS
            def r2rd(i):
                a.lgop(f"ds_read_b128 {r4(R2+8*(i%2))}, v15 offset:{512 + 64*i}", ("r2", i))
                a.lgop(f"ds_read_b128 {r4(R2+8*(i%2)+4)}, v15 offset:{768 + 64*i}", ("r2", i))
            r2rd(0); r2rd(1)
        for k, i in enumerate(etok):
            a(f"v_mul_f32 v{E+2}, {fbits(LN2)}, v{RR+2*i}")
            for j in range(4): a(f"v_mul_f32 v{EA+4*k+j}, v{EA+4*k+j}, v{E+2}")
            a(f"v_cvt_pk_bf16_f32 v{EA+4*k}, v{EA+4*k}, v{EA+4*k+1}\nv_cvt_pk_bf16_f32 v{EA+4*k+1}, v{EA+4*k+2}, v{EA+4*k+3}")
        a("s_barrier")
        a("s_mov_b64 exec, 0xffff")
        for j in range(4):
            for k, i in enumerate(etok):
                op = "ds_write_b16" if j % 2 == 0 else "ds_write_b16_d16_hi"
                a.lgop(f"{op} v{E}, v{EA+4*k+j//2} offset:{(32 + j)*256 + (i//2)*64 + (i%2)*8}", "ui")
        a("s_mov_b64 exec, -1")
        if b == 1:
            a(f"""s_mov_b32 s78, 0
s_cmp_eq_u32 s50, 0
s_cselect_b32 s78, {fbits(576.0)}, s78
s_cmp_eq_u32 s50, 2
s_cselect_b32 s78, {fbits(-0.25)}, s78
s_cmp_eq_u32 s50, 4
s_cselect_b32 s78, {fbits(-0.25)}, s78
s_cmp_eq_u32 s50, 8
s_cselect_b32 s78, {fbits(-0.25)}, s78
v_cmp_eq_u32 vcc, 0, v9
v_mov_b32 v{E+1}, s78
v_lshlrev_b32 v{E+2}, 4, v10
v_lshl_add_u32 v{E+2}, v9, 8, v{E+2}
v_cndmask_b32 v{E+1}, 0, v{E+1}, vcc
v_add_u32 v{E+2}, s76, v{E+2}""")
            for i in range(4):
                a.wait(lg=("r2", i))
                q = R2 + 8*(i % 2)
                for ct in range(2):
                    r = ACC + ((8 + ct)*4 + i)*4
                    if ct == 0:
                        for j in range(4): a(f"v_fmac_f32 v{r+j}, v{q+4+j}, v{E+1}")
                    for h in (0, 2): a(f"v_pk_mul_f32 {p2(r+h)}, {p2(r+h)}, {p2(q+h)}")
                    d = ACC + ((8 + ct)*4 + (i & 2))*4 + 2*(i % 2)
                    for h in range(2): a(f"v_cvt_pk_bf16_f32 v{d+h}, v{r+2*h}, v{r+2*h+1}")
                    if i % 2 == 1:
                        a.lgop(f"ds_write_b128 v{E+2}, {r4(d-2)} offset:{ct*4096 + (i//2)*64}", "ui")
                if i < 2: r2rd(i + 2)
            a.wait(lg="ui"); a("s_barrier")
        for p in range(npair):
            tstage(p, 0); tstage(p, 1)
            for i in range(4):
                mish8(p, i)
                if b == 0 and p == 0 and i == opt.get("ubar", 1):
                    a.wait(lg="ui"); a("s_barrier")
        mark(a, opt, 4)
        mark(a, opt, 5)
        if MONO: signal(64)
        if opt.get("stamp"):
            a.wait(vm="all")
            stamp_out(a, 0, "s48", 32, "K1_end")
        a("s_branch K2_start" if MONO else "s_endpgm")
    comp(0)
    a("K1_c1:")
    comp(1)
    a.lines += hl
    a("K1_end:\ns_endpgm")
    a.end_kernel(KN, 256, 102)
    a.launch(KN, 256, 512, 163840)
```

```python
from fw import *
from common import *
import numpy as np
M32 = "v_mfma_f32_32x32x16_bf16"; M16 = "v_mfma_f32_16x16x32_bf16"
def r4(x): return f"v[{x}:{x+3}]"
def r16(x): return f"v[{x}:{x+15}]"
UNIT = 20480; NRING = 6; NU = 36
T_C32, T_S32, T_C64, T_S64, T_TW1, T_TW2, T_END = 0, 2048, 4096, 8192, 12288, 28672, 45056
VIMG = 53248

def f2bf(x):
    u = np.ascontiguousarray(x, dtype=np.float32).view(np.uint32)
    return ((u + 0x7FFF + ((u >> 16) & 1)) >> 16).astype(np.uint16)
def fft_tables():
    lane = np.arange(64); n = lane & 31; h = lane >> 5
    i8 = np.arange(8); perm = (i8 & 3) + 8*(i8 >> 2)
    out = []
    def frag(N, lanebase, ks, fn):
        b = 16*ks + 4*h[:, None] + perm[None, :]
        return f2bf(fn(2*np.pi*(((lanebase + n)[:, None]*b) % N)/N)).tobytes()
    for fn in (np.cos, np.sin):
        for ks in range(2): out.append(frag(32, 0, ks, fn))
    for fn in (np.cos, np.sin):
        for e in range(2):
            for p1 in range(2):
                j = 2*i8 + e
                b = 32*p1 + (j & 3)[None, :] + 8*(j >> 2)[None, :] + 4*h[:, None]
                out.append(f2bf(fn(2*np.pi*((n[:, None]*b) % 64)/64)).tobytes())
    j4 = np.arange(4)
    for tw in range(2):
        for p in range(2):
            for jg in range(4):
                r = 8*jg + 4*h[:, None] + j4[None, :]
                prod = (32*p + r)*n[:, None] if tw == 0 else (32*p + n[:, None])*r
                for fn in (np.cos, np.sin):
                    out.append(fn(2*np.pi*prod/2048).astype(np.float32).tobytes())
    b = b"".join(out); assert len(b) == T_END
    return np.frombuffer(b, np.uint32)

def gen_k2(a, opt):
    st_p = opt.get("st_p", "sc1"); st_v = opt.get("st_v", "sc1"); st_g = opt.get("st_g", "sc1")
    ld_w2 = opt.get("ld_w2", ""); ld_act = opt.get("ld_act", "")
    B1 = opt.get("k1b", 1); MG = opt.get("merge", 1)
    def p2(x): return f"v[{x}:{x+1}]"
    MONO = opt.get("mono", 1)
    sigB = """v_mov_b32 v8, 0
v_mov_b32 v9, 1
s_waitcnt vmcnt(0)
s_mov_b64 exec, 1
buffer_atomic_add v9, v8, s[32:35], s98 offen sc1
s_mov_b64 exec, -1"""
    if MONO: ld_act = opt.get("ld_act", "sc1")
    SC = "sc1" if MONO else ""
    vpos = "v_lshlrev_b32 v6, 2, v2" if not B1 else """v_and_b32 v6, 7, v2
v_bfe_u32 v8, v2, 3, 1
v_lshl_add_u32 v6, v8, 4, v6
v_bfe_u32 v8, v2, 4, 1
v_lshl_add_u32 v6, v8, 3, v6
v_lshlrev_b32 v6, 2, v6"""
    if MONO:
        a(".p2align 8\nK2_start:")
        if opt.get("stamp"): a("s_memrealtime s[90:91]")
        a("s_load_dwordx2 s[24:25], s[0:1], 48")
    else:
        a.begin_kernel("k2_kernel")
        a("K2_start:\ns_cmp_ge_u32 s2, 256\ns_cbranch_scc1 K2_end")
        if opt.get("stamp"): a("s_memrealtime s[90:91]")
        a("""s_load_dwordx2 s[24:25], s[0:1], 48
s_load_dwordx2 s[32:33], s[0:1], 72
v_lshrrev_b32 v1, 6, v0
v_and_b32 v0, 63, v0
v_readfirstlane_b32 s48, v1        ; wave""")
    a(f"""s_and_b32 s49, s2, 7               ; xcd
s_lshr_b32 s50, s2, 3              ; idx
s_mov_b32 s26, {F*D*2}
s_mov_b32 s27, 0x20000
s_mov_b32 s34, 0x10000000
s_mov_b32 s35, 0x20000
v_lshlrev_b32 v7, 4, v0            ; lane*16
s_cmp_lt_u32 s50, 8
s_cbranch_scc1 K2_fft
s_sub_u32 s50, s50, 8
s_lshr_b32 s51, s49, 1             ; split
s_and_b32 s52, s49, 1
s_lshl_b32 s52, s52, 3
s_and_b32 s59, s50, 7
s_add_u32 s52, s52, s59            ; rb
s_lshr_b32 s53, s50, 3             ; cb
s_cmp_lt_u32 s48, 4
s_cbranch_scc1 K2_comp""")
    a(f"""s_sub_u32 s54, s48, 4              ; lw
s_lshl_b32 s55, s52, 2
s_add_u32 s55, s55, s54            ; G
s_mul_i32 s55, s55, {144*2048}
s_mul_i32 s59, s51, {36*2048}
s_add_u32 s55, s55, s59
s_mul_i32 s56, s51, {1152*1152}
s_mul_i32 s59, s54, {8*1152}
s_add_u32 s56, s56, s59
s_mul_i32 s59, s53, 192
s_add_u32 s56, s56, s59
v_lshrrev_b32 v2, 3, v0            ; r
v_and_b32 v3, 7, v0
v_and_b32 v4, 6, v2
v_xor_b32 v3, v3, v4
v_mul_u32_u24 v2, 1152, v2
v_lshl_add_u32 v2, v3, 4, v2
s_and_b32 s59, s53, 1
s_lshl_b32 s60, s59, 6
v_add_u32 v244, s60, v2
s_sub_u32 s60, 640, s60
v_add_u32 v245, s60, v2
s_lshl_b32 s60, s59, 7
s_sub_u32 s61, 128, s60
s_lshl_b32 s60, s60, 1
s_add_u32 s60, s60, 384
v_lshrrev_b32 v3, 2, v3
v_mad_u32_u24 v246, v3, s60, v2
v_add_u32 v246, s61, v246
s_lshl_b32 s57, s54, 11
s_mul_i32 s58, s54, 3072
s_add_u32 s58, s58, 8192
s_and_b32 s60, s52, {opt.get("k2_rotmask", 0)}
s_mul_i32 s60, s60, {opt.get("k2_rot", 9)}
s_lshr_b32 s60, s60, 1
s_waitcnt lgkmcnt(0)""")
    def load_act(u):
        base = (u % NRING)*UNIT
        a(f"s_add_u32 m0, s57, {base}\ns_add_u32 s59, s55, {u*2048}")
        a.vmop(f"buffer_load_dwordx4 v7, s[32:35], s59 offen {ld_act} lds", ("u", u))
        a.vmop(f"buffer_load_dwordx4 v7, s[32:35], s59 offen offset:1024 {ld_act} lds", ("u", u))
    def load_w(u):
        base = (u % NRING)*UNIT
        for j in range(3):
            a(f"s_add_u32 m0, s58, {base + j*1024}")
            if j == 0: a(f"s_add_u32 s61, s56, {u*32*1152}")
            a.vmop(f"buffer_load_dwordx4 v{244+j}, s[24:27], s61 offen {ld_w2} lds", ("u", u))
    wdone = [0]
    def load_unit(u):
        load_act(u)
        if u >= wdone[0]: load_w(u)
    VL = NRING*UNIT
    FL = VL + 36864
    PA = 16; GB = 40; RC = 148; VB = 208
    g_ = []
    if MG:
        PQ = lambda t, k: RC + 16*t + 8*(k % 2)
        KK = lambda t: RC + 48 + 2*t
        R2 = RC + 54; SP = RC + 56
        g_ += f"""s_and_b32 s64, s54, 1              ; par
s_lshr_b32 s65, s54, 1             ; tile half
v_and_b32 v1, 15, v0
v_lshrrev_b32 v3, 4, v0
v_lshl_add_u32 v4, v3, 3, s64
v_cvt_f32_u32 v4, v4               ; j0
s_lshl_b32 s63, s53, 1
s_add_u32 s63, s63, s65
s_mul_i32 s63, s63, 48
v_add_u32 v10, s63, v1
v_cmp_eq_f32 s[70:71], 0, v4
v_cvt_f32_u32 v11, v10
v_lshlrev_b32 v{SP}, 31, v10
v_mul_f32 v11, {fbits(1/576)}, v11
v_or_b32 v{SP}, 0x3f003f00, v{SP}""".split("\n")
        def rot(dst, src, cs):
            g_.append(f"v_pk_mul_f32 {p2(dst)}, {p2(src)}, {p2(cs)} op_sel_hi:[1,0]")
            g_.append(f"v_pk_fma_f32 {p2(dst)}, {p2(src)}, {p2(cs)}, {p2(dst)} op_sel:[1,1,0] op_sel_hi:[0,1,1] neg_hi:[0,1,0]")
        for t in range(3):
            P, Q = PQ(t, 0), PQ(t, 1)
            if t: g_.append(f"v_add_f32 v11, {fbits(16/576)}, v11")
            g_ += f"""v_mul_f32 v12, v4, v11
v_add_f32 v13, v11, v11
v_mul_f32 v14, {fbits(32.0)}, v11
v_cos_f32 v{P}, v12
v_sin_f32_e64 v{P+1}, -v12
v_cos_f32 v{R2}, v13
v_sin_f32 v{R2+1}, v13
v_cos_f32 v{KK(t)}, v14
v_sin_f32 v{KK(t)+1}, v14""".split("\n")
            rot(P+4, P, R2); rot(Q, P, KK(t)); rot(P+2, P+4, R2); rot(Q+4, P+4, KK(t)); rot(P+6, P+2, R2); rot(Q+2, P+2, KK(t)); rot(Q+6, P+6, KK(t))
            g_.append(f"v_add_f32 v{KK(t)}, v{KK(t)}, v{KK(t)}")
        npk = opt.get("g_npk", 4)
        for kk in range(9):
            if kk >= 2:
                for t in range(3):
                    cur, oth = PQ(t, kk), PQ(t, kk + 1)
                    if kk < npk:
                        for i in range(0, 8, 2): g_.append(f"v_pk_fma_f32 {p2(cur+i)}, {p2(oth+i)}, {p2(KK(t))}, {p2(cur+i)} op_sel_hi:[1,0,1] neg_lo:[0,0,1] neg_hi:[0,0,1]")
                    else:
                        for i in range(8): g_.append(f"v_fma_f32 v{cur+i}, v{oth+i}, v{KK(t)}, -v{cur+i}")
            for t in range(3):
                cur = PQ(t, kk)
                for i in range(4): g_.append(f"v_cvt_pk_bf16_f32 v{GB+12*kk+4*t+i}, v{cur+2*i}, v{cur+2*i+1}")
                if kk == 0: g_.append(f"v_cndmask_b32_e64 v{GB+4*t}, v{GB+4*t}, v{SP}, s[70:71]")
            if kk == npk - 1: npre = len(g_)
        g_ += f"""v_min_u32 v8, 7, v0
v_cmp_eq_u32 vcc, 0, v8
v_lshlrev_b32 v8, 7, v8
v_mov_b32 v9, 36
s_mov_b32 s69, {WS_SYNC + 48*128}
v_addc_co_u32 v9, vcc, 0, v9, vcc
s_lshl_b32 s66, s52, 2
s_add_u32 s66, s66, s51            ; G of the final task
s_lshl_b32 s68, s64, 1
s_add_u32 s68, s68, s65            ; quarter of V this wave loads
s_mul_i32 s67, s68, {72*8192}
s_lshl_b32 s66, s66, 7
s_add_u32 s67, s67, s66
s_add_u32 s67, s67, {WS_V}
s_mul_i32 s68, s68, 9216
s_add_u32 s68, s68, {VL}
v_lshrrev_b32 v5, 3, v0
v_and_b32 v6, 4, v5
v_xor_b32 v6, v6, v0
v_and_b32 v6, 7, v6
v_lshlrev_b32 v6, 4, v6
v_lshl_add_u32 v6, v5, 13, v6      ; V dma voffset
v_lshlrev_b32 v10, 9, v3
v_lshl_add_u32 v10, v1, 2, v10
v_and_b32 v11, 1, v3
v_lshl_add_u32 v10, v11, 6, v10
s_mul_i32 s66, s64, 18432
s_add_u32 s66, s66, {VL}
v_add_u32 v10, s66, v10
v_xor_b32 v11, 64, v10
v_add_u32 v12, 128, v10
v_add_u32 v13, 128, v11
s_mul_i32 s66, s54, {UNIT}
v_add_u32 v14, s66, v7             ; exchange write""".split("\n")
        a(f"""s_lshl_b32 s59, s54, 2
s_add_u32 s59, s59, {FL}
v_mov_b32 v240, s59
v_xor_b32 v241, 8, v240
v_mov_b32 v243, 0
v_mov_b32 v242, 1""")
    def vissue():
        for k in range(9):
            a(f"buffer_load_dwordx4 v6, s[32:35], s67 offen sc1 lds")
            if k < 8: a("s_add_u32 m0, m0, 1024\ns_add_u32 s67, s67, 65536")
    def gen(n):
        for _ in range(n):
            if g_: a(g_.pop(0))
    a.vm = []
    first = opt.get("k2_first", 4)
    if MONO:
        wdone[0] = opt.get("wpre", NRING)
        for u in range(wdone[0]): load_w(u)
        a(sigB)
        a(f"""s_lshl_b32 s62, s52, 2
s_add_u32 s62, s62, s51
s_lshl_b32 s62, s62, 7
s_add_u32 s62, s62, {WS_SYNC + 64*128}
s_barrier""")
        n1 = opt.get("g_n1", 0)
        gen(n1)
        poll(a, "K2_pa", 243, "s62", "16")
        a.vm = []
        first = opt.get("k2_first", NRING)
        for u in range(first): load_unit(u)
        gen(npre - n1)
    else:
      for u in range(first):
        load_unit(u)
        if MG and u >= 1: gen(-(-npre // (first - 1)))
    nu = first
    per = -(-len(g_) // opt.get("g_per", 12))
    for g in range(NU//2):
        a.wait(vm=[("u", 2*g), ("u", 2*g+1)])
        if g == 1: a("s_waitcnt lgkmcnt(0)")
        a("s_barrier")
        if g == 0 and MG: a("ds_write_b32 v240, v243")
        if MG and g == NU//2 - 3:
            assert not g_
            a.vmop("buffer_load_dword v15, v8, s[32:35], s69 offen sc1", "flag")
        if MG and g == NU//2 - 2:
            a.wait(vm="flag")
            nrem = len(a.vm)
            a("v_cmp_ne_u32 vcc, v15, v9\ns_mov_b32 m0, s68\ns_nop 3\ns_cbranch_vccnz K2_late")
            vissue()
            a("s_waitcnt vmcnt(9)\ns_barrier\ns_branch K2_vw\nK2_late:")
        lim = min(NU, 2*g + NRING, nu + opt.get("k2_ramp", 2))
        while nu < lim:
            load_unit(nu); nu += 1
            gen(-(-per // 2))
        if g == NU//2 - 3 and opt.get("pf3c", 1) and "3" in opt.get("kernels", "123") and not MG:
            a("""s_getpc_b64 s[40:41]
K2_pc:
s_add_u32 s40, s40, k3_kernel-K2_pc
s_addc_u32 s41, s41, 0
s_mov_b32 s42, code_end-k3_kernel
s_mov_b32 s43, 0x20000
v_lshrrev_b32 v8, 1, v0
v_lshlrev_b32 v8, 7, v8
s_lshl_b32 s59, s54, 12""")
            a.vmop("buffer_load_dword v9, v8, s[40:43], s59 offen", "pf")
            a(f"""s_load_dwordx2 s[36:37], s[0:1], 0
s_mov_b32 s38, {T*D*2}
s_mov_b32 s39, 0x20000
v_and_b32 v8, 7, v0
v_mul_u32_u24 v8, 73728, v8
v_lshrrev_b32 v10, 3, v0
v_min_u32 v10, 2, v10
v_lshl_add_u32 v8, v10, 7, v8
s_lshl_b32 s59, s49, 3
s_and_b32 s62, s50, 7
s_add_u32 s59, s59, s62
s_mul_i32 s59, s59, 1152
s_mul_i32 s62, s53, 384
s_add_u32 s59, s59, s62
s_mul_i32 s62, s54, {8*73728}
s_add_u32 s59, s59, s62
s_waitcnt lgkmcnt(0)""")
            a.vmop("buffer_load_dword v9, v8, s[36:39], s59 offen", "pf")
    if MG:
        mark(a, opt, 0)
        poll(a, "K2_pv", 8, "s69", "v9")
        a("s_mov_b32 m0, s68\ns_nop 0")
        vissue()
        a("K2_vw:")
        mark(a, opt, 1)
        a("s_waitcnt vmcnt(0)")
        mark(a, opt, 2)
        a("""ds_write_b32 v240, v242
s_mov_b32 s72, 0x400000
K2_hs:
ds_read_b32 v243, v241
s_waitcnt lgkmcnt(0)
v_cmp_eq_u32 vcc, 0, v243
s_sub_u32 s72, s72, 1
s_cbranch_scc1 K2_hs_d
s_nop 2
s_cbranch_vccnz K2_hs
K2_hs_d:""")
        mark(a, opt, 3)
        a.lg = []
        def vread(kk, n):
            th, z = n // 2, n % 2
            d = VB + 8*(kk % 4) + 4*th + 2*z
            a.lgop(f"ds_read2st64_b32 v[{d}:{d+1}], v{10+th+2*z} offset0:{8*kk} offset1:{8*kk+1}", ("v", kk))
        for kk in range(3):
            for n in range(4): vread(kk, n)
        for kk in range(9):
            a.wait(lg=("v", kk))
            n = 0
            for t in range(3):
                for th in range(2):
                    d = PA + 8*t + 4*th
                    a(f"{M16} {r4(d)}, {r4(GB+12*kk+4*t)}, {r4(VB+8*(kk%4)+4*th)}, " + (r4(d) if kk else "0"))
                    if kk + 3 < 9 and n < 4: vread(kk + 3, n)
                    n += 1
        for k in range(6): a(f"ds_write_b128 v14, {r4(PA+4*k)} offset:{k*1024}")
        a("s_waitcnt lgkmcnt(0)")
        mark(a, opt, 4)
        a("s_barrier")
        mark(a, opt, 5)
        if opt.get("stamp"): stamp_out(a, 2, "s48", 32, "K2_end")
    a("s_endpgm")
    ACC = 16; FB = 112
    a("K2_comp:")
    if MONO: a("s_barrier")
    a(f"""s_and_b32 s54, s48, 1
s_lshr_b32 s55, s48, 1             ; b : d tiles 6b..6b+5
v_lshrrev_b32 v8, 4, v0            ; g
v_and_b32 v9, 15, v0
v_lshlrev_b32 v10, {8 if B1 else 9}, v8
v_lshl_add_u32 v10, v9, 4, v10
s_lshl_b32 s59, s54, 12
v_add_u32 v5, s59, v10
v_lshrrev_b32 v10, 2, v9           ; r
v_and_b32 v11, 1, v8
v_lshl_add_u32 v10, v11, 2, v10
v_lshrrev_b32 v11, 1, v8
v_mul_u32_u24 v11, {3072 if B1 else 6144}, v11
v_lshl_add_u32 v11, v10, 7, v11
v_and_b32 v12, 3, v0
v_lshl_add_u32 v11, v12, 3, v11
v_add_u32 v11, 8192, v11
v_lshrrev_b32 v10, 1, v10          ; swizzle
s_lshl_b32 s59, s55, 10
v_lshl_add_u32 v12, v10, 5, v11
v_add_u32 v1, s59, v12
v_xor_b32 v2, 32, v1
v_xor_b32 v3, 64, v1
v_xor_b32 v4, 0x60, v1
s_lshl_b32 s59, s55, 6
v_xor_b32 v12, s59, v12
v_add_u32 v6, 2048, v12
v_xor_b32 v13, 32, v6""")
    a(f"""s_mul_i32 s57, s51, {64*18*2048}
s_lshl_b32 s59, s52, 2
s_lshl_b32 s60, s54, 1
s_add_u32 s59, s59, s60
s_mul_i32 s59, s59, {18*2048}
s_add_u32 s57, s57, s59
s_mul_i32 s59, s53, 6
s_mul_i32 s60, s55, 3
s_add_u32 s59, s59, s60
s_lshl_b32 s59, s59, 10
s_add_u32 s57, s57, s59
s_add_u32 s57, s57, {WS_PART}
s_waitcnt lgkmcnt(0)""")
    a.vm = []; a.lg = []
    win = [0]
    def reads(u):
        base = (u % NRING)*UNIT
        fb = FB + (u % 2)*40
        ops = []
        def setwin():
            if not (win[0] <= base and base + 8192 - win[0] <= 65535):
                for k in (1, 2, 3, 4, 5, 6, 13):
                    a(f"v_add_u32 v{k}, {(base - win[0]) & 0xffffffff:#x}, v{k}")
                win[0] = base
        def act(i):
            setwin()
            a.lgop(f"ds_read_b128 {r4(fb+4*i)}, v5 offset:{base - win[0] + (i//2)*2048 + (i%2)*(1024 if B1 else 256)}", ("a", u))
        def w(j, t):
            d = fb + 16 + 4*j + 2*t
            a.lgop(f"ds_read_b64_tr_b16 v[{d}:{d+1}], v{(1, 2, 3, 4, 6, 13)[j]} offset:{base - win[0] + t*6144}", ("w", u, j))
        for i in range(4): ops.append(lambda i=i: act(i))
        for j in range(6):
            for t in range(2): ops.append(lambda j=j, t=t: w(j, t))
        return ops
    if MG:
        st_o = opt.get("st_o", "")
        OUT = 192; XR = 216; EO = 16; PB = 64; U = 228
        a(f"""s_load_dwordx2 s[36:37], s[0:1], 0
s_load_dwordx2 s[40:41], s[0:1], 56
s_mov_b32 s38, {T*D*2}
s_mov_b32 s39, 0x20000
s_mov_b32 s42, {T*D*2}
s_mov_b32 s43, 0x20000
v_and_b32 v240, 8, v9
v_add_u32 v240, v240, v9
v_mul_u32_u24 v240, 73728, v240
v_and_b32 v241, 1, v8
v_lshl_add_u32 v240, v241, 5, v240
v_lshrrev_b32 v242, 1, v8
v_lshl_add_u32 v240, v242, 4, v240
s_lshl_b32 s66, s52, 2
s_add_u32 s66, s66, s51            ; G
s_mul_i32 s74, s54, 9
s_mul_i32 s59, s53, 3
s_add_u32 s74, s74, s59
s_mul_i32 s58, s66, 1152
s_lshl_b32 s59, s74, 6
s_add_u32 s58, s58, s59
s_mul_i32 s59, s55, {8*73728}
s_add_u32 s58, s58, s59
s_mul_i32 s73, s66, 36864
s_lshl_b32 s59, s53, 1
s_add_u32 s59, s59, s54
s_mul_i32 s59, s59, 3072
s_add_u32 s73, s73, s59
s_add_u32 s59, s53, s54
s_and_b32 s59, s59, 1
s_cselect_b32 s76, 2048, 0
s_cselect_b32 s77, 0, 1024
s_add_u32 s78, s77, 1024
s_mul_i32 s59, s55, {18*1024}
s_add_u32 s73, s73, s59
s_add_u32 s73, s73, {WS_PART}
s_waitcnt lgkmcnt(0)""")
    mark(a, opt, 0)
    a("s_barrier")
    mark(a, opt, 1)
    for o in reads(0): o()
    for u in range(NU):
        if u == 18: mark(a, opt, 2)
        if MG and u == opt.get("u_x", 33):
            for w in range(3): a(f"buffer_load_dwordx4 {r4(XR+4*w)}, v240, s[36:39], s58 offen offset:{w*64}")
        fb = FB + (u % 2)*40
        nxt = reads(u+1) if u + 1 < NU else []
        bar = (u % 2 == 1 and u + 1 < NU)
        n = 0
        for j in range(6):
            for i in range(4):
                if i == 0:
                    if bar and j == 0: a.wait(lg="all")
                    else: a.wait(lg=[("a", u), ("w", u, j)])
                d = ACC + (i*6 + j)*4
                a(f"{M16} {r4(d)}, {r4(fb+16+4*j)}, {r4(fb+4*i)}, " + (r4(d) if u else "0"))
                if bar and n == 0: a("s_barrier")
                elif nxt: nxt.pop(0)()
                n += 1
    mark(a, opt, 3)
    a(f"""s_lshl_b32 s59, s54, 1
s_sub_u32 s75, s51, s59
s_mul_i32 s59, s55, {UNIT}
s_add_u32 s59, s59, 8192
v_add_u32 v243, s59, v7""")
    for i in range(4):
        for jp in range(3):
            pk = FB + 4*((i*3 + jp) % 8)
            for t in range(2):
                d = ACC + (i*6 + 2*jp + t)*4
                a(f"v_cvt_pk_bf16_f32 v{pk+2*t}, v{d}, v{d+1}\nv_cvt_pk_bf16_f32 v{pk+2*t+1}, v{d+2}, v{d+3}")
            a(f"v_permlane16_swap_b32 v{pk}, v{pk+2}\nv_permlane16_swap_b32 v{pk+1}, v{pk+3}")
            if jp == 0: a(f"s_add_u32 s59, s57, {i*18*1024}")
            a(f"s_cbranch_scc1 K2_own{i}{jp}" if False else "")
            a(f"s_cmp_eq_u32 s75, {i//2}\ns_cbranch_scc1 K2_own{i}{jp}")
            a(f"buffer_store_dwordx4 {r4(pk)}, v7, s[32:35], s59 offen offset:{jp*1024} {st_p}\ns_branch K2_owd{i}{jp}")
            a(f"K2_own{i}{jp}:\nds_write_b128 v243, {r4(pk)} offset:{(i % 2)*2*UNIT + jp*1024}\nK2_owd{i}{jp}:")
    if MG:
        a(f"""v_lshlrev_b32 v10, 9, v242
v_lshl_add_u32 v10, v9, 4, v10
s_lshl_b32 s59, s55, 10
v_add_u32 v10, s59, v10
v_lshl_add_u32 v11, v241, 11, v10
v_mul_u32_u24 v12, {2*UNIT - 4096}, v241
v_add_u32 v12, v12, v10
s_mov_b32 s66, {fbits(LN2)}
s_mov_b32 s67, s66
s_mov_b32 s70, {fbits(2/(576*2048))}
s_mov_b32 s71, s70
s_lshl_b32 s68, s54, 31
s_xor_b32 s68, s68, s70
s_mov_b32 s69, s68
s_mul_i32 s60, s52, 3
s_add_u32 s60, s60, s53
s_lshl_b32 s60, s60, 7
s_add_u32 s60, s60, {WS_SYNC}
s_mul_i32 s59, s48, {UNIT}
s_add_u32 s59, s59, 8192
v_add_u32 v243, s59, v7
v_add_u32 v244, s76, v243
v_add_u32 v245, s77, v243
v_add_u32 v246, s78, v243
v_mov_b32 v13, 0
v_mov_b32 v14, 1
s_waitcnt vmcnt(0) lgkmcnt(0)""")
        mark(a, opt, 4)
        a(f"""s_barrier
s_cmp_lg_u32 s48, 0
s_cbranch_scc1 K2_nosig
s_mov_b64 exec, 1
buffer_atomic_add v14, v13, s[32:35], s60 offen sc1
s_mov_b64 exec, -1
K2_nosig:""")
        a.lg = []; a.vm = []
        for w in range(3):
            reg, off = ((11, 0), (12, 4096), (11, 2*UNIT + 2048))[w]
            for par in range(2):
                for hf in range(2):
                    a.lgop(f"ds_read_b128 {r4(EO+16*w+8*par+4*hf)}, v{reg} offset:{off + par*UNIT + hf*256}", ("eo", w))
        for w in range(3): a.lgop(f"ds_read_b128 {r4(PB+16*w)}, v{244+w}", "own")
        for w in range(3):
            for e in range(4):
                a(f"v_lshlrev_b32 v{OUT+8*w+2*e}, 16, v{XR+4*w+e}\nv_and_b32 v{OUT+8*w+2*e+1}, 0xffff0000, v{XR+4*w+e}")
        for w in range(3):
            a.wait(lg=("eo", w))
            for e in range(0, 8, 2): a(f"v_pk_fma_f32 {p2(OUT+8*w+e)}, {p2(EO+16*w+e)}, s[70:71], {p2(OUT+8*w+e)}")
            for e in range(0, 8, 2): a(f"v_pk_fma_f32 {p2(OUT+8*w+e)}, {p2(EO+16*w+8+e)}, s[68:69], {p2(OUT+8*w+e)}")
        def psum(src0, w):
            for e in range(4):
                a(f"v_lshlrev_b32 v{U+2*e}, 16, v{src0+e}\nv_and_b32 v{U+2*e+1}, 0xffff0000, v{src0+e}")
            for e in range(0, 8, 2): a(f"v_pk_fma_f32 {p2(OUT+8*w+e)}, {p2(U+e)}, s[66:67], {p2(OUT+8*w+e)}")
        a.wait(lg="own")
        for w in range(3): psum(PB + 16*w, w)
        for s_ in range(1, 4):
            a(f"s_add_u32 s59, s51, {s_}\ns_and_b32 s59, s59, 3\ns_mul_i32 s59, s59, {64*18*2048}\ns_add_u32 s{79+s_}, s59, s73")
        a("v_add_u32 v244, s76, v7\nv_add_u32 v245, s77, v7\nv_add_u32 v246, s78, v7\nv_mov_b32 v14, 4")
        poll(a, "K2_pp", 13, "s60", "v14")
        mark(a, opt, 5)
        for w in range(3):
            for s_ in range(1, 4):
                a.vmop(f"buffer_load_dwordx4 {r4(PB+16*w+4*s_)}, v{244+w}, s[32:35], s{79+s_} offen sc1", ("p", w, s_))
        for w in range(3):
            for s_ in range(1, 4):
                a.wait(vm=("p", w, s_))
                psum(PB + 16*w + 4*s_, w)
            for e in range(4): a(f"v_cvt_pk_bf16_f32 v{XR+4*w+e}, v{OUT+8*w+2*e}, v{OUT+8*w+2*e+1}")
            a.vmop(f"buffer_store_dwordx4 {r4(XR+4*w)}, v240, s[40:43], s58 offen offset:{w*64} {st_o}", "o")
    if opt.get("stamp"):
        a.wait(vm="all")
        stamp_out(a, 1, "s48", 32, "K2_end")
    a("s_endpgm")
    PR, PI, PN = 16, 32, 48
    AR, AI = 64, 96
    C32, S32, C64, S64, TWS = 128, 136, 144, 160, 176
    WL = T_END
    u0 = opt.get("apf0", 9)
    xpf = f"""s_cmp_lt_u32 s48, 5
s_cbranch_scc1 K2_end
s_and_b32 s59, s49, 1
s_lshl_b32 s59, s59, 3
s_add_u32 s59, s59, s50            ; rb
s_mul_i32 s59, s59, {4*144*2048}
s_lshr_b32 s60, s49, 1
s_mul_i32 s60, s60, {36*2048}
s_add_u32 s59, s59, s60
s_add_u32 s60, s48, {u0 - 5}
s_lshl_b32 s61, s60, 11
s_add_u32 s59, s59, s61
v_lshrrev_b32 v2, 4, v0
s_mov_b32 s61, {144*2048}
v_mul_lo_u32 v2, s61, v2
v_and_b32 v3, 15, v0
v_lshl_add_u32 v2, v3, 7, v2
s_waitcnt lgkmcnt(0)
K2_pfl:
buffer_load_dword v3, v2, s[32:35], s59 offen
s_add_u32 s59, s59, 6144
s_add_u32 s60, s60, 3
s_waitcnt vmcnt({opt.get("apfd", 0)})
s_cmp_lt_u32 s60, 36
s_cbranch_scc1 K2_pfl""" if opt.get("apf", 0) else ""
    fsig = f"""s_cmp_lt_u32 s48, 4
s_cbranch_scc1 K2_fs
s_cmp_eq_u32 s48, 4
s_cbranch_scc1 K2_fs1
s_cmp_lt_u32 s51, 58
s_cbranch_scc1 K2_fs
K2_fs1:
{sigB}
K2_fs:""" if MONO else ""
    a(f"""K2_fft:
s_lshl_b32 s51, s49, 3
s_add_u32 s51, s51, s50            ; f
{fsig}
s_cmp_ge_u32 s51, {opt.get("nfft", 58)}
s_cbranch_scc1 K2_xpf
s_mul_i32 s52, s51, 5              ; j0
s_cmp_lt_u32 s48, 5
s_cbranch_scc1 K2_fft_go
s_getpc_b64 s[28:29]
s_add_u32 s28, s28, fft_tab@rel32@lo+4
s_addc_u32 s29, s29, fft_tab@rel32@hi+12
s_mov_b32 s30, {T_END}
s_mov_b32 s31, 0x20000
s_sub_u32 s53, s48, 5
s_lshl_b32 s59, s53, 10
K2_tl:
s_mov_b32 m0, s59
s_nop 0
buffer_load_dwordx4 v7, s[28:31], s59 offen lds
s_add_u32 s59, s59, 3072
s_cmp_lt_u32 s59, {T_END if MONO else T_TW2}
s_cbranch_scc1 K2_tl
s_mov_b32 s60, s59
s_lshl_b32 s54, s51, 16
s_add_u32 s54, s54, {WS_WT}
s_lshl_b32 s53, s53, 10""")
    if MONO:
        a(sigB + "\ns_barrier")
        a(f"v_lshlrev_b32 v8, 7, v0\ns_mov_b32 s62, {WS_SYNC + 128*128}")
        poll(a, "K2_pw", 8, "s62", "16", sleep=opt.get("pwsleep", 2))
        a("s_barrier")
    else: a("s_waitcnt vmcnt(0) lgkmcnt(0)\ns_barrier")
    tl2 = "" if MONO else f"""K2_tl2:
s_mov_b32 m0, s60
s_nop 0
buffer_load_dwordx4 v7, s[28:31], s60 offen lds
s_add_u32 s60, s60, 3072
s_cmp_lt_u32 s60, {T_END}
s_cbranch_scc1 K2_tl2"""
    a(f"""K2_wl:
s_add_u32 m0, s53, {WL}
s_add_u32 s59, s53, s54
buffer_load_dwordx4 v7, s[32:35], s59 offen {SC} lds
s_add_u32 s53, s53, 3072
s_cmp_lt_u32 s53, 65536
s_cbranch_scc1 K2_wl
{tl2}
s_waitcnt vmcnt(0)
s_barrier
K2_xpf:
{"s_cmp_lg_u32 s48, 7|s_cbranch_scc1 K2_end|s_sleep %d|buffer_wbl2 sc1|s_waitcnt vmcnt(0)".replace("|", chr(10)) % opt["wb"] if opt.get("wb") else ""}
{xpf}
s_endpgm
K2_fft_go:
s_add_u32 s56, s52, s48            ; j
s_cmp_gt_u32 s56, 288
s_cbranch_scc1 K2_end
s_lshr_b32 s54, s56, 1
s_and_b32 s59, s56, 1
s_mul_i32 s59, s59, 144
s_add_u32 s54, s54, s59            ; sigma
s_mov_b32 s61, 0                   ; 0 normal, 1: j=0, 2: j=288
s_cmp_eq_u32 s56, 0
s_cselect_b32 s61, 1, s61
s_cmp_eq_u32 s56, 288
s_cselect_b32 s61, 2, s61
s_cselect_b32 s54, 0, s54
s_cselect_b32 s59, 4096, 0
s_lshl_b32 s62, s54, 13
s_add_u32 s57, s62, {WS_U}
s_add_u32 s58, s57, 4096
s_add_u32 s57, s57, s59
s_cmp_lg_u32 s61, 0
s_cselect_b32 s58, 0x10000000, s58
v_and_b32 v2, 31, v0               ; n
v_lshrrev_b32 v3, 5, v0            ; h
v_lshlrev_b32 v4, 4, v3
v_lshl_add_u32 v4, v2, 6, v4       ; U voffset
s_waitcnt lgkmcnt(0)""")
    if MONO:
        a("s_barrier\ns_barrier")
    a.vm = []; a.lg = []
    for p in range(2):
        for ks in range(2):
            a.vmop(f"buffer_load_dwordx4 {r4(PR+8*p+4*ks)}, v4, s[32:35], s57 offen offset:{p*2048+ks*32} {SC}", "z")
            a.vmop(f"buffer_load_dwordx4 {r4(PI+8*p+4*ks)}, v4, s[32:35], s58 offen offset:{p*2048+ks*32} {SC}", "z")
    a(f"""v_add_u32 v5, s52, v2
v_and_b32 v5, 1, v5
v_add_u32 v5, s48, v5
v_lshlrev_b32 v5, 1, v5
v_lshl_add_u32 v5, v2, 4, v5
v_lshl_add_u32 v5, v3, 11, v5
v_add_u32 v5, {WL}, v5
{vpos}
v_lshl_add_u32 v6, v3, 9, v6       ; V voffset
s_add_u32 s62, s62, {WS_V}
s_mov_b32 s64, -2.0
s_mov_b32 s65, -2.0""")
    if not MONO: a("s_barrier")
    for k in range(4): a.lgop(f"ds_read_b128 {r4(C32+4*k)}, v7 offset:{k*1024}", "t32")
    NB = 8
    def twread(tw, k):
        s = TWS + 8*(k % NB)
        off = (T_TW1 if tw == 0 else T_TW2) + k*2048
        a.lgop(f"ds_read_b128 {r4(s)}, v7 offset:{off}", ("tw", k))
        a.lgop(f"ds_read_b128 {r4(s+4)}, v7 offset:{off+1024}", ("tw", k))
    def wread(k):
        s = TWS + 8*(k % NB)
        for arr in range(2):
            for e in range(4):
                a.lgop(f"ds_read_u16 v{s+4*arr+e}, v5 offset:{arr*32768 + (8*k + e)*512}", ("tw", k))
    for k in range(4): twread(0, k)
    a.wait(vm="z")
    for k in range(16): a(f"v_xor_b32 v{PN+k}, 0x80008000, v{PR+k}")
    a.wait(lg="t32")
    def stage_small(X1, X2, X3, X4):
        for p in range(2):
            for (D, Xa, Xb) in ((AR, X1, X2), (AI, X3, X4)):
                d = D + 16*p
                for ks in range(2):
                    a(f"{M32} {r16(d)}, {r4(Xa+8*p+4*ks)}, {r4(C32+4*ks)}, " + (r16(d) if ks else "0"))
                    a(f"{M32} {r16(d)}, {r4(Xb+8*p+4*ks)}, {r4(S32+4*ks)}, {r16(d)}")
    def stage_big(X1, X2, X3, X4, dataA, fill=()):
        fill = list(fill)
        for (D, Xa, Xb) in ((AR, X1, X2), (AI, X3, X4)):
            for e in range(2):
                d = D + 16*e
                for p1 in range(2):
                    ks = 2*e + p1
                    for (X, Tb, first) in ((Xa, C64, p1 == 0), (Xb, S64, False)):
                        x, tb = r4(X+4*ks), r4(Tb+4*ks)
                        A_, B_ = (x, tb) if dataA else (tb, x)
                        a(f"{M32} {r16(d)}, {A_}, {B_}, " + ("0" if first else r16(d)))
                        if fill: fill.pop(0)()
        for D in (AR, AI):
            for k in range(0, 16, 2): a(f"v_pk_add_f32 {p2(D+k)}, {p2(D+k)}, {p2(D+16+k)}")
            for k in range(0, 16, 2): a(f"v_pk_fma_f32 {p2(D+16+k)}, {p2(D+16+k)}, s[64:65], {p2(D+k)}")
    def cmul4(k, cr, sr, sgn):
        ng = " neg_lo:[1,0,0] neg_hi:[1,0,0]"
        n1, n2 = (ng, "") if sgn > 0 else ("", ng)
        for e in (0, 2): a(f"v_pk_mul_f32 {p2(8+e)}, {p2(AR+4*k+e)}, {p2(cr+e)}")
        for e in (0, 2): a(f"v_pk_mul_f32 {p2(12+e)}, {p2(AI+4*k+e)}, {p2(cr+e)}")
        for e in (0, 2): a(f"v_pk_fma_f32 {p2(8+e)}, {p2(AI+4*k+e)}, {p2(sr+e)}, {p2(8+e)}{n1}")
        for e in (0, 2): a(f"v_pk_fma_f32 {p2(12+e)}, {p2(AR+4*k+e)}, {p2(sr+e)}, {p2(12+e)}{n2}")
    def pack4(k, negre, eo=False):
        dst = (lambda e: 8*e + k) if eo else (lambda e: 2*k + e)
        src = (lambda e: (e, e + 2)) if eo else (lambda e: (2*e, 2*e + 1))
        for e in range(2): a(f"v_cvt_pk_bf16_f32 v{PR+dst(e)}, v{8+src(e)[0]}, v{8+src(e)[1]}")
        for e in range(2): a(f"v_cvt_pk_bf16_f32 v{PI+dst(e)}, v{12+src(e)[0]}, v{12+src(e)[1]}")
        for e in range(2): a(f"v_xor_b32 v{PN+dst(e)}, 0x80008000, v{(PR if negre else PI)+dst(e)}")
    stage_small(PR, PI, PI, PN)
    t64 = [lambda k=k: a.lgop(f"ds_read_b128 {r4(C64+4*k)}, v7 offset:{T_C64+k*1024}", "t64") for k in range(8)]
    for k in range(8):
        a.wait(lg=("tw", k))
        s = TWS + 8*(k % NB)
        cmul4(k, s, s+4, -1)
        if k + 4 < 8: twread(0, k+4)
        t64.pop(0)()
        pack4(k, True, True)
    a.wait(lg="t64")
    mark(a, opt, 0)
    a("s_barrier")
    mark(a, opt, 1)
    def wr4(k, arr):
        for e in range(4):
            a.lgop(f"ds_read_u16 v{TWS+8*k+4*arr+e}, v5 offset:{arr*32768 + (8*k + e)*512}", ("tw", k))
    stage_big(PR, PI, PI, PN, False, fill=[lambda k=k, arr=arr: wr4(k, arr) for k in range(8) for arr in range(2)])
    mark(a, opt, 2)
    for k in range(8):
        a.wait(lg=("tw", k))
        s = TWS + 8*(k % NB)
        for e in range(8): a(f"v_lshlrev_b32 v{s+e}, 16, v{s+e}")
        cmul4(k, s, s+4, +1)
        pack4(k, False, True)
    stage_big(PR, PN, PI, PR, True, fill=[lambda k=k: twread(1, k) for k in range(NB)])
    for k in range(8):
        a.wait(lg=("tw", k))
        s = TWS + 8*(k % NB)
        cmul4(k, s, s+4, +1)
        if k + NB < 8: twread(1, k+NB)
        pack4(k, False)
    mark(a, opt, 4)
    a("s_add_u32 s63, s62, 4096\ns_cmp_lg_u32 s61, 0\ns_cbranch_scc1 K2_fft_spw")
    off = lambda j: ((j & 3) + 8*(j >> 2))*128
    def last(special):
        o = []
        for p in range(2):
            for j in range(16):
                d = TWS + 16*p + j
                if special: o.append(f"v_cvt_pk_bf16_f32 v{d}, v{AR+16*p+j}, v{AR+16*p+j}\nbuffer_store_short v{d}, v6, s[32:35], s{62+p} offen offset:{off(j)} {st_v}")
                else: o.append(f"v_cvt_pk_bf16_f32 v{d}, v{AR+16*p+j}, v{AI+16*p+j}\nbuffer_store_dword v{d}, v6, s[32:35], s{62+p} offen offset:{off(j)} {st_v}")
        n = 0
        for p in range(2):
            for (D, Xa, Xb) in ((AR, PR, PN), (AI, PI, PR)):
                if special and D == AI: continue
                d = D + 16*p
                for ks in range(2):
                    for (X, Tb, first) in ((Xa, C32, ks == 0), (Xb, S32, False)):
                        a(f"{M32} {r16(d)}, {r4(X+8*p+4*ks)}, {r4(Tb+4*ks)}, " + ("0" if first else r16(d)))
                        if p == 1 and not special:
                            n += 1
                            if n >= 2: a(o.pop(0)); a(o.pop(0))
        for l in o: a(l)
    last(False)
    a("s_branch K2_fft_out\nK2_fft_spw:\ns_sub_u32 s59, s61, 1\ns_lshl_b32 s59, s59, 1\nv_add_u32 v6, s59, v6")
    last(True)
    a("K2_fft_out:")
    if MG:
        a(f"""s_and_b32 s59, s56, 7
s_lshl_b32 s59, s59, 7
s_add_u32 s59, s59, {WS_SYNC + 48*128}
v_mov_b32 v4, 0
v_mov_b32 v5, 1
s_waitcnt vmcnt(0)
s_mov_b64 exec, 1
buffer_atomic_add v5, v4, s[32:35], s59 offen sc1
s_mov_b64 exec, -1""")
    if opt.get("stamp"):
        a("s_waitcnt vmcnt(0)")
        a("s_mov_b32 s87, 0")
        mark(a, opt, 5)
        stamp_out(a, 3, "s48", 32, "K2_end")
    a("K2_end:\ns_endpgm")
    if not MONO:
        a.end_kernel("k2_kernel", 256, 96)
        a.launch("k2_kernel", 256, 512, 163840)
    tab = fft_tables()
    t = [".p2align 8", ".type fft_tab,@object", "fft_tab:"]
    for i in range(0, len(tab), 8):
        t.append(".long " + ",".join("0x%x" % x for x in tab[i:i+8]))
    a.tail += t
```

```python
import struct, math
T, D, F = 2048, 576, 4608
LOG2E = 1.4426950408889634; LN2 = 0.6931471805599453
def fbits(x): return "0x%08x" % struct.unpack("<I", struct.pack("<f", x))[0]
WS_ACT  = 0
WS_U    = 0x1200000
WS_WT   = WS_U + 576*4096
WS_V    = WS_WT + 64*65536
WS_PART = WS_V + 64*36*1024
WS_GT   = WS_PART + 4*64*18*2048
WS_END  = WS_GT + 9*36*1024
WS_SYNC = (WS_END + 8191) // 8192 * 8192
WS_STAMP = 0x4000000
assert WS_U == 64*144*2048


def probe(a, opt, name):
    amp = opt.get("amp")
    if amp:
        for r, n in ((100, amp[0]), (101, amp[1])):
            if n == name:
                a(f"s_memrealtime s[92:93]\ns_waitcnt lgkmcnt(0)\ns_mov_b32 s{r}, s92")
                a.lg = []
def amp_out(a, opt):
    amp = opt.get("amp")
    if amp:
        a(f"""s_waitcnt vmcnt(0)""")
        probe(a, opt, "end")
        a(f"""s_sub_u32 s100, s101, s100
s_mul_i32 s100, s100, {amp[2]}
s_min_u32 s100, s100, 20000
s_memrealtime s[92:93]
s_waitcnt lgkmcnt(0)
s_mov_b32 s101, s92
AMP_l:
s_memrealtime s[92:93]
s_waitcnt lgkmcnt(0)
s_sub_u32 s92, s92, s101
s_cmp_lt_u32 s92, s100
s_cbranch_scc1 AMP_l""")
def mark(a, opt, k):
    if opt.get("stamp"):
        a(f"s_memrealtime s[92:93]\ns_waitcnt lgkmcnt(0)\ns_mov_b32 s{84+k}, s92")
        a.lg = []
def stamp_out(a, slot, wavereg, srd, endlab):
    a(f"""s_memrealtime s[92:93]
s_waitcnt lgkmcnt(0)
s_lshl_b32 s94, s2, 3
s_add_u32 s94, s94, {wavereg}
s_lshl_b32 s94, s94, 5
s_add_u32 s94, s94, {WS_STAMP + slot*131072}
v_mov_b32 v4, s90
v_mov_b32 v5, s84
v_mov_b32 v6, s85
v_mov_b32 v7, s86
v_mov_b32 v8, s87
v_mov_b32 v9, s88
v_mov_b32 v10, s89
v_mov_b32 v11, s92
v_mov_b32 v12, 0
s_mov_b64 exec, 1
buffer_store_dwordx4 v[4:7], v12, s[{srd}:{srd+3}], s94 offen
buffer_store_dwordx4 v[8:11], v12, s[{srd}:{srd+3}], s94 offen offset:16
s_waitcnt vmcnt(0)
s_mov_b64 exec, -1""")

def poll(a, lab, voff, soff, vexp, srd=32, tmp=15, sleep=1):
    a(f"""s_mov_b32 s72, 0x40000
{lab}:
buffer_load_dword v{tmp}, v{voff}, s[{srd}:{srd+3}], {soff} offen sc1
s_waitcnt vmcnt(0)
v_cmp_ne_u32 vcc, {vexp}, v{tmp}
s_sub_u32 s72, s72, 1
s_cbranch_scc1 {lab}_d
s_nop 2
s_cbranch_vccz {lab}_d
s_sleep {sleep}
s_branch {lab}
{lab}_d:""")
```

```python
from fw import *
from common import *
M16 = "v_mfma_f32_16x16x32_bf16"
def r4(x): return f"v[{x}:{x+3}]"
def p2(x): return f"v[{x}:{x+1}]"
WU = 18432
W_OFF = 0; NW = 4
X_OFF = NW*WU
NX = 3
F_OFF = X_OFF + NX*16384
E_OFF = F_OFF + 18432
ESTR = 1168
WR_OFF = 149504
CSB = 159744
BIAS = CSB + 1280
STAT = BIAS + 1280
SCR = E_OFF + 6*ESTR + 160
RS = 0
NS = 18
HC = CSB + 1152
UI = F_OFF + 4096

def gen_k1b(a, opt):
    st_act = opt.get("st_act", "sc1"); st_u = opt.get("st_u", "sc1"); st_wt = opt.get("st_wt", "sc1")
    MONO = opt.get("mono", 1) and "2" in opt.get("kernels", "123")
    KN = NAME + "_kernel" if MONO else "k1_kernel"
    if MONO: st_u = opt.get("st_u", "sc1")
    def signal(base):
        a(f"""s_lshl_b32 s59, s49, 2
s_lshr_b32 s60, s50, 2
s_add_u32 s59, s59, s60
s_lshl_b32 s59, s59, 7
s_add_u32 s59, s59, {WS_SYNC + base*128}
v_mov_b32 v8, 0
v_mov_b32 v9, 1
s_waitcnt vmcnt(0)
s_mov_b64 exec, 1
buffer_atomic_add v9, v8, s[32:35], s59 offen sc1
s_mov_b64 exec, -1""")
    a.begin_kernel(KN)
    a("K1_start:")
    a("s_cmp_ge_u32 s2, 256\ns_cbranch_scc1 K1_end")
    if opt.get("stamp"): a("s_memrealtime s[90:91]")
    probe(a, opt, "start")
    a(f"""s_load_dwordx8 s[4:11], s[0:1], 0
s_load_dwordx8 s[12:19], s[0:1], 32
s_load_dwordx2 s[32:33], s[0:1], 72
s_lshr_b32 s60, s2, 3              ; idx
s_getpc_b64 s[80:81]
K1_pc:
s_mov_b32 s82, code_end-K1_pc
s_mov_b32 s83, 0x20000
v_mul_u32_u24 v1, 3, v0
v_lshrrev_b32 v1, 6, v1
v_lshlrev_b32 v1, 7, v1
s_mul_i32 s59, s60, 3072
s_mov_b32 m0, {SCR}
s_nop 0
buffer_load_dword v1, s[80:83], s59 offen lds
v_lshrrev_b32 v1, 6, v0
v_readfirstlane_b32 s48, v1        ; wave
v_mov_b32 v2, v0                   ; tid
v_and_b32 v0, 63, v0               ; lane
s_and_b32 s49, s2, 1
s_lshl_b32 s49, s49, 3
s_and_b32 s61, s60, 7
s_add_u32 s49, s49, s61            ; rb
s_lshr_b32 s3, s60, 3              ; cq
s_bfe_u32 s50, s2, 0x20001
s_lshl_b32 s50, s50, 2
s_add_u32 s50, s50, s3             ; cg
s_add_u32 s71, s3, s49
s_and_b32 s71, s71, {opt.get("rotmask", 0)}
s_mul_i32 s71, s71, {opt.get("rot", 4)}
s_mul_i32 s63, s50, 576
s_and_b32 s64, s50, 1
s_mov_b32 s34, 0x10000000
s_mov_b32 s35, 0x20000
v_lshlrev_b32 v7, 4, v0
s_cmp_lt_u32 s48, 4
s_cbranch_scc1 K1_comp""")
    a(f"""s_sub_u32 s51, s48, 4              ; lw
v_lshrrev_b32 v8, 3, v0            ; r
v_lshrrev_b32 v9, 4, v0
v_xor_b32 v9, v9, v0
v_and_b32 v9, 7, v9
v_lshlrev_b32 v9, 4, v9
s_mov_b32 s22, 73728
v_mad_u32_u24 v3, v8, s22, v9
v_xor_b32 v4, 64, v3
v_add_u32 v4, {16*73728-1024}, v4
s_lshl_b32 s53, s49, 2
s_add_u32 s53, s53, s51
s_mul_i32 s53, s53, 1152           ; x base
s_lshl_b32 s20, s71, 7
s_add_u32 s20, s20, s53
s_add_u32 s21, s53, 1152
s_lshl_b32 s57, s51, 12            ; lw*4096
s_mov_b32 s26, {T*D*2}
s_mov_b32 s27, 0x20000
s_waitcnt lgkmcnt(0)
s_mov_b64 s[24:25], s[4:5]""")
    wsetup = f"""v_and_b32 v9, 2, v8
s_and_b32 s59, s51, 1
s_lshl_b32 s59, s59, 2
v_or_b32 v9, s59, v9
v_xor_b32 v9, v9, v0
v_and_b32 v9, 7, v9
v_lshlrev_b32 v9, 4, v9
v_mul_u32_u24 v5, 9216, v8
v_add_u32 v5, v5, v9               ; W voffset
v_lshrrev_b32 v8, 2, v0
v_mul_u32_u24 v6, 9216, v8
s_lshr_b32 s59, s59, 1
v_xor_b32 v9, s59, v0
v_and_b32 v9, 3, v9
v_lshl_add_u32 v6, v9, 4, v6       ; H voffset
s_mul_i32 s54, s51, {8*9216}
s_add_u32 s54, s54, s63
s_mul_i32 s59, s71, {64*9216}
s_add_u32 s36, s54, s59
s_add_u32 s37, s54, {576*9216}
s_lshl_b32 s38, s64, 6
s_xor_b32 s39, s64, 1
s_lshl_b32 s39, s39, 9
s_lshl_b32 s58, s51, 9
s_mov_b32 s30, {D*F*2}
s_mov_b32 s31, 0x20000
s_mov_b64 s[28:29], s[12:13]"""
    a.vm = []; a.lg = []
    def x_items(c, th):
        def f0():
            a(f"s_add_u32 m0, s57, {X_OFF + (c % NX)*16384 + th*2048}")
            if th: a(f"s_add_u32 s23, s20, {8*73728}")
            else: a("s_mov_b32 s23, s20")
            a.vmop("buffer_load_dwordx4 v3, s[24:27], s23 offen lds", ("x", c))
        def f1():
            a(f"s_add_u32 m0, s57, {X_OFF + (c % NX)*16384 + th*2048}\ns_nop 0")
            a.vmop("buffer_load_dwordx4 v4, s[24:27], s23 offen offset:1024 lds", ("x", c))
            if th: a("s_add_u32 s20, s20, 128\ns_cmp_eq_u32 s20, s21\ns_cselect_b32 s20, s53, s20")
        return [f0, f1]
    def w_items(u):
        base = W_OFF + (u % NW)*WU
        it = []
        for j in range(4):
            def f(j=j):
                a(f"s_add_u32 m0, s57, {base + j*1024 - j*128}")
                if j == 0: a("s_add_u32 s40, s36, s38")
                else: a("s_nop 0")
                a.vmop(f"buffer_load_dwordx4 v5, s[28:31], s40 offen offset:{j*128} lds", ("w", u))
            it.append(f)
        def fh():
            a(f"s_add_u32 m0, s58, {base + 16384}\ns_add_u32 s41, s36, s39\ns_mov_b32 exec_hi, 0")
            a.vmop("buffer_load_dwordx4 v6, s[28:31], s41 offen lds", ("w", u))
            a(f"s_mov_b32 exec_hi, -1\ns_add_u32 s36, s36, {32*9216}\ns_cmp_eq_u32 s36, s37\ns_cselect_b32 s36, s54, s36")
        it.append(fh)
        return it
    for f in x_items(0, 0) + x_items(0, 1): f()
    a(wsetup)
    for f in w_items(0): f()
    a(f"""s_mov_b64 s[44:45], s[14:15]
s_mov_b32 s46, {F*2}
s_mov_b32 s47, 0x20000
v_subrev_u32 v10, 256, v2
v_lshlrev_b32 v11, 1, v10
v_lshlrev_b32 v10, 2, v10
v_add_u32 v10, {BIAS}, v10""")
    for f in w_items(1): f()
    a.vmop("buffer_load_ushort v12, v11, s[44:47], s63 offen", "bias")
    a.vmop("buffer_load_ushort v13, v11, s[44:47], s63 offen offset:512", "bias")
    XV = 64; XP = 96
    def recur():
        a(f"""s_lshl_b32 s59, s71, 6
v_lshl_add_u32 v18, v18, 5, s59    ; d0
v_cvt_f32_u32 v16, v16
v_cvt_f32_u32 v17, v17
v_cvt_f32_u32 v18, v18
v_mul_f32 v16, {fbits(1/576)}, v16
v_mul_f32 v17, {fbits(0.25)}, v17
v_fma_f32 v17, v18, v16, v17
v_fract_f32 v17, v17
v_add_f32 v18, v17, v16
v_cos_f32 v{XV}, v17
v_cos_f32 v{XV+1}, v18
v_cos_f32 v16, v16
v_and_b32 v{XV}, v20, v{XV}
v_and_b32 v{XV+1}, v20, v{XV+1}
v_add_f32 v16, v16, v16""")
    def recur2():
        for k in range(2, 32):
            a(f"v_fma_f32 v{XV+k}, v16, v{XV+k-1}, -v{XV+k-2}")
            if k % 2 == 0: a(f"v_cvt_pk_bf16_f32 v{XP+k//2-1}, v{XV+k-2}, v{XV+k-1}")
            if k % 8 == 0: a(f"ds_write_b128 v19, {r4(XP + k//2 - 4)}\nv_add_u32 v19, s72, v19")
        a(f"v_cvt_pk_bf16_f32 v{XP+15}, v{XV+30}, v{XV+31}\nds_write_b128 v19, {r4(XP+12)}")
    a(f"""v_and_b32 v8, 31, v0
v_lshrrev_b32 v9, 5, v0
v_bfe_u32 v14, v8, 1, 3
v_xor_b32 v14, v14, v9
v_lshlrev_b32 v14, 4, v14
v_lshl_add_u32 v14, v8, 7, v14
s_add_u32 s59, s57, {X_OFF}
v_add_u32 v24, s59, v14
v_xor_b32 v25, 32, v24
v_xor_b32 v26, 64, v24
v_xor_b32 v27, 0x60, v24
v_mov_b32 v28, 0
v_mov_b32 v29, 0""")
    a("s_branch K1_hloop")
    cut0 = len(a.lines)
    a("K1_hloop:")
    side = {}
    def sq_ops(c):
        o = [lambda: [a.lgop(f"ds_read_b128 {r4(32+4*i)}, v{24+i} offset:{(c % NX)*16384}", ("sq", i)) for i in range(4)]]
        for i in range(4):
            def f(i=i):
                a.wait(lg=("sq", i))
                for hh in range(2):
                    for k in range(2): a(f"v_lshlrev_b32 v{48+2*k}, 16, v{32+4*i+2*hh+k}\nv_and_b32 v{49+2*k}, 0xffff0000, v{32+4*i+2*hh+k}")
                    for k in range(4): a(f"v_fmac_f32 v{28+k%2}, v{48+k}, v{48+k}")
            o.append(f)
        return o
    def bias_w():
        a.wait(vm="bias")
        a(f"v_lshlrev_b32 v12, 16, v12\nv_lshlrev_b32 v13, 16, v13\nv_mul_f32 v12, {fbits(LOG2E)}, v12\nv_mul_f32 v13, {fbits(LOG2E)}, v13")
        a.lgop("ds_write_b32 v10, v12", "pub")
        a(f"v_mov_b32 v8, {HC}\nv_mov_b32 v9, 0")
        a.lgop("ds_write_b32 v8, v9", "pub")
        a("s_cmp_lg_u32 s51, 0\ns_cbranch_scc1 K1_nb\nds_write_b32 v10, v13 offset:1024\nK1_nb:")
    side.setdefault(1, []).append(bias_w)
    def zero_sync():
        a(f"""s_lshl_b32 s59, s2, 2
s_or_b32 s59, s59, s51
s_cmp_lg_u32 s59, 0
s_cbranch_scc1 K1_nz
v_lshlrev_b32 v8, 7, v0
v_mov_b32 v9, 0
s_mov_b32 s59, {WS_SYNC}
buffer_store_dword v9, v8, s[32:35], s59 offen sc1""")
        if MONO:
            a("""s_add_u32 s59, s59, 8192
buffer_store_dword v9, v8, s[32:35], s59 offen sc1
s_add_u32 s59, s59, 8192
buffer_store_dword v9, v8, s[32:35], s59 offen sc1
v_mov_b32 v8, 1
s_waitcnt vmcnt(0)
s_mov_b64 exec, 1
buffer_store_dword v8, v9, s[44:47], 0 offen sc1
s_mov_b64 exec, -1""")
        a("K1_nz:")
    def dbg_srd():
        a("s_load_dwordx2 s[44:45], s[0:1], 64\ns_mov_b32 s46, 256\ns_waitcnt lgkmcnt(0)")
        a.lg = []
    if MONO: side.setdefault(2, []).append(dbg_srd)
    if opt.get("merge", 1): side.setdefault(2, []).append(zero_sync)
    if MONO:
        side.setdefault(12, []).append(lambda: (a("v_mov_b32 v53, 0"), a.vmop("buffer_load_dword v54, v53, s[44:47], 0 offen sc1", "init")))
        def chk():
            a.wait(vm="init")
            a("v_cmp_ne_u32 vcc, 1, v54\ns_nop 4\ns_cbranch_vccz K1_in_d")
            poll(a, "K1_in", 53, "0", "1", srd=44, tmp=54)
        side.setdefault(15, []).insert(0, chk)
    fol = opt.get("fol", 0)
    nlab = [0]
    def guarded(f):
        def g():
            if not fol: return f(True)
            nlab[0] += 1
            a(f"s_cmp_lg_u32 s71, 0\ns_cbranch_scc1 K1_sj{nlab[0]}")
            f(False)
            a(f"K1_sj{nlab[0]}:")
        return g
    def vm(track, txt, tag):
        if track: a.vmop(txt, tag)
        else: a(txt)
    spf = opt.get("s_pf2", [15])
    full = opt.get('pffull', 0)
    nl = -(-(82 if (fol or full) else 41) // len(spf))
    def pf2_setup(tr):
        a(f"""s_mov_b32 s18, {F*D*2}
s_mov_b32 s19, 0x20000
s_bfe_u32 s65, s2, 0x20001
s_mul_i32 s65, s65, {1152*1152}
s_and_b32 s66, s60, {30 if fol else 31}
s_mul_i32 s66, s66, {324*128}
s_add_u32 s65, s65, s66
s_lshl_b32 s66, s51, 1
s_and_b32 s67, s2, {0 if full else 1}
s_add_u32 s66, s66, s67
s_mul_i32 s66, s66, {(82 if fol else 41)*128}
s_add_u32 s95, s65, s66
v_min_u32 v52, {nl-1}, v0
v_lshlrev_b32 v52, 7, v52""")
        if "2" in opt.get("kernels", "123"):
            a(f"""s_getpc_b64 s[80:81]
s_add_u32 s80, s80, fft_tab@rel32@lo+4
s_addc_u32 s81, s81, fft_tab@rel32@hi+12
s_mov_b32 s82, 45056
s_mov_b32 s83, 0x20000
s_lshr_b32 s65, s60, 1
s_lshl_b32 s65, s65, 2
s_add_u32 s65, s65, s51
s_lshl_b32 s65, s65, 10
v_lshrrev_b32 v8, 3, v0
v_lshlrev_b32 v8, 7, v8
s_mov_b32 m0, {SCR}
s_nop 0""")
            vm(tr, "buffer_load_dword v8, s[80:83], s65 offen lds", "pf")
    def pf2(tr):
        a(f"s_mov_b32 m0, {SCR}\ns_nop 0")
        vm(tr, "buffer_load_dword v52, s[16:19], s95 offen lds", "pf")
        a(f"s_add_u32 s95, s95, {nl*128}")
    def pf_first():
        a(f"""s_bfe_u32 s65, s2, 0x20001
s_mul_i32 s65, s65, {1152*1152}
s_lshl_b32 s66, s60, 2
s_add_u32 s66, s66, s51
s_mul_i32 s66, s66, {14*128}
s_add_u32 s65, s65, s66
v_min_u32 v8, 13, v0
v_lshlrev_b32 v8, 7, v8
s_mov_b32 m0, {SCR}
s_nop 0""")
        a.vmop("buffer_load_dword v8, s[16:19], s65 offen lds", "pf")
    if opt.get("pf2", 1):
        s0 = opt.get("s_pf0", 11) if MONO else spf[0]
        side.setdefault(s0, []).append(lambda: pf2_setup(True))
        if MONO: side.setdefault(s0, []).append(pf_first)
        for k in spf: side.setdefault(k, []).append(guarded(pf2))
    def wt_setup():
        a(f"""s_mov_b64 s[72:73], s[6:7]
s_mov_b32 s74, {T*289*2}
s_mov_b32 s75, 0x20000
s_mov_b64 s[76:77], s[8:9]
s_mov_b32 s78, {T*289*2}
s_mov_b32 s79, 0x20000
v_and_b32 v8, 7, v0
v_lshrrev_b32 v9, 3, v0
v_mul_u32_u24 v30, 289, v8
v_mad_u32_u24 v30, v9, 5, v30
v_and_b32 v30, -2, v30
v_lshlrev_b32 v30, 1, v30
s_andn2_b32 s96, s2, {8 if fol else 0}
s_mul_i32 s67, s96, {8*578}
s_mul_i32 s68, s51, 160
s_add_u32 s67, s67, s68
v_lshlrev_b32 v8, 4, v8
v_lshl_add_u32 v31, v9, 16, v8
s_lshl_b32 s69, s51, 20
s_lshl_b32 s68, s96, 7
s_add_u32 s69, s69, s68
s_add_u32 s69, s69, {WS_WT}""")
    def wt_load(y):
        def f(tr):
            for z in range(4):
                vm(tr, f"buffer_load_dwordx4 {r4(112+16*y+4*z)}, v30, s[{72+4*(z%2)}:{75+4*(z%2)}], s67 offen offset:{80*(z//2)}", "wt")
            a(f"s_add_u32 s67, s67, {64*578}")
        return f
    def wt_store(y):
        def f(tr):
            for z in range(4):
                a(f"s_add_u32 s68, s69, {(z % 2)*32768 + (z//2)*8*65536 + y*1024}")
                vm(tr, f"buffer_store_dwordx4 {r4(112+16*y+4*z)}, v31, s[32:35], s68 offen {st_wt}", "st")
        return f
    if not opt.get("nowt"):
        swt = opt.get("s_wt", [15]); sws = opt.get("s_wts", [17]*len(swt))
        assert len(swt) == (2 if fol else 1)
        side.setdefault(swt[0], []).append(wt_setup)
        for y in range(len(swt)):
            side.setdefault(swt[y], []).append(guarded(wt_load(y)))
            if sws[y] == 17: side.setdefault(17, []).append(lambda: (a("s_waitcnt vmcnt(2)"), a.vm.clear()))
            else: assert sws[y] >= swt[y] + 3 and swt[y] + 1 + 2 < NS
            side.setdefault(sws[y], []).append(guarded(wt_store(y)))
    xq = [(c, th) for c in range(1, 9) for th in range(2)]
    nw = 2
    sq = []
    for k in range(NS):
        a.wait(vm=[("w", k), ("x", k//2)], lg="all")
        a("s_barrier")
        items = []
        nx = 2 if k == 0 else 1
        while nx and xq and (xq[0][0] < NX or 2*(xq[0][0] - NX) + 2 <= k):
            items += x_items(*xq.pop(0)); nx -= 1
        while nw < NS and nw - NW <= k - 2 and nw <= k + 2:
            items += w_items(nw); nw += 1
        if k % 2 == 0: sq = sq_ops(k//2)
        fill = [sq.pop(0) for _ in range(3 if k % 2 == 0 else 2)]
        if k == NS - 2: fill += [sq.pop(0), sq.pop(0)]; sq = [lambda: None]*2
        if fill and k % 2 == 0: fill.pop(0)()
        n = len(items)
        for i, f in enumerate(items):
            f()
            if fill and (i + 1) % 3 == 0: fill.pop(0)()
        for f in fill: f()
        if k < NS - 1:
            for f in side.get(k, []): f()
    assert not xq and nw == NS
    a(f"""v_add_f32 v28, v28, v29
v_and_b32 v8, 31, v0
v_lshrrev_b32 v9, 5, v0
v_lshlrev_b32 v8, 2, v8
v_lshl_add_u32 v8, v9, 9, v8
s_lshl_b32 s59, s51, 7
s_add_u32 s59, s59, {STAT + 512}
v_add_u32 v8, s59, v8
ds_write_b32 v8, v28
s_waitcnt lgkmcnt(0)
s_barrier""")
    a(f"""s_lshl_b32 s59, s51, 11
s_add_u32 s59, s59, {UI}
v_add_u32 v10, s59, v7
v_lshrrev_b32 v8, 4, v0
v_and_b32 v9, 15, v0
v_lshlrev_b32 v9, 4, v9
v_lshl_add_u32 v11, v8, 12, v9
s_lshl_b32 s65, s50, 17
s_lshl_b32 s66, s49, 8
s_lshl_b32 s67, s51, 15
s_add_u32 s65, s65, s67
s_add_u32 s65, s65, s66
s_add_u32 s65, s65, {WS_U}
s_add_u32 s97, s65, 16384
s_lshl_b32 s68, s50, 14
s_add_u32 s68, s68, s66
s_add_u32 s68, s68, {WS_U + 512*4096}
s_barrier
s_barrier
ds_read_b128 v[32:35], v10
ds_read_b128 v[36:39], v10 offset:1024
ds_read_b128 v[40:43], v10 offset:8192
s_waitcnt lgkmcnt(0)
buffer_store_dwordx4 v[32:35], v11, s[32:35], s65 offen {st_u}
buffer_store_dwordx4 v[36:39], v11, s[32:35], s97 offen {st_u}
s_cmp_lg_u32 s51, 0
s_cbranch_scc1 K1_nex
buffer_store_dwordx4 v[40:43], v11, s[32:35], s68 offen {st_u}
K1_nex:""")
    for f in side.get(NS - 1, []): f()
    if MONO:
        a(f"""s_and_b32 s59, s2, 7
s_lshl_b32 s59, s59, 7
s_add_u32 s59, s59, {WS_SYNC + 128*128}
v_mov_b32 v8, {HC}
v_mov_b32 v9, 1
s_waitcnt vmcnt(0)
s_mov_b64 exec, 1
ds_add_rtn_u32 v10, v8, v9
v_mov_b32 v8, 0
s_waitcnt lgkmcnt(0)
v_readfirstlane_b32 s61, v10
s_cmp_lg_u32 s61, 3
s_cbranch_scc1 K1_ns
buffer_atomic_add v9, v8, s[32:35], s59 offen sc1
K1_ns:
s_mov_b64 exec, -1""")
    if opt.get("pf2c", 1) and "2" in opt.get("kernels", "123"):
        a("""s_getpc_b64 s[80:81]
K1_pc2:
s_add_u32 s80, s80, K2_start-K1_pc2
s_addc_u32 s81, s81, 0
s_mov_b32 s82, code_end-K2_start
s_mov_b32 s83, 0x20000
v_lshrrev_b32 v8, 4, v0
v_lshlrev_b32 v8, 7, v8
s_lshr_b32 s59, s2, 3
s_lshl_b32 s59, s59, 2
s_add_u32 s59, s59, s51
s_lshl_b32 s59, s59, 9
buffer_load_dword v255, v8, s[80:83], s59 offen""")
    a("s_branch K2_start" if MONO else "s_endpgm")
    hl = a.lines[cut0:]; del a.lines[cut0:]
    ACC = 16
    CS = 176
    XF = 204; WF = 236; ONE = 252
    a(f"""K1_comp:
s_movk_i32 s72, 256
s_and_b32 s51, s48, 1              ; a
s_lshr_b32 s52, s48, 1             ; b
v_and_b32 v8, 31, v0
s_lshl_b32 s61, s50, 5
s_sub_u32 s60, s61, 287
s_cmp_lt_u32 s50, 9
s_cselect_b32 s75, 1.0, -1.0       ; sgn
s_cselect_b32 s59, s61, s60        ; jb
s_cselect_b32 s60, 0, 2
v_and_b32 v12, 30, v8
v_add_u32 v12, s59, v12            ; j
v_and_or_b32 v13, v8, 1, s60
v_add_u32 v18, s61, v8
v_cmp_eq_u32 vcc, 1, v18
v_mov_b32 v19, 288
v_lshrrev_b32 v14, 5, v2           ; kk
v_mov_b32 v20, -1
v_cndmask_b32 v12, v12, v19, vcc
v_cndmask_b32_e64 v13, v13, 0, vcc
v_lshrrev_b32 v19, 4, v8
v_mul_u32_u24 v19, 9216, v19
v_and_b32 v9, 15, v0               ; n16
v_lshl_add_u32 v19, v9, 4, v19
v_add_u32 v15, {F_OFF}, v19
s_mov_b32 s70, 0
K1_fg0:
v_mov_b32 v16, v12
v_mov_b32 v17, v13
v_mov_b32 v18, v14
v_lshl_add_u32 v19, v14, 10, v15
K1_fg:""")
    recur(); recur2()
    a(f"""s_cmp_lg_u32 s70, 0
s_cbranch_scc1 K1_fgd
s_mov_b32 s70, 1
v_mov_b32 v14, 8
s_cmp_eq_u32 s48, 0
s_cbranch_scc1 K1_fg0
s_cmp_eq_u32 s48, 3
s_cbranch_scc1 K1_fgd
v_subrev_u32 v18, 64, v2
v_mul_u32_u24 v21, 3641, v18
v_lshrrev_b32 v21, 16, v21         ; row
v_mul_u32_u24 v19, 18, v21
v_sub_u32 v18, v18, v19            ; seg
v_mul_u32_u24 v19, {ESTR}, v21
v_lshl_add_u32 v19, v18, 6, v19
v_add_u32 v19, {E_OFF}, v19
s_lshl_b32 s59, s50, 2
s_add_u32 s59, s59, 225
v_and_b32 v16, 2, v21
v_add_u32 v16, s59, v16
v_cmp_gt_u32 vcc, 4, v21
v_and_b32 v17, 1, v21
s_movk_i32 s72, 16
v_cndmask_b32 v16, 0, v16, vcc
v_cmp_ne_u32 vcc, 5, v21
s_nop 1
v_cndmask_b32_e64 v20, 0, -1, vcc
s_branch K1_fg
K1_fgd:
v_lshrrev_b32 v10, 4, v0           ; g
v_bfe_u32 v11, v0, 2, 2            ; r
v_and_b32 v12, 3, v0
v_lshlrev_b32 v13, 12, v10
v_lshl_add_u32 v13, v11, 7, v13
v_lshl_add_u32 v13, v12, 3, v13
s_lshl_b32 s59, s52, 11
v_add_u32 v13, s59, v13
v_lshrrev_b32 v14, 1, v11
v_and_b32 v15, 1, v10
v_lshl_add_u32 v14, v15, 1, v14    ; swizzle
s_lshl_b32 s59, s51, 1
v_xor_b32 v14, s59, v14
v_lshl_add_u32 v1, v14, 5, v13
v_xor_b32 v2, 32, v1
v_xor_b32 v3, 64, v1
v_xor_b32 v4, 0x60, v1
v_lshrrev_b32 v14, 1, v9
v_xor_b32 v14, v14, v10
v_lshlrev_b32 v14, 4, v14
v_lshl_add_u32 v14, v9, 7, v14
s_lshl_b32 s59, s51, 13
s_add_u32 s59, s59, {X_OFF}
v_add_u32 v8, s59, v14
v_xor_b32 v14, 64, v8
v_min_u32 v13, 5, v9
v_mul_u32_u24 v13, {ESTR}, v13
v_lshl_add_u32 v13, v10, 4, v13
v_add_u32 v13, {E_OFF}, v13        ; E read
v_mov_b32 v{ONE}, 0x3f803f80
v_mov_b32 v{ONE+1}, v{ONE}
v_mov_b32 v{ONE+2}, v{ONE}
v_mov_b32 v{ONE+3}, v{ONE}
s_lshl_b32 s73, s49, 2
s_lshl_b32 s59, s51, 1
s_add_u32 s73, s73, s59
s_waitcnt lgkmcnt(0)
s_cmp_lg_u32 s52, 0
s_cbranch_scc1 K1_c1""")
    def comp(b):
        a.vm = []; a.lg = []
        EA = CS + (24 if b == 0 else 16)
        etok = [0] if b == 0 else [1, 2, 3]
        if b == 0:
            a(f"""v_lshlrev_b32 v5, 9, v10
v_lshl_add_u32 v5, v11, 6, v5
v_lshl_add_u32 v5, v12, 3, v5
v_lshl_add_u32 v5, v15, 5, v5
v_add_u32 v5, 16384, v5
v_xor_b32 v6, 32, v5""")
        else:
            a(f"v_add_u32 v5, {F_OFF}, v7")
        win = [0]
        NF = 11
        def frag(s, j, d):
            base = W_OFF + (s % NW)*WU
            tag = ("f", s, j)
            def setwin():
                want = 0
                if want != win[0]:
                    for k in ([1, 2, 3, 4] + ([5, 6] if b == 0 else [])):
                        a(f"v_add_u32 v{k}, {(want - win[0]) & 0xffffffff:#x}, v{k}")
                    win[0] = want
            def tr(reg, off, t):
                def f():
                    setwin()
                    a.lgop(f"ds_read_b64_tr_b16 v[{d+2*t}:{d+2*t+1}], v{reg} offset:{base - win[0] + off}", tag)
                return f
            if j < 8: return [tr(1 + j % 4, (j//4)*1024 + t*512, t) for t in range(2)]
            if j < 10:
                if b == 0: return [tr(5 + j - 8, t*256, t) for t in range(2)]
                return [lambda: a.lgop(f"ds_read_b128 {r4(d)}, v5 offset:{(j-8)*9216 + (s % 9)*1024}", tag)]
            return [lambda: a.lgop(f"ds_read_b128 {r4(d)}, v13 offset:{s*64}", tag)]
        def xrd(s, i):
            d = XF + 16*(s % 2) + 4*i
            return lambda: a.lgop(f"ds_read_b128 {r4(d)}, v{8 if s % 2 == 0 else 14} offset:{((s//2) % NX)*16384 + i*2048}", ("x", s))
        LA = 3
        order = [10, 0, 1, 4, 5, 2, 3, 6, 7, 8, 9]
        NBAR = opt.get("nbar", 6)
        slot = lambda s, n: WF + 4*((s*NF + n) % 4)
        if opt.get("cprio"): a(f"s_setprio {opt['cprio']}")
        mark(a, opt, 0)
        a("s_barrier")
        mark(a, opt, 1)
        probe(a, opt, 'b0')
        for i in range(4): xrd(0, i)()
        for n in range(LA):
            for f in frag(0, order[n], slot(0, n)): f()
        T0 = XF
        RR = XF + 8
        t = T0
        L = lambda txt: [(lambda l=l: a(l.replace("|", "\n"))) for l in txt.split("\n")]
        pub = L(f"""s_lshl_b32 s59, s52, 9|s_lshl_b32 s60, s51, 7|s_add_u32 s59, s59, s60|s_add_u32 s59, s59, {CSB}
v_lshl_add_u32 v{t+4}, v10, 4, s59
s_lshl_b32 s59, s51, 8|s_add_u32 s59, s59, {STAT}
v_lshl_add_u32 v{t+5}, v9, 2, s59
v_lshl_add_u32 v{t+6}, v0, 2, s59
s_lshl_b32 s59, s48, 10|s_add_u32 s59, s59, {F_OFF}
v_lshl_add_u32 v8, v0, 3, s59
v_lshl_add_u32 v{t+7}, v9, 3, s59
v_lshl_add_u32 v14, v0, 2, s59
v_lshl_add_u32 v15, v10, 4, s59""")
        def pub_sum():
            a("s_mov_b32 exec_lo, 0xffff0000\ns_mov_b32 exec_hi, 0")
            for k, i in enumerate(etok): a.lgop(f"ds_write_b32 v{t+5}, v{EA+4*k} offset:{64*i}", "pub")
            a("s_mov_b64 exec, -1")
        def pub_cs(k):
            a("s_mov_b32 exec_lo, 0x10001\ns_mov_b32 exec_hi, 0x10001")
            a.lgop(f"ds_write_b128 v{t+4}, {r4(CS+4*k)} offset:{(k//2)*256 + (k%2)*64}", "pub")
            a("s_mov_b64 exec, -1")
        post = [lambda: a.lgop(f"ds_read_b32 v{t}, v{t+6}", "st"),
                lambda: a.lgop(f"ds_read2st64_b32 v[{t+2}:{t+3}], v{t+6} offset0:2 offset1:4", "st")] + L(f"""s_mul_i32 s58, s73, {144*2048}|s_mul_i32 s59, s50, 9
s_xor_b32 s61, s64, 1|s_lshl_b32 s61, s61, 3
s_add_u32 s61, s61, s59|s_lshl_b32 s61, s61, 11
s_add_u32 s40, s58, s61|s_add_u32 s59, s59, s64
s_lshl_b32 s61, s52, 2|s_add_u32 s59, s59, s61
s_lshl_b32 s59, s59, 11|s_add_u32 s58, s58, s59
s_lshl_b32 s59, s51, 11|s_add_u32 s36, s58, s59
s_xor_b32 s59, s59, 2048|s_add_u32 s37, s58, s59""") + [lambda: a.wait(lg="st")] + L(f"""v_add_f32 v{t+2}, v{t+2}, v{t+3}|v_mul_f32 v{t}, {fbits(-1/576)}, v{t}
v_mul_f32 v{t+2}, {fbits(1/576)}, v{t+2}|v_fma_f32 v{t+2}, -v{t}, v{t}, v{t+2}
v_max_f32 v{t+2}, 0, v{t+2}|v_cvt_pk_bf16_f32 v{t}, v{t}, v{t+2}
v_and_b32 v{t+2}, 0xffff0000, v{t}|v_lshlrev_b32 v{t}, 16, v{t}
v_add_f32 v{t+2}, {fbits(1e-5)}, v{t+2}|v_cvt_pk_bf16_f32 v{t+2}, v{t+2}, v{t+2}
v_lshlrev_b32 v{t+2}, 16, v{t+2}|v_sqrt_f32 v{t+2}, v{t+2}
v_cvt_pk_bf16_f32 v{t+2}, v{t+2}, v{t+2}|v_lshlrev_b32 v{t+2}, 16, v{t+2}
v_rcp_f32 v{t+1}, v{t+2}
v_mul_f32 v{t+2}, {fbits(LOG2E)}, v{t+1}|v_mul_f32 v{t+3}, v{t}, v{t+2}""") + \
               [lambda: (a.lgop(f"ds_write_b64 v8, v[{t+2}:{t+3}]", "rw"), a.lgop(f"ds_write2st64_b32 v14, v{t+1}, v{t} offset0:2 offset1:3", "rw"))] + \
               [lambda i=i: a.lgop(f"ds_read_b64 {p2(RR+2*i)}, v{t+7} offset:{128*i}", "rr") for i in range(4)]
        for s in range(NS):
            if s == 9: mark(a, opt, 2)
            last = s == NS - 1
            xf = XF + 16*(s % 2)
            xo = list(pub) if last else []
            for n, j in enumerate(order):
                d = slot(s, n)
                nn = n + LA
                rds = frag(s, order[nn], slot(s, nn)) if nn < NF else (frag(s + 1, order[nn - NF], slot(s + 1, nn - NF)) if not last else [])
                bar = n == NBAR
                if last:
                    if n == 3: xo += [pub_sum, lambda: pub_cs(0), lambda: pub_cs(1)]
                    if n == 5: xo += [lambda: pub_cs(2), lambda: pub_cs(3)]
                if bar:
                    for f in xo: f()
                    xo = [xrd(s + 1, i) for i in range(4)] if not last else list(post)
                a.wait(lg=[("f", s, j), ("x", s)])
                if b == 1 and s == 9 and j in (8, 9):
                    for k in range(16): a(f"v_mul_f32 v{ACC + j*16 + k}, s75, v{ACC + j*16 + k}")
                ms = []
                c = lambda r: (r4(r) if s else "0")
                if j < 10:
                    if j < 8 and j % 4 < 2:
                        r = CS + 4*((j//4)*2 + j % 4); ms.append(f"{M16} {r4(r)}, {r4(d)}, {r4(ONE)}, {c(r)}")
                    if b == 0 and j >= 8:
                        r = CS + 16 + 4*(j - 8); ms.append(f"{M16} {r4(r)}, {r4(d)}, {r4(ONE)}, {c(r)}")
                    for i in range(4):
                        r = ACC + (j*4 + i)*4
                        if b == 1 and j >= 8: ms.append(f"{M16} {r4(r)}, {r4(xf+4*i)}, {r4(d)}, {c(r)}")
                        else: ms.append(f"{M16} {r4(r)}, {r4(d)}, {r4(xf+4*i)}, {c(r)}")
                else:
                    for k, i in enumerate(etok):
                        r = EA + 4*k; ms.append(f"{M16} {r4(r)}, {r4(d)}, {r4(xf+4*i)}, {c(r)}")
                for q, m in enumerate(ms):
                    a(m)
                    if bar and q == 0:
                        if last: a.wait(lg="pub")
                        a("s_barrier")
                    elif rds: rds.pop(0)()
                    elif xo:
                        xo.pop(0)()
                    if last and n > NBAR and xo and not rds and q % 2: xo.pop(0)()
                for f in rds: f()
            for f in xo: f()
        mark(a, opt, 3)
        probe(a, opt, 'l1')
        a(f"""s_lshl_b32 s59, s52, 9
s_add_u32 s59, s59, {CSB}
v_lshl_add_u32 v4, v10, 4, s59
v_add_u32 v1, s60, v4
s_xor_b32 s60, s60, 128
v_add_u32 v2, s60, v4
s_lshl_b32 s61, s64, 7
v_add_u32 v5, s61, v1
v_add_u32 v6, s61, v2
s_xor_b32 s61, s64, 1
s_lshl_b32 s61, s61, 10
s_add_u32 s61, s61, {BIAS}
v_lshl_add_u32 v11, v10, 4, s61
s_add_u32 s38, s36, 4096
s_add_u32 s39, s37, 4096""")
        CB = XF + 16
        npair = 5 if b == 0 else 4
        def cbread(p, tl):
            s = CB + 8*((2*p + tl) % 2)
            if p < 4:
                a.lgop(f"ds_read_b128 {r4(s)}, v{1 + p % 2} offset:{(p//2)*256 + tl*64}", ("cb", p, tl))
                a.lgop(f"ds_read_b128 {r4(s+4)}, v{5 + p % 2} offset:{BIAS - CSB + (p//2)*256 + tl*64}", ("cb", p, tl))
            else:
                a.lgop(f"ds_read_b128 {r4(s+4)}, v11 offset:{tl*64}", ("cb", p, tl))
        K1c, K2c = 244, 246
        a(f"v_mov_b32 v{K1c}, -0.5\nv_mov_b32 v{K1c+1}, -0.5\nv_mov_b32 v{K2c}, -1.0\nv_mov_b32 v{K2c+1}, -1.0")
        cbread(0, 0); cbread(0, 1)
        a.wait(lg="rr")
        E = WF
        def tstage(p, tl):
            a.wait(lg=("cb", p, tl))
            a(".p2align 3")
            s = CB + 8*((2*p + tl) % 2)
            cs = s if p < 4 else CS + 16 + 4*tl
            for i in range(4):
                r = ACC + ((2*p + tl)*4 + i)*4
                for h in (0, 2): a(f"v_pk_fma_f32 {p2(E+h+4*(i%2))}, {p2(cs+h)}, {p2(RR+2*i)}, {p2(s+4+h)} op_sel:[0,1,0] op_sel_hi:[1,1,1]")
                for h in (0, 2): a(f"v_pk_fma_f32 {p2(r+h)}, {p2(r+h)}, {p2(RR+2*i)}, {p2(E+h+4*(i%2))} op_sel_hi:[1,0,1]")
            if p + 1 < npair: cbread(p + 1, tl)
        P = ONE - 4
        def mish8(p, i):
            rs = [ACC + ((2*p + tl)*4 + i)*4 for tl in range(2)]
            reg = lambda k: rs[k//4] + k % 4
            a(".p2align 3")
            for k in range(8): a(f"v_exp_f32 v{E+k}, v{reg(k)}")
            for k in range(0, 8, 2): a(f"v_pk_fma_f32 {p2(P+k)}, {p2(E+k)}, {p2(K1c)}, {p2(K2c)}")
            for k in range(0, 8, 2): a(f"v_pk_fma_f32 {p2(E+k)}, {p2(E+k)}, {p2(P+k)}, {p2(K2c)}")
            for k in range(8): a(f"v_rcp_f32 v{E+k}, v{E+k}")
            for k in range(0, 8, 2): a(f"v_pk_fma_f32 {p2(reg(k))}, {p2(reg(k))}, {p2(E+k)}, {p2(reg(k))}")
            for k in range(4): a(f"v_cvt_pk_bf16_f32 v{rs[0]+k}, v{reg(2*k)}, v{reg(2*k+1)}")
            if i == 2: a(f"s_add_u32 s{36+p}, s{36+p}, {144*2048}")
            a.vmop(f"buffer_store_dwordx4 {r4(rs[0])}, v7, s[32:35], s{36+p} offen offset:{(i%2)*1024} {st_act}", "st")
        a(f"""v_lshrrev_b32 v{E}, 2, v9
v_lshlrev_b32 v{E}, 4, v{E}
v_and_b32 v{E+1}, 3, v9
v_lshl_add_u32 v{E}, v{E+1}, 1, v{E}
s_lshl_b32 s76, s51, 7
s_add_u32 s76, s76, {UI}
v_add_u32 v{E}, s76, v{E}""")
        if b == 1:
            R2 = CS
            def r2rd(i):
                a.lgop(f"ds_read_b128 {r4(R2+8*(i%2))}, v15 offset:{512 + 64*i}", ("r2", i))
                a.lgop(f"ds_read_b128 {r4(R2+8*(i%2)+4)}, v15 offset:{768 + 64*i}", ("r2", i))
            r2rd(0); r2rd(1)
        for k, i in enumerate(etok):
            a(f"v_mul_f32 v{E+2}, {fbits(LN2)}, v{RR+2*i}")
            for j in range(4): a(f"v_mul_f32 v{EA+4*k+j}, v{EA+4*k+j}, v{E+2}")
            a(f"v_cvt_pk_bf16_f32 v{EA+4*k}, v{EA+4*k}, v{EA+4*k+1}\nv_cvt_pk_bf16_f32 v{EA+4*k+1}, v{EA+4*k+2}, v{EA+4*k+3}")
        a("s_barrier")
        a("s_mov_b64 exec, 0xffff")
        for j in range(4):
            for k, i in enumerate(etok):
                op = "ds_write_b16" if j % 2 == 0 else "ds_write_b16_d16_hi"
                a.lgop(f"{op} v{E}, v{EA+4*k+j//2} offset:{(32 + j)*256 + (i//2)*64 + (i%2)*8}", "ui")
        a("s_mov_b64 exec, -1")
        if b == 1:
            a(f"""s_mov_b32 s78, 0
s_cmp_eq_u32 s50, 0
s_cselect_b32 s78, {fbits(576.0)}, s78
s_cmp_eq_u32 s50, 2
s_cselect_b32 s78, {fbits(-0.25)}, s78
s_cmp_eq_u32 s50, 4
s_cselect_b32 s78, {fbits(-0.25)}, s78
s_cmp_eq_u32 s50, 8
s_cselect_b32 s78, {fbits(-0.25)}, s78
v_cmp_eq_u32 vcc, 0, v9
v_mov_b32 v{E+1}, s78
v_lshlrev_b32 v{E+2}, 4, v10
v_lshl_add_u32 v{E+2}, v9, 8, v{E+2}
v_cndmask_b32 v{E+1}, 0, v{E+1}, vcc
v_add_u32 v{E+2}, s76, v{E+2}""")
            for i in range(4):
                a.wait(lg=("r2", i))
                q = R2 + 8*(i % 2)
                for ct in range(2):
                    r = ACC + ((8 + ct)*4 + i)*4
                    if ct == 0:
                        for j in range(4): a(f"v_fmac_f32 v{r+j}, v{q+4+j}, v{E+1}")
                    for h in (0, 2): a(f"v_pk_mul_f32 {p2(r+h)}, {p2(r+h)}, {p2(q+h)}")
                    d = ACC + ((8 + ct)*4 + (i & 2))*4 + 2*(i % 2)
                    for h in range(2): a(f"v_cvt_pk_bf16_f32 v{d+h}, v{r+2*h}, v{r+2*h+1}")
                    if i % 2 == 1:
                        a.lgop(f"ds_write_b128 v{E+2}, {r4(d-2)} offset:{ct*4096 + (i//2)*64}", "ui")
                if i < 2: r2rd(i + 2)
            a.wait(lg="ui"); a("s_barrier")
        for p in range(npair):
            tstage(p, 0); tstage(p, 1)
            for i in range(4):
                mish8(p, i)
                if b == 0 and p == 0 and i == opt.get("ubar", 1):
                    a.wait(lg="ui"); a("s_barrier")
        mark(a, opt, 4)
        mark(a, opt, 5)
        if MONO: signal(64)
        probe(a, opt, 'e1')
        if opt.get("stamp"):
            a.wait(vm="all")
            stamp_out(a, 0, "s48", 32, "K1_end")
        a("s_branch K2_start" if MONO else "s_endpgm")
    comp(0)
    a("K1_c1:")
    comp(1)
    a.lines += hl
    a("K1_end:\ns_endpgm")
    a.end_kernel(KN, 256, 102)
    a.launch(KN, 256, 512, 163840)
```

```python
from fw import *
from common import *
import numpy as np
M32 = "v_mfma_f32_32x32x16_bf16"; M16 = "v_mfma_f32_16x16x32_bf16"
def r4(x): return f"v[{x}:{x+3}]"
def r16(x): return f"v[{x}:{x+15}]"
UNIT = 20480; NRING = 6; NU = 36
T_C32, T_S32, T_C64, T_S64, T_TW1, T_TW2, T_END = 0, 2048, 4096, 8192, 12288, 28672, 45056
VIMG = 53248

def f2bf(x):
    u = np.ascontiguousarray(x, dtype=np.float32).view(np.uint32)
    return ((u + 0x7FFF + ((u >> 16) & 1)) >> 16).astype(np.uint16)
def fft_tables():
    lane = np.arange(64); n = lane & 31; h = lane >> 5
    i8 = np.arange(8); perm = (i8 & 3) + 8*(i8 >> 2)
    out = []
    def frag(N, lanebase, ks, fn):
        b = 16*ks + 4*h[:, None] + perm[None, :]
        return f2bf(fn(2*np.pi*(((lanebase + n)[:, None]*b) % N)/N)).tobytes()
    for fn in (np.cos, np.sin):
        for ks in range(2): out.append(frag(32, 0, ks, fn))
    for fn in (np.cos, np.sin):
        for e in range(2):
            for p1 in range(2):
                j = 2*i8 + e
                b = 32*p1 + (j & 3)[None, :] + 8*(j >> 2)[None, :] + 4*h[:, None]
                out.append(f2bf(fn(2*np.pi*((n[:, None]*b) % 64)/64)).tobytes())
    j4 = np.arange(4)
    for tw in range(2):
        for p in range(2):
            for jg in range(4):
                r = 8*jg + 4*h[:, None] + j4[None, :]
                prod = (32*p + r)*n[:, None] if tw == 0 else (32*p + n[:, None])*r
                for fn in (np.cos, np.sin):
                    out.append(fn(2*np.pi*prod/2048).astype(np.float32).tobytes())
    b = b"".join(out); assert len(b) == T_END
    return np.frombuffer(b, np.uint32)

def gen_k2(a, opt):
    st_p = opt.get("st_p", "sc1"); st_v = opt.get("st_v", "sc1"); st_g = opt.get("st_g", "sc1")
    ld_w2 = opt.get("ld_w2", ""); ld_act = opt.get("ld_act", "")
    B1 = opt.get("k1b", 1); MG = opt.get("merge", 1)
    def p2(x): return f"v[{x}:{x+1}]"
    MONO = opt.get("mono", 1)
    sigB = """v_mov_b32 v8, 0
v_mov_b32 v9, 1
s_waitcnt vmcnt(0)
s_mov_b64 exec, 1
buffer_atomic_add v9, v8, s[32:35], s98 offen sc1
s_mov_b64 exec, -1"""
    if MONO: ld_act = opt.get("ld_act", "sc1")
    SC = "sc1" if MONO else ""
    vpos = "v_lshlrev_b32 v6, 2, v2" if not B1 else """v_and_b32 v6, 7, v2
v_bfe_u32 v8, v2, 3, 1
v_lshl_add_u32 v6, v8, 4, v6
v_bfe_u32 v8, v2, 4, 1
v_lshl_add_u32 v6, v8, 3, v6
v_lshlrev_b32 v6, 2, v6"""
    if MONO:
        a(".p2align 8\nK2_start:")
        if opt.get("stamp"): a("s_memrealtime s[90:91]")
        a("s_load_dwordx2 s[24:25], s[0:1], 48")
    else:
        a.begin_kernel("k2_kernel")
        a("K2_start:\ns_cmp_ge_u32 s2, 256\ns_cbranch_scc1 K2_end")
        if opt.get("stamp"): a("s_memrealtime s[90:91]")
        a("""s_load_dwordx2 s[24:25], s[0:1], 48
s_load_dwordx2 s[32:33], s[0:1], 72
v_lshrrev_b32 v1, 6, v0
v_and_b32 v0, 63, v0
v_readfirstlane_b32 s48, v1        ; wave""")
    a(f"""s_and_b32 s49, s2, 7               ; xcd
s_lshr_b32 s50, s2, 3              ; idx
s_mov_b32 s26, {F*D*2}
s_mov_b32 s27, 0x20000
s_mov_b32 s34, 0x10000000
s_mov_b32 s35, 0x20000
v_lshlrev_b32 v7, 4, v0            ; lane*16
s_cmp_lt_u32 s50, 8
s_cbranch_scc1 K2_fft
s_sub_u32 s50, s50, 8
s_lshr_b32 s51, s49, 1             ; split
s_and_b32 s52, s49, 1
s_lshl_b32 s52, s52, 3
s_and_b32 s59, s50, 7
s_add_u32 s52, s52, s59            ; rb
s_lshr_b32 s53, s50, 3             ; cb
s_cmp_lt_u32 s48, 4
s_cbranch_scc1 K2_comp""")
    a(f"""s_sub_u32 s54, s48, 4              ; lw
s_lshl_b32 s55, s52, 2
s_add_u32 s55, s55, s54            ; G
s_mul_i32 s55, s55, {144*2048}
s_mul_i32 s59, s51, {36*2048}
s_add_u32 s55, s55, s59
s_mul_i32 s56, s51, {1152*1152}
s_mul_i32 s59, s54, {8*1152}
s_add_u32 s56, s56, s59
s_mul_i32 s59, s53, 192
s_add_u32 s56, s56, s59
v_lshrrev_b32 v2, 3, v0            ; r
v_and_b32 v3, 7, v0
v_and_b32 v4, 6, v2
v_xor_b32 v3, v3, v4
v_mul_u32_u24 v2, 1152, v2
v_lshl_add_u32 v2, v3, 4, v2
s_and_b32 s59, s53, 1
s_lshl_b32 s60, s59, 6
v_add_u32 v244, s60, v2
s_sub_u32 s60, 640, s60
v_add_u32 v245, s60, v2
s_lshl_b32 s60, s59, 7
s_sub_u32 s61, 128, s60
s_lshl_b32 s60, s60, 1
s_add_u32 s60, s60, 384
v_lshrrev_b32 v3, 2, v3
v_mad_u32_u24 v246, v3, s60, v2
v_add_u32 v246, s61, v246
s_lshl_b32 s57, s54, 11
s_mul_i32 s58, s54, 3072
s_add_u32 s58, s58, 8192
s_and_b32 s60, s52, {opt.get("k2_rotmask", 0)}
s_mul_i32 s60, s60, {opt.get("k2_rot", 9)}
s_lshr_b32 s60, s60, 1
s_waitcnt lgkmcnt(0)""")
    def load_act(u):
        base = (u % NRING)*UNIT
        a(f"s_add_u32 m0, s57, {base}\ns_add_u32 s59, s55, {u*2048}")
        a.vmop(f"buffer_load_dwordx4 v7, s[32:35], s59 offen {ld_act} lds", ("u", u))
        a.vmop(f"buffer_load_dwordx4 v7, s[32:35], s59 offen offset:1024 {ld_act} lds", ("u", u))
    def load_w(u):
        base = (u % NRING)*UNIT
        for j in range(3):
            a(f"s_add_u32 m0, s58, {base + j*1024}")
            if j == 0: a(f"s_add_u32 s61, s56, {u*32*1152}")
            a.vmop(f"buffer_load_dwordx4 v{244+j}, s[24:27], s61 offen {ld_w2} lds", ("u", u))
    wdone = [0]
    def load_unit(u):
        load_act(u)
        if u >= wdone[0]: load_w(u)
    VL = NRING*UNIT
    FL = VL + 36864
    PA = 16; GB = 40; RC = 148; VB = 208
    g_ = []
    if MG:
        PQ = lambda t, k: RC + 16*t + 8*(k % 2)
        KK = lambda t: RC + 48 + 2*t
        R2 = RC + 54; SP = RC + 56
        g_ += f"""s_and_b32 s64, s54, 1              ; par
s_lshr_b32 s65, s54, 1             ; tile half
v_and_b32 v1, 15, v0
v_lshrrev_b32 v3, 4, v0
v_lshl_add_u32 v4, v3, 3, s64
v_cvt_f32_u32 v4, v4               ; j0
s_lshl_b32 s63, s53, 1
s_add_u32 s63, s63, s65
s_mul_i32 s63, s63, 48
v_add_u32 v10, s63, v1
v_cmp_eq_f32 s[70:71], 0, v4
v_cvt_f32_u32 v11, v10
v_lshlrev_b32 v{SP}, 31, v10
v_mul_f32 v11, {fbits(1/576)}, v11
v_or_b32 v{SP}, 0x3f003f00, v{SP}""".split("\n")
        def rot(dst, src, cs):
            g_.append(f"v_pk_mul_f32 {p2(dst)}, {p2(src)}, {p2(cs)} op_sel_hi:[1,0]")
            g_.append(f"v_pk_fma_f32 {p2(dst)}, {p2(src)}, {p2(cs)}, {p2(dst)} op_sel:[1,1,0] op_sel_hi:[0,1,1] neg_hi:[0,1,0]")
        for t in range(3):
            P, Q = PQ(t, 0), PQ(t, 1)
            if t: g_.append(f"v_add_f32 v11, {fbits(16/576)}, v11")
            g_ += f"""v_mul_f32 v12, v4, v11
v_add_f32 v13, v11, v11
v_mul_f32 v14, {fbits(32.0)}, v11
v_cos_f32 v{P}, v12
v_sin_f32_e64 v{P+1}, -v12
v_cos_f32 v{R2}, v13
v_sin_f32 v{R2+1}, v13
v_cos_f32 v{KK(t)}, v14
v_sin_f32 v{KK(t)+1}, v14""".split("\n")
            rot(P+4, P, R2); rot(Q, P, KK(t)); rot(P+2, P+4, R2); rot(Q+4, P+4, KK(t)); rot(P+6, P+2, R2); rot(Q+2, P+2, KK(t)); rot(Q+6, P+6, KK(t))
            g_.append(f"v_add_f32 v{KK(t)}, v{KK(t)}, v{KK(t)}")
        npk = opt.get("g_npk", 4)
        for kk in range(9):
            if kk >= 2:
                for t in range(3):
                    cur, oth = PQ(t, kk), PQ(t, kk + 1)
                    if kk < npk:
                        for i in range(0, 8, 2): g_.append(f"v_pk_fma_f32 {p2(cur+i)}, {p2(oth+i)}, {p2(KK(t))}, {p2(cur+i)} op_sel_hi:[1,0,1] neg_lo:[0,0,1] neg_hi:[0,0,1]")
                    else:
                        for i in range(8): g_.append(f"v_fma_f32 v{cur+i}, v{oth+i}, v{KK(t)}, -v{cur+i}")
            for t in range(3):
                cur = PQ(t, kk)
                for i in range(4): g_.append(f"v_cvt_pk_bf16_f32 v{GB+12*kk+4*t+i}, v{cur+2*i}, v{cur+2*i+1}")
                if kk == 0: g_.append(f"v_cndmask_b32_e64 v{GB+4*t}, v{GB+4*t}, v{SP}, s[70:71]")
            if kk == npk - 1: npre = len(g_)
        g_ += f"""v_min_u32 v8, 7, v0
v_cmp_eq_u32 vcc, 0, v8
v_lshlrev_b32 v8, 7, v8
v_mov_b32 v9, 36
s_mov_b32 s69, {WS_SYNC + 48*128}
v_addc_co_u32 v9, vcc, 0, v9, vcc
s_lshl_b32 s66, s52, 2
s_add_u32 s66, s66, s51            ; G of the final task
s_lshl_b32 s68, s64, 1
s_add_u32 s68, s68, s65            ; quarter of V this wave loads
s_mul_i32 s67, s68, {72*8192}
s_lshl_b32 s66, s66, 7
s_add_u32 s67, s67, s66
s_add_u32 s67, s67, {WS_V}
s_mul_i32 s68, s68, 9216
s_add_u32 s68, s68, {VL}
v_lshrrev_b32 v5, 3, v0
v_and_b32 v6, 4, v5
v_xor_b32 v6, v6, v0
v_and_b32 v6, 7, v6
v_lshlrev_b32 v6, 4, v6
v_lshl_add_u32 v6, v5, 13, v6      ; V dma voffset
v_lshlrev_b32 v10, 9, v3
v_lshl_add_u32 v10, v1, 2, v10
v_and_b32 v11, 1, v3
v_lshl_add_u32 v10, v11, 6, v10
s_mul_i32 s66, s64, 18432
s_add_u32 s66, s66, {VL}
v_add_u32 v10, s66, v10
v_xor_b32 v11, 64, v10
v_add_u32 v12, 128, v10
v_add_u32 v13, 128, v11
s_mul_i32 s66, s54, {UNIT}
v_add_u32 v14, s66, v7             ; exchange write""".split("\n")
        a(f"""s_lshl_b32 s59, s54, 2
s_add_u32 s59, s59, {FL}
v_mov_b32 v240, s59
v_xor_b32 v241, 8, v240
v_mov_b32 v243, 0
v_mov_b32 v242, 1""")
    def vissue():
        for k in range(9):
            a(f"buffer_load_dwordx4 v6, s[32:35], s67 offen sc1 lds")
            if k < 8: a("s_add_u32 m0, m0, 1024\ns_add_u32 s67, s67, 65536")
    def gen(n):
        for _ in range(n):
            if g_: a(g_.pop(0))
    a.vm = []
    first = opt.get("k2_first", 4)
    if MONO:
        wdone[0] = opt.get("wpre", 4)
        for u in range(wdone[0]):
            load_w(u)
            if opt.get("wpace", 1): a("s_waitcnt vmcnt(0)")
        a(f"""s_lshl_b32 s62, s52, 2
s_add_u32 s62, s62, s51
s_lshl_b32 s62, s62, 7
s_add_u32 s62, s62, {WS_SYNC + 64*128}
s_barrier""")
        n1 = opt.get("g_n1", 0)
        gen(n1)
        if opt.get("one", 1): a("s_cmp_lg_u32 s54, 0\ns_cbranch_scc1 K2_pa_d")
        poll(a, "K2_pa", 243, "s62", "16", sleep=opt.get("pasleep", 2))
        if opt.get("one", 1): a("s_barrier")
        a.vm = []
        first = opt.get("k2_first", NRING)
        for u in range(first): load_unit(u)
        gen(npre - n1)
    else:
      for u in range(first):
        load_unit(u)
        if MG and u >= 1: gen(-(-npre // (first - 1)))
    nu = first
    per = -(-len(g_) // opt.get("g_per", 12))
    for g in range(NU//2):
        a.wait(vm=[("u", 2*g), ("u", 2*g+1)])
        if g == 1: a("s_waitcnt lgkmcnt(0)")
        a("s_barrier")
        if g == 0 and MG: a("ds_write_b32 v240, v243")
        if MG and g == NU//2 - 3:
            assert not g_
            a.vmop("buffer_load_dword v15, v8, s[32:35], s69 offen sc1", "flag")
        if MG and g == NU//2 - 2:
            a.wait(vm="flag")
            nrem = len(a.vm)
            a("v_cmp_ne_u32 vcc, v15, v9\ns_mov_b32 m0, s68\ns_nop 3\ns_cbranch_vccnz K2_late")
            vissue()
            a("s_waitcnt vmcnt(9)\ns_barrier\ns_branch K2_vw\nK2_late:")
        lim = min(NU, 2*g + NRING, nu + opt.get("k2_ramp", 2))
        while nu < lim:
            load_unit(nu); nu += 1
            gen(-(-per // 2))
        if g == NU//2 - 3 and opt.get("pf3c", 1) and "3" in opt.get("kernels", "123") and not MG:
            a("""s_getpc_b64 s[40:41]
K2_pc:
s_add_u32 s40, s40, k3_kernel-K2_pc
s_addc_u32 s41, s41, 0
s_mov_b32 s42, code_end-k3_kernel
s_mov_b32 s43, 0x20000
v_lshrrev_b32 v8, 1, v0
v_lshlrev_b32 v8, 7, v8
s_lshl_b32 s59, s54, 12""")
            a.vmop("buffer_load_dword v9, v8, s[40:43], s59 offen", "pf")
            a(f"""s_load_dwordx2 s[36:37], s[0:1], 0
s_mov_b32 s38, {T*D*2}
s_mov_b32 s39, 0x20000
v_and_b32 v8, 7, v0
v_mul_u32_u24 v8, 73728, v8
v_lshrrev_b32 v10, 3, v0
v_min_u32 v10, 2, v10
v_lshl_add_u32 v8, v10, 7, v8
s_lshl_b32 s59, s49, 3
s_and_b32 s62, s50, 7
s_add_u32 s59, s59, s62
s_mul_i32 s59, s59, 1152
s_mul_i32 s62, s53, 384
s_add_u32 s59, s59, s62
s_mul_i32 s62, s54, {8*73728}
s_add_u32 s59, s59, s62
s_waitcnt lgkmcnt(0)""")
            a.vmop("buffer_load_dword v9, v8, s[36:39], s59 offen", "pf")
    if MG:
        mark(a, opt, 0)
        poll(a, "K2_pv", 8, "s69", "v9")
        a("s_mov_b32 m0, s68\ns_nop 0")
        vissue()
        a("K2_vw:")
        mark(a, opt, 1)
        a("s_waitcnt vmcnt(0)")
        mark(a, opt, 2)
        a("""ds_write_b32 v240, v242
s_mov_b32 s72, 0x400000
K2_hs:
ds_read_b32 v243, v241
s_waitcnt lgkmcnt(0)
v_cmp_eq_u32 vcc, 0, v243
s_sub_u32 s72, s72, 1
s_cbranch_scc1 K2_hs_d
s_nop 2
s_cbranch_vccnz K2_hs
K2_hs_d:""")
        mark(a, opt, 3)
        a.lg = []
        def vread(kk, n):
            th, z = n // 2, n % 2
            d = VB + 8*(kk % 4) + 4*th + 2*z
            a.lgop(f"ds_read2st64_b32 v[{d}:{d+1}], v{10+th+2*z} offset0:{8*kk} offset1:{8*kk+1}", ("v", kk))
        for kk in range(3):
            for n in range(4): vread(kk, n)
        for kk in range(9):
            a.wait(lg=("v", kk))
            n = 0
            for t in range(3):
                for th in range(2):
                    d = PA + 8*t + 4*th
                    a(f"{M16} {r4(d)}, {r4(GB+12*kk+4*t)}, {r4(VB+8*(kk%4)+4*th)}, " + (r4(d) if kk else "0"))
                    if kk + 3 < 9 and n < 4: vread(kk + 3, n)
                    n += 1
        for k in range(6): a(f"ds_write_b128 v14, {r4(PA+4*k)} offset:{k*1024}")
        a("s_waitcnt lgkmcnt(0)")
        mark(a, opt, 4)
        a("s_barrier")
        mark(a, opt, 5)
        if opt.get("stamp"): stamp_out(a, 2, "s48", 32, "K2_end")
    a("s_endpgm")
    ACC = 16; FB = 112
    a("K2_comp:")
    if MONO: a("s_barrier")
    a(f"""s_and_b32 s54, s48, 1
s_lshr_b32 s55, s48, 1             ; b : d tiles 6b..6b+5
v_lshrrev_b32 v8, 4, v0            ; g
v_and_b32 v9, 15, v0
v_lshlrev_b32 v10, {8 if B1 else 9}, v8
v_lshl_add_u32 v10, v9, 4, v10
s_lshl_b32 s59, s54, 12
v_add_u32 v5, s59, v10
v_lshrrev_b32 v10, 2, v9           ; r
v_and_b32 v11, 1, v8
v_lshl_add_u32 v10, v11, 2, v10
v_lshrrev_b32 v11, 1, v8
v_mul_u32_u24 v11, {3072 if B1 else 6144}, v11
v_lshl_add_u32 v11, v10, 7, v11
v_and_b32 v12, 3, v0
v_lshl_add_u32 v11, v12, 3, v11
v_add_u32 v11, 8192, v11
v_lshrrev_b32 v10, 1, v10          ; swizzle
s_lshl_b32 s59, s55, 10
v_lshl_add_u32 v12, v10, 5, v11
v_add_u32 v1, s59, v12
v_xor_b32 v2, 32, v1
v_xor_b32 v3, 64, v1
v_xor_b32 v4, 0x60, v1
s_lshl_b32 s59, s55, 6
v_xor_b32 v12, s59, v12
v_add_u32 v6, 2048, v12
v_xor_b32 v13, 32, v6""")
    a(f"""s_mul_i32 s57, s51, {64*18*2048}
s_lshl_b32 s59, s52, 2
s_lshl_b32 s60, s54, 1
s_add_u32 s59, s59, s60
s_mul_i32 s59, s59, {18*2048}
s_add_u32 s57, s57, s59
s_mul_i32 s59, s53, 6
s_mul_i32 s60, s55, 3
s_add_u32 s59, s59, s60
s_lshl_b32 s59, s59, 10
s_add_u32 s57, s57, s59
s_add_u32 s57, s57, {WS_PART}
s_waitcnt lgkmcnt(0)""")
    a.vm = []; a.lg = []
    win = [0]
    def reads(u):
        base = (u % NRING)*UNIT
        fb = FB + (u % 2)*40
        ops = []
        def setwin():
            if not (win[0] <= base and base + 8192 - win[0] <= 65535):
                for k in (1, 2, 3, 4, 5, 6, 13):
                    a(f"v_add_u32 v{k}, {(base - win[0]) & 0xffffffff:#x}, v{k}")
                win[0] = base
        def act(i):
            setwin()
            a.lgop(f"ds_read_b128 {r4(fb+4*i)}, v5 offset:{base - win[0] + (i//2)*2048 + (i%2)*(1024 if B1 else 256)}", ("a", u))
        def w(j, t):
            d = fb + 16 + 4*j + 2*t
            a.lgop(f"ds_read_b64_tr_b16 v[{d}:{d+1}], v{(1, 2, 3, 4, 6, 13)[j]} offset:{base - win[0] + t*6144}", ("w", u, j))
        for i in range(4): ops.append(lambda i=i: act(i))
        for j in range(6):
            for t in range(2): ops.append(lambda j=j, t=t: w(j, t))
        return ops
    if MG:
        st_o = opt.get("st_o", "")
        OUT = 192; XR = 216; EO = 16; PB = 64; U = 228
        a(f"""s_load_dwordx2 s[36:37], s[0:1], 0
s_load_dwordx2 s[40:41], s[0:1], 56
s_mov_b32 s38, {T*D*2}
s_mov_b32 s39, 0x20000
s_mov_b32 s42, {T*D*2}
s_mov_b32 s43, 0x20000
v_and_b32 v240, 8, v9
v_add_u32 v240, v240, v9
v_mul_u32_u24 v240, 73728, v240
v_and_b32 v241, 1, v8
v_lshl_add_u32 v240, v241, 5, v240
v_lshrrev_b32 v242, 1, v8
v_lshl_add_u32 v240, v242, 4, v240
s_lshl_b32 s66, s52, 2
s_add_u32 s66, s66, s51            ; G
s_mul_i32 s74, s54, 9
s_mul_i32 s59, s53, 3
s_add_u32 s74, s74, s59
s_mul_i32 s58, s66, 1152
s_lshl_b32 s59, s74, 6
s_add_u32 s58, s58, s59
s_mul_i32 s59, s55, {8*73728}
s_add_u32 s58, s58, s59
s_mul_i32 s73, s66, 36864
s_lshl_b32 s59, s53, 1
s_add_u32 s59, s59, s54
s_mul_i32 s59, s59, 3072
s_add_u32 s73, s73, s59
s_add_u32 s59, s53, s54
s_and_b32 s59, s59, 1
s_cselect_b32 s76, 2048, 0
s_cselect_b32 s77, 0, 1024
s_add_u32 s78, s77, 1024
s_mul_i32 s59, s55, {18*1024}
s_add_u32 s73, s73, s59
s_add_u32 s73, s73, {WS_PART}
s_waitcnt lgkmcnt(0)""")
    mark(a, opt, 0)
    if MONO and opt.get("one", 1): a("s_barrier")
    a("s_barrier")
    mark(a, opt, 1)
    probe(a, opt, "s2")
    for o in reads(0): o()
    for u in range(NU):
        if u == 18: mark(a, opt, 2)
        if MG and u == opt.get("u_x", 33):
            for w in range(3): a(f"buffer_load_dwordx4 {r4(XR+4*w)}, v240, s[36:39], s58 offen offset:{w*64}")
        fb = FB + (u % 2)*40
        nxt = reads(u+1) if u + 1 < NU else []
        bar = (u % 2 == 1 and u + 1 < NU)
        n = 0
        for j in range(6):
            for i in range(4):
                if i == 0:
                    if bar and j == 0: a.wait(lg="all")
                    else: a.wait(lg=[("a", u), ("w", u, j)])
                d = ACC + (i*6 + j)*4
                a(f"{M16} {r4(d)}, {r4(fb+16+4*j)}, {r4(fb+4*i)}, " + (r4(d) if u else "0"))
                if bar and n == 0: a("s_barrier")
                elif nxt: nxt.pop(0)()
                n += 1
    mark(a, opt, 3)
    probe(a, opt, "l2")
    a(f"""s_lshl_b32 s59, s54, 1
s_sub_u32 s75, s51, s59
s_mul_i32 s59, s55, {UNIT}
s_add_u32 s59, s59, 8192
v_add_u32 v243, s59, v7""")
    for i in range(4):
        for jp in range(3):
            pk = FB + 4*((i*3 + jp) % 8)
            for t in range(2):
                d = ACC + (i*6 + 2*jp + t)*4
                a(f"v_cvt_pk_bf16_f32 v{pk+2*t}, v{d}, v{d+1}\nv_cvt_pk_bf16_f32 v{pk+2*t+1}, v{d+2}, v{d+3}")
            a(f"v_permlane16_swap_b32 v{pk}, v{pk+2}\nv_permlane16_swap_b32 v{pk+1}, v{pk+3}")
            if jp == 0: a(f"s_add_u32 s59, s57, {i*18*1024}")
            a(f"s_cbranch_scc1 K2_own{i}{jp}" if False else "")
            a(f"s_cmp_eq_u32 s75, {i//2}\ns_cbranch_scc1 K2_own{i}{jp}")
            a(f"buffer_store_dwordx4 {r4(pk)}, v7, s[32:35], s59 offen offset:{jp*1024} {st_p}\ns_branch K2_owd{i}{jp}")
            a(f"K2_own{i}{jp}:\nds_write_b128 v243, {r4(pk)} offset:{(i % 2)*2*UNIT + jp*1024}\nK2_owd{i}{jp}:")
    if MG:
        a(f"""v_lshlrev_b32 v10, 9, v242
v_lshl_add_u32 v10, v9, 4, v10
s_lshl_b32 s59, s55, 10
v_add_u32 v10, s59, v10
v_lshl_add_u32 v11, v241, 11, v10
v_mul_u32_u24 v12, {2*UNIT - 4096}, v241
v_add_u32 v12, v12, v10
s_mov_b32 s66, {fbits(LN2)}
s_mov_b32 s67, s66
s_mov_b32 s70, {fbits(2/(576*2048))}
s_mov_b32 s71, s70
s_lshl_b32 s68, s54, 31
s_xor_b32 s68, s68, s70
s_mov_b32 s69, s68
s_mul_i32 s60, s52, 3
s_add_u32 s60, s60, s53
s_lshl_b32 s60, s60, 7
s_add_u32 s60, s60, {WS_SYNC}
s_mul_i32 s59, s48, {UNIT}
s_add_u32 s59, s59, 8192
v_add_u32 v243, s59, v7
v_add_u32 v244, s76, v243
v_add_u32 v245, s77, v243
v_add_u32 v246, s78, v243
v_mov_b32 v13, 0
v_mov_b32 v14, 1
s_waitcnt vmcnt(0) lgkmcnt(0)""")
        mark(a, opt, 4)
        a(f"""s_barrier
s_cmp_lg_u32 s48, 0
s_cbranch_scc1 K2_nosig
s_mov_b64 exec, 1
buffer_atomic_add v14, v13, s[32:35], s60 offen sc1
s_mov_b64 exec, -1
K2_nosig:""")
        a.lg = []; a.vm = []
        for w in range(3):
            reg, off = ((11, 0), (12, 4096), (11, 2*UNIT + 2048))[w]
            for par in range(2):
                for hf in range(2):
                    a.lgop(f"ds_read_b128 {r4(EO+16*w+8*par+4*hf)}, v{reg} offset:{off + par*UNIT + hf*256}", ("eo", w))
        for w in range(3): a.lgop(f"ds_read_b128 {r4(PB+16*w)}, v{244+w}", "own")
        for w in range(3):
            for e in range(4):
                a(f"v_lshlrev_b32 v{OUT+8*w+2*e}, 16, v{XR+4*w+e}\nv_and_b32 v{OUT+8*w+2*e+1}, 0xffff0000, v{XR+4*w+e}")
        for w in range(3):
            a.wait(lg=("eo", w))
            for e in range(0, 8, 2): a(f"v_pk_fma_f32 {p2(OUT+8*w+e)}, {p2(EO+16*w+e)}, s[70:71], {p2(OUT+8*w+e)}")
            for e in range(0, 8, 2): a(f"v_pk_fma_f32 {p2(OUT+8*w+e)}, {p2(EO+16*w+8+e)}, s[68:69], {p2(OUT+8*w+e)}")
        def psum(src0, w):
            for e in range(4):
                a(f"v_lshlrev_b32 v{U+2*e}, 16, v{src0+e}\nv_and_b32 v{U+2*e+1}, 0xffff0000, v{src0+e}")
            for e in range(0, 8, 2): a(f"v_pk_fma_f32 {p2(OUT+8*w+e)}, {p2(U+e)}, s[66:67], {p2(OUT+8*w+e)}")
        a.wait(lg="own")
        for w in range(3): psum(PB + 16*w, w)
        for s_ in range(1, 4):
            a(f"s_add_u32 s59, s51, {s_}\ns_and_b32 s59, s59, 3\ns_mul_i32 s59, s59, {64*18*2048}\ns_add_u32 s{79+s_}, s59, s73")
        a("v_add_u32 v244, s76, v7\nv_add_u32 v245, s77, v7\nv_add_u32 v246, s78, v7\nv_mov_b32 v14, 4")
        if opt.get("one2", 1): a("s_cmp_lg_u32 s48, 0\ns_cbranch_scc1 K2_pp_d")
        poll(a, "K2_pp", 13, "s60", "v14")
        if opt.get("one2", 1): a("s_barrier")
        mark(a, opt, 5)
        for w in range(3):
            for s_ in range(1, 4):
                a.vmop(f"buffer_load_dwordx4 {r4(PB+16*w+4*s_)}, v{244+w}, s[32:35], s{79+s_} offen sc1", ("p", w, s_))
        for w in range(3):
            for s_ in range(1, 4):
                a.wait(vm=("p", w, s_))
                psum(PB + 16*w + 4*s_, w)
            for e in range(4): a(f"v_cvt_pk_bf16_f32 v{XR+4*w+e}, v{OUT+8*w+2*e}, v{OUT+8*w+2*e+1}")
            a.vmop(f"buffer_store_dwordx4 {r4(XR+4*w)}, v240, s[40:43], s58 offen offset:{w*64} {st_o}", "o")
    amp_out(a, opt)
    if opt.get("stamp"):
        a.wait(vm="all")
        stamp_out(a, 1, "s48", 32, "K2_end")
    a("s_endpgm")
    PR, PI, PN = 16, 32, 48
    AR, AI = 64, 96
    C32, S32, C64, S64, TWS = 128, 136, 144, 160, 176
    WL = T_END
    u0 = opt.get("apf0", 9)
    xpf = f"""s_cmp_lt_u32 s48, 5
s_cbranch_scc1 K2_end
s_and_b32 s59, s49, 1
s_lshl_b32 s59, s59, 3
s_add_u32 s59, s59, s50            ; rb
s_mul_i32 s59, s59, {4*144*2048}
s_lshr_b32 s60, s49, 1
s_mul_i32 s60, s60, {36*2048}
s_add_u32 s59, s59, s60
s_add_u32 s60, s48, {u0 - 5}
s_lshl_b32 s61, s60, 11
s_add_u32 s59, s59, s61
v_lshrrev_b32 v2, 4, v0
s_mov_b32 s61, {144*2048}
v_mul_lo_u32 v2, s61, v2
v_and_b32 v3, 15, v0
v_lshl_add_u32 v2, v3, 7, v2
s_waitcnt lgkmcnt(0)
K2_pfl:
buffer_load_dword v3, v2, s[32:35], s59 offen
s_add_u32 s59, s59, 6144
s_add_u32 s60, s60, 3
s_waitcnt vmcnt({opt.get("apfd", 0)})
s_cmp_lt_u32 s60, 36
s_cbranch_scc1 K2_pfl""" if opt.get("apf", 0) else ""
    fsig = f"""s_cmp_lt_u32 s48, 4
s_cbranch_scc1 K2_fs
s_cmp_eq_u32 s48, 4
s_cbranch_scc1 K2_fs1
s_cmp_lt_u32 s51, 58
s_cbranch_scc1 K2_fs
K2_fs1:
{sigB}
K2_fs:""" if MONO else ""
    a(f"""K2_fft:
s_lshl_b32 s51, s49, 3
s_add_u32 s51, s51, s50            ; f
s_cmp_ge_u32 s51, {opt.get("nfft", 58)}
s_cbranch_scc1 K2_xpf
s_mul_i32 s52, s51, 5              ; j0
s_cmp_lt_u32 s48, 5
s_cbranch_scc1 K2_fft_go
s_getpc_b64 s[28:29]
s_add_u32 s28, s28, fft_tab@rel32@lo+4
s_addc_u32 s29, s29, fft_tab@rel32@hi+12
s_mov_b32 s30, {T_END}
s_mov_b32 s31, 0x20000
s_sub_u32 s53, s48, 5
s_lshl_b32 s59, s53, 10
K2_tl:
s_mov_b32 m0, s59
s_nop 0
buffer_load_dwordx4 v7, s[28:31], s59 offen lds
s_add_u32 s59, s59, 3072
{"s_waitcnt vmcnt(2)" if MONO else ""}
s_cmp_lt_u32 s59, {T_END if MONO else T_TW2}
s_cbranch_scc1 K2_tl
s_mov_b32 s60, s59
s_lshl_b32 s54, s51, 16
s_add_u32 s54, s54, {WS_WT}
s_lshl_b32 s53, s53, 10""")
    if MONO:
        a("s_waitcnt vmcnt(0)\ns_barrier\ns_cmp_lg_u32 s48, 5\ns_cbranch_scc1 K2_pw_d")
        a(f"v_min_u32 v8, 7, v0\nv_lshlrev_b32 v8, 7, v8\ns_mov_b32 s62, {WS_SYNC + 128*128}")
        poll(a, "K2_pw", 8, "s62", "32", sleep=opt.get("pwsleep", 4))
        a("s_barrier")
    else: a("s_waitcnt vmcnt(0) lgkmcnt(0)\ns_barrier")
    tl2 = "" if MONO else f"""K2_tl2:
s_mov_b32 m0, s60
s_nop 0
buffer_load_dwordx4 v7, s[28:31], s60 offen lds
s_add_u32 s60, s60, 3072
s_cmp_lt_u32 s60, {T_END}
s_cbranch_scc1 K2_tl2"""
    a(f"""K2_wl:
s_add_u32 m0, s53, {WL}
s_add_u32 s59, s53, s54
buffer_load_dwordx4 v7, s[32:35], s59 offen {SC} lds
s_add_u32 s53, s53, 3072
s_cmp_lt_u32 s53, 65536
s_cbranch_scc1 K2_wl
{tl2}
s_waitcnt vmcnt(0)
s_barrier
K2_xpf:
{"s_cmp_lg_u32 s48, 7|s_cbranch_scc1 K2_end|s_sleep %d|buffer_wbl2 sc1|s_waitcnt vmcnt(0)".replace("|", chr(10)) % opt["wb"] if opt.get("wb") else ""}
{xpf}
s_endpgm
K2_fft_go:
s_add_u32 s56, s52, s48            ; j
s_cmp_gt_u32 s56, 288
s_cbranch_scc1 K2_end
s_lshr_b32 s54, s56, 1
s_and_b32 s59, s56, 1
s_mul_i32 s59, s59, 144
s_add_u32 s54, s54, s59            ; sigma
s_mov_b32 s61, 0                   ; 0 normal, 1: j=0, 2: j=288
s_cmp_eq_u32 s56, 0
s_cselect_b32 s61, 1, s61
s_cmp_eq_u32 s56, 288
s_cselect_b32 s61, 2, s61
s_cselect_b32 s54, 0, s54
s_cselect_b32 s59, 4096, 0
s_lshl_b32 s62, s54, 13
s_add_u32 s57, s62, {WS_U}
s_add_u32 s58, s57, 4096
s_add_u32 s57, s57, s59
s_cmp_lg_u32 s61, 0
s_cselect_b32 s58, 0x10000000, s58
v_and_b32 v2, 31, v0               ; n
v_lshrrev_b32 v3, 5, v0            ; h
v_lshlrev_b32 v4, 4, v3
v_lshl_add_u32 v4, v2, 6, v4       ; U voffset
s_waitcnt lgkmcnt(0)""")
    if MONO:
        a("s_barrier\ns_barrier")
    a.vm = []; a.lg = []
    for p in range(2):
        for ks in range(2):
            a.vmop(f"buffer_load_dwordx4 {r4(PR+8*p+4*ks)}, v4, s[32:35], s57 offen offset:{p*2048+ks*32} {SC}", "z")
            a.vmop(f"buffer_load_dwordx4 {r4(PI+8*p+4*ks)}, v4, s[32:35], s58 offen offset:{p*2048+ks*32} {SC}", "z")
    a(f"""v_add_u32 v5, s52, v2
v_and_b32 v5, 1, v5
v_add_u32 v5, s48, v5
v_lshlrev_b32 v5, 1, v5
v_lshl_add_u32 v5, v2, 4, v5
v_lshl_add_u32 v5, v3, 11, v5
v_add_u32 v5, {WL}, v5
{vpos}
v_lshl_add_u32 v6, v3, 9, v6       ; V voffset
s_add_u32 s62, s62, {WS_V}
s_mov_b32 s64, -2.0
s_mov_b32 s65, -2.0""")
    if not MONO: a("s_barrier")
    for k in range(4): a.lgop(f"ds_read_b128 {r4(C32+4*k)}, v7 offset:{k*1024}", "t32")
    NB = 8
    def twread(tw, k):
        s = TWS + 8*(k % NB)
        off = (T_TW1 if tw == 0 else T_TW2) + k*2048
        a.lgop(f"ds_read_b128 {r4(s)}, v7 offset:{off}", ("tw", k))
        a.lgop(f"ds_read_b128 {r4(s+4)}, v7 offset:{off+1024}", ("tw", k))
    def wread(k):
        s = TWS + 8*(k % NB)
        for arr in range(2):
            for e in range(4):
                a.lgop(f"ds_read_u16 v{s+4*arr+e}, v5 offset:{arr*32768 + (8*k + e)*512}", ("tw", k))
    for k in range(4): twread(0, k)
    a.wait(vm="z")
    for k in range(16): a(f"v_xor_b32 v{PN+k}, 0x80008000, v{PR+k}")
    a.wait(lg="t32")
    def stage_small(X1, X2, X3, X4):
        for p in range(2):
            for (D, Xa, Xb) in ((AR, X1, X2), (AI, X3, X4)):
                d = D + 16*p
                for ks in range(2):
                    a(f"{M32} {r16(d)}, {r4(Xa+8*p+4*ks)}, {r4(C32+4*ks)}, " + (r16(d) if ks else "0"))
                    a(f"{M32} {r16(d)}, {r4(Xb+8*p+4*ks)}, {r4(S32+4*ks)}, {r16(d)}")
    def stage_big(X1, X2, X3, X4, dataA, fill=()):
        fill = list(fill)
        for (D, Xa, Xb) in ((AR, X1, X2), (AI, X3, X4)):
            for e in range(2):
                d = D + 16*e
                for p1 in range(2):
                    ks = 2*e + p1
                    for (X, Tb, first) in ((Xa, C64, p1 == 0), (Xb, S64, False)):
                        x, tb = r4(X+4*ks), r4(Tb+4*ks)
                        A_, B_ = (x, tb) if dataA else (tb, x)
                        a(f"{M32} {r16(d)}, {A_}, {B_}, " + ("0" if first else r16(d)))
                        if fill: fill.pop(0)()
        for D in (AR, AI):
            for k in range(0, 16, 2): a(f"v_pk_add_f32 {p2(D+k)}, {p2(D+k)}, {p2(D+16+k)}")
            for k in range(0, 16, 2): a(f"v_pk_fma_f32 {p2(D+16+k)}, {p2(D+16+k)}, s[64:65], {p2(D+k)}")
    def cmul4(k, cr, sr, sgn):
        ng = " neg_lo:[1,0,0] neg_hi:[1,0,0]"
        n1, n2 = (ng, "") if sgn > 0 else ("", ng)
        for e in (0, 2): a(f"v_pk_mul_f32 {p2(8+e)}, {p2(AR+4*k+e)}, {p2(cr+e)}")
        for e in (0, 2): a(f"v_pk_mul_f32 {p2(12+e)}, {p2(AI+4*k+e)}, {p2(cr+e)}")
        for e in (0, 2): a(f"v_pk_fma_f32 {p2(8+e)}, {p2(AI+4*k+e)}, {p2(sr+e)}, {p2(8+e)}{n1}")
        for e in (0, 2): a(f"v_pk_fma_f32 {p2(12+e)}, {p2(AR+4*k+e)}, {p2(sr+e)}, {p2(12+e)}{n2}")
    def pack4(k, negre, eo=False):
        dst = (lambda e: 8*e + k) if eo else (lambda e: 2*k + e)
        src = (lambda e: (e, e + 2)) if eo else (lambda e: (2*e, 2*e + 1))
        for e in range(2): a(f"v_cvt_pk_bf16_f32 v{PR+dst(e)}, v{8+src(e)[0]}, v{8+src(e)[1]}")
        for e in range(2): a(f"v_cvt_pk_bf16_f32 v{PI+dst(e)}, v{12+src(e)[0]}, v{12+src(e)[1]}")
        for e in range(2): a(f"v_xor_b32 v{PN+dst(e)}, 0x80008000, v{(PR if negre else PI)+dst(e)}")
    stage_small(PR, PI, PI, PN)
    t64 = [lambda k=k: a.lgop(f"ds_read_b128 {r4(C64+4*k)}, v7 offset:{T_C64+k*1024}", "t64") for k in range(8)]
    for k in range(8):
        a.wait(lg=("tw", k))
        s = TWS + 8*(k % NB)
        cmul4(k, s, s+4, -1)
        if k + 4 < 8: twread(0, k+4)
        t64.pop(0)()
        pack4(k, True, True)
    a.wait(lg="t64")
    mark(a, opt, 0)
    a("s_barrier")
    mark(a, opt, 1)
    def wr4(k, arr):
        for e in range(4):
            a.lgop(f"ds_read_u16 v{TWS+8*k+4*arr+e}, v5 offset:{arr*32768 + (8*k + e)*512}", ("tw", k))
    stage_big(PR, PI, PI, PN, False, fill=[lambda k=k, arr=arr: wr4(k, arr) for k in range(8) for arr in range(2)])
    mark(a, opt, 2)
    for k in range(8):
        a.wait(lg=("tw", k))
        s = TWS + 8*(k % NB)
        for e in range(8): a(f"v_lshlrev_b32 v{s+e}, 16, v{s+e}")
        cmul4(k, s, s+4, +1)
        pack4(k, False, True)
    stage_big(PR, PN, PI, PR, True, fill=[lambda k=k: twread(1, k) for k in range(NB)])
    for k in range(8):
        a.wait(lg=("tw", k))
        s = TWS + 8*(k % NB)
        cmul4(k, s, s+4, +1)
        if k + NB < 8: twread(1, k+NB)
        pack4(k, False)
    mark(a, opt, 4)
    a("s_add_u32 s63, s62, 4096\ns_cmp_lg_u32 s61, 0\ns_cbranch_scc1 K2_fft_spw")
    off = lambda j: ((j & 3) + 8*(j >> 2))*128
    def last(special):
        o = []
        for p in range(2):
            for j in range(16):
                d = TWS + 16*p + j
                if special: o.append(f"v_cvt_pk_bf16_f32 v{d}, v{AR+16*p+j}, v{AR+16*p+j}\nbuffer_store_short v{d}, v6, s[32:35], s{62+p} offen offset:{off(j)} {st_v}")
                else: o.append(f"v_cvt_pk_bf16_f32 v{d}, v{AR+16*p+j}, v{AI+16*p+j}\nbuffer_store_dword v{d}, v6, s[32:35], s{62+p} offen offset:{off(j)} {st_v}")
        n = 0
        for p in range(2):
            for (D, Xa, Xb) in ((AR, PR, PN), (AI, PI, PR)):
                if special and D == AI: continue
                d = D + 16*p
                for ks in range(2):
                    for (X, Tb, first) in ((Xa, C32, ks == 0), (Xb, S32, False)):
                        a(f"{M32} {r16(d)}, {r4(X+8*p+4*ks)}, {r4(Tb+4*ks)}, " + ("0" if first else r16(d)))
                        if p == 1 and not special:
                            n += 1
                            if n >= 2: a(o.pop(0)); a(o.pop(0))
        for l in o: a(l)
    last(False)
    a("s_branch K2_fft_out\nK2_fft_spw:\ns_sub_u32 s59, s61, 1\ns_lshl_b32 s59, s59, 1\nv_add_u32 v6, s59, v6")
    last(True)
    a("K2_fft_out:")
    if MG:
        a(f"""s_and_b32 s59, s56, 7
s_lshl_b32 s59, s59, 7
s_add_u32 s59, s59, {WS_SYNC + 48*128}
v_mov_b32 v4, 0
v_mov_b32 v5, 1
s_waitcnt vmcnt(0)
s_mov_b64 exec, 1
buffer_atomic_add v5, v4, s[32:35], s59 offen sc1
s_mov_b64 exec, -1""")
    if opt.get("stamp"):
        a("s_waitcnt vmcnt(0)")
        a("s_mov_b32 s87, 0")
        mark(a, opt, 5)
        stamp_out(a, 3, "s48", 32, "K2_end")
    a("K2_end:\ns_endpgm")
    if not MONO:
        a.end_kernel("k2_kernel", 256, 96)
        a.launch("k2_kernel", 256, 512, 163840)
    tab = fft_tables()
    t = [".p2align 8", ".type fft_tab,@object", "fft_tab:"]
    for i in range(0, len(tab), 8):
        t.append(".long " + ",".join("0x%x" % x for x in tab[i:i+8]))
    a.tail += t
```

```python
import struct, math
T, D, F = 2048, 576, 4608
LOG2E = 1.4426950408889634; LN2 = 0.6931471805599453
def fbits(x): return "0x%08x" % struct.unpack("<I", struct.pack("<f", x))[0]
WS_ACT  = 0
WS_U    = 0x1200000
WS_WT   = WS_U + 576*4096
WS_V    = WS_WT + 64*65536
WS_PART = WS_V + 64*36*1024
WS_GT   = WS_PART + 4*64*18*2048
WS_END  = WS_GT + 9*36*1024
WS_SYNC = (WS_END + 8191) // 8192 * 8192
WS_STAMP = 0x4000000
assert WS_U == 64*144*2048


def probe(a, opt, name):
    amp = opt.get("amp")
    if amp:
        for r, n in ((100, amp[0]), (101, amp[1])):
            if n == name:
                a(f"s_memrealtime s[92:93]\ns_waitcnt lgkmcnt(0)\ns_mov_b32 s{r}, s92")
                a.lg = []
def amp_out(a, opt):
    amp = opt.get("amp")
    if amp:
        a(f"""s_waitcnt vmcnt(0)""")
        probe(a, opt, "end")
        if amp[2] == 0:
            a("""AMP_f:
s_memrealtime s[92:93]
s_waitcnt lgkmcnt(0)
s_sub_u32 s92, s92, s100
s_cmp_lt_u32 s92, 6000
s_cbranch_scc1 AMP_f""")
            return
        a(f"""s_sub_u32 s100, s101, s100
s_mul_i32 s100, s100, {amp[2]}
s_min_u32 s100, s100, 20000
s_memrealtime s[92:93]
s_waitcnt lgkmcnt(0)
s_mov_b32 s101, s92
AMP_l:
s_memrealtime s[92:93]
s_waitcnt lgkmcnt(0)
s_sub_u32 s92, s92, s101
s_cmp_lt_u32 s92, s100
s_cbranch_scc1 AMP_l""")
def mark(a, opt, k):
    if opt.get("stamp"):
        a(f"s_memrealtime s[92:93]\ns_waitcnt lgkmcnt(0)\ns_mov_b32 s{84+k}, s92")
        a.lg = []
def stamp_out(a, slot, wavereg, srd, endlab):
    a(f"""s_memrealtime s[92:93]
s_waitcnt lgkmcnt(0)
s_lshl_b32 s94, s2, 3
s_add_u32 s94, s94, {wavereg}
s_lshl_b32 s94, s94, 5
s_add_u32 s94, s94, {WS_STAMP + slot*131072}
v_mov_b32 v4, s90
v_mov_b32 v5, s84
v_mov_b32 v6, s85
v_mov_b32 v7, s86
v_mov_b32 v8, s87
v_mov_b32 v9, s88
v_mov_b32 v10, s89
v_mov_b32 v11, s92
v_mov_b32 v12, 0
s_mov_b64 exec, 1
buffer_store_dwordx4 v[4:7], v12, s[{srd}:{srd+3}], s94 offen
buffer_store_dwordx4 v[8:11], v12, s[{srd}:{srd+3}], s94 offen offset:16
s_waitcnt vmcnt(0)
s_mov_b64 exec, -1""")

def poll(a, lab, voff, soff, vexp, srd=32, tmp=15, sleep=1):
    a(f"""s_mov_b32 s72, 0x40000
{lab}:
buffer_load_dword v{tmp}, v{voff}, s[{srd}:{srd+3}], {soff} offen sc1
s_waitcnt vmcnt(0)
v_cmp_ne_u32 vcc, {vexp}, v{tmp}
s_sub_u32 s72, s72, 1
s_cbranch_scc1 {lab}_d
s_nop 2
s_cbranch_vccz {lab}_d
s_sleep {sleep}
s_branch {lab}
{lab}_d:""")
```

```python
import struct, math
T, D, F = 2048, 576, 4608
LOG2E = 1.4426950408889634; LN2 = 0.6931471805599453
def fbits(x): return "0x%08x" % struct.unpack("<I", struct.pack("<f", x))[0]
WS_ACT  = 0
WS_U    = 0x1200000
WS_WT   = WS_U + 576*4096
WS_V    = WS_WT + 64*65536
WS_PART = WS_V + 64*36*1024
WS_GT   = WS_PART + 4*64*18*2048
WS_END  = WS_GT + 9*36*1024
WS_SYNC = (WS_END + 8191) // 8192 * 8192
WS_STAMP = 0x4000000
assert WS_U == 64*144*2048


def probe(a, opt, name):
    amp = opt.get("amp")
    if amp:
        for r, n in ((100, amp[0]), (101, amp[1])):
            if n == name:
                a(f"s_memrealtime s[92:93]\ns_waitcnt lgkmcnt(0)\ns_mov_b32 s{r}, s92")
                a.lg = []
def amp_out(a, opt):
    amp = opt.get("amp")
    if amp:
        a(f"""s_waitcnt vmcnt(0)""")
        probe(a, opt, "end")
        if amp[2] == 0:
            a("""AMP_f:
s_memrealtime s[92:93]
s_waitcnt lgkmcnt(0)
s_sub_u32 s92, s92, s100
s_cmp_lt_u32 s92, 6000
s_cbranch_scc1 AMP_f""")
            return
        a(f"""s_sub_u32 s100, s101, s100
s_mul_i32 s100, s100, {amp[2]}
s_min_u32 s100, s100, 20000
s_memrealtime s[92:93]
s_waitcnt lgkmcnt(0)
s_mov_b32 s101, s92
AMP_l:
s_memrealtime s[92:93]
s_waitcnt lgkmcnt(0)
s_sub_u32 s92, s92, s101
s_cmp_lt_u32 s92, s100
s_cbranch_scc1 AMP_l""")
def mark(a, opt, k):
    if opt.get("stamp"):
        a(f"s_memrealtime s[92:93]\ns_waitcnt lgkmcnt(0)\ns_mov_b32 s{84+k}, s92")
        a.lg = []
def stamp_out(a, slot, wavereg, srd, endlab, wait=True):
    a(f"""s_memrealtime s[92:93]
s_waitcnt lgkmcnt(0)
s_lshl_b32 s94, s2, 3
s_add_u32 s94, s94, {wavereg}
s_lshl_b32 s94, s94, 5
s_add_u32 s94, s94, {WS_STAMP + slot*131072}
v_mov_b32 v4, s90
v_mov_b32 v5, s84
v_mov_b32 v6, s85
v_mov_b32 v7, s86
v_mov_b32 v8, s87
v_mov_b32 v9, s88
v_mov_b32 v10, s89
v_mov_b32 v11, s92
v_mov_b32 v12, 0
s_mov_b64 exec, 1
buffer_store_dwordx4 v[4:7], v12, s[{srd}:{srd+3}], s94 offen
buffer_store_dwordx4 v[8:11], v12, s[{srd}:{srd+3}], s94 offen offset:16
{"s_waitcnt vmcnt(0)" if wait else "s_nop 4"}
s_mov_b64 exec, -1""")

def poll(a, lab, voff, soff, vexp, srd=32, tmp=15, sleep=1):
    a(f"""s_mov_b32 s72, 0x40000
{lab}:
buffer_load_dword v{tmp}, v{voff}, s[{srd}:{srd+3}], {soff} offen sc1
s_waitcnt vmcnt(0)
v_cmp_ne_u32 vcc, {vexp}, v{tmp}
s_sub_u32 s72, s72, 1
s_cbranch_scc1 {lab}_d
s_nop 2
s_cbranch_vccz {lab}_d
{"s_sleep %d" % sleep if sleep else ""}
s_branch {lab}
{lab}_d:""")

OWN_X = 132096
def own_base(u): return u*20480 if u < 6 else OWN_X + (u - 6)*8192
```

```python
from fw import *
from common import *
M16 = "v_mfma_f32_16x16x32_bf16"
def r4(x): return f"v[{x}:{x+3}]"
def p2(x): return f"v[{x}:{x+1}]"
WU = 18432
W_OFF = 0; NW = 4
X_OFF = NW*WU
NX = 3
F_OFF = X_OFF + NX*16384
E_OFF = F_OFF + 18432
ESTR = 1168
WR_OFF = 149504
CSB = 159744
BIAS = CSB + 1280
STAT = BIAS + 1280
SCR = 157184
RS = 0
NS = 18
HC = CSB + 1152
UI = F_OFF

def gen_k1b(a, opt):
    st_act = opt.get("st_act", "sc1"); st_u = opt.get("st_u", "sc1"); st_wt = opt.get("st_wt", "sc1")
    MONO = opt.get("mono", 1) and "2" in opt.get("kernels", "123")
    KN = NAME + "_kernel" if MONO else "k1_kernel"
    if MONO: st_u = opt.get("st_u", "sc1")
    EARLY = MONO and opt.get("early", 1)
    def signal(base, tag="all"):
        a(f"""s_lshl_b32 s59, s49, 2
s_lshr_b32 s60, s50, 2
s_add_u32 s59, s59, s60
s_lshl_b32 s59, s59, 7
s_add_u32 s59, s59, {WS_SYNC + base*128}
v_mov_b32 v12, 0
v_mov_b32 v13, 1""")
        a.wait(vm=tag)
        a("s_mov_b64 exec, 1")
        a.vmop("buffer_atomic_add v13, v12, s[32:35], s59 offen sc1", "sig")
        a("s_mov_b64 exec, -1")
    a.begin_kernel(KN)
    a("K1_start:")
    a("s_cmp_ge_u32 s2, 256\ns_cbranch_scc1 K1_end")
    if opt.get("stamp"): a("s_memrealtime s[90:91]")
    probe(a, opt, "start")
    a(f"""s_load_dwordx8 s[4:11], s[0:1], 0
s_load_dwordx8 s[12:19], s[0:1], 32
s_load_dwordx2 s[32:33], s[0:1], 72
s_lshr_b32 s60, s2, 3              ; idx
s_getpc_b64 s[80:81]
K1_pc:
s_mov_b32 s82, code_end-K1_pc
s_mov_b32 s83, 0x20000
v_mul_u32_u24 v1, 3, v0
v_lshrrev_b32 v1, 6, v1
v_lshlrev_b32 v1, 7, v1
s_mul_i32 s59, s60, 3072
s_mov_b32 m0, {SCR}
s_nop 0
buffer_load_dword v1, s[80:83], s59 offen lds
v_lshrrev_b32 v1, 6, v0
v_readfirstlane_b32 s48, v1        ; wave
v_mov_b32 v2, v0                   ; tid
v_and_b32 v0, 63, v0               ; lane
s_and_b32 s49, s2, 1
s_lshl_b32 s49, s49, 3
s_and_b32 s61, s60, 7
s_add_u32 s49, s49, s61            ; rb
s_lshr_b32 s3, s60, 3              ; cq
s_bfe_u32 s50, s2, 0x20001
s_lshl_b32 s50, s50, 2
s_add_u32 s50, s50, s3             ; cg
s_add_u32 s71, s3, s49
s_and_b32 s71, s71, {opt.get("rotmask", 0)}
s_mul_i32 s71, s71, {opt.get("rot", 4)}
s_mul_i32 s63, s50, 576
s_and_b32 s64, s50, 1
s_mov_b32 s34, 0x10000000
s_mov_b32 s35, 0x20000
v_lshlrev_b32 v7, 4, v0
s_cmp_lt_u32 s48, 4
s_cbranch_scc1 K1_comp""")
    a(f"""s_sub_u32 s51, s48, 4              ; lw
v_lshrrev_b32 v8, 3, v0            ; r
v_lshrrev_b32 v9, 4, v0
v_xor_b32 v9, v9, v0
v_and_b32 v9, 7, v9
v_lshlrev_b32 v9, 4, v9
s_mov_b32 s22, 73728
v_mad_u32_u24 v3, v8, s22, v9
v_xor_b32 v4, 64, v3
v_add_u32 v4, {16*73728-1024}, v4
s_lshl_b32 s53, s49, 2
s_add_u32 s53, s53, s51
s_mul_i32 s53, s53, 1152           ; x base
s_lshl_b32 s20, s71, 7
s_add_u32 s20, s20, s53
s_add_u32 s21, s53, 1152
s_lshl_b32 s57, s51, 12            ; lw*4096
s_mov_b32 s26, {T*D*2}
s_mov_b32 s27, 0x20000
s_waitcnt lgkmcnt(0)
s_mov_b64 s[24:25], s[4:5]""")
    wsetup = f"""v_and_b32 v9, 2, v8
s_and_b32 s59, s51, 1
s_lshl_b32 s59, s59, 2
v_or_b32 v9, s59, v9
v_xor_b32 v9, v9, v0
v_and_b32 v9, 7, v9
v_lshlrev_b32 v9, 4, v9
v_mul_u32_u24 v5, 9216, v8
v_add_u32 v5, v5, v9               ; W voffset
v_lshrrev_b32 v8, 2, v0
v_mul_u32_u24 v6, 9216, v8
s_lshr_b32 s59, s59, 1
v_xor_b32 v9, s59, v0
v_and_b32 v9, 3, v9
v_lshl_add_u32 v6, v9, 4, v6       ; H voffset
s_mul_i32 s54, s51, {8*9216}
s_add_u32 s54, s54, s63
s_mul_i32 s59, s71, {64*9216}
s_add_u32 s36, s54, s59
s_add_u32 s37, s54, {576*9216}
s_lshl_b32 s38, s64, 6
s_xor_b32 s39, s64, 1
s_lshl_b32 s39, s39, 9
s_lshl_b32 s58, s51, 9
s_mov_b32 s30, {D*F*2}
s_mov_b32 s31, 0x20000
s_mov_b64 s[28:29], s[12:13]"""
    a.vm = []; a.lg = []
    def x_items(c, th):
        def f0():
            a(f"s_add_u32 m0, s57, {X_OFF + (c % NX)*16384 + th*2048}")
            if th: a(f"s_add_u32 s23, s20, {8*73728}")
            else: a("s_mov_b32 s23, s20")
            a.vmop("buffer_load_dwordx4 v3, s[24:27], s23 offen lds", ("x", c))
        def f1():
            a(f"s_add_u32 m0, s57, {X_OFF + (c % NX)*16384 + th*2048}\ns_nop 0")
            a.vmop("buffer_load_dwordx4 v4, s[24:27], s23 offen offset:1024 lds", ("x", c))
            if th: a("s_add_u32 s20, s20, 128\ns_cmp_eq_u32 s20, s21\ns_cselect_b32 s20, s53, s20")
        return [f0, f1]
    def w_items(u):
        base = W_OFF + (u % NW)*WU
        it = []
        for j in range(4):
            def f(j=j):
                a(f"s_add_u32 m0, s57, {base + j*1024 - j*128}")
                if j == 0: a("s_add_u32 s40, s36, s38")
                else: a("s_nop 0")
                a.vmop(f"buffer_load_dwordx4 v5, s[28:31], s40 offen offset:{j*128} lds", ("w", u))
            it.append(f)
        def fh():
            a(f"s_add_u32 m0, s58, {base + 16384}\ns_add_u32 s41, s36, s39\ns_mov_b32 exec_hi, 0")
            a.vmop("buffer_load_dwordx4 v6, s[28:31], s41 offen lds", ("w", u))
            a(f"s_mov_b32 exec_hi, -1\ns_add_u32 s36, s36, {32*9216}\ns_cmp_eq_u32 s36, s37\ns_cselect_b32 s36, s54, s36")
        it.append(fh)
        return it
    for f in x_items(0, 0) + x_items(0, 1): f()
    a(wsetup)
    for f in w_items(0): f()
    a(f"""s_mov_b64 s[44:45], s[14:15]
s_mov_b32 s46, {F*2}
s_mov_b32 s47, 0x20000
v_subrev_u32 v10, 256, v2
v_lshlrev_b32 v11, 1, v10
v_lshlrev_b32 v10, 2, v10
v_add_u32 v10, {BIAS}, v10""")
    for f in w_items(1): f()
    a.vmop("buffer_load_ushort v12, v11, s[44:47], s63 offen", "bias")
    a.vmop("buffer_load_ushort v13, v11, s[44:47], s63 offen offset:512", "bias")
    XV = 64; XP = 96
    def recur():
        a(f"""s_lshl_b32 s59, s71, 6
v_lshl_add_u32 v18, v18, 5, s59    ; d0
v_cvt_f32_u32 v16, v16
v_cvt_f32_u32 v17, v17
v_cvt_f32_u32 v18, v18
v_mul_f32 v16, {fbits(1/576)}, v16
v_mul_f32 v17, {fbits(0.25)}, v17
v_fma_f32 v17, v18, v16, v17
v_fract_f32 v17, v17
v_add_f32 v18, v17, v16
v_cos_f32 v{XV}, v17
v_cos_f32 v{XV+1}, v18
v_cos_f32 v16, v16
v_and_b32 v{XV}, v20, v{XV}
v_and_b32 v{XV+1}, v20, v{XV+1}
v_add_f32 v16, v16, v16""")
    def recur2():
        for k in range(2, 32):
            a(f"v_fma_f32 v{XV+k}, v16, v{XV+k-1}, -v{XV+k-2}")
            if k % 2 == 0: a(f"v_cvt_pk_bf16_f32 v{XP+k//2-1}, v{XV+k-2}, v{XV+k-1}")
            if k % 8 == 0: a(f"ds_write_b128 v19, {r4(XP + k//2 - 4)}\nv_add_u32 v19, s72, v19")
        a(f"v_cvt_pk_bf16_f32 v{XP+15}, v{XV+30}, v{XV+31}\nds_write_b128 v19, {r4(XP+12)}")
    a(f"""v_and_b32 v8, 31, v0
v_lshrrev_b32 v9, 5, v0
v_bfe_u32 v14, v8, 1, 3
v_xor_b32 v14, v14, v9
v_lshlrev_b32 v14, 4, v14
v_lshl_add_u32 v14, v8, 7, v14
s_add_u32 s59, s57, {X_OFF}
v_add_u32 v24, s59, v14
v_xor_b32 v25, 32, v24
v_xor_b32 v26, 64, v24
v_xor_b32 v27, 0x60, v24
v_mov_b32 v28, 0
v_mov_b32 v29, 0""")
    a("s_branch K1_hloop")
    cut0 = len(a.lines)
    a("K1_hloop:")
    side = {}
    def sq_ops(c):
        o = [lambda: [a.lgop(f"ds_read_b128 {r4(32+4*i)}, v{24+i} offset:{(c % NX)*16384}", ("sq", i)) for i in range(4)]]
        for i in range(4):
            def f(i=i):
                a.wait(lg=("sq", i))
                for hh in range(2):
                    for k in range(2): a(f"v_lshlrev_b32 v{48+2*k}, 16, v{32+4*i+2*hh+k}\nv_and_b32 v{49+2*k}, 0xffff0000, v{32+4*i+2*hh+k}")
                    for k in range(4): a(f"v_fmac_f32 v{28+k%2}, v{48+k}, v{48+k}")
            o.append(f)
        return o
    def bias_w():
        a.wait(vm="bias")
        a(f"v_lshlrev_b32 v12, 16, v12\nv_lshlrev_b32 v13, 16, v13\nv_mul_f32 v12, {fbits(LOG2E)}, v12\nv_mul_f32 v13, {fbits(LOG2E)}, v13")
        a.lgop("ds_write_b32 v10, v12", "pub")
        a(f"v_mov_b32 v8, {HC}\nv_mov_b32 v9, 0")
        a.lgop("ds_write_b32 v8, v9", "pub")
        a("s_cmp_lg_u32 s51, 0\ns_cbranch_scc1 K1_nb\nds_write_b32 v10, v13 offset:1024\nK1_nb:")
    side.setdefault(1, []).append(bias_w)
    def zero_sync():
        a(f"""s_lshl_b32 s59, s2, 2
s_or_b32 s59, s59, s51
s_cmp_lg_u32 s59, 0
s_cbranch_scc1 K1_nz
v_lshlrev_b32 v8, 7, v0
v_mov_b32 v9, 0
s_mov_b32 s59, {WS_SYNC}
buffer_store_dword v9, v8, s[32:35], s59 offen sc1""")
        if MONO:
            a("""s_add_u32 s59, s59, 8192
buffer_store_dword v9, v8, s[32:35], s59 offen sc1
s_add_u32 s59, s59, 8192
buffer_store_dword v9, v8, s[32:35], s59 offen sc1
s_add_u32 s59, s59, 8192
buffer_store_dword v9, v8, s[32:35], s59 offen sc1
""")
        a("K1_nz:")
    def init_flag():
        a("""s_lshl_b32 s59, s2, 2
s_or_b32 s59, s59, s51
s_cmp_lg_u32 s59, 0
s_cbranch_scc1 K1_nz2
v_mov_b32 v8, 1
v_mov_b32 v9, 0
s_mov_b64 exec, 1
buffer_store_dword v8, v9, s[44:47], 0 offen sc1
s_mov_b64 exec, -1
K1_nz2:""")
    if MONO: side.setdefault(6, []).append(init_flag)
    def dbg_srd():
        a("s_load_dwordx2 s[44:45], s[0:1], 64\ns_mov_b32 s46, 256\ns_waitcnt lgkmcnt(0)")
        a.lg = []
    if MONO: side.setdefault(2, []).append(dbg_srd)
    if opt.get("merge", 1): side.setdefault(2, []).append(zero_sync)
    if MONO:
        side.setdefault(12, []).append(lambda: (a("v_mov_b32 v53, 0"), a.vmop("buffer_load_dword v54, v53, s[44:47], 0 offen sc1", "init")))
        def chk():
            a.wait(vm="init")
            a("v_cmp_ne_u32 vcc, 1, v54\ns_nop 4\ns_cbranch_vccz K1_in_d")
            poll(a, "K1_in", 53, "0", "1", srd=44, tmp=54)
        side.setdefault(15, []).insert(0, chk)
    fol = opt.get("fol", 0)
    nlab = [0]
    def guarded(f):
        def g():
            if not fol: return f(True)
            nlab[0] += 1
            a(f"s_cmp_lg_u32 s71, 0\ns_cbranch_scc1 K1_sj{nlab[0]}")
            f(False)
            a(f"K1_sj{nlab[0]}:")
        return g
    def vm(track, txt, tag):
        if track: a.vmop(txt, tag)
        else: a(txt)
    spf = opt.get("s_pf2", [15])
    full = opt.get('pffull', 0)
    nl = -(-(82 if (fol or full) else 41) // len(spf))
    def pf2_setup(tr):
        a(f"""s_mov_b32 s18, {F*D*2}
s_mov_b32 s19, 0x20000
s_bfe_u32 s65, s2, 0x20001
s_mul_i32 s65, s65, {1152*1152}
s_and_b32 s66, s60, {30 if fol else 31}
s_mul_i32 s66, s66, {324*128}
s_add_u32 s65, s65, s66
s_lshl_b32 s66, s51, 1
s_and_b32 s67, s2, {0 if full else 1}
s_add_u32 s66, s66, s67
s_mul_i32 s66, s66, {(82 if fol else 41)*128}
s_add_u32 s95, s65, s66
v_min_u32 v52, {nl-1}, v0
v_lshlrev_b32 v52, 7, v52""")
        if "2" in opt.get("kernels", "123"):
            a(f"""s_getpc_b64 s[80:81]
s_add_u32 s80, s80, fft_tab@rel32@lo+4
s_addc_u32 s81, s81, fft_tab@rel32@hi+12
s_mov_b32 s82, 45056
s_mov_b32 s83, 0x20000
s_lshr_b32 s65, s60, 1
s_lshl_b32 s65, s65, 2
s_add_u32 s65, s65, s51
s_lshl_b32 s65, s65, 10
v_lshrrev_b32 v8, 3, v0
v_lshlrev_b32 v8, 7, v8
s_mov_b32 m0, {SCR}
s_nop 0""")
            vm(tr, "buffer_load_dword v8, s[80:83], s65 offen lds", "pf")
    def pf2(tr):
        a(f"s_mov_b32 m0, {SCR}\ns_nop 0")
        vm(tr, "buffer_load_dword v52, s[16:19], s95 offen lds", "pf")
        a(f"s_add_u32 s95, s95, {nl*128}")
    def pf_first():
        rows = opt.get("pf_rows", 4)
        a(f"""s_mul_i32 s65, s50, {288*1152}
s_mul_i32 s66, s64, {32*1152}
s_add_u32 s65, s65, s66
s_and_b32 s66, s49, 7
s_lshl_b32 s66, s66, 2
s_add_u32 s66, s66, s51
s_mul_i32 s66, s66, {rows*1152}
s_add_u32 s65, s65, s66
s_add_u32 s66, s3, 2
s_mul_i32 s66, s66, 192
s_cmp_ge_u32 s66, 576
s_cselect_b32 s67, 576, 0
s_sub_u32 s66, s66, s67
s_add_u32 s65, s65, s66
v_lshrrev_b32 v8, 2, v0
v_min_u32 v8, {rows-1}, v8
v_mul_u32_u24 v8, 1152, v8
v_and_b32 v9, 1, v0
v_lshl_add_u32 v8, v9, 7, v8
v_bfe_u32 v9, v0, 1, 1
v_mul_u32_u24 v9, 576, v9
v_add_u32 v8, v8, v9
s_mov_b32 m0, {SCR}
s_nop 0""")
        a.vmop("buffer_load_dword v8, s[16:19], s65 offen lds", "pf")
    if opt.get("pf2", 1):
        s0 = opt.get("s_pf0", 11) if MONO else spf[0]
        side.setdefault(s0, []).append(lambda: pf2_setup(True))
        if MONO: side.setdefault(s0, []).append(pf_first)
        for k in spf: side.setdefault(k, []).append(guarded(pf2))
    def pf_code():
        a("""s_getpc_b64 s[80:81]
K1_pc2:
s_add_u32 s80, s80, K2_start-K1_pc2
s_addc_u32 s81, s81, 0
s_mov_b32 s82, code_end-K2_start
s_mov_b32 s83, 0x20000
v_lshrrev_b32 v8, 4, v0
v_lshlrev_b32 v8, 7, v8
s_lshr_b32 s59, s2, 3
s_lshl_b32 s59, s59, 2
s_add_u32 s59, s59, s51
s_lshl_b32 s59, s59, 9
""")
        a.vmop("buffer_load_dword v255, v8, s[80:83], s59 offen", "pf")
    if opt.get("pf2c", 1) and "2" in opt.get("kernels", "123"): side.setdefault(opt.get("s_pfc", 14), []).append(pf_code)
    def wt_load():
        a(f"""s_mov_b64 s[72:73], s[6:7]
s_mov_b32 s74, {T*289*2}
s_mov_b32 s75, 0x20000
s_mov_b64 s[76:77], s[8:9]
s_mov_b32 s78, {T*289*2}
s_mov_b32 s79, 0x20000
v_and_b32 v8, 7, v0
v_lshrrev_b32 v9, 3, v0
v_mul_u32_u24 v30, 289, v8
v_lshl_add_u32 v30, v9, 2, v30
v_and_b32 v30, -2, v30
v_lshlrev_b32 v30, 1, v30
s_mul_i32 s67, s2, {8*578}
s_lshl_b32 s68, s51, 6
s_add_u32 s67, s67, s68""")
        for y in range(3):
            for z in range(2):
                a.vmop(f"buffer_load_dwordx3 v[{112+8*y+4*z}:{114+8*y+4*z}], v30, s[{72+4*z}:{75+4*z}], s67 offen offset:{256*y}", "wt")
        a(f"""v_lshlrev_b32 v253, 4, v8
v_lshl_add_u32 v31, v9, 15, v253
v_and_b32 v253, 16, v253
s_lshl_b32 s69, s51, 18
s_lshl_b32 s68, s2, 7
s_add_u32 s69, s69, s68
s_add_u32 s4, s32, {WS_WT}
s_addc_u32 s5, s33, 0
s_mov_b32 s6, {73*32768}
s_mov_b32 s7, 0x20000
s_mov_b32 s8, 0x05040100
s_mov_b32 s9, 0x07060302""")
    def wt_store():
        for y in range(3):
            for z in range(2):
                r = 112 + 8*y + 4*z
                a(f"v_alignbit_b32 v{r}, v{r+1}, v{r}, v253\nv_alignbit_b32 v{r+1}, v{r+2}, v{r+1}, v253")
        a("s_and_b32 s68, s2, 3")
        for rot in range(4):
            if rot < 3: a(f"s_cmp_lg_u32 s68, {rot}\ns_cbranch_scc1 K1_nexr{rot}")
            for y in range(3):
                for k in range(4):
                    a(f"v_perm_b32 v{136+4*y+((k+rot)&3)}, v{116+8*y+k//2}, v{112+8*y+k//2}, s{8+k%2}")
            if rot < 3: a(f"s_branch K1_nexr\nK1_nexr{rot}:")
        a("K1_nexr:")
        for y in range(3):
            a(f"s_add_u32 s68, s69, {y*32*32768}")
            a.vmop(f"buffer_store_dwordx4 {r4(136+4*y)}, v31, s[4:7], s68 offen {st_wt}", "st")
    if not opt.get("nowt"):
        swt = opt.get("s_wt", [13])[0]; sws = opt.get("s_wts", [16])[0]
        side.setdefault(swt, []).append(wt_load)
        if sws == 17: side.setdefault(17, []).append(lambda: (a("s_waitcnt vmcnt(2)"), a.vm.clear()))
        else: side.setdefault(sws, []).append(lambda: a.wait(vm="wt"))
        side.setdefault(sws, []).append(wt_store)
    xq = [(c, th) for c in range(1, 9) for th in range(2)]
    nw = 2
    sq = []
    for k in range(NS):
        a.wait(vm=[("w", k), ("x", k//2)], lg="all")
        a("s_barrier")
        items = []
        nx = 2 if k == 0 else 1
        while nx and xq and (xq[0][0] < NX or 2*(xq[0][0] - NX) + 2 <= k):
            items += x_items(*xq.pop(0)); nx -= 1
        while nw < NS and nw - NW <= k - 2 and nw <= k + 2:
            items += w_items(nw); nw += 1
        if k % 2 == 0: sq = sq_ops(k//2)
        fill = [sq.pop(0) for _ in range(3 if k % 2 == 0 else 2)]
        if k == NS - 2: fill += [sq.pop(0), sq.pop(0)]; sq = [lambda: None]*2
        if fill and k % 2 == 0: fill.pop(0)()
        n = len(items)
        for i, f in enumerate(items):
            f()
            if fill and (i + 1) % 3 == 0: fill.pop(0)()
        for f in fill: f()
        if k < NS - 1:
            for f in side.get(k, []): f()
    assert not xq and nw == NS
    a(f"""v_add_f32 v28, v28, v29
v_and_b32 v8, 31, v0
v_lshrrev_b32 v9, 5, v0
v_lshlrev_b32 v8, 2, v8
v_lshl_add_u32 v8, v9, 9, v8
s_lshl_b32 s59, s51, 7
s_add_u32 s59, s59, {STAT + 512}
v_add_u32 v8, s59, v8
ds_write_b32 v8, v28
s_waitcnt lgkmcnt(0)
s_barrier""")
    a(f"""s_lshl_b32 s59, s51, 11
s_add_u32 s59, s59, {UI}
v_add_u32 v250, s59, v7
v_lshrrev_b32 v8, 4, v0
v_and_b32 v9, 15, v0
v_lshlrev_b32 v9, 4, v9
v_lshl_add_u32 v251, v8, 12, v9
s_lshl_b32 s14, s50, 17
s_lshl_b32 s66, s49, 8
s_lshl_b32 s67, s51, 15
s_add_u32 s14, s14, s67
s_add_u32 s14, s14, s66
s_add_u32 s14, s14, {WS_U}
s_add_u32 s15, s14, 16384
s_lshl_b32 s10, s50, 14
s_add_u32 s10, s10, s66
s_add_u32 s10, s10, {WS_U + 512*4096}
s_barrier""")
    if EARLY: a("s_mov_b32 s11, s69\nv_mov_b32 v252, v31\ns_branch K2_start")
    cut1 = len(a.lines)
    a(f"""s_barrier
ds_read_b128 v[32:35], v250
ds_read_b128 v[36:39], v250 offset:1024
ds_read_b128 v[40:43], v250 offset:8192
s_waitcnt lgkmcnt(0)
buffer_store_dwordx4 v[32:35], v251, s[32:35], s14 offen {st_u}
buffer_store_dwordx4 v[36:39], v251, s[32:35], s15 offen {st_u}
s_cmp_lg_u32 s48, 4
s_cbranch_scc1 K1_nex
buffer_store_dwordx4 v[40:43], v251, s[32:35], s10 offen {st_u}
K1_nex:""")
    for f in side.get(NS - 1, []): f()
    if MONO:
        a(f"""s_and_b32 s59, s2, 7
s_lshl_b32 s59, s59, 7
s_add_u32 s59, s59, {WS_SYNC + 128*128}
v_mov_b32 v8, {HC}
v_mov_b32 v9, 1
s_waitcnt vmcnt(0)
s_mov_b64 exec, 1
ds_add_rtn_u32 v10, v8, v9
v_mov_b32 v8, 0
s_waitcnt lgkmcnt(0)
v_readfirstlane_b32 s61, v10
s_cmp_lg_u32 s61, 3
s_cbranch_scc1 K1_ns
buffer_atomic_add v9, v8, s[32:35], s59 offen sc1
K1_ns:
s_mov_b64 exec, -1""")
    a("s_branch K2_start" if MONO else "s_endpgm")
    if EARLY:
        t_ = a.lines[cut1:-1]; del a.lines[cut1:]
        t_ = [l.replace("s68", "s23").replace("s69", "s11").replace("v31,", "v252,").replace("s_add_u32 s59, s59, s51", "s_add_u32 s59, s59, s48\n    s_sub_u32 s59, s59, 4").replace("s[80:83]", "s[44:47]").replace("s[80:81]", "s[44:45]").replace("s80", "s44").replace("s81", "s45").replace("s82", "s46").replace("s83", "s47").replace("s61", "s23").replace("s_add_u32 s44, s44, K2_start-K1_pc2", "s_sub_u32 s44, s44, K1_pc2-K2_start").replace("s_addc_u32 s45, s45, 0", "s_subb_u32 s45, s45, 0") for l in t_]
        a.helper_tail = t_
    hl = a.lines[cut0:]; del a.lines[cut0:]
    ACC = 16
    CS = 176
    XF = 204; WF = 236; ONE = 252
    a(f"""K1_comp:
s_movk_i32 s72, 256
s_and_b32 s51, s48, 1              ; a
s_lshr_b32 s52, s48, 1             ; b
v_and_b32 v8, 31, v0
s_lshl_b32 s61, s50, 5
s_sub_u32 s60, s61, 287
s_cmp_lt_u32 s50, 9
s_cselect_b32 s75, 1.0, -1.0       ; sgn
s_cselect_b32 s59, s61, s60        ; jb
s_cselect_b32 s60, 0, 2
v_and_b32 v12, 30, v8
v_add_u32 v12, s59, v12            ; j
v_and_or_b32 v13, v8, 1, s60
v_add_u32 v18, s61, v8
v_cmp_eq_u32 vcc, 1, v18
v_mov_b32 v19, 288
v_lshrrev_b32 v14, 5, v2           ; kk
v_mov_b32 v20, -1
v_cndmask_b32 v12, v12, v19, vcc
v_cndmask_b32_e64 v13, v13, 0, vcc
v_lshrrev_b32 v19, 4, v8
v_mul_u32_u24 v19, 9216, v19
v_and_b32 v9, 15, v0               ; n16
v_lshl_add_u32 v19, v9, 4, v19
v_add_u32 v15, {F_OFF}, v19
s_mov_b32 s70, 0
K1_fg0:
v_mov_b32 v16, v12
v_mov_b32 v17, v13
v_mov_b32 v18, v14
v_lshl_add_u32 v19, v14, 10, v15
K1_fg:""")
    recur(); recur2()
    a(f"""s_cmp_lg_u32 s70, 0
s_cbranch_scc1 K1_fgd
s_mov_b32 s70, 1
v_mov_b32 v14, 8
s_cmp_eq_u32 s48, 0
s_cbranch_scc1 K1_fg0
s_cmp_eq_u32 s48, 3
s_cbranch_scc1 K1_fgd
v_subrev_u32 v18, 64, v2
v_mul_u32_u24 v21, 3641, v18
v_lshrrev_b32 v21, 16, v21         ; row
v_mul_u32_u24 v19, 18, v21
v_sub_u32 v18, v18, v19            ; seg
v_mul_u32_u24 v19, {ESTR}, v21
v_lshl_add_u32 v19, v18, 6, v19
v_add_u32 v19, {E_OFF}, v19
s_lshl_b32 s59, s50, 2
s_add_u32 s59, s59, 225
v_and_b32 v16, 2, v21
v_add_u32 v16, s59, v16
v_cmp_gt_u32 vcc, 4, v21
v_and_b32 v17, 1, v21
s_movk_i32 s72, 16
v_cndmask_b32 v16, 0, v16, vcc
v_cmp_ne_u32 vcc, 5, v21
s_nop 1
v_cndmask_b32_e64 v20, 0, -1, vcc
s_branch K1_fg
K1_fgd:
v_lshrrev_b32 v10, 4, v0           ; g
v_bfe_u32 v11, v0, 2, 2            ; r
v_and_b32 v12, 3, v0
v_lshlrev_b32 v13, 12, v10
v_lshl_add_u32 v13, v11, 7, v13
v_lshl_add_u32 v13, v12, 3, v13
s_lshl_b32 s59, s52, 11
v_add_u32 v13, s59, v13
v_lshrrev_b32 v14, 1, v11
v_and_b32 v15, 1, v10
v_lshl_add_u32 v14, v15, 1, v14    ; swizzle
s_lshl_b32 s59, s51, 1
v_xor_b32 v14, s59, v14
v_lshl_add_u32 v1, v14, 5, v13
v_xor_b32 v2, 32, v1
v_xor_b32 v3, 64, v1
v_xor_b32 v4, 0x60, v1
v_lshrrev_b32 v14, 1, v9
v_xor_b32 v14, v14, v10
v_lshlrev_b32 v14, 4, v14
v_lshl_add_u32 v14, v9, 7, v14
s_lshl_b32 s59, s51, 13
s_add_u32 s59, s59, {X_OFF}
v_add_u32 v8, s59, v14
v_xor_b32 v14, 64, v8
v_min_u32 v13, 5, v9
v_mul_u32_u24 v13, {ESTR}, v13
v_lshl_add_u32 v13, v10, 4, v13
v_add_u32 v13, {E_OFF}, v13        ; E read
v_mov_b32 v{ONE}, 0x3f803f80
v_mov_b32 v{ONE+1}, v{ONE}
v_mov_b32 v{ONE+2}, v{ONE}
v_mov_b32 v{ONE+3}, v{ONE}
s_lshl_b32 s73, s49, 2
s_lshl_b32 s59, s51, 1
s_add_u32 s73, s73, s59
s_waitcnt lgkmcnt(0)
s_cmp_lg_u32 s52, 0
s_cbranch_scc1 K1_c1""")
    def comp(b):
        a.vm = []; a.lg = []
        EA = CS + (24 if b == 0 else 16)
        etok = [0] if b == 0 else [1, 2, 3]
        if b == 0:
            a(f"""v_lshlrev_b32 v5, 9, v10
v_lshl_add_u32 v5, v11, 6, v5
v_lshl_add_u32 v5, v12, 3, v5
v_lshl_add_u32 v5, v15, 5, v5
v_add_u32 v5, 16384, v5
v_xor_b32 v6, 32, v5""")
        else:
            a(f"v_add_u32 v5, {F_OFF}, v7")
        win = [0]
        NF = 11
        def frag(s, j, d):
            base = W_OFF + (s % NW)*WU
            tag = ("f", s, j)
            def setwin():
                want = 0
                if want != win[0]:
                    for k in ([1, 2, 3, 4] + ([5, 6] if b == 0 else [])):
                        a(f"v_add_u32 v{k}, {(want - win[0]) & 0xffffffff:#x}, v{k}")
                    win[0] = want
            def tr(reg, off, t):
                def f():
                    setwin()
                    a.lgop(f"ds_read_b64_tr_b16 v[{d+2*t}:{d+2*t+1}], v{reg} offset:{base - win[0] + off}", tag)
                return f
            if j < 8: return [tr(1 + j % 4, (j//4)*1024 + t*512, t) for t in range(2)]
            if j < 10:
                if b == 0: return [tr(5 + j - 8, t*256, t) for t in range(2)]
                return [lambda: a.lgop(f"ds_read_b128 {r4(d)}, v5 offset:{(j-8)*9216 + (s % 9)*1024}", tag)]
            return [lambda: a.lgop(f"ds_read_b128 {r4(d)}, v13 offset:{s*64}", tag)]
        def xrd(s, i):
            d = XF + 16*(s % 2) + 4*i
            return lambda: a.lgop(f"ds_read_b128 {r4(d)}, v{8 if s % 2 == 0 else 14} offset:{((s//2) % NX)*16384 + i*2048}", ("x", s))
        LA = 3
        order = [10, 0, 1, 4, 5, 2, 3, 6, 7, 8, 9]
        NBAR = opt.get("nbar", 6)
        slot = lambda s, n: WF + 4*((s*NF + n) % 4)
        if opt.get("cprio"): a(f"s_setprio {opt['cprio']}")
        mark(a, opt, 0)
        a("s_barrier")
        mark(a, opt, 1)
        probe(a, opt, 'b0')
        for i in range(4): xrd(0, i)()
        for n in range(LA):
            for f in frag(0, order[n], slot(0, n)): f()
        T0 = XF
        RR = XF + 8
        t = T0
        L = lambda txt: [(lambda l=l: a(l.replace("|", "\n"))) for l in txt.split("\n")]
        pub = L(f"""s_lshl_b32 s59, s52, 9|s_lshl_b32 s60, s51, 7|s_add_u32 s59, s59, s60|s_add_u32 s59, s59, {CSB}
v_lshl_add_u32 v{t+4}, v10, 4, s59
s_lshl_b32 s59, s51, 8|s_add_u32 s59, s59, {STAT}
v_lshl_add_u32 v{t+5}, v9, 2, s59
v_lshl_add_u32 v{t+6}, v0, 2, s59
s_lshl_b32 s59, s48, 10|s_add_u32 s59, s59, 45056
v_lshl_add_u32 v8, v0, 3, s59
v_lshl_add_u32 v{t+7}, v9, 3, s59
v_lshl_add_u32 v14, v0, 2, s59
v_lshl_add_u32 v15, v10, 4, s59""")
        def pub_sum():
            a("s_mov_b32 exec_lo, 0xffff0000\ns_mov_b32 exec_hi, 0")
            for k, i in enumerate(etok): a.lgop(f"ds_write_b32 v{t+5}, v{EA+4*k} offset:{64*i}", "pub")
            a("s_mov_b64 exec, -1")
        def pub_cs(k):
            a("s_mov_b32 exec_lo, 0x10001\ns_mov_b32 exec_hi, 0x10001")
            a.lgop(f"ds_write_b128 v{t+4}, {r4(CS+4*k)} offset:{(k//2)*256 + (k%2)*64}", "pub")
            a("s_mov_b64 exec, -1")
        post = [lambda: a.lgop(f"ds_read_b32 v{t}, v{t+6}", "st"),
                lambda: a.lgop(f"ds_read2st64_b32 v[{t+2}:{t+3}], v{t+6} offset0:2 offset1:4", "st")] + L(f"""s_mul_i32 s58, s73, {144*2048}|s_mul_i32 s59, s50, 9
s_xor_b32 s61, s64, 1|s_lshl_b32 s61, s61, 3
s_add_u32 s61, s61, s59|s_lshl_b32 s61, s61, 11
s_add_u32 s40, s58, s61|s_add_u32 s59, s59, s64
s_lshl_b32 s61, s52, 2|s_add_u32 s59, s59, s61
s_lshl_b32 s59, s59, 11|s_add_u32 s58, s58, s59
s_lshl_b32 s59, s51, 11|s_add_u32 s36, s58, s59
s_xor_b32 s59, s59, 2048|s_add_u32 s37, s58, s59""") + [lambda: a.wait(lg="st")] + L(f"""v_add_f32 v{t+2}, v{t+2}, v{t+3}|v_mul_f32 v{t}, {fbits(-1/576)}, v{t}
v_mul_f32 v{t+2}, {fbits(1/576)}, v{t+2}|v_fma_f32 v{t+2}, -v{t}, v{t}, v{t+2}
v_max_f32 v{t+2}, 0, v{t+2}|v_cvt_pk_bf16_f32 v{t}, v{t}, v{t+2}
v_and_b32 v{t+2}, 0xffff0000, v{t}|v_lshlrev_b32 v{t}, 16, v{t}
v_add_f32 v{t+2}, {fbits(1e-5)}, v{t+2}|v_cvt_pk_bf16_f32 v{t+2}, v{t+2}, v{t+2}
v_lshlrev_b32 v{t+2}, 16, v{t+2}|v_sqrt_f32 v{t+2}, v{t+2}
v_cvt_pk_bf16_f32 v{t+2}, v{t+2}, v{t+2}|v_lshlrev_b32 v{t+2}, 16, v{t+2}
v_rcp_f32 v{t+1}, v{t+2}
v_mul_f32 v{t+2}, {fbits(LOG2E)}, v{t+1}|v_mul_f32 v{t+3}, v{t}, v{t+2}""") + \
               [lambda: (a.lgop(f"ds_write_b64 v8, v[{t+2}:{t+3}]", "rw"), a.lgop(f"ds_write2st64_b32 v14, v{t+1}, v{t} offset0:2 offset1:3", "rw"))] + \
               [lambda i=i: a.lgop(f"ds_read_b64 {p2(RR+2*i)}, v{t+7} offset:{128*i}", "rr") for i in range(4)]
        for s in range(NS):
            if s == 9: mark(a, opt, 2)
            last = s == NS - 1
            xf = XF + 16*(s % 2)
            xo = list(pub) if last else []
            for n, j in enumerate(order):
                d = slot(s, n)
                nn = n + LA
                rds = frag(s, order[nn], slot(s, nn)) if nn < NF else (frag(s + 1, order[nn - NF], slot(s + 1, nn - NF)) if not last else [])
                bar = n == NBAR
                if last:
                    if n == 3: xo += [pub_sum, lambda: pub_cs(0), lambda: pub_cs(1)]
                    if n == 5: xo += [lambda: pub_cs(2), lambda: pub_cs(3)]
                if bar:
                    for f in xo: f()
                    xo = [xrd(s + 1, i) for i in range(4)] if not last else list(post)
                a.wait(lg=[("f", s, j), ("x", s)])
                if b == 1 and s == 9 and j in (8, 9):
                    for k in range(16): a(f"v_mul_f32 v{ACC + j*16 + k}, s75, v{ACC + j*16 + k}")
                ms = []
                c = lambda r: (r4(r) if s else "0")
                if j < 10:
                    if j < 8 and j % 4 < 2:
                        r = CS + 4*((j//4)*2 + j % 4); ms.append(f"{M16} {r4(r)}, {r4(d)}, {r4(ONE)}, {c(r)}")
                    if b == 0 and j >= 8:
                        r = CS + 16 + 4*(j - 8); ms.append(f"{M16} {r4(r)}, {r4(d)}, {r4(ONE)}, {c(r)}")
                    for i in range(4):
                        r = ACC + (j*4 + i)*4
                        if b == 1 and j >= 8: ms.append(f"{M16} {r4(r)}, {r4(xf+4*i)}, {r4(d)}, {c(r)}")
                        else: ms.append(f"{M16} {r4(r)}, {r4(d)}, {r4(xf+4*i)}, {c(r)}")
                else:
                    for k, i in enumerate(etok):
                        r = EA + 4*k; ms.append(f"{M16} {r4(r)}, {r4(d)}, {r4(xf+4*i)}, {c(r)}")
                for q, m in enumerate(ms):
                    a(m)
                    if bar and q == 0:
                        if last: a.wait(lg="pub")
                        a("s_barrier")
                    elif rds: rds.pop(0)()
                    elif xo:
                        xo.pop(0)()
                    if last and n > NBAR and xo and not rds and q % 2: xo.pop(0)()
                for f in rds: f()
            for f in xo: f()
        mark(a, opt, 3)
        probe(a, opt, 'l1')
        a(f"""s_lshl_b32 s59, s52, 9
s_add_u32 s59, s59, {CSB}
v_lshl_add_u32 v4, v10, 4, s59
v_add_u32 v1, s60, v4
s_xor_b32 s60, s60, 128
v_add_u32 v2, s60, v4
s_lshl_b32 s61, s64, 7
v_add_u32 v5, s61, v1
v_add_u32 v6, s61, v2
s_xor_b32 s61, s64, 1
s_lshl_b32 s61, s61, 10
s_add_u32 s61, s61, {BIAS}
v_lshl_add_u32 v11, v10, 4, s61
s_add_u32 s38, s36, 4096
s_add_u32 s39, s37, 4096""")
        CB = XF + 16
        npair = 5 if b == 0 else 4
        def cbread(p, tl):
            s = CB + 8*((2*p + tl) % 2)
            if p < 4:
                a.lgop(f"ds_read_b128 {r4(s)}, v{1 + p % 2} offset:{(p//2)*256 + tl*64}", ("cb", p, tl))
                a.lgop(f"ds_read_b128 {r4(s+4)}, v{5 + p % 2} offset:{BIAS - CSB + (p//2)*256 + tl*64}", ("cb", p, tl))
            else:
                a.lgop(f"ds_read_b128 {r4(s+4)}, v11 offset:{tl*64}", ("cb", p, tl))
        K1c, K2c = 244, 246
        a(f"v_mov_b32 v{K1c}, -0.5\nv_mov_b32 v{K1c+1}, -0.5\nv_mov_b32 v{K2c}, -1.0\nv_mov_b32 v{K2c+1}, -1.0")
        cbread(0, 0); cbread(0, 1)
        a.wait(lg="rr")
        E = WF
        def tstage(p, tl):
            a.wait(lg=("cb", p, tl))
            a(".p2align 3")
            s = CB + 8*((2*p + tl) % 2)
            cs = s if p < 4 else CS + 16 + 4*tl
            for i in range(4):
                r = ACC + ((2*p + tl)*4 + i)*4
                for h in (0, 2): a(f"v_pk_fma_f32 {p2(E+h+4*(i%2))}, {p2(cs+h)}, {p2(RR+2*i)}, {p2(s+4+h)} op_sel:[0,1,0] op_sel_hi:[1,1,1]")
                for h in (0, 2): a(f"v_pk_fma_f32 {p2(r+h)}, {p2(r+h)}, {p2(RR+2*i)}, {p2(E+h+4*(i%2))} op_sel_hi:[1,0,1]")
            if p + 1 < npair: cbread(p + 1, tl)
        P = ONE - 4
        def mish8(p, i):
            rs = [ACC + ((2*p + tl)*4 + i)*4 for tl in range(2)]
            reg = lambda k: rs[k//4] + k % 4
            a(".p2align 3")
            for k in range(8): a(f"v_exp_f32 v{E+k}, v{reg(k)}")
            for k in range(0, 8, 2): a(f"v_pk_fma_f32 {p2(P+k)}, {p2(E+k)}, {p2(K1c)}, {p2(K2c)}")
            for k in range(0, 8, 2): a(f"v_pk_fma_f32 {p2(E+k)}, {p2(E+k)}, {p2(P+k)}, {p2(K2c)}")
            for k in range(8): a(f"v_rcp_f32 v{E+k}, v{E+k}")
            for k in range(0, 8, 2): a(f"v_pk_fma_f32 {p2(reg(k))}, {p2(reg(k))}, {p2(E+k)}, {p2(reg(k))}")
            for k in range(4): a(f"v_cvt_pk_bf16_f32 v{rs[0]+k}, v{reg(2*k)}, v{reg(2*k+1)}")
            if i == 2: a(f"s_add_u32 s{36+p}, s{36+p}, {144*2048}")
            a.vmop(f"buffer_store_dwordx4 {r4(rs[0])}, v7, s[32:35], s{36+p} offen offset:{(i%2)*1024} {st_act}", ("st", p))
            if EARLY: a.lgop(f"ds_write_b128 v12, {r4(rs[0])} offset:{i*1024}", "own")
        a(f"""v_lshrrev_b32 v{E}, 2, v9
v_lshlrev_b32 v{E}, 4, v{E}
v_and_b32 v{E+1}, 3, v9
v_lshl_add_u32 v{E}, v{E+1}, 1, v{E}
s_lshl_b32 s76, s51, 7
s_add_u32 s76, s76, {UI}
v_add_u32 v{E}, s76, v{E}""")
        if b == 1:
            R2 = CS
            def r2rd(i):
                a.lgop(f"ds_read_b128 {r4(R2+8*(i%2))}, v15 offset:{512 + 64*i}", ("r2", i))
                a.lgop(f"ds_read_b128 {r4(R2+8*(i%2)+4)}, v15 offset:{768 + 64*i}", ("r2", i))
            r2rd(0); r2rd(1)
        for k, i in enumerate(etok):
            a(f"v_mul_f32 v{E+2}, {fbits(LN2)}, v{RR+2*i}")
            for j in range(4): a(f"v_mul_f32 v{EA+4*k+j}, v{EA+4*k+j}, v{E+2}")
            a(f"v_cvt_pk_bf16_f32 v{EA+4*k}, v{EA+4*k}, v{EA+4*k+1}\nv_cvt_pk_bf16_f32 v{EA+4*k+1}, v{EA+4*k+2}, v{EA+4*k+3}")
        a("s_barrier")
        a("s_mov_b64 exec, 0xffff")
        for j in range(4):
            for k, i in enumerate(etok):
                op = "ds_write_b16" if j % 2 == 0 else "ds_write_b16_d16_hi"
                a.lgop(f"{op} v{E}, v{EA+4*k+j//2} offset:{(32 + j)*256 + (i//2)*64 + (i%2)*8}", "ui")
        a("s_mov_b64 exec, -1")
        if b == 1:
            a(f"""s_mov_b32 s78, 0
s_cmp_eq_u32 s50, 0
s_cselect_b32 s78, {fbits(576.0)}, s78
s_cmp_eq_u32 s50, 2
s_cselect_b32 s78, {fbits(-0.25)}, s78
s_cmp_eq_u32 s50, 4
s_cselect_b32 s78, {fbits(-0.25)}, s78
s_cmp_eq_u32 s50, 8
s_cselect_b32 s78, {fbits(-0.25)}, s78
v_cmp_eq_u32 vcc, 0, v9
v_mov_b32 v{E+1}, s78
v_lshlrev_b32 v{E+2}, 4, v10
v_lshl_add_u32 v{E+2}, v9, 8, v{E+2}
v_cndmask_b32 v{E+1}, 0, v{E+1}, vcc
v_add_u32 v{E+2}, s76, v{E+2}""")
            for i in range(4):
                a.wait(lg=("r2", i))
                q = R2 + 8*(i % 2)
                for ct in range(2):
                    r = ACC + ((8 + ct)*4 + i)*4
                    if ct == 0:
                        for j in range(4): a(f"v_fmac_f32 v{r+j}, v{q+4+j}, v{E+1}")
                    for h in (0, 2): a(f"v_pk_mul_f32 {p2(r+h)}, {p2(r+h)}, {p2(q+h)}")
                    d = ACC + ((8 + ct)*4 + (i & 2))*4 + 2*(i % 2)
                    for h in range(2): a(f"v_cvt_pk_bf16_f32 v{d+h}, v{r+2*h}, v{r+2*h+1}")
                    if i % 2 == 1:
                        a.lgop(f"ds_write_b128 v{E+2}, {r4(d-2)} offset:{ct*4096 + (i//2)*64}", "ui")
                if i < 2: r2rd(i + 2)
            if opt.get("ubar1", -1) < 0: a.wait(lg="ui"); a("s_barrier")
        for p in range(npair):
            if EARLY:
                u0, u1 = (4*b + p, 4*b + (p ^ 1)) if p < 4 else (8, 8)
                a(f"s_mul_i32 s59, s51, {(own_base(u1) - own_base(u0) + 4096) & 0xffffffff:#x}\ns_add_u32 s59, s59, {own_base(u0)}\ns_cmp_eq_u32 s3, 0\ns_cselect_b32 s59, {OWN_X}, s59\nv_add_u32 v12, s59, v7")
            tstage(p, 0); tstage(p, 1)
            for i in range(4):
                mish8(p, i)
                if 4*p + i == (opt.get("ubar", 1) if b == 0 else opt.get("ubar1", -1)):
                    a.wait(lg="ui"); a("s_barrier")
        mark(a, opt, 4)
        mark(a, opt, 5)
        if EARLY and opt.get("defer", 1):
            a(f"""s_lshl_b32 s98, s49, 2
s_lshr_b32 s59, s50, 2
s_add_u32 s98, s98, s59
s_lshl_b32 s98, s98, 7
s_add_u32 s98, s98, {WS_SYNC + 64*128}""")
        elif MONO: signal(64)
        probe(a, opt, 'e1')
        if opt.get("stamp"):
            if not EARLY: a.wait(vm="all")
            stamp_out(a, 0, "s48", 32, "K1_end", wait=not EARLY)
        a("s_branch K2_start" if MONO else "s_endpgm")
    comp(0)
    a("K1_c1:")
    comp(1)
    a.lines += hl
    a("K1_end:\ns_endpgm")
    a.end_kernel(KN, 256, 102)
    a.launch(KN, 256, 512, 163840)
```

```python
from fw import *
from common import *
import numpy as np
M32 = "v_mfma_f32_32x32x16_bf16"; M16 = "v_mfma_f32_16x16x32_bf16"
def r4(x): return f"v[{x}:{x+3}]"
def r16(x): return f"v[{x}:{x+15}]"
UNIT = 20480; NRING = 6; NU = 36
T_C32, T_S32, T_C64, T_S64, T_TW1, T_TW2, T_END = 0, 2048, 4096, 8192, 12288, 28672, 45056
VIMG = 53248

def f2bf(x):
    u = np.ascontiguousarray(x, dtype=np.float32).view(np.uint32)
    return ((u + 0x7FFF + ((u >> 16) & 1)) >> 16).astype(np.uint16)
def fft_tables():
    lane = np.arange(64); n = lane & 31; h = lane >> 5
    i8 = np.arange(8); perm = (i8 & 3) + 8*(i8 >> 2)
    out = []
    def frag(N, lanebase, ks, fn):
        b = 16*ks + 4*h[:, None] + perm[None, :]
        return f2bf(fn(2*np.pi*(((lanebase + n)[:, None]*b) % N)/N)).tobytes()
    for fn in (np.cos, np.sin):
        for ks in range(2): out.append(frag(32, 0, ks, fn))
    for fn in (np.cos, np.sin):
        for e in range(2):
            for p1 in range(2):
                j = 2*i8 + e
                b = 32*p1 + (j & 3)[None, :] + 8*(j >> 2)[None, :] + 4*h[:, None]
                out.append(f2bf(fn(2*np.pi*((n[:, None]*b) % 64)/64)).tobytes())
    j4 = np.arange(4)
    for tw in range(2):
        for p in range(2):
            for jg in range(4):
                r = 8*jg + 4*h[:, None] + j4[None, :]
                prod = (32*p + r)*n[:, None] if tw == 0 else (32*p + n[:, None])*r
                for fn in (np.cos, np.sin):
                    out.append(fn(2*np.pi*prod/2048).astype(np.float32).tobytes())
    b = b"".join(out); assert len(b) == T_END
    return np.frombuffer(b, np.uint32)

def gen_k2(a, opt):
    st_p = opt.get("st_p", "sc1"); st_v = opt.get("st_v", "sc1"); st_g = opt.get("st_g", "sc1")
    ld_w2 = opt.get("ld_w2", ""); ld_act = opt.get("ld_act", "")
    B1 = opt.get("k1b", 1); MG = opt.get("merge", 1)
    def p2(x): return f"v[{x}:{x+1}]"
    MONO = opt.get("mono", 1)
    sigB = """v_mov_b32 v14, 0
v_mov_b32 v15, 1
s_waitcnt vmcnt(0)
s_mov_b64 exec, 1
buffer_atomic_add v15, v14, s[32:35], s98 offen sc1
s_mov_b64 exec, -1"""
    if not opt.get("defer", 1): sigB = ""
    if MONO: ld_act = opt.get("ld_act", "sc1")
    SC = "sc1" if MONO else ""
    vpos = "v_lshlrev_b32 v6, 2, v2" if not B1 else """v_and_b32 v6, 7, v2
v_bfe_u32 v8, v2, 3, 1
v_lshl_add_u32 v6, v8, 4, v6
v_bfe_u32 v8, v2, 4, 1
v_lshl_add_u32 v6, v8, 3, v6
v_lshlrev_b32 v6, 2, v6"""
    if MONO:
        a(".p2align 8\nK2_start:")
        if opt.get("stamp"): a("s_memrealtime s[90:91]")
        a("s_load_dwordx2 s[24:25], s[0:1], 48")
    else:
        a.begin_kernel("k2_kernel")
        a("K2_start:\ns_cmp_ge_u32 s2, 256\ns_cbranch_scc1 K2_end")
        if opt.get("stamp"): a("s_memrealtime s[90:91]")
        a("""s_load_dwordx2 s[24:25], s[0:1], 48
s_load_dwordx2 s[32:33], s[0:1], 72
v_lshrrev_b32 v1, 6, v0
v_and_b32 v0, 63, v0
v_readfirstlane_b32 s48, v1        ; wave""")
    a(f"""s_and_b32 s49, s2, 7               ; xcd
s_lshr_b32 s50, s2, 3              ; idx
s_mov_b32 s26, {F*D*2}
s_mov_b32 s27, 0x20000
s_mov_b32 s34, 0x10000000
s_mov_b32 s35, 0x20000
v_lshlrev_b32 v7, 4, v0            ; lane*16
s_cmp_lt_u32 s50, 8
s_cbranch_scc1 K2_fft
s_sub_u32 s50, s50, 8
s_lshr_b32 s51, s49, 1             ; split
s_and_b32 s52, s49, 1
s_lshl_b32 s52, s52, 3
s_and_b32 s59, s50, 7
s_add_u32 s52, s52, s59            ; rb
s_lshr_b32 s53, s50, 3             ; cb
s_cmp_lt_u32 s48, 4
s_cbranch_scc1 K2_comp""")
    a(f"""s_sub_u32 s54, s48, 4              ; lw
s_lshl_b32 s55, s52, 2
s_add_u32 s55, s55, s54            ; G
s_mul_i32 s55, s55, {144*2048}
s_mul_i32 s59, s51, {36*2048}
s_add_u32 s55, s55, s59
s_mul_i32 s56, s51, {1152*1152}
s_mul_i32 s59, s54, {8*1152}
s_add_u32 s56, s56, s59
s_mul_i32 s59, s53, 192
s_add_u32 s56, s56, s59
v_lshrrev_b32 v2, 3, v0            ; r
v_and_b32 v3, 7, v0
v_and_b32 v4, 6, v2
v_xor_b32 v3, v3, v4
v_mul_u32_u24 v2, 1152, v2
v_lshl_add_u32 v2, v3, 4, v2
s_and_b32 s59, s53, 1
s_lshl_b32 s60, s59, 6
v_add_u32 v244, s60, v2
s_sub_u32 s60, 640, s60
v_add_u32 v245, s60, v2
s_lshl_b32 s60, s59, 7
s_sub_u32 s61, 128, s60
s_lshl_b32 s60, s60, 1
s_add_u32 s60, s60, 384
v_lshrrev_b32 v3, 2, v3
v_mad_u32_u24 v246, v3, s60, v2
v_add_u32 v246, s61, v246
s_lshl_b32 s57, s54, 11
s_mul_i32 s58, s54, 3072
s_add_u32 s58, s58, 8192
s_and_b32 s60, s52, {opt.get("k2_rotmask", 0)}
s_mul_i32 s60, s60, {opt.get("k2_rot", 9)}
s_lshr_b32 s60, s60, 1
s_waitcnt lgkmcnt(0)""")
    EARLY = MONO and opt.get("early", 1)
    def htail(sfx, mid=None):
        import re
        for l in a.helper_tail:
            if mid and "s_and_b32 s59, s2, 7" in l: mid()
            for x in l.split("\n"): a(re.sub(r"(K1_nex|K1_ns|K1_pc2)", r"\1" + sfx, x))
    if EARLY:
        for k in range(4):
            a(f"s_add_u32 s59, s53, {k+1}\ns_and_b32 s59, s59, 3\ns_mul_i32 s60, s59, {9*2048}\ns_add_u32 s{76+k}, s55, s60\ns_mul_i32 s60, s59, {9*32*1152}\ns_add_u32 s{80+k}, s56, s60")
        a(f"s_and_b32 s59, s53, 1\ns_mul_i32 s60, s59, {8*32*1152}\ns_add_u32 s75, s80, s60\ns_xor_b32 s59, s59, 1\ns_mul_i32 s60, s59, {32*1152}\ns_add_u32 s74, s80, s60")
    def load_act(u):
        base = (u % NRING)*UNIT
        if EARLY:
            if u < 9: return
            a(f"s_add_u32 m0, s57, {base}\ns_add_u32 s59, s{76 + u//9}, {(u % 9)*2048}")
        else: a(f"s_add_u32 m0, s57, {base}\ns_add_u32 s59, s55, {u*2048}")
        a.vmop(f"buffer_load_dwordx4 v7, s[32:35], s59 offen {ld_act} lds", ("u", u))
        a.vmop(f"buffer_load_dwordx4 v7, s[32:35], s59 offen offset:1024 {ld_act} lds", ("u", u))
    def load_w(u):
        base = (u % NRING)*UNIT
        for j in range(3):
            a(f"s_add_u32 m0, s58, {base + j*1024}")
            if j == 0:
                if not EARLY: a(f"s_add_u32 s61, s56, {u*32*1152}")
                elif u < 8: a(f"s_add_u32 s61, s74, {u*32*1152}")
                elif u == 8: a("s_mov_b32 s61, s75")
                else: a(f"s_add_u32 s61, s{80 + u//9}, {(u % 9)*32*1152}")
            a.vmop(f"buffer_load_dwordx4 v{244+j}, s[24:27], s61 offen {ld_w2} lds", ("u", u))
    wdone = [0]
    def load_unit(u):
        load_act(u)
        if u >= wdone[0]: load_w(u)
    VL = NRING*UNIT
    FL = VL + 36864
    PA = 16; GB = 40; RC = 148; VB = 208
    g_ = []
    if MG:
        PQ = lambda t, k: RC + 16*t + 8*(k % 2)
        KK = lambda t: RC + 48 + 2*t
        R2 = RC + 54; SP = RC + 56
        g_ += f"""s_and_b32 s64, s54, 1              ; par
s_lshr_b32 s65, s54, 1             ; tile half
v_and_b32 v1, 15, v0
v_lshrrev_b32 v3, 4, v0
v_lshl_add_u32 v4, v3, 3, s64
v_cvt_f32_u32 v4, v4               ; j0
s_lshl_b32 s63, s53, 1
s_add_u32 s63, s63, s65
s_mul_i32 s63, s63, 48
v_add_u32 v10, s63, v1
v_cmp_eq_f32 s[70:71], 0, v4
v_cvt_f32_u32 v11, v10
v_lshlrev_b32 v{SP}, 31, v10
v_mul_f32 v11, {fbits(1/576)}, v11
v_or_b32 v{SP}, 0x3f003f00, v{SP}""".split("\n")
        def rot(dst, src, cs):
            g_.append(f"v_pk_mul_f32 {p2(dst)}, {p2(src)}, {p2(cs)} op_sel_hi:[1,0]")
            g_.append(f"v_pk_fma_f32 {p2(dst)}, {p2(src)}, {p2(cs)}, {p2(dst)} op_sel:[1,1,0] op_sel_hi:[0,1,1] neg_hi:[0,1,0]")
        for t in range(3):
            P, Q = PQ(t, 0), PQ(t, 1)
            if t: g_.append(f"v_add_f32 v11, {fbits(16/576)}, v11")
            g_ += f"""v_mul_f32 v12, v4, v11
v_add_f32 v13, v11, v11
v_mul_f32 v14, {fbits(32.0)}, v11
v_cos_f32 v{P}, v12
v_sin_f32_e64 v{P+1}, -v12
v_cos_f32 v{R2}, v13
v_sin_f32 v{R2+1}, v13
v_cos_f32 v{KK(t)}, v14
v_sin_f32 v{KK(t)+1}, v14""".split("\n")
            rot(P+4, P, R2); rot(Q, P, KK(t)); rot(P+2, P+4, R2); rot(Q+4, P+4, KK(t)); rot(P+6, P+2, R2); rot(Q+2, P+2, KK(t)); rot(Q+6, P+6, KK(t))
            g_.append(f"v_add_f32 v{KK(t)}, v{KK(t)}, v{KK(t)}")
        npk = opt.get("g_npk", 2 if EARLY else 4)
        for kk in range(9):
            if kk >= 2:
                for t in range(3):
                    cur, oth = PQ(t, kk), PQ(t, kk + 1)
                    if kk < npk:
                        for i in range(0, 8, 2): g_.append(f"v_pk_fma_f32 {p2(cur+i)}, {p2(oth+i)}, {p2(KK(t))}, {p2(cur+i)} op_sel_hi:[1,0,1] neg_lo:[0,0,1] neg_hi:[0,0,1]")
                    else:
                        for i in range(8): g_.append(f"v_fma_f32 v{cur+i}, v{oth+i}, v{KK(t)}, -v{cur+i}")
            for t in range(3):
                cur = PQ(t, kk)
                for i in range(4): g_.append(f"v_cvt_pk_bf16_f32 v{GB+12*kk+4*t+i}, v{cur+2*i}, v{cur+2*i+1}")
                if kk == 0: g_.append(f"v_cndmask_b32_e64 v{GB+4*t}, v{GB+4*t}, v{SP}, s[70:71]")
            if kk == npk - 1: npre = len(g_)
        g_ += f"""v_min_u32 v8, 7, v0
v_min_u32 v9, 1, v8
v_lshlrev_b32 v8, 7, v8
v_sub_u32 v9, 37, v9
s_mov_b32 s69, {WS_SYNC + 48*128}
s_lshl_b32 s66, s52, 2
s_add_u32 s66, s66, s51            ; G of the final task
s_lshl_b32 s68, s64, 1
s_add_u32 s68, s68, s65            ; quarter of V this wave loads
s_mul_i32 s67, s68, {72*8192}
s_lshl_b32 s66, s66, 7
s_add_u32 s67, s67, s66
s_add_u32 s67, s67, {WS_V}
s_mul_i32 s68, s68, 9216
s_add_u32 s68, s68, {VL}
v_lshrrev_b32 v5, 3, v0
v_and_b32 v6, 4, v5
v_xor_b32 v6, v6, v0
v_and_b32 v6, 7, v6
v_lshlrev_b32 v6, 4, v6
v_lshl_add_u32 v6, v5, 13, v6      ; V dma voffset
v_lshlrev_b32 v10, 9, v3
v_lshl_add_u32 v10, v1, 2, v10
v_and_b32 v11, 1, v3
v_lshl_add_u32 v10, v11, 6, v10
s_mul_i32 s66, s64, 18432
s_add_u32 s66, s66, {VL}
v_add_u32 v10, s66, v10
v_xor_b32 v11, 64, v10
v_add_u32 v12, 128, v10
v_add_u32 v13, 128, v11
s_mul_i32 s66, s54, {UNIT}
v_add_u32 v14, s66, v7             ; exchange write""".split("\n")
        a(f"""s_lshl_b32 s59, s54, 2
s_add_u32 s59, s59, {FL}
v_mov_b32 v240, s59
v_xor_b32 v241, 8, v240
v_mov_b32 v243, 0
v_mov_b32 v242, 1""")
    def vissue():
        a(f"v_mov_b32 v249, {FL + 16}\nds_write_b32 v249, v242")
        for k in range(9):
            a(f"buffer_load_dwordx4 v6, s[32:35], s67 offen sc1 lds")
            if k < 8: a("s_add_u32 m0, m0, 1024\ns_add_u32 s67, s67, 65536")
    def gen(n):
        for _ in range(n):
            if g_: a(g_.pop(0))
    a.vm = []
    first = opt.get("k2_first", 4)
    if MONO:
        wdone[0] = opt.get("wpre", 4)
        w1 = opt.get("wpre1", 2) if EARLY else wdone[0]
        for u in range(w1):
            load_w(u)
            if not EARLY: a("s_waitcnt vmcnt(0)")
        if EARLY:
            htail("g")
            a.vm = []
            for u in range(w1, wdone[0]): load_w(u)
        a(f"""s_lshl_b32 s62, s52, 2
s_add_u32 s62, s62, s51
s_lshl_b32 s62, s62, 7
s_add_u32 s62, s62, {WS_SYNC + 64*128}""")
        n1 = opt.get("g_n1", 0)
        if EARLY: npre = 0
        else:
            a("s_barrier")
            gen(n1)
            a("s_cmp_lg_u32 s54, 0\ns_cbranch_scc1 K2_pa_d")
            poll(a, "K2_pa", 243, "s62", "16", sleep=opt.get("pasleep", 2))
            a("s_barrier")
        if not EARLY: a.vm = []
        first = wdone[0] if EARLY else opt.get("k2_first", 4)
        for u in range(first): load_unit(u)
        gen(npre - n1)
    else:
      for u in range(first):
        load_unit(u)
        if MG and u >= 1: gen(-(-npre // (first - 1)))
    nu = first
    per = -(-len(g_) // opt.get("g_per", 12))
    for g in range(NU//2):
        a.wait(vm=[("u", 2*g), ("u", 2*g+1)])
        if g == 1: a("s_waitcnt lgkmcnt(0)")
        a("s_barrier")
        if g == 0 and MG: a("ds_write_b32 v240, v243\nds_write_b32 v240, v243 offset:16")
        if MG and g == NU//2 - 3:
            assert not g_
            a.vmop("buffer_load_dword v15, v8, s[32:35], s69 offen sc1", "flag")
        if MG and g == NU//2 - 2:
            a.wait(vm="flag")
            nrem = len(a.vm)
            a("v_cmp_ne_u32 vcc, v15, v9\ns_mov_b32 m0, s68\ns_nop 3\ns_cbranch_vccnz K2_late")
            vissue()
            a("s_waitcnt vmcnt(9)\ns_barrier\ns_branch K2_vw\nK2_late:")
        lim = min(NU, 2*g + NRING, nu + opt.get("k2_ramp", 2))
        gchk = opt.get("g_chk", 3)
        if EARLY and g < gchk:
            if g == gchk - 1: a.vmop("buffer_load_dword v247, v243, s[32:35], s62 offen sc1", "a2")
            while wdone[0] < 2*g + NRING:
                load_w(wdone[0]); wdone[0] += 1
                gen(-(-per // 2))
            nu = 9
            continue
        if EARLY and g == gchk:
            a.wait(vm="a2")
            a("v_cmp_ne_u32 vcc, 16, v247\ns_nop 4\ns_cbranch_vccz K2_pb_d")
            poll(a, "K2_pb", 243, "s62", "16", tmp=247, sleep=opt.get("pbsleep", 4))
            lim = min(2*g + NRING, 2*g + 2 + opt.get("k2_first", 4))
        while nu < lim:
            load_unit(nu); nu += 1
            gen(-(-per // 2))
        if g == NU//2 - 3 and opt.get("pf3c", 1) and "3" in opt.get("kernels", "123") and not MG:
            a("""s_getpc_b64 s[40:41]
K2_pc:
s_add_u32 s40, s40, k3_kernel-K2_pc
s_addc_u32 s41, s41, 0
s_mov_b32 s42, code_end-k3_kernel
s_mov_b32 s43, 0x20000
v_lshrrev_b32 v8, 1, v0
v_lshlrev_b32 v8, 7, v8
s_lshl_b32 s59, s54, 12""")
            a.vmop("buffer_load_dword v9, v8, s[40:43], s59 offen", "pf")
            a(f"""s_load_dwordx2 s[36:37], s[0:1], 0
s_mov_b32 s38, {T*D*2}
s_mov_b32 s39, 0x20000
v_and_b32 v8, 7, v0
v_mul_u32_u24 v8, 73728, v8
v_lshrrev_b32 v10, 3, v0
v_min_u32 v10, 2, v10
v_lshl_add_u32 v8, v10, 7, v8
s_lshl_b32 s59, s49, 3
s_and_b32 s62, s50, 7
s_add_u32 s59, s59, s62
s_mul_i32 s59, s59, 1152
s_mul_i32 s62, s53, 384
s_add_u32 s59, s59, s62
s_mul_i32 s62, s54, {8*73728}
s_add_u32 s59, s59, s62
s_waitcnt lgkmcnt(0)""")
            a.vmop("buffer_load_dword v9, v8, s[36:39], s59 offen", "pf")
    if MG:
        mark(a, opt, 0)
        a(f"v_mov_b32 v249, {FL + 16}\ns_cmp_lg_u32 s54, 0\ns_cbranch_scc1 K2_pl")
        poll(a, "K2_pv", 8, "s69", "v9", sleep=opt.get("pvsleep", 8))
        a("""s_branch K2_pl_d
K2_pl:
s_mov_b32 s72, 0x400000
K2_pl2:
ds_read_b32 v15, v249
s_waitcnt lgkmcnt(0)
v_cmp_ne_u32 vcc, 0, v15
s_sub_u32 s72, s72, 1
s_cbranch_scc1 K2_pl_d
s_nop 2
s_cbranch_vccnz K2_pl_d
s_sleep 2
s_branch K2_pl2
K2_pl_d:""")
        a("s_mov_b32 m0, s68\ns_nop 0")
        vissue()
        a("K2_vw:")
        mark(a, opt, 1)
        a("s_waitcnt vmcnt(0)")
        mark(a, opt, 2)
        a("""ds_write_b32 v240, v242
s_mov_b32 s72, 0x400000
K2_hs:
ds_read_b32 v243, v241
s_waitcnt lgkmcnt(0)
v_cmp_eq_u32 vcc, 0, v243
s_sub_u32 s72, s72, 1
s_cbranch_scc1 K2_hs_d
s_nop 2
s_cbranch_vccnz K2_hs
K2_hs_d:""")
        mark(a, opt, 3)
        a.lg = []
        def vread(kk, n):
            th, z = n // 2, n % 2
            d = VB + 8*(kk % 4) + 4*th + 2*z
            a.lgop(f"ds_read2st64_b32 v[{d}:{d+1}], v{10+th+2*z} offset0:{8*kk} offset1:{8*kk+1}", ("v", kk))
        for kk in range(3):
            for n in range(4): vread(kk, n)
        for kk in range(9):
            a.wait(lg=("v", kk))
            n = 0
            for t in range(3):
                for th in range(2):
                    d = PA + 8*t + 4*th
                    a(f"{M16} {r4(d)}, {r4(GB+12*kk+4*t)}, {r4(VB+8*(kk%4)+4*th)}, " + (r4(d) if kk else "0"))
                    if kk + 3 < 9 and n < 4: vread(kk + 3, n)
                    n += 1
        for k in range(6): a(f"ds_write_b128 v14, {r4(PA+4*k)} offset:{k*1024}")
        a("s_waitcnt lgkmcnt(0)")
        mark(a, opt, 4)
        a("s_barrier")
        mark(a, opt, 5)
        if opt.get("stamp"): stamp_out(a, 2, "s48", 32, "K2_end")
    a("s_endpgm")
    ACC = 16; FB = 112
    a("K2_comp:")
    if MONO and not EARLY: a("s_barrier")
    a(f"""s_and_b32 s54, s48, 1
s_lshr_b32 s55, s48, 1             ; b : d tiles 6b..6b+5
v_lshrrev_b32 v8, 4, v0            ; g
v_and_b32 v9, 15, v0
v_lshlrev_b32 v10, {8 if B1 else 9}, v8
v_lshl_add_u32 v10, v9, 4, v10
s_lshl_b32 s59, s54, 12
v_add_u32 v5, s59, v10
v_add_u32 v248, {OWN_X}, v5
v_lshrrev_b32 v10, 2, v9           ; r
v_and_b32 v11, 1, v8
v_lshl_add_u32 v10, v11, 2, v10
v_lshrrev_b32 v11, 1, v8
v_mul_u32_u24 v11, {3072 if B1 else 6144}, v11
v_lshl_add_u32 v11, v10, 7, v11
v_and_b32 v12, 3, v0
v_lshl_add_u32 v11, v12, 3, v11
v_add_u32 v11, 8192, v11
v_lshrrev_b32 v10, 1, v10          ; swizzle
s_lshl_b32 s59, s55, 10
v_lshl_add_u32 v12, v10, 5, v11
v_add_u32 v1, s59, v12
v_xor_b32 v2, 32, v1
v_xor_b32 v3, 64, v1
v_xor_b32 v4, 0x60, v1
s_lshl_b32 s59, s55, 6
v_xor_b32 v12, s59, v12
v_add_u32 v6, 2048, v12
v_xor_b32 v13, 32, v6""")
    a(f"""s_mul_i32 s57, s51, {64*18*2048}
s_lshl_b32 s59, s52, 2
s_lshl_b32 s60, s54, 1
s_add_u32 s59, s59, s60
s_mul_i32 s59, s59, {18*2048}
s_add_u32 s57, s57, s59
s_mul_i32 s59, s53, 6
s_mul_i32 s60, s55, 3
s_add_u32 s59, s59, s60
s_lshl_b32 s59, s59, 10
s_add_u32 s57, s57, s59
s_add_u32 s57, s57, {WS_PART}
s_waitcnt lgkmcnt(0)""")
    a.vm = []; a.lg = []
    win = [0]
    def reads(u):
        base = (u % NRING)*UNIT
        fb = FB + (u % 2)*40
        ops = []
        def setwin():
            if not (win[0] <= base and base + 8192 - win[0] <= 65535):
                for k in (1, 2, 3, 4, 5, 6, 13):
                    a(f"v_add_u32 v{k}, {(base - win[0]) & 0xffffffff:#x}, v{k}")
                win[0] = base
        def act(i):
            setwin()
            if EARLY and 6 <= u < 9: a.lgop(f"ds_read_b128 {r4(fb+4*i)}, v248 offset:{(u - 6)*8192 + i*1024}", ("a", u))
            else: a.lgop(f"ds_read_b128 {r4(fb+4*i)}, v5 offset:{base - win[0] + i*1024}", ("a", u))
        def w(j, t):
            d = fb + 16 + 4*j + 2*t
            a.lgop(f"ds_read_b64_tr_b16 v[{d}:{d+1}], v{(1, 2, 3, 4, 6, 13)[j]} offset:{base - win[0] + t*6144}", ("w", u, j))
        for i in range(4): ops.append(lambda i=i: act(i))
        for j in range(6):
            for t in range(2): ops.append(lambda j=j, t=t: w(j, t))
        return ops
    if MG:
        st_o = opt.get("st_o", "")
        OUT = 192; XR = 216; EO = 16; PB = 64; U = 228
        a(f"""s_load_dwordx2 s[36:37], s[0:1], 0
s_load_dwordx2 s[40:41], s[0:1], 56
s_mov_b32 s38, {T*D*2}
s_mov_b32 s39, 0x20000
s_mov_b32 s42, {T*D*2}
s_mov_b32 s43, 0x20000
v_and_b32 v240, 8, v9
v_add_u32 v240, v240, v9
v_mul_u32_u24 v240, 73728, v240
v_and_b32 v241, 1, v8
v_lshl_add_u32 v240, v241, 5, v240
v_lshrrev_b32 v242, 1, v8
v_lshl_add_u32 v240, v242, 4, v240
s_lshl_b32 s66, s52, 2
s_add_u32 s66, s66, s51            ; G
s_mul_i32 s74, s54, 9
s_mul_i32 s59, s53, 3
s_add_u32 s74, s74, s59
s_mul_i32 s58, s66, 1152
s_lshl_b32 s59, s74, 6
s_add_u32 s58, s58, s59
s_mul_i32 s59, s55, {8*73728}
s_add_u32 s58, s58, s59
s_mul_i32 s73, s66, 36864
s_lshl_b32 s59, s53, 1
s_add_u32 s59, s59, s54
s_mul_i32 s59, s59, 3072
s_add_u32 s73, s73, s59
s_add_u32 s59, s53, s54
s_and_b32 s59, s59, 1
s_cselect_b32 s76, 2048, 0
s_cselect_b32 s77, 0, 1024
s_add_u32 s78, s77, 1024
s_mul_i32 s59, s55, {18*1024}
s_add_u32 s73, s73, s59
s_add_u32 s73, s73, {WS_PART}
s_waitcnt lgkmcnt(0)""")
    mark(a, opt, 0)
    if MONO and not EARLY: a("s_barrier")
    a("s_barrier")
    mark(a, opt, 1)
    probe(a, opt, "s2")
    for o in reads(0): o()
    for u in range(NU):
        if u == opt.get("m2u", 18): mark(a, opt, 2)
        if EARLY and u == opt.get("u_sig", 1): a(sigB)
        if MG and u == opt.get("u_x", 33):
            for w in range(3): a(f"buffer_load_dwordx4 {r4(XR+4*w)}, v240, s[36:39], s58 offen offset:{w*64}")
        fb = FB + (u % 2)*40
        nxt = reads(u+1) if u + 1 < NU else []
        bar = (u % 2 == 1 and u + 1 < NU)
        n = 0
        for j in range(6):
            for i in range(4):
                if i == 0:
                    if bar and j == 0: a.wait(lg="all")
                    else: a.wait(lg=[("a", u), ("w", u, j)])
                d = ACC + (i*6 + j)*4
                a(f"{M16} {r4(d)}, {r4(fb+16+4*j)}, {r4(fb+4*i)}, " + (r4(d) if u else "0"))
                if bar and n == 0: a("s_barrier")
                elif nxt: nxt.pop(0)()
                n += 1
    mark(a, opt, 3)
    probe(a, opt, "l2")
    a(f"""s_lshl_b32 s59, s54, 1
s_sub_u32 s75, s51, s59
s_mul_i32 s59, s55, {UNIT}
s_add_u32 s59, s59, 8192
v_add_u32 v243, s59, v7""")
    for i in range(4):
        for jp in range(3):
            pk = FB + 4*((i*3 + jp) % 8)
            for t in range(2):
                d = ACC + (i*6 + 2*jp + t)*4
                a(f"v_cvt_pk_bf16_f32 v{pk+2*t}, v{d}, v{d+1}\nv_cvt_pk_bf16_f32 v{pk+2*t+1}, v{d+2}, v{d+3}")
            a(f"v_permlane16_swap_b32 v{pk}, v{pk+2}\nv_permlane16_swap_b32 v{pk+1}, v{pk+3}")
            if jp == 0: a(f"s_add_u32 s59, s57, {i*18*1024}")
            a(f"s_cbranch_scc1 K2_own{i}{jp}" if False else "")
            a(f"s_cmp_eq_u32 s75, {i//2}\ns_cbranch_scc1 K2_own{i}{jp}")
            a(f"buffer_store_dwordx4 {r4(pk)}, v7, s[32:35], s59 offen offset:{jp*1024} {st_p}\ns_branch K2_owd{i}{jp}")
            a(f"K2_own{i}{jp}:\nds_write_b128 v243, {r4(pk)} offset:{(i % 2)*2*UNIT + jp*1024}\nK2_owd{i}{jp}:")
    if MG:
        a(f"""v_lshlrev_b32 v10, 9, v242
v_lshl_add_u32 v10, v9, 4, v10
s_lshl_b32 s59, s55, 10
v_add_u32 v10, s59, v10
v_lshl_add_u32 v11, v241, 11, v10
v_mul_u32_u24 v12, {2*UNIT - 4096}, v241
v_add_u32 v12, v12, v10
s_mov_b32 s66, {fbits(LN2)}
s_mov_b32 s67, s66
s_mov_b32 s70, {fbits(2/(576*2048))}
s_mov_b32 s71, s70
s_lshl_b32 s68, s54, 31
s_xor_b32 s68, s68, s70
s_mov_b32 s69, s68
s_mul_i32 s60, s52, 3
s_add_u32 s60, s60, s53
s_lshl_b32 s60, s60, 7
s_add_u32 s60, s60, {WS_SYNC}
s_mul_i32 s59, s48, {UNIT}
s_add_u32 s59, s59, 8192
v_add_u32 v243, s59, v7
v_add_u32 v244, s76, v243
v_add_u32 v245, s77, v243
v_add_u32 v246, s78, v243
v_mov_b32 v13, 0
v_mov_b32 v14, 1
s_waitcnt vmcnt(0) lgkmcnt(0)""")
        mark(a, opt, 4)
        a(f"""s_barrier
s_cmp_lg_u32 s48, 0
s_cbranch_scc1 K2_nosig
s_mov_b64 exec, 1
buffer_atomic_add v14, v13, s[32:35], s60 offen sc1
s_mov_b64 exec, -1
K2_nosig:""")
        a.lg = []; a.vm = []
        for w in range(3):
            reg, off = ((11, 0), (12, 4096), (11, 2*UNIT + 2048))[w]
            for par in range(2):
                for hf in range(2):
                    a.lgop(f"ds_read_b128 {r4(EO+16*w+8*par+4*hf)}, v{reg} offset:{off + par*UNIT + hf*256}", ("eo", w))
        for w in range(3): a.lgop(f"ds_read_b128 {r4(PB+16*w)}, v{244+w}", "own")
        for w in range(3):
            for e in range(4):
                a(f"v_lshlrev_b32 v{OUT+8*w+2*e}, 16, v{XR+4*w+e}\nv_and_b32 v{OUT+8*w+2*e+1}, 0xffff0000, v{XR+4*w+e}")
        for w in range(3):
            a.wait(lg=("eo", w))
            for e in range(0, 8, 2): a(f"v_pk_fma_f32 {p2(OUT+8*w+e)}, {p2(EO+16*w+e)}, s[70:71], {p2(OUT+8*w+e)}")
            for e in range(0, 8, 2): a(f"v_pk_fma_f32 {p2(OUT+8*w+e)}, {p2(EO+16*w+8+e)}, s[68:69], {p2(OUT+8*w+e)}")
        def psum(src0, w):
            for e in range(4):
                a(f"v_lshlrev_b32 v{U+2*e}, 16, v{src0+e}\nv_and_b32 v{U+2*e+1}, 0xffff0000, v{src0+e}")
            for e in range(0, 8, 2): a(f"v_pk_fma_f32 {p2(OUT+8*w+e)}, {p2(U+e)}, s[66:67], {p2(OUT+8*w+e)}")
        a.wait(lg="own")
        for w in range(3): psum(PB + 16*w, w)
        for s_ in range(1, 4):
            a(f"s_add_u32 s59, s51, {s_}\ns_and_b32 s59, s59, 3\ns_mul_i32 s59, s59, {64*18*2048}\ns_add_u32 s{79+s_}, s59, s73")
        a("v_add_u32 v244, s76, v7\nv_add_u32 v245, s77, v7\nv_add_u32 v246, s78, v7\nv_mov_b32 v14, 4")
        if opt.get("one2", 1): a("s_cmp_lg_u32 s48, 0\ns_cbranch_scc1 K2_pp_d")
        poll(a, "K2_pp", 13, "s60", "v14")
        if opt.get("one2", 1): a("s_barrier")
        mark(a, opt, 5)
        for w in range(3):
            for s_ in range(1, 4):
                a.vmop(f"buffer_load_dwordx4 {r4(PB+16*w+4*s_)}, v{244+w}, s[32:35], s{79+s_} offen sc1", ("p", w, s_))
        for w in range(3):
            for s_ in range(1, 4):
                a.wait(vm=("p", w, s_))
                psum(PB + 16*w + 4*s_, w)
            for e in range(4): a(f"v_cvt_pk_bf16_f32 v{XR+4*w+e}, v{OUT+8*w+2*e}, v{OUT+8*w+2*e+1}")
            a.vmop(f"buffer_store_dwordx4 {r4(XR+4*w)}, v240, s[40:43], s58 offen offset:{w*64} {st_o}", "o")
    amp_out(a, opt)
    if opt.get("stamp"):
        a.wait(vm="all")
        stamp_out(a, 1, "s48", 32, "K2_end")
    a("s_endpgm")
    PR, PI, PN = 16, 32, 48
    AR, AI = 64, 96
    C32, S32, C64, S64, TWS = 128, 136, 144, 160, 176
    WL = T_END
    u0 = opt.get("apf0", 9)
    xpf = f"""s_cmp_lt_u32 s48, 5
s_cbranch_scc1 K2_end
s_and_b32 s59, s49, 1
s_lshl_b32 s59, s59, 3
s_add_u32 s59, s59, s50            ; rb
s_mul_i32 s59, s59, {4*144*2048}
s_lshr_b32 s60, s49, 1
s_mul_i32 s60, s60, {36*2048}
s_add_u32 s59, s59, s60
s_add_u32 s60, s48, {u0 - 5}
s_lshl_b32 s61, s60, 11
s_add_u32 s59, s59, s61
v_lshrrev_b32 v2, 4, v0
s_mov_b32 s61, {144*2048}
v_mul_lo_u32 v2, s61, v2
v_and_b32 v3, 15, v0
v_lshl_add_u32 v2, v3, 7, v2
s_waitcnt lgkmcnt(0)
K2_pfl:
buffer_load_dword v3, v2, s[32:35], s59 offen
s_add_u32 s59, s59, 6144
s_add_u32 s60, s60, 3
s_waitcnt vmcnt({opt.get("apfd", 0)})
s_cmp_lt_u32 s60, 36
s_cbranch_scc1 K2_pfl""" if opt.get("apf", 0) else ""
    a(f"""K2_fft:
s_lshl_b32 s51, s49, 3
s_add_u32 s51, s51, s50            ; f""")
    if EARLY:
        a(f"s_cmp_ge_u32 s48, 4\ns_cbranch_scc1 K2_fs\n{sigB}\ns_branch K2_fs2\nK2_fs:")
        htail("f")
        a("K2_fs2:")
    a(f"""s_cmp_ge_u32 s51, {opt.get("nfft", 58)}
s_cbranch_scc1 K2_xpf
s_mul_i32 s52, s51, 5              ; j0
s_cmp_lt_u32 s48, 5
s_cbranch_scc1 K2_fft_go
s_getpc_b64 s[28:29]
s_add_u32 s28, s28, fft_tab@rel32@lo+4
s_addc_u32 s29, s29, fft_tab@rel32@hi+12
s_mov_b32 s30, {T_END}
s_mov_b32 s31, 0x20000
s_sub_u32 s53, s48, 5
s_lshl_b32 s59, s53, 10
K2_tl:
s_mov_b32 m0, s59
s_nop 0
buffer_load_dwordx4 v7, s[28:31], s59 offen lds
s_add_u32 s59, s59, 3072
{"s_waitcnt vmcnt(2)" if MONO else ""}
s_cmp_lt_u32 s59, {T_END if MONO else T_TW2}
s_cbranch_scc1 K2_tl
s_mov_b32 s60, s59
s_lshr_b32 s54, s52, 2
s_lshl_b32 s54, s54, 15
s_add_u32 s54, s54, {WS_WT}
s_lshl_b32 s53, s53, 10""")
    if MONO:
        a("s_waitcnt vmcnt(0)\n" + ("" if EARLY else "s_barrier\n") + "s_cmp_lg_u32 s48, 5\ns_cbranch_scc1 K2_pw_d")
        a(f"v_min_u32 v8, 7, v0\nv_lshlrev_b32 v8, 7, v8\ns_mov_b32 s62, {WS_SYNC + 128*128}")
        poll(a, "K2_pw", 8, "s62", "32", sleep=opt.get("pwsleep", 10))
        a("s_barrier")
    else: a("s_waitcnt vmcnt(0) lgkmcnt(0)\ns_barrier")
    tl2 = "" if MONO else f"""K2_tl2:
s_mov_b32 m0, s60
s_nop 0
buffer_load_dwordx4 v7, s[28:31], s60 offen lds
s_add_u32 s60, s60, 3072
s_cmp_lt_u32 s60, {T_END}
s_cbranch_scc1 K2_tl2"""
    a(f"""K2_wl:
s_add_u32 m0, s53, {WL}
s_add_u32 s59, s53, s54
buffer_load_dwordx4 v7, s[32:35], s59 offen {SC} lds
s_add_u32 s53, s53, 3072
s_cmp_lt_u32 s53, 65536
s_cbranch_scc1 K2_wl
{tl2}
s_waitcnt vmcnt(0)
s_barrier
K2_xpf:
{"s_cmp_lg_u32 s48, 7|s_cbranch_scc1 K2_end|s_sleep %d|buffer_wbl2 sc1|s_waitcnt vmcnt(0)".replace("|", chr(10)) % opt["wb"] if opt.get("wb") else ""}
{xpf}
s_endpgm
K2_fft_go:
s_add_u32 s56, s52, s48            ; j
s_cmp_gt_u32 s56, 288
s_cbranch_scc1 K2_end
s_lshr_b32 s54, s56, 1
s_and_b32 s59, s56, 1
s_mul_i32 s59, s59, 144
s_add_u32 s54, s54, s59            ; sigma
s_mov_b32 s61, 0                   ; 0 normal, 1: j=0, 2: j=288
s_cmp_eq_u32 s56, 0
s_cselect_b32 s61, 1, s61
s_cmp_eq_u32 s56, 288
s_cselect_b32 s61, 2, s61
s_cselect_b32 s54, 0, s54
s_cselect_b32 s59, 4096, 0
s_lshl_b32 s62, s54, 13
s_add_u32 s57, s62, {WS_U}
s_add_u32 s58, s57, 4096
s_add_u32 s57, s57, s59
s_cmp_lg_u32 s61, 0
s_cselect_b32 s58, 0x10000000, s58
v_and_b32 v2, 31, v0               ; n
v_lshrrev_b32 v3, 5, v0            ; h
v_lshlrev_b32 v4, 4, v3
v_lshl_add_u32 v4, v2, 6, v4       ; U voffset
s_waitcnt lgkmcnt(0)""")
    if MONO:
        a("s_barrier" if EARLY else "s_barrier\ns_barrier")
    a.vm = []; a.lg = []
    for p in range(2):
        for ks in range(2):
            a.vmop(f"buffer_load_dwordx4 {r4(PR+8*p+4*ks)}, v4, s[32:35], s57 offen offset:{p*2048+ks*32} {SC}", "z")
            a.vmop(f"buffer_load_dwordx4 {r4(PI+8*p+4*ks)}, v4, s[32:35], s58 offen offset:{p*2048+ks*32} {SC}", "z")
    a(f"""v_lshrrev_b32 v5, 3, v2
v_add_u32 v5, s56, v5
v_and_b32 v5, 3, v5
v_lshlrev_b32 v5, 2, v5
v_lshl_add_u32 v5, v2, 4, v5
v_lshl_add_u32 v5, v3, 11, v5
s_lshr_b32 s59, s56, 2
s_lshr_b32 s60, s52, 2
s_sub_u32 s59, s59, s60
s_lshl_b32 s59, s59, 15
s_add_u32 s59, s59, {WL}
v_add_u32 v5, s59, v5
{vpos}
v_lshl_add_u32 v6, v3, 9, v6       ; V voffset
s_add_u32 s62, s62, {WS_V}
s_mov_b32 s64, -2.0
s_mov_b32 s65, -2.0""")
    if not MONO: a("s_barrier")
    for k in range(4): a.lgop(f"ds_read_b128 {r4(C32+4*k)}, v7 offset:{k*1024}", "t32")
    NB = 8
    def twread(tw, k):
        s = TWS + 8*(k % NB)
        off = (T_TW1 if tw == 0 else T_TW2) + k*2048
        a.lgop(f"ds_read_b128 {r4(s)}, v7 offset:{off}", ("tw", k))
        a.lgop(f"ds_read_b128 {r4(s+4)}, v7 offset:{off+1024}", ("tw", k))
    def wread(k):
        s = TWS + 8*(k % NB)
        for arr in range(2):
            for e in range(4):
                a.lgop(f"ds_read_u16 v{s+4*arr+e}, v5 offset:{arr*32768 + (8*k + e)*512}", ("tw", k))
    for k in range(4): twread(0, k)
    a.wait(vm="z")
    for k in range(16): a(f"v_xor_b32 v{PN+k}, 0x80008000, v{PR+k}")
    a.wait(lg="t32")
    def stage_small(X1, X2, X3, X4):
        for p in range(2):
            for (D, Xa, Xb) in ((AR, X1, X2), (AI, X3, X4)):
                d = D + 16*p
                for ks in range(2):
                    a(f"{M32} {r16(d)}, {r4(Xa+8*p+4*ks)}, {r4(C32+4*ks)}, " + (r16(d) if ks else "0"))
                    a(f"{M32} {r16(d)}, {r4(Xb+8*p+4*ks)}, {r4(S32+4*ks)}, {r16(d)}")
    def stage_big(X1, X2, X3, X4, dataA, fill=()):
        fill = list(fill)
        for (D, Xa, Xb) in ((AR, X1, X2), (AI, X3, X4)):
            for e in range(2):
                d = D + 16*e
                for p1 in range(2):
                    ks = 2*e + p1
                    for (X, Tb, first) in ((Xa, C64, p1 == 0), (Xb, S64, False)):
                        x, tb = r4(X+4*ks), r4(Tb+4*ks)
                        A_, B_ = (x, tb) if dataA else (tb, x)
                        a(f"{M32} {r16(d)}, {A_}, {B_}, " + ("0" if first else r16(d)))
                        if fill: fill.pop(0)()
        for D in (AR, AI):
            for k in range(0, 16, 2): a(f"v_pk_add_f32 {p2(D+k)}, {p2(D+k)}, {p2(D+16+k)}")
            for k in range(0, 16, 2): a(f"v_pk_fma_f32 {p2(D+16+k)}, {p2(D+16+k)}, s[64:65], {p2(D+k)}")
    def cmul4(k, cr, sr, sgn):
        ng = " neg_lo:[1,0,0] neg_hi:[1,0,0]"
        n1, n2 = (ng, "") if sgn > 0 else ("", ng)
        for e in (0, 2): a(f"v_pk_mul_f32 {p2(8+e)}, {p2(AR+4*k+e)}, {p2(cr+e)}")
        for e in (0, 2): a(f"v_pk_mul_f32 {p2(12+e)}, {p2(AI+4*k+e)}, {p2(cr+e)}")
        for e in (0, 2): a(f"v_pk_fma_f32 {p2(8+e)}, {p2(AI+4*k+e)}, {p2(sr+e)}, {p2(8+e)}{n1}")
        for e in (0, 2): a(f"v_pk_fma_f32 {p2(12+e)}, {p2(AR+4*k+e)}, {p2(sr+e)}, {p2(12+e)}{n2}")
    def pack4(k, negre, eo=False):
        dst = (lambda e: 8*e + k) if eo else (lambda e: 2*k + e)
        src = (lambda e: (e, e + 2)) if eo else (lambda e: (2*e, 2*e + 1))
        for e in range(2): a(f"v_cvt_pk_bf16_f32 v{PR+dst(e)}, v{8+src(e)[0]}, v{8+src(e)[1]}")
        for e in range(2): a(f"v_cvt_pk_bf16_f32 v{PI+dst(e)}, v{12+src(e)[0]}, v{12+src(e)[1]}")
        for e in range(2): a(f"v_xor_b32 v{PN+dst(e)}, 0x80008000, v{(PR if negre else PI)+dst(e)}")
    stage_small(PR, PI, PI, PN)
    t64 = [lambda k=k: a.lgop(f"ds_read_b128 {r4(C64+4*k)}, v7 offset:{T_C64+k*1024}", "t64") for k in range(8)]
    for k in range(8):
        a.wait(lg=("tw", k))
        s = TWS + 8*(k % NB)
        cmul4(k, s, s+4, -1)
        if k + 4 < 8: twread(0, k+4)
        t64.pop(0)()
        pack4(k, True, True)
    a.wait(lg="t64")
    mark(a, opt, 0)
    a("s_barrier")
    mark(a, opt, 1)
    def wr4(k, arr):
        for e in (2*arr, 2*arr + 1):
            a.lgop(f"ds_read_b32 v{TWS+8*k+4+e}, v5 offset:{(8*k + e)*512}", ("tw", k))
    stage_big(PR, PI, PI, PN, False, fill=[lambda k=k, arr=arr: wr4(k, arr) for k in range(8) for arr in range(2)])
    mark(a, opt, 2)
    for k in range(8):
        a.wait(lg=("tw", k))
        s = TWS + 8*(k % NB)
        for e in range(4): a(f"v_lshlrev_b32 v{s+e}, 16, v{s+4+e}")
        for e in range(4): a(f"v_and_b32 v{s+4+e}, 0xffff0000, v{s+4+e}")
        cmul4(k, s, s+4, +1)
        pack4(k, False, True)
    stage_big(PR, PN, PI, PR, True, fill=[lambda k=k: twread(1, k) for k in range(NB)])
    for k in range(8):
        a.wait(lg=("tw", k))
        s = TWS + 8*(k % NB)
        cmul4(k, s, s+4, +1)
        if k + NB < 8: twread(1, k+NB)
        pack4(k, False)
    mark(a, opt, 4)
    a("s_add_u32 s63, s62, 4096\ns_cmp_lg_u32 s61, 0\ns_cbranch_scc1 K2_fft_spw")
    off = lambda j: ((j & 3) + 8*(j >> 2))*128
    def last(special):
        o = []
        for p in range(2):
            for j in range(16):
                d = TWS + 16*p + j
                if special: o.append(f"v_cvt_pk_bf16_f32 v{d}, v{AR+16*p+j}, v{AR+16*p+j}\nbuffer_store_short v{d}, v6, s[32:35], s{62+p} offen offset:{off(j)} {st_v}")
                else: o.append(f"v_cvt_pk_bf16_f32 v{d}, v{AR+16*p+j}, v{AI+16*p+j}\nbuffer_store_dword v{d}, v6, s[32:35], s{62+p} offen offset:{off(j)} {st_v}")
        n = 0
        for p in range(2):
            for (D, Xa, Xb) in ((AR, PR, PN), (AI, PI, PR)):
                if special and D == AI: continue
                d = D + 16*p
                for ks in range(2):
                    for (X, Tb, first) in ((Xa, C32, ks == 0), (Xb, S32, False)):
                        a(f"{M32} {r16(d)}, {r4(X+8*p+4*ks)}, {r4(Tb+4*ks)}, " + ("0" if first else r16(d)))
                        if p == 1 and not special:
                            n += 1
                            if n >= 2: a(o.pop(0)); a(o.pop(0))
        for l in o: a(l)
    last(False)
    a("s_branch K2_fft_out\nK2_fft_spw:\ns_sub_u32 s59, s61, 1\ns_lshl_b32 s59, s59, 1\nv_add_u32 v6, s59, v6")
    last(True)
    a("K2_fft_out:")
    if MG:
        a(f"""s_and_b32 s59, s56, 7
s_lshl_b32 s59, s59, 7
s_add_u32 s59, s59, {WS_SYNC + 48*128}
v_mov_b32 v4, 0
v_mov_b32 v5, 1
s_waitcnt vmcnt(0)
s_mov_b64 exec, 1
buffer_atomic_add v5, v4, s[32:35], s59 offen sc1
s_mov_b64 exec, -1""")
    if opt.get("stamp"):
        a("s_waitcnt vmcnt(0)")
        a("s_mov_b32 s87, 0")
        mark(a, opt, 5)
        stamp_out(a, 3, "s48", 32, "K2_end")
    a("K2_end:\ns_endpgm")
    if not MONO:
        a.end_kernel("k2_kernel", 256, 96)
        a.launch("k2_kernel", 256, 512, 163840)
    tab = fft_tables()
    t = [".p2align 8", ".type fft_tab,@object", "fft_tab:"]
    for i in range(0, len(tab), 8):
        t.append(".long " + ",".join("0x%x" % x for x in tab[i:i+8]))
    a.tail += t
```

```python
from fw import *
from common import *
M16 = "v_mfma_f32_16x16x32_bf16"
def r4(x): return f"v[{x}:{x+3}]"
def p2(x): return f"v[{x}:{x+1}]"
WU = 18432
W_OFF = 0; NW = 4
X_OFF = NW*WU
NX = 3
F_OFF = X_OFF + NX*16384
E_OFF = F_OFF + 18432
ESTR = 1168
WR_OFF = 149504
CSB = 159744
BIAS = CSB + 1280
STAT = BIAS + 1280
SCR = 157184
RS = 0
NS = 18
PF = CSB + 1168
HC = CSB + 1152
UI = F_OFF

def gen_k1b(a, opt):
    st_act = opt.get("st_act", "sc1"); st_u = opt.get("st_u", "sc1"); st_wt = opt.get("st_wt", "sc1")
    MONO = opt.get("mono", 1) and "2" in opt.get("kernels", "123")
    KN = NAME + "_kernel" if MONO else "k1_kernel"
    if MONO: st_u = opt.get("st_u", "sc1")
    EARLY = MONO and opt.get("early", 1)
    ASY = EARLY and opt.get("asy", 0)
    def own_addr(b_, p, dst, areg):
        u0, u1 = (4*b_ + p, 4*b_ + (p ^ 1)) if p < 4 else (8, 8)
        t_ = f"s_mul_i32 s59, {areg}, {(own_base(u1) - own_base(u0) + 4096) & 0xffffffff:#x}\ns_add_u32 s59, s59, {own_base(u0)}\n"
        if ASY: t_ += f"s_mul_i32 s61, {areg}, {((u1 - u0)*8192 + 4096) & 0xffffffff:#x}\ns_add_u32 s61, s61, {49152 + u0*8192}\ns_cmp_eq_u32 s3, 0\ns_cselect_b32 s59, s61, s59\n"
        else: t_ += f"s_cmp_eq_u32 s3, 0\ns_cselect_b32 s59, {OWN_X}, s59\n"
        return t_ + f"v_add_u32 v{dst}, s59, v7"
    def signal(base, tag="all"):
        a(f"""s_lshl_b32 s59, s49, 2
s_lshr_b32 s60, s50, 2
s_add_u32 s59, s59, s60
s_lshl_b32 s59, s59, 7
s_add_u32 s59, s59, {WS_SYNC + base*128}
v_mov_b32 v12, 0
v_mov_b32 v13, 1""")
        a.wait(vm=tag)
        a("s_mov_b64 exec, 1")
        a.vmop("buffer_atomic_add v13, v12, s[32:35], s59 offen sc1", "sig")
        a("s_mov_b64 exec, -1")
    a.begin_kernel(KN)
    a("K1_start:")
    a("s_cmp_ge_u32 s2, 256\ns_cbranch_scc1 K1_end")
    if opt.get("stamp"): a("s_memrealtime s[90:91]")
    probe(a, opt, "start")
    a(f"""s_load_dwordx8 s[4:11], s[0:1], 0
s_load_dwordx8 s[12:19], s[0:1], 32
s_load_dwordx2 s[32:33], s[0:1], 72
s_lshr_b32 s60, s2, 3              ; idx
s_getpc_b64 s[80:81]
K1_pc:
s_mov_b32 s82, code_end-K1_pc
s_mov_b32 s83, 0x20000
v_mul_u32_u24 v1, 3, v0
v_lshrrev_b32 v1, 6, v1
v_lshlrev_b32 v1, 7, v1
s_mul_i32 s59, s60, 3072
s_mov_b32 m0, {SCR}
s_nop 0
buffer_load_dword v1, s[80:83], s59 offen lds
v_lshrrev_b32 v1, 6, v0
v_readfirstlane_b32 s48, v1        ; wave
v_mov_b32 v2, v0                   ; tid
v_and_b32 v0, 63, v0               ; lane
s_and_b32 s49, s2, 1
s_lshl_b32 s49, s49, 3
s_and_b32 s61, s60, 7
s_add_u32 s49, s49, s61            ; rb
s_lshr_b32 s3, s60, 3              ; cq
s_bfe_u32 s50, s2, 0x20001
s_lshl_b32 s50, s50, 2
s_add_u32 s50, s50, s3             ; cg
{"s_lshr_b32 s71, s2, 1|s_xor_b32 s71, s71, s2".replace("|", chr(10)) if opt.get("rotx") else "s_add_u32 s71, s3, s49"}
s_and_b32 s71, s71, {opt.get("rotmask", 0)}
s_mul_i32 s71, s71, {opt.get("rot", 4)}
s_mul_i32 s63, s50, 576
s_and_b32 s64, s50, 1
s_mov_b32 s34, 0x10000000
s_mov_b32 s35, 0x20000
v_lshlrev_b32 v7, 4, v0
s_cmp_lt_u32 s48, 4
s_cbranch_scc1 K1_comp""")
    a(f"""s_sub_u32 s51, s48, 4              ; lw
v_lshrrev_b32 v8, 3, v0            ; r
v_lshrrev_b32 v9, 4, v0
v_xor_b32 v9, v9, v0
v_and_b32 v9, 7, v9
v_lshlrev_b32 v9, 4, v9
s_mov_b32 s22, 73728
v_mad_u32_u24 v3, v8, s22, v9
v_xor_b32 v4, 64, v3
v_add_u32 v4, {16*73728-1024}, v4
s_lshl_b32 s53, s49, 2
s_add_u32 s53, s53, s51
s_mul_i32 s53, s53, 1152           ; x base
s_lshl_b32 s20, s71, 7
s_add_u32 s20, s20, s53
s_add_u32 s21, s53, 1152
s_lshl_b32 s57, s51, 12            ; lw*4096
s_mov_b32 s26, {T*D*2}
s_mov_b32 s27, 0x20000
s_waitcnt lgkmcnt(0)
s_mov_b64 s[24:25], s[4:5]""")
    wsetup = f"""v_and_b32 v9, 2, v8
s_and_b32 s59, s51, 1
s_lshl_b32 s59, s59, 2
v_or_b32 v9, s59, v9
v_xor_b32 v9, v9, v0
v_and_b32 v9, 7, v9
v_lshlrev_b32 v9, 4, v9
v_mul_u32_u24 v5, 9216, v8
v_add_u32 v5, v5, v9               ; W voffset
v_lshrrev_b32 v8, 2, v0
v_mul_u32_u24 v6, 9216, v8
s_lshr_b32 s59, s59, 1
v_xor_b32 v9, s59, v0
v_and_b32 v9, 3, v9
v_lshl_add_u32 v6, v9, 4, v6       ; H voffset
s_mul_i32 s54, s51, {8*9216}
s_add_u32 s54, s54, s63
s_mul_i32 s59, s71, {64*9216}
s_add_u32 s36, s54, s59
s_add_u32 s37, s54, {576*9216}
s_lshl_b32 s38, s64, 6
s_xor_b32 s39, s64, 1
s_lshl_b32 s39, s39, 9
s_lshl_b32 s58, s51, 9
s_mov_b32 s30, {D*F*2}
s_mov_b32 s31, 0x20000
s_mov_b64 s[28:29], s[12:13]"""
    a.vm = []; a.lg = []
    def x_items(c, th):
        def f0():
            a(f"s_add_u32 m0, s57, {X_OFF + (c % NX)*16384 + th*2048}")
            if th: a(f"s_add_u32 s23, s20, {8*73728}")
            else: a("s_mov_b32 s23, s20")
            a.vmop("buffer_load_dwordx4 v3, s[24:27], s23 offen lds", ("x", c))
        def f1():
            a(f"s_add_u32 m0, s57, {X_OFF + (c % NX)*16384 + th*2048}\ns_nop 0")
            a.vmop("buffer_load_dwordx4 v4, s[24:27], s23 offen offset:1024 lds", ("x", c))
            if th: a("s_add_u32 s20, s20, 128\ns_cmp_eq_u32 s20, s21\ns_cselect_b32 s20, s53, s20")
        return [f0, f1]
    def w_items(u):
        base = W_OFF + (u % NW)*WU
        it = []
        for j in range(4):
            def f(j=j):
                a(f"s_add_u32 m0, s57, {base + j*1024 - j*128}")
                if j == 0: a("s_add_u32 s40, s36, s38")
                else: a("s_nop 0")
                a.vmop(f"buffer_load_dwordx4 v5, s[28:31], s40 offen offset:{j*128} lds", ("w", u))
            it.append(f)
        def fh():
            a(f"s_add_u32 m0, s58, {base + 16384}\ns_add_u32 s41, s36, s39\ns_mov_b32 exec_hi, 0")
            a.vmop("buffer_load_dwordx4 v6, s[28:31], s41 offen lds", ("w", u))
            a(f"s_mov_b32 exec_hi, -1\ns_add_u32 s36, s36, {32*9216}\ns_cmp_eq_u32 s36, s37\ns_cselect_b32 s36, s54, s36")
        it.append(fh)
        return it
    for f in x_items(0, 0) + x_items(0, 1): f()
    a(wsetup)
    for f in w_items(0): f()
    a(f"""s_mov_b64 s[44:45], s[14:15]
s_mov_b32 s46, {F*2}
s_mov_b32 s47, 0x20000
v_subrev_u32 v10, 256, v2
v_lshlrev_b32 v11, 1, v10
v_lshlrev_b32 v10, 2, v10
v_add_u32 v10, {BIAS}, v10""")
    for f in w_items(1): f()
    a.vmop("buffer_load_ushort v12, v11, s[44:47], s63 offen", "bias")
    a.vmop("buffer_load_ushort v13, v11, s[44:47], s63 offen offset:512", "bias")
    XV = 64; XP = 96
    def recur():
        a(f"""s_lshl_b32 s59, s71, 6
v_lshl_add_u32 v18, v18, 5, s59    ; d0
v_cvt_f32_u32 v16, v16
v_cvt_f32_u32 v17, v17
v_cvt_f32_u32 v18, v18
v_mul_f32 v16, {fbits(1/576)}, v16
v_mul_f32 v17, {fbits(0.25)}, v17
v_fma_f32 v17, v18, v16, v17
v_fract_f32 v17, v17
v_add_f32 v18, v17, v16
v_cos_f32 v{XV}, v17
v_cos_f32 v{XV+1}, v18
v_cos_f32 v16, v16
v_and_b32 v{XV}, v20, v{XV}
v_and_b32 v{XV+1}, v20, v{XV+1}
v_add_f32 v16, v16, v16""")
    def recur2():
        for k in range(2, 32):
            a(f"v_fma_f32 v{XV+k}, v16, v{XV+k-1}, -v{XV+k-2}")
            if k % 2 == 0: a(f"v_cvt_pk_bf16_f32 v{XP+k//2-1}, v{XV+k-2}, v{XV+k-1}")
            if k % 8 == 0: a(f"ds_write_b128 v19, {r4(XP + k//2 - 4)}\nv_add_u32 v19, s72, v19")
        a(f"v_cvt_pk_bf16_f32 v{XP+15}, v{XV+30}, v{XV+31}\nds_write_b128 v19, {r4(XP+12)}")
    a(f"""v_and_b32 v8, 31, v0
v_lshrrev_b32 v9, 5, v0
v_bfe_u32 v14, v8, 1, 3
v_xor_b32 v14, v14, v9
v_lshlrev_b32 v14, 4, v14
v_lshl_add_u32 v14, v8, 7, v14
s_add_u32 s59, s57, {X_OFF}
v_add_u32 v24, s59, v14
v_xor_b32 v25, 32, v24
v_xor_b32 v26, 64, v24
v_xor_b32 v27, 0x60, v24
v_mov_b32 v28, 0
v_mov_b32 v29, 0""")
    a("s_branch K1_hloop")
    cut0 = len(a.lines)
    a("K1_hloop:")
    side = {}
    pre = []
    def sq_ops(c):
        o = [lambda: [a.lgop(f"ds_read_b128 {r4(32+4*i)}, v{24+i} offset:{(c % NX)*16384}", ("sq", i)) for i in range(4)]]
        for i in range(4):
            def f(i=i):
                a.wait(lg=("sq", i))
                if opt.get("sqdot"):
                    for k in range(4): a(f"v_dot2c_f32_bf16 v{28+k%2}, v{32+4*i+k}, v{32+4*i+k}")
                    return
                for hh in range(2):
                    for k in range(2): a(f"v_lshlrev_b32 v{48+2*k}, 16, v{32+4*i+2*hh+k}\nv_and_b32 v{49+2*k}, 0xffff0000, v{32+4*i+2*hh+k}")
                    for k in range(4): a(f"v_fmac_f32 v{28+k%2}, v{48+k}, v{48+k}")
            o.append(f)
        return o
    def bias_w():
        a.wait(vm="bias")
        a(f"v_lshlrev_b32 v12, 16, v12\nv_lshlrev_b32 v13, 16, v13\nv_mul_f32 v12, {fbits(LOG2E)}, v12\nv_mul_f32 v13, {fbits(LOG2E)}, v13")
        a.lgop("ds_write_b32 v10, v12", "pub")
        a(f"v_mov_b32 v8, {HC}\nv_mov_b32 v9, 0")
        a.lgop("ds_write_b32 v8, v9", "pub")
        a.lgop("ds_write_b32 v237, v9", "pub")
        a("s_cmp_lg_u32 s51, 0\ns_cbranch_scc1 K1_nb\nds_write_b32 v10, v13 offset:1024\nK1_nb:")
    side.setdefault(1, []).append(bias_w)
    def zero_sync():
        a(f"""s_lshl_b32 s59, s2, 2
s_or_b32 s59, s59, s51
s_cmp_lg_u32 s59, 0
s_cbranch_scc1 K1_nz
v_lshlrev_b32 v8, 7, v0
v_mov_b32 v9, 0
s_mov_b32 s59, {WS_SYNC}
buffer_store_dword v9, v8, s[32:35], s59 offen sc1""")
        if MONO:
            a("""s_add_u32 s59, s59, 8192
buffer_store_dword v9, v8, s[32:35], s59 offen sc1
s_add_u32 s59, s59, 8192
buffer_store_dword v9, v8, s[32:35], s59 offen sc1
s_add_u32 s59, s59, 8192
buffer_store_dword v9, v8, s[32:35], s59 offen sc1
""")
        a("K1_nz:")
    def init_flag():
        a("""s_lshl_b32 s59, s2, 2
s_or_b32 s59, s59, s51
s_cmp_lg_u32 s59, 0
s_cbranch_scc1 K1_nz2
v_mov_b32 v8, 1
v_mov_b32 v9, 0
s_mov_b64 exec, 1
buffer_store_dword v8, v9, s[44:47], 0 offen sc1
s_mov_b64 exec, -1
K1_nz2:""")
    if MONO: side.setdefault(6, []).append(init_flag)
    def dbg_srd():
        a("s_load_dwordx2 s[44:45], s[0:1], 64\ns_mov_b32 s46, 256\ns_waitcnt lgkmcnt(0)")
        a.lg = []
    if MONO: side.setdefault(2, []).append(dbg_srd)
    if opt.get("merge", 1): side.setdefault(2, []).append(zero_sync)
    if MONO:
        side.setdefault(opt.get('s_ini', 12), []).append(lambda: (a.vmop("buffer_load_dword v54, v53, s[44:47], 0 offen sc1", "init")))
        def chk():
            a.wait(vm="init")
            a("v_cmp_ne_u32 vcc, 1, v54\ns_nop 4\ns_cbranch_vccz K1_in_d")
            poll(a, "K1_in", 53, "0", "1", srd=44, tmp=54)
        side.setdefault(opt.get('s_chk', 15), []).insert(0, chk)
    fol = opt.get("fol", 0)
    nlab = [0]
    def guarded(f):
        def g():
            if not fol: return f(True)
            nlab[0] += 1
            a(f"s_cmp_lg_u32 s71, 0\ns_cbranch_scc1 K1_sj{nlab[0]}")
            f(False)
            a(f"K1_sj{nlab[0]}:")
        return g
    def vm(track, txt, tag):
        if track: a.vmop(txt, tag)
        else: a(txt)
    spf = opt.get("s_pf2", [15])
    full = opt.get('pffull', 0)
    nl = -(-(82 if (fol or full) else 41) // len(spf))
    pre.append(f"""s_mov_b32 s18, {F*D*2}
s_mov_b32 s19, 0x20000
s_bfe_u32 s65, s2, 0x20001
s_mul_i32 s65, s65, {1152*1152}
s_mul_i32 s66, s60, {324*128}
s_add_u32 s65, s65, s66
s_lshl_b32 s66, s51, 1
s_and_b32 s67, s2, {0 if full else 1}
s_add_u32 s66, s66, s67
s_mul_i32 s66, s66, {41*128}
s_add_u32 s95, s65, s66
v_min_u32 v52, {nl-1}, v0
v_lshlrev_b32 v52, 7, v52
v_lshrrev_b32 v56, 3, v0
v_lshlrev_b32 v56, 7, v56
v_min_u32 v57, 5, v0
v_lshlrev_b32 v57, 7, v57""")
    def pf2_setup(tr):
        if "2" in opt.get("kernels", "123"):
            a(f"""s_getpc_b64 s[80:81]
s_add_u32 s80, s80, fft_tab@rel32@lo+4
s_addc_u32 s81, s81, fft_tab@rel32@hi+12
s_mov_b32 s82, 45056
s_mov_b32 s83, 0x20000
s_lshr_b32 s65, s60, 1
s_lshl_b32 s65, s65, 2
s_add_u32 s65, s65, s51
s_mov_b32 m0, {SCR}
s_lshl_b32 s65, s65, 10""")
            vm(tr, "buffer_load_dword v56, s[80:83], s65 offen lds", "pf")
    def pf2(tr):
        a(f"s_mov_b32 m0, {SCR}\ns_nop 0")
        vm(tr, "buffer_load_dword v52, s[16:19], s95 offen lds", "pf")
        a(f"s_add_u32 s95, s95, {nl*128}")
    rows = opt.get("pf_rows", 4)
    pre.append(f"""s_mul_i32 s65, s50, {288*1152}
s_mul_i32 s66, s64, {32*1152}
s_add_u32 s65, s65, s66
s_and_b32 s66, s49, 7
s_lshl_b32 s66, s66, 2
s_add_u32 s66, s66, s51
s_mul_i32 s66, s66, {rows*1152}
s_add_u32 s65, s65, s66
s_add_u32 s66, s3, 2
s_mul_i32 s66, s66, 192
s_cmp_ge_u32 s66, 576
s_cselect_b32 s67, 576, 0
s_sub_u32 s66, s66, s67
s_add_u32 s96, s65, s66
v_lshrrev_b32 v58, 2, v0
v_min_u32 v58, {rows-1}, v58
v_mul_u32_u24 v58, 1152, v58
v_and_b32 v9, 1, v0
v_lshl_add_u32 v58, v9, 7, v58
v_bfe_u32 v9, v0, 1, 1
v_mul_u32_u24 v9, 576, v9
v_add_u32 v58, v58, v9""")
    def pf_first():
        a(f"s_mov_b32 m0, {SCR}\ns_nop 0")
        a.vmop("buffer_load_dword v58, s[16:19], s96 offen lds", "pf")
    if opt.get("pf2", 1):
        s0 = opt.get("s_pf0", 11) if MONO else spf[0]
        side.setdefault(s0, []).append(lambda: pf2_setup(True))
        if MONO: side.setdefault(s0, []).append(pf_first)
        for k in spf: side.setdefault(k, []).append(guarded(pf2))
    def touch(k0, n):
        def f():
            a(f"""v_lshl_add_u32 v8, v0, 2, s51
v_mul_u32_u24 v9, 52429, v8
v_lshrrev_b32 v9, 18, v9           ; /5
v_mul_u32_u24 v55, 5, v9
v_sub_u32 v8, v8, v55
v_min_u32 v9, {2*n-1}, v9
v_mul_u32_u24 v9, {16*9216}, v9
v_lshl_add_u32 v8, v8, 7, v9
s_mul_i32 s65, s49, 9216
s_and_b32 s66, s63, 0xffffff80
s_add_u32 s65, s65, s66
s_add_u32 s65, s65, {k0*32*9216}
s_mov_b32 m0, {SCR}
s_nop 0""")
            a.vmop("buffer_load_dword v8, s[28:31], s65 offen lds", "pf")
            a(f"""v_and_b32 v8, 1, v0
v_mul_u32_u24 v8, 73728, v8
v_lshrrev_b32 v9, 1, v0
v_min_u32 v9, {n//2-1}, v9
v_lshl_add_u32 v8, v9, 7, v8
s_mul_i32 s65, s50, {2*73728}
s_add_u32 s65, s65, s53
s_add_u32 s65, s65, {(k0//2)*128}""")
            a.vmop("buffer_load_dword v8, s[24:27], s65 offen lds", "pf")
        return f
    for (k, k0, n) in opt.get("tch", []): side.setdefault(k, []).append(touch(k0, n))
    def pf_code():
        a("""s_getpc_b64 s[80:81]
K1_pc2:
s_sub_u32 s80, s80, K1_pc2-K1_start
s_subb_u32 s81, s81, 0
s_mov_b32 s82, code_end-K1_start
s_mov_b32 s83, 0x20000
s_lshl_b32 s59, s60, 2
s_add_u32 s59, s59, s51
s_mul_i32 s59, s59, 768""")
        a.vmop("buffer_load_dword v255, v57, s[80:83], s59 offen", "pf")
    if opt.get("pf2c", 1) and "2" in opt.get("kernels", "123"): side.setdefault(opt.get("s_pfc", 14), []).append(pf_code)
    pre.append(f"""v_and_b32 v8, 7, v0
v_lshrrev_b32 v9, 3, v0
v_mul_u32_u24 v30, 289, v8
v_lshl_add_u32 v30, v9, 2, v30
v_and_b32 v30, -2, v30
v_lshlrev_b32 v30, 1, v30
v_lshlrev_b32 v253, 4, v8
v_lshl_add_u32 v31, v9, 15, v253
v_and_b32 v253, 16, v253
v_mov_b32 v53, 0""")
    def wt_load():
        a(f"""s_mov_b64 s[84:85], s[6:7]
s_mov_b32 s86, {T*289*2}
s_mov_b32 s87, 0x20000
s_mov_b64 s[76:77], s[8:9]
s_mov_b32 s78, {T*289*2}
s_mov_b32 s79, 0x20000
s_mul_i32 s67, s2, {8*578}
s_lshl_b32 s68, s51, 6
s_add_u32 s67, s67, s68""")
        for y in range(3):
            for z in range(2):
                a.vmop(f"buffer_load_dwordx3 v[{112+8*y+4*z}:{114+8*y+4*z}], v30, s[{84-8*z}:{87-8*z}], s67 offen offset:{256*y}", "wt")
        a(f"""s_lshl_b32 s69, s51, 18
s_lshl_b32 s68, s2, 7
s_add_u32 s69, s69, s68
s_add_u32 s4, s32, {WS_WT}
s_addc_u32 s5, s33, 0
s_mov_b32 s6, {73*32768}
s_mov_b32 s7, 0x20000
s_mov_b32 s8, 0x05040100
s_mov_b32 s9, 0x07060302""")
    def wt_store():
        for y in range(3):
            for z in range(2):
                r = 112 + 8*y + 4*z
                a(f"v_alignbit_b32 v{r}, v{r+1}, v{r}, v253\nv_alignbit_b32 v{r+1}, v{r+2}, v{r+1}, v253")
        a("s_and_b32 s68, s2, 3")
        for rot in range(4):
            if rot < 3: a(f"s_cmp_lg_u32 s68, {rot}\ns_cbranch_scc1 K1_nexr{rot}")
            for y in range(3):
                for k in range(4):
                    a(f"v_perm_b32 v{136+4*y+((k+rot)&3)}, v{116+8*y+k//2}, v{112+8*y+k//2}, s{8+k%2}")
            if rot < 3: a(f"s_branch K1_nexr\nK1_nexr{rot}:")
        a("K1_nexr:")
        for y in range(3):
            a(f"s_add_u32 s68, s69, {y*32*32768}")
            a.vmop(f"buffer_store_dwordx4 {r4(136+4*y)}, v31, s[4:7], s68 offen {st_wt}", "st")
    if not opt.get("nowt"):
        swt = opt.get("s_wt", [14])[0]; sws = opt.get("s_wts", ["late"])[0]
        side.setdefault(swt, []).append(wt_load)
        if sws == 17: side.setdefault(17, []).append(lambda: (a("s_waitcnt vmcnt(2)"), a.vm.clear()))
        else: side.setdefault(sws, []).append(lambda: a.wait(vm="wt"))
        side.setdefault(sws, []).append(wt_store)
    pre.append(f"""v_and_b32 v8, 31, v0
v_lshrrev_b32 v9, 5, v0
v_lshlrev_b32 v8, 2, v8
v_lshl_add_u32 v8, v9, 9, v8
s_lshl_b32 s59, s51, 7
s_add_u32 s59, s59, {STAT + 512}
v_add_u32 v59, s59, v8
s_lshl_b32 s59, s51, 11
s_add_u32 s59, s59, {UI}
v_add_u32 v250, s59, v7
v_lshrrev_b32 v8, 4, v0
v_and_b32 v9, 15, v0
v_lshlrev_b32 v9, 4, v9
v_lshl_add_u32 v251, v8, 12, v9
s_lshl_b32 s14, s50, 17
s_lshl_b32 s66, s49, 8
s_lshl_b32 s67, s51, 15
s_add_u32 s14, s14, s67
s_add_u32 s14, s14, s66
s_add_u32 s14, s14, {WS_U}
s_add_u32 s15, s14, 16384
s_lshl_b32 s10, s50, 14
s_add_u32 s10, s10, s66
s_add_u32 s10, s10, {WS_U + 512*4096}""")
    pre.append(f"s_lshl_b32 s59, s51, 2\ns_add_u32 s59, s59, {PF}\nv_mov_b32 v237, s59")
    if ASY:
        pre.append("s_and_b32 s12, s51, 1\ns_lshr_b32 s13, s51, 1\ns_cmp_lg_u32 s13, 0\ns_cbranch_scc1 K1_oa1")
        for p in range(5): pre.append(own_addr(0, p, 232 + p, "s12"))
        pre.append("s_branch K1_oa2\nK1_oa1:")
        for p in range(4): pre.append(own_addr(1, p, 232 + p, "s12"))
        pre.append("v_mov_b32 v236, v235\nK1_oa2:")
        side.setdefault("late", []).append(lambda: a(f"""s_lshl_b32 s59, s49, 2
s_lshr_b32 s98, s50, 2
s_add_u32 s98, s98, s59
s_lshl_b32 s98, s98, 7
s_add_u32 s98, s98, {WS_SYNC + 64*128}
s_lshl_b32 s61, s12, 1
s_add_u32 s59, s59, s61
s_mul_i32 s58, s59, {144*2048}
s_mul_i32 s59, s50, 9
s_xor_b32 s61, s64, 1
s_lshl_b32 s61, s61, 3
s_add_u32 s61, s61, s59
s_lshl_b32 s61, s61, 11
s_add_u32 s40, s58, s61
s_add_u32 s59, s59, s64
s_lshl_b32 s61, s13, 2
s_add_u32 s59, s59, s61
s_lshl_b32 s59, s59, 11
s_add_u32 s58, s58, s59
s_lshl_b32 s59, s12, 11
s_add_u32 s36, s58, s59
s_xor_b32 s59, s59, 2048
s_add_u32 s37, s58, s59
s_add_u32 s38, s36, 4096
s_add_u32 s39, s37, 4096"""))
    for t_ in pre: a(t_)
    xq = [(c, th) for c in range(1, 9) for th in range(2)]
    nw = 2
    sq = []
    for k in range(NS):
        a.wait(vm=[("w", k), ("x", k//2)], lg="all")
        a("s_barrier")
        items = []
        nx = 2 if k == 0 else 1
        while nx and xq and (xq[0][0] < NX or 2*(xq[0][0] - NX) + 2 <= k):
            items += x_items(*xq.pop(0)); nx -= 1
        while nw < NS and nw - NW <= k - 2 and nw <= k + 2:
            items += w_items(nw); nw += 1
        if k % 2 == 0: sq = sq_ops(k//2)
        fill = [sq.pop(0) for _ in range(3 if k % 2 == 0 else 2)]
        if k == NS - 2 and opt.get('sqlast', 1): fill += [sq.pop(0)]; sq = sq + [lambda: None]
        if fill and k % 2 == 0: fill.pop(0)()
        n = len(items)
        for i, f in enumerate(items):
            f()
            if fill and (i + 1) % 3 == 0: fill.pop(0)()
        for f in fill: f()
        if k < NS - 1:
            for f in side.get(k, []): f()
    assert not xq and nw == NS
    a("v_add_f32 v28, v28, v29\nds_write_b32 v59, v28\ns_waitcnt lgkmcnt(0)\ns_barrier")
    for f in side.get("late", []): f()
    a("s_barrier")
    if EARLY: a("s_mov_b32 s11, s69\nv_mov_b32 v252, v31\ns_branch K2_start")
    cut1 = len(a.lines)
    a(f"""s_barrier
ds_read_b128 v[32:35], v250
ds_read_b128 v[36:39], v250 offset:1024
ds_read_b128 v[40:43], v250 offset:8192
s_waitcnt lgkmcnt(0)
buffer_store_dwordx4 v[32:35], v251, s[32:35], s14 offen {st_u}
buffer_store_dwordx4 v[36:39], v251, s[32:35], s15 offen {st_u}
s_cmp_lg_u32 s48, 4
s_cbranch_scc1 K1_nex
buffer_store_dwordx4 v[40:43], v251, s[32:35], s10 offen {st_u}
K1_nex:""")
    for f in side.get(NS - 1, []): f()
    if MONO:
        a(f"""s_and_b32 s59, s2, 7
s_lshl_b32 s59, s59, 7
s_add_u32 s59, s59, {WS_SYNC + 128*128}
v_mov_b32 v8, {HC}
v_mov_b32 v9, 1
s_waitcnt vmcnt(0)
s_mov_b64 exec, 1
ds_add_rtn_u32 v10, v8, v9
v_mov_b32 v8, 0
s_waitcnt lgkmcnt(0)
v_readfirstlane_b32 s61, v10
s_cmp_lg_u32 s61, 3
s_cbranch_scc1 K1_ns
buffer_atomic_add v9, v8, s[32:35], s59 offen sc1
K1_ns:
s_mov_b64 exec, -1""")
    a("s_branch K2_start" if MONO else "s_endpgm")
    if EARLY:
        t_ = a.lines[cut1:-1]; del a.lines[cut1:]
        t_ = [l.replace("s68", "s23").replace("s69", "s11").replace("v31,", "v252,").replace("s_add_u32 s59, s59, s51", "s_add_u32 s59, s59, s48\n    s_sub_u32 s59, s59, 4").replace("s[80:83]", "s[44:47]").replace("s[80:81]", "s[44:45]").replace("s80", "s44").replace("s81", "s45").replace("s82", "s46").replace("s83", "s47").replace("s61", "s23").replace("s_add_u32 s44, s44, K2_start-K1_pc2", "s_sub_u32 s44, s44, K1_pc2-K2_start").replace("s_addc_u32 s45, s45, 0", "s_subb_u32 s45, s45, 0") for l in t_]
        a.helper_tail = t_
        def copy_pair(p, sfx, wait=True, track=True):
            d = (16, 208)[p % 2]
            if wait:
                a(f"""s_mov_b32 s72, 0x400000
K1_cp{p}{sfx}:
ds_read_b32 v238, v237
s_waitcnt lgkmcnt(0)
v_cmp_le_u32 vcc, {1 if p == 4 else p + 2}, v238
s_sub_u32 s72, s72, 1
s_cbranch_scc1 K1_cq{p}{sfx}
s_nop 2
s_cbranch_vccnz K1_cq{p}{sfx}
s_sleep {opt.get("cpsleep", 2)}
s_branch K1_cp{p}{sfx}
K1_cq{p}{sfx}:""")
            for i in range(4): a(f"ds_read_b128 {r4(d+4*i)}, v{232+p} offset:{i*1024}")
            a(f"s_add_u32 s23, s{36+p}, {144*2048}")
            for i in range(4):
                a(f"s_waitcnt lgkmcnt({3-i})")
                l = f"buffer_store_dwordx4 {r4(d+4*i)}, v7, s[32:35], s{36+p if i < 2 else 23} offen offset:{(i%2)*1024} {st_act}"
                if track: a.vmop(l, "cp")
                else: a(l)
        a.copy_pair = copy_pair
    hl = a.lines[cut0:]; del a.lines[cut0:]
    ACC = 16
    CS = 176
    XF = 204; WF = 236; ONE = 252
    a(f"""K1_comp:
s_movk_i32 s72, 256
s_and_b32 s51, s48, 1              ; a
s_lshr_b32 s52, s48, 1             ; b
v_and_b32 v8, 31, v0
s_lshl_b32 s61, s50, 5
s_sub_u32 s60, s61, 287
s_cmp_lt_u32 s50, 9
s_cselect_b32 s75, 1.0, -1.0       ; sgn
s_cselect_b32 s59, s61, s60        ; jb
s_cselect_b32 s60, 0, 2
v_and_b32 v12, 30, v8
v_add_u32 v12, s59, v12            ; j
v_and_or_b32 v13, v8, 1, s60
v_add_u32 v18, s61, v8
v_cmp_eq_u32 vcc, 1, v18
v_mov_b32 v19, 288
v_lshrrev_b32 v14, 5, v2           ; kk
v_mov_b32 v20, -1
v_cndmask_b32 v12, v12, v19, vcc
v_cndmask_b32_e64 v13, v13, 0, vcc
v_lshrrev_b32 v19, 4, v8
v_mul_u32_u24 v19, 9216, v19
v_and_b32 v9, 15, v0               ; n16
v_lshl_add_u32 v19, v9, 4, v19
v_add_u32 v15, {F_OFF}, v19
s_mov_b32 s70, 0
K1_fg0:
v_mov_b32 v16, v12
v_mov_b32 v17, v13
v_mov_b32 v18, v14
v_lshl_add_u32 v19, v14, 10, v15
K1_fg:""")
    recur(); recur2()
    a(f"""s_cmp_lg_u32 s70, 0
s_cbranch_scc1 K1_fgd
s_mov_b32 s70, 1
v_mov_b32 v14, 8
s_cmp_eq_u32 s48, 0
s_cbranch_scc1 K1_fg0
s_cmp_eq_u32 s48, 3
s_cbranch_scc1 K1_fgd
v_subrev_u32 v18, 64, v2
v_mul_u32_u24 v21, 3641, v18
v_lshrrev_b32 v21, 16, v21         ; row
v_mul_u32_u24 v19, 18, v21
v_sub_u32 v18, v18, v19            ; seg
v_mul_u32_u24 v19, {ESTR}, v21
v_lshl_add_u32 v19, v18, 6, v19
v_add_u32 v19, {E_OFF}, v19
s_lshl_b32 s59, s50, 2
s_add_u32 s59, s59, 225
v_and_b32 v16, 2, v21
v_add_u32 v16, s59, v16
v_cmp_gt_u32 vcc, 4, v21
v_and_b32 v17, 1, v21
s_movk_i32 s72, 16
v_cndmask_b32 v16, 0, v16, vcc
v_cmp_ne_u32 vcc, 5, v21
s_nop 1
v_cndmask_b32_e64 v20, 0, -1, vcc
s_branch K1_fg
K1_fgd:
v_lshrrev_b32 v10, 4, v0           ; g
v_bfe_u32 v11, v0, 2, 2            ; r
v_and_b32 v12, 3, v0
v_lshlrev_b32 v13, 12, v10
v_lshl_add_u32 v13, v11, 7, v13
v_lshl_add_u32 v13, v12, 3, v13
s_lshl_b32 s59, s52, 11
v_add_u32 v13, s59, v13
v_lshrrev_b32 v14, 1, v11
v_and_b32 v15, 1, v10
v_lshl_add_u32 v14, v15, 1, v14    ; swizzle
s_lshl_b32 s59, s51, 1
v_xor_b32 v14, s59, v14
v_lshl_add_u32 v1, v14, 5, v13
v_xor_b32 v2, 32, v1
v_xor_b32 v3, 64, v1
v_xor_b32 v4, 0x60, v1
v_lshrrev_b32 v14, 1, v9
v_xor_b32 v14, v14, v10
v_lshlrev_b32 v14, 4, v14
v_lshl_add_u32 v14, v9, 7, v14
s_lshl_b32 s59, s51, 13
s_add_u32 s59, s59, {X_OFF}
v_add_u32 v8, s59, v14
v_xor_b32 v14, 64, v8
v_min_u32 v13, 5, v9
v_mul_u32_u24 v13, {ESTR}, v13
v_lshl_add_u32 v13, v10, 4, v13
v_add_u32 v13, {E_OFF}, v13        ; E read
v_mov_b32 v{ONE}, 0x3f803f80
v_mov_b32 v{ONE+1}, v{ONE}
v_mov_b32 v{ONE+2}, v{ONE}
v_mov_b32 v{ONE+3}, v{ONE}
s_lshl_b32 s73, s49, 2
s_lshl_b32 s59, s51, 1
s_add_u32 s73, s73, s59
s_waitcnt lgkmcnt(0)
s_cmp_lg_u32 s52, 0
s_cbranch_scc1 K1_c1""")
    def comp(b):
        a.vm = []; a.lg = []
        EA = CS + (24 if b == 0 else 16)
        etok = [0] if b == 0 else [1, 2, 3]
        if b == 0:
            a(f"""v_lshlrev_b32 v5, 9, v10
v_lshl_add_u32 v5, v11, 6, v5
v_lshl_add_u32 v5, v12, 3, v5
v_lshl_add_u32 v5, v15, 5, v5
v_add_u32 v5, 16384, v5
v_xor_b32 v6, 32, v5""")
        else:
            a(f"v_add_u32 v5, {F_OFF}, v7")
        win = [0]
        NF = 11
        def frag(s, j, d):
            base = W_OFF + (s % NW)*WU
            tag = ("f", s, j)
            def setwin():
                want = 0
                if want != win[0]:
                    for k in ([1, 2, 3, 4] + ([5, 6] if b == 0 else [])):
                        a(f"v_add_u32 v{k}, {(want - win[0]) & 0xffffffff:#x}, v{k}")
                    win[0] = want
            def tr(reg, off, t):
                def f():
                    setwin()
                    a.lgop(f"ds_read_b64_tr_b16 v[{d+2*t}:{d+2*t+1}], v{reg} offset:{base - win[0] + off}", tag)
                return f
            if j < 8: return [tr(1 + j % 4, (j//4)*1024 + t*512, t) for t in range(2)]
            if j < 10:
                if b == 0: return [tr(5 + j - 8, t*256, t) for t in range(2)]
                return [lambda: a.lgop(f"ds_read_b128 {r4(d)}, v5 offset:{(j-8)*9216 + (s % 9)*1024}", tag)]
            return [lambda: a.lgop(f"ds_read_b128 {r4(d)}, v13 offset:{s*64}", tag)]
        def xrd(s, i):
            d = XF + 16*(s % 2) + 4*i
            return lambda: a.lgop(f"ds_read_b128 {r4(d)}, v{8 if s % 2 == 0 else 14} offset:{((s//2) % NX)*16384 + i*2048}", ("x", s))
        LA = 3
        order = [10, 0, 1, 4, 5, 2, 3, 6, 7, 8, 9]
        NBAR = opt.get("nbar", 6)
        slot = lambda s, n: WF + 4*((s*NF + n) % 4)
        if opt.get("cprio"): a(f"s_setprio {opt['cprio']}")
        mark(a, opt, 0)
        a("s_barrier")
        mark(a, opt, 1)
        probe(a, opt, 'b0')
        for i in range(4): xrd(0, i)()
        for n in range(LA):
            for f in frag(0, order[n], slot(0, n)): f()
        T0 = XF
        RR = XF + 8
        t = T0
        L = lambda txt: [(lambda l=l: a(l.replace("|", "\n"))) for l in txt.split("\n")]
        pub = L(f"""s_lshl_b32 s59, s52, 9|s_lshl_b32 s60, s51, 7|s_add_u32 s59, s59, s60|s_add_u32 s59, s59, {CSB}
v_lshl_add_u32 v{t+4}, v10, 4, s59
s_lshl_b32 s59, s51, 8|s_add_u32 s59, s59, {STAT}
v_lshl_add_u32 v{t+5}, v9, 2, s59
v_lshl_add_u32 v{t+6}, v0, 2, s59
s_lshl_b32 s59, s48, 10|s_add_u32 s59, s59, 45056
v_lshl_add_u32 v8, v0, 3, s59
v_lshl_add_u32 v{t+7}, v9, 3, s59
v_lshl_add_u32 v14, v0, 2, s59
v_lshl_add_u32 v15, v10, 4, s59""")
        def pub_sum():
            a("s_mov_b32 exec_lo, 0xffff0000\ns_mov_b32 exec_hi, 0")
            for k, i in enumerate(etok): a.lgop(f"ds_write_b32 v{t+5}, v{EA+4*k} offset:{64*i}", "pub")
            a("s_mov_b64 exec, -1")
        def pub_cs(k):
            a("s_mov_b32 exec_lo, 0x10001\ns_mov_b32 exec_hi, 0x10001")
            a.lgop(f"ds_write_b128 v{t+4}, {r4(CS+4*k)} offset:{(k//2)*256 + (k%2)*64}", "pub")
            a("s_mov_b64 exec, -1")
        post = [lambda: a.lgop(f"ds_read_b32 v{t}, v{t+6}", "st"),
                lambda: a.lgop(f"ds_read2st64_b32 v[{t+2}:{t+3}], v{t+6} offset0:2 offset1:4", "st")] + L(f"""s_mul_i32 s58, s73, {144*2048}|s_mul_i32 s59, s50, 9
s_xor_b32 s61, s64, 1|s_lshl_b32 s61, s61, 3
s_add_u32 s61, s61, s59|s_lshl_b32 s61, s61, 11
s_add_u32 s40, s58, s61|s_add_u32 s59, s59, s64
s_lshl_b32 s61, s52, 2|s_add_u32 s59, s59, s61
s_lshl_b32 s59, s59, 11|s_add_u32 s58, s58, s59
s_lshl_b32 s59, s51, 11|s_add_u32 s36, s58, s59
s_xor_b32 s59, s59, 2048|s_add_u32 s37, s58, s59""") + [lambda: a.wait(lg="st")] + L(f"""v_add_f32 v{t+2}, v{t+2}, v{t+3}|v_mul_f32 v{t}, {fbits(-1/576)}, v{t}
v_mul_f32 v{t+2}, {fbits(1/576)}, v{t+2}|v_fma_f32 v{t+2}, -v{t}, v{t}, v{t+2}
v_max_f32 v{t+2}, 0, v{t+2}|v_cvt_pk_bf16_f32 v{t}, v{t}, v{t+2}
v_and_b32 v{t+2}, 0xffff0000, v{t}|v_lshlrev_b32 v{t}, 16, v{t}
v_add_f32 v{t+2}, {fbits(1e-5)}, v{t+2}|v_cvt_pk_bf16_f32 v{t+2}, v{t+2}, v{t+2}
v_lshlrev_b32 v{t+2}, 16, v{t+2}|v_sqrt_f32 v{t+2}, v{t+2}
v_cvt_pk_bf16_f32 v{t+2}, v{t+2}, v{t+2}|v_lshlrev_b32 v{t+2}, 16, v{t+2}
v_rcp_f32 v{t+1}, v{t+2}
v_mul_f32 v{t+2}, {fbits(LOG2E)}, v{t+1}|v_mul_f32 v{t+3}, v{t}, v{t+2}""") + \
               [lambda: (a.lgop(f"ds_write_b64 v8, v[{t+2}:{t+3}]", "rw"), a.lgop(f"ds_write2st64_b32 v14, v{t+1}, v{t} offset0:2 offset1:3", "rw"))] + \
               [lambda i=i: a.lgop(f"ds_read_b64 {p2(RR+2*i)}, v{t+7} offset:{128*i}", "rr") for i in range(4)]
        for s in range(NS):
            if s == 9: mark(a, opt, 2)
            last = s == NS - 1
            xf = XF + 16*(s % 2)
            xo = list(pub) if last else []
            for n, j in enumerate(order):
                d = slot(s, n)
                nn = n + LA
                rds = frag(s, order[nn], slot(s, nn)) if nn < NF else (frag(s + 1, order[nn - NF], slot(s + 1, nn - NF)) if not last else [])
                bar = n == NBAR
                if last:
                    if n == 3: xo += [pub_sum, lambda: pub_cs(0), lambda: pub_cs(1)]
                    if n == 5: xo += [lambda: pub_cs(2), lambda: pub_cs(3)]
                if bar:
                    for f in xo: f()
                    xo = [xrd(s + 1, i) for i in range(4)] if not last else list(post)
                a.wait(lg=[("f", s, j), ("x", s)])
                if b == 1 and s == 9 and j in (8, 9):
                    for k in range(16): a(f"v_mul_f32 v{ACC + j*16 + k}, s75, v{ACC + j*16 + k}")
                ms = []
                c = lambda r: (r4(r) if s else "0")
                if j < 10:
                    if j < 8 and j % 4 < 2:
                        r = CS + 4*((j//4)*2 + j % 4); ms.append(f"{M16} {r4(r)}, {r4(d)}, {r4(ONE)}, {c(r)}")
                    if b == 0 and j >= 8:
                        r = CS + 16 + 4*(j - 8); ms.append(f"{M16} {r4(r)}, {r4(d)}, {r4(ONE)}, {c(r)}")
                    for i in range(4):
                        r = ACC + (j*4 + i)*4
                        if b == 1 and j >= 8: ms.append(f"{M16} {r4(r)}, {r4(xf+4*i)}, {r4(d)}, {c(r)}")
                        else: ms.append(f"{M16} {r4(r)}, {r4(d)}, {r4(xf+4*i)}, {c(r)}")
                else:
                    for k, i in enumerate(etok):
                        r = EA + 4*k; ms.append(f"{M16} {r4(r)}, {r4(d)}, {r4(xf+4*i)}, {c(r)}")
                for q, m in enumerate(ms):
                    a(m)
                    if bar and q == 0:
                        if last: a.wait(lg="pub")
                        a("s_barrier")
                    elif rds: rds.pop(0)()
                    elif xo:
                        xo.pop(0)()
                    if last and n > NBAR and xo and not rds and q % 2: xo.pop(0)()
                for f in rds: f()
            for f in xo: f()
        mark(a, opt, 3)
        probe(a, opt, 'l1')
        a(f"""s_lshl_b32 s59, s52, 9
s_add_u32 s59, s59, {CSB}
v_lshl_add_u32 v4, v10, 4, s59
v_add_u32 v1, s60, v4
s_xor_b32 s60, s60, 128
v_add_u32 v2, s60, v4
s_lshl_b32 s61, s64, 7
v_add_u32 v5, s61, v1
v_add_u32 v6, s61, v2
s_xor_b32 s61, s64, 1
s_lshl_b32 s61, s61, 10
s_add_u32 s61, s61, {BIAS}
v_lshl_add_u32 v11, v10, 4, s61
s_add_u32 s38, s36, 4096
s_add_u32 s39, s37, 4096""")
        CB = XF + 16
        npair = 5 if b == 0 else 4
        def cbread(p, tl):
            s = CB + 8*((2*p + tl) % 2)
            if p < 4:
                a.lgop(f"ds_read_b128 {r4(s)}, v{1 + p % 2} offset:{(p//2)*256 + tl*64}", ("cb", p, tl))
                a.lgop(f"ds_read_b128 {r4(s+4)}, v{5 + p % 2} offset:{BIAS - CSB + (p//2)*256 + tl*64}", ("cb", p, tl))
            else:
                a.lgop(f"ds_read_b128 {r4(s+4)}, v11 offset:{tl*64}", ("cb", p, tl))
        K1c, K2c = 244, 246
        a(f"v_mov_b32 v{K1c}, -0.5\nv_mov_b32 v{K1c+1}, -0.5\nv_mov_b32 v{K2c}, -1.0\nv_mov_b32 v{K2c+1}, -1.0")
        pseq = ([4] if b == 0 else []) + [0, 1, 2, 3] if ASY else list(range(npair))
        cbread(pseq[0], 0); cbread(pseq[0], 1)
        a.wait(lg="rr")
        E = WF
        def tstage(p, tl):
            a.wait(lg=("cb", p, tl))
            a(".p2align 3")
            s = CB + 8*((2*p + tl) % 2)
            cs = s if p < 4 else CS + 16 + 4*tl
            for i in range(4):
                r = ACC + ((2*p + tl)*4 + i)*4
                for h in (0, 2): a(f"v_pk_fma_f32 {p2(E+h+4*(i%2))}, {p2(cs+h)}, {p2(RR+2*i)}, {p2(s+4+h)} op_sel:[0,1,0] op_sel_hi:[1,1,1]")
                for h in (0, 2): a(f"v_pk_fma_f32 {p2(r+h)}, {p2(r+h)}, {p2(RR+2*i)}, {p2(E+h+4*(i%2))} op_sel_hi:[1,0,1]")
            if pseq.index(p) + 1 < npair: cbread(pseq[pseq.index(p) + 1], tl)
        P = ONE - 4
        def mish8(p, i):
            rs = [ACC + ((2*p + tl)*4 + i)*4 for tl in range(2)]
            reg = lambda k: rs[k//4] + k % 4
            a(".p2align 3")
            for k in range(8): a(f"v_exp_f32 v{E+k}, v{reg(k)}")
            for k in range(0, 8, 2): a(f"v_pk_fma_f32 {p2(P+k)}, {p2(E+k)}, {p2(K1c)}, {p2(K2c)}")
            for k in range(0, 8, 2): a(f"v_pk_fma_f32 {p2(E+k)}, {p2(E+k)}, {p2(P+k)}, {p2(K2c)}")
            for k in range(8): a(f"v_rcp_f32 v{E+k}, v{E+k}")
            for k in range(0, 8, 2): a(f"v_pk_fma_f32 {p2(reg(k))}, {p2(reg(k))}, {p2(E+k)}, {p2(reg(k))}")
            for k in range(4): a(f"v_cvt_pk_bf16_f32 v{rs[0]+k}, v{reg(2*k)}, v{reg(2*k+1)}")
            if i == 2 and not ASY: a(f"s_add_u32 s{36+p}, s{36+p}, {144*2048}")
            if not ASY: a.vmop(f"buffer_store_dwordx4 {r4(rs[0])}, v7, s[32:35], s{36+p} offen offset:{(i%2)*1024} {st_act}", ("st", p))
            if EARLY: a.lgop(f"ds_write_b128 v12, {r4(rs[0])} offset:{i*1024}", "own")
        a(f"""v_lshrrev_b32 v{E}, 2, v9
v_lshlrev_b32 v{E}, 4, v{E}
v_and_b32 v{E+1}, 3, v9
v_lshl_add_u32 v{E}, v{E+1}, 1, v{E}
s_lshl_b32 s76, s51, 7
s_add_u32 s76, s76, {UI}
v_add_u32 v{E}, s76, v{E}""")
        if b == 1:
            R2 = CS
            def r2rd(i):
                a.lgop(f"ds_read_b128 {r4(R2+8*(i%2))}, v15 offset:{512 + 64*i}", ("r2", i))
                a.lgop(f"ds_read_b128 {r4(R2+8*(i%2)+4)}, v15 offset:{768 + 64*i}", ("r2", i))
            r2rd(0); r2rd(1)
        for k, i in enumerate(etok):
            a(f"v_mul_f32 v{E+2}, {fbits(LN2)}, v{RR+2*i}")
            for j in range(4): a(f"v_mul_f32 v{EA+4*k+j}, v{EA+4*k+j}, v{E+2}")
            a(f"v_cvt_pk_bf16_f32 v{EA+4*k}, v{EA+4*k}, v{EA+4*k+1}\nv_cvt_pk_bf16_f32 v{EA+4*k+1}, v{EA+4*k+2}, v{EA+4*k+3}")
        a("s_barrier")
        a("s_mov_b64 exec, 0xffff")
        for j in range(4):
            for k, i in enumerate(etok):
                op = "ds_write_b16" if j % 2 == 0 else "ds_write_b16_d16_hi"
                a.lgop(f"{op} v{E}, v{EA+4*k+j//2} offset:{(32 + j)*256 + (i//2)*64 + (i%2)*8}", "ui")
        a("s_mov_b64 exec, -1")
        if b == 1:
            a(f"""s_mov_b32 s78, 0
s_cmp_eq_u32 s50, 0
s_cselect_b32 s78, {fbits(576.0)}, s78
s_cmp_eq_u32 s50, 2
s_cselect_b32 s78, {fbits(-0.25)}, s78
s_cmp_eq_u32 s50, 4
s_cselect_b32 s78, {fbits(-0.25)}, s78
s_cmp_eq_u32 s50, 8
s_cselect_b32 s78, {fbits(-0.25)}, s78
v_cmp_eq_u32 vcc, 0, v9
v_mov_b32 v{E+1}, s78
v_lshlrev_b32 v{E+2}, 4, v10
v_lshl_add_u32 v{E+2}, v9, 8, v{E+2}
v_cndmask_b32 v{E+1}, 0, v{E+1}, vcc
v_add_u32 v{E+2}, s76, v{E+2}""")
            for i in range(4):
                a.wait(lg=("r2", i))
                q = R2 + 8*(i % 2)
                for ct in range(2):
                    r = ACC + ((8 + ct)*4 + i)*4
                    if ct == 0:
                        for j in range(4): a(f"v_fmac_f32 v{r+j}, v{q+4+j}, v{E+1}")
                    for h in (0, 2): a(f"v_pk_mul_f32 {p2(r+h)}, {p2(r+h)}, {p2(q+h)}")
                    d = ACC + ((8 + ct)*4 + (i & 2))*4 + 2*(i % 2)
                    for h in range(2): a(f"v_cvt_pk_bf16_f32 v{d+h}, v{r+2*h}, v{r+2*h+1}")
                    if i % 2 == 1:
                        a.lgop(f"ds_write_b128 v{E+2}, {r4(d-2)} offset:{ct*4096 + (i//2)*64}", "ui")
                if i < 2: r2rd(i + 2)
            if opt.get("ubar1", -1) < 0: a.wait(lg="ui"); a("s_barrier")
        if ASY: a(f"s_lshl_b32 s59, s48, 2\ns_add_u32 s59, s59, {PF}\nv_mov_b32 v13, s59")
        for n_, p in enumerate(pseq):
            if EARLY: a(own_addr(b, p, 12, "s51"))
            tstage(p, 0); tstage(p, 1)
            for i in range(4):
                mish8(p, i)
                if 4*n_ + i == (opt.get("ubar", 1) if b == 0 else opt.get("ubar1", -1)):
                    a.wait(lg="ui"); a("s_barrier")
            if ASY:
                a(f"v_mov_b32 v8, {1 if p == 4 else p + 2}")
                a.lgop("ds_write_b32 v13, v8", "own")
        mark(a, opt, 4)
        mark(a, opt, 5)
        if ASY: pass
        elif EARLY and opt.get("defer", 1):
            a(f"""s_lshl_b32 s98, s49, 2
s_lshr_b32 s59, s50, 2
s_add_u32 s98, s98, s59
s_lshl_b32 s98, s98, 7
s_add_u32 s98, s98, {WS_SYNC + 64*128}""")
        elif MONO: signal(64)
        probe(a, opt, 'e1')
        if opt.get("stamp"):
            if not EARLY: a.wait(vm="all")
            stamp_out(a, 0, "s48", 32, "K1_end", wait=not EARLY)
        a("s_branch K2_start" if MONO else "s_endpgm")
    comp(0)
    a("K1_c1:")
    comp(1)
    a.lines += hl
    a("K1_end:\ns_endpgm")
    a.end_kernel(KN, 256, 102)
    a.launch(KN, 256, 512, 163840)
```

```python
from fw import *
from common import *
import numpy as np
M32 = "v_mfma_f32_32x32x16_bf16"; M16 = "v_mfma_f32_16x16x32_bf16"
def r4(x): return f"v[{x}:{x+3}]"
def r16(x): return f"v[{x}:{x+15}]"
UNIT = 20480; NRING = 6; NU = 36
T_C32, T_S32, T_C64, T_S64, T_TW1, T_TW2, T_END = 0, 2048, 4096, 8192, 12288, 28672, 45056
VIMG = 53248

def f2bf(x):
    u = np.ascontiguousarray(x, dtype=np.float32).view(np.uint32)
    return ((u + 0x7FFF + ((u >> 16) & 1)) >> 16).astype(np.uint16)
def fft_tables():
    lane = np.arange(64); n = lane & 31; h = lane >> 5
    i8 = np.arange(8); perm = (i8 & 3) + 8*(i8 >> 2)
    out = []
    def frag(N, lanebase, ks, fn):
        b = 16*ks + 4*h[:, None] + perm[None, :]
        return f2bf(fn(2*np.pi*(((lanebase + n)[:, None]*b) % N)/N)).tobytes()
    for fn in (np.cos, np.sin):
        for ks in range(2): out.append(frag(32, 0, ks, fn))
    for fn in (np.cos, np.sin):
        for e in range(2):
            for p1 in range(2):
                j = 2*i8 + e
                b = 32*p1 + (j & 3)[None, :] + 8*(j >> 2)[None, :] + 4*h[:, None]
                out.append(f2bf(fn(2*np.pi*((n[:, None]*b) % 64)/64)).tobytes())
    j4 = np.arange(4)
    for tw in range(2):
        for p in range(2):
            for jg in range(4):
                r = 8*jg + 4*h[:, None] + j4[None, :]
                prod = (32*p + r)*n[:, None] if tw == 0 else (32*p + n[:, None])*r
                for fn in (np.cos, np.sin):
                    out.append(fn(2*np.pi*prod/2048).astype(np.float32).tobytes())
    b = b"".join(out); assert len(b) == T_END
    return np.frombuffer(b, np.uint32)

def gen_k2(a, opt):
    st_p = opt.get("st_p", "sc1"); st_v = opt.get("st_v", "sc1"); st_g = opt.get("st_g", "sc1")
    ld_w2 = opt.get("ld_w2", ""); ld_act = opt.get("ld_act", "")
    B1 = opt.get("k1b", 1); MG = opt.get("merge", 1)
    def p2(x): return f"v[{x}:{x+1}]"
    MONO = opt.get("mono", 1)
    sigB = """v_mov_b32 v14, 0
v_mov_b32 v15, 1
s_waitcnt vmcnt(0)
s_mov_b64 exec, 1
buffer_atomic_add v15, v14, s[32:35], s98 offen sc1
s_mov_b64 exec, -1"""
    if not opt.get("defer", 1): sigB = ""
    if MONO: ld_act = opt.get("ld_act", "sc1")
    SC = "sc1" if MONO else ""
    vpos = "v_lshlrev_b32 v6, 2, v2" if not B1 else """v_and_b32 v6, 7, v2
v_bfe_u32 v8, v2, 3, 1
v_lshl_add_u32 v6, v8, 4, v6
v_bfe_u32 v8, v2, 4, 1
v_lshl_add_u32 v6, v8, 3, v6
v_lshlrev_b32 v6, 2, v6"""
    if MONO:
        a(".p2align 8\nK2_start:")
        if opt.get("stamp"): a("s_memrealtime s[90:91]")
        a("s_mov_b64 s[24:25], s[16:17]")
    else:
        a.begin_kernel("k2_kernel")
        a("K2_start:\ns_cmp_ge_u32 s2, 256\ns_cbranch_scc1 K2_end")
        if opt.get("stamp"): a("s_memrealtime s[90:91]")
        a("""s_load_dwordx2 s[24:25], s[0:1], 48
s_load_dwordx2 s[32:33], s[0:1], 72
v_lshrrev_b32 v1, 6, v0
v_and_b32 v0, 63, v0
v_readfirstlane_b32 s48, v1        ; wave""")
    a(f"""s_and_b32 s49, s2, 7               ; xcd
s_lshr_b32 s50, s2, 3              ; idx
s_mov_b32 s26, {F*D*2}
s_mov_b32 s27, 0x20000
s_mov_b32 s34, 0x10000000
s_mov_b32 s35, 0x20000
v_lshlrev_b32 v7, 4, v0            ; lane*16
s_cmp_lt_u32 s50, 8
s_cbranch_scc1 K2_fft
s_sub_u32 s50, s50, 8
s_lshr_b32 s51, s49, 1             ; split
s_and_b32 s52, s49, 1
s_lshl_b32 s52, s52, 3
s_and_b32 s59, s50, 7
s_add_u32 s52, s52, s59            ; rb
s_lshr_b32 s53, s50, 3             ; cb
s_cmp_lt_u32 s48, 4
s_cbranch_scc1 K2_comp""")
    a(f"""s_sub_u32 s54, s48, 4              ; lw
s_lshl_b32 s55, s52, 2
s_add_u32 s55, s55, s54            ; G
s_mul_i32 s55, s55, {144*2048}
s_mul_i32 s59, s51, {36*2048}
s_add_u32 s55, s55, s59
s_mul_i32 s56, s51, {1152*1152}
s_mul_i32 s59, s54, {8*1152}
s_add_u32 s56, s56, s59
s_mul_i32 s59, s53, 192
s_add_u32 s56, s56, s59
v_lshrrev_b32 v2, 3, v0            ; r
v_and_b32 v3, 7, v0
v_and_b32 v4, 6, v2
v_xor_b32 v3, v3, v4
v_mul_u32_u24 v2, 1152, v2
v_lshl_add_u32 v2, v3, 4, v2
s_and_b32 s59, s53, 1
s_lshl_b32 s60, s59, 6
v_add_u32 v244, s60, v2
s_sub_u32 s60, 640, s60
v_add_u32 v245, s60, v2
s_lshl_b32 s60, s59, 7
s_sub_u32 s61, 128, s60
s_lshl_b32 s60, s60, 1
s_add_u32 s60, s60, 384
v_lshrrev_b32 v3, 2, v3
v_mad_u32_u24 v246, v3, s60, v2
v_add_u32 v246, s61, v246
s_lshl_b32 s57, s54, 11
s_mul_i32 s58, s54, 3072
s_add_u32 s58, s58, 8192
s_and_b32 s60, s52, {opt.get("k2_rotmask", 0)}
s_mul_i32 s60, s60, {opt.get("k2_rot", 9)}
s_lshr_b32 s60, s60, 1
s_waitcnt lgkmcnt(0)""")
    EARLY = MONO and opt.get("early", 1)
    LSIG = opt.get("lsig", 1)
    TABE = EARLY and opt.get("tabe", 1) and not opt.get("asy", 0)
    ASY = EARLY and opt.get("asy", 0)
    def cp_first(sfx):
        a(f"s_cmp_lg_u32 s13, 0\ns_cbranch_scc1 K2_c4{sfx}")
        a.copy_pair(4, sfx, track=False)
        a(f"K2_c4{sfx}:")
    def htail(sfx, mid=None):
        import re
        for l in a.helper_tail:
            if mid and "s_and_b32 s59, s2, 7" in l: mid()
            for x in l.split("\n"): a(re.sub(r"(K1_nex|K1_ns|K1_pc2)", r"\1" + sfx, x))
    if EARLY:
        for k in range(4):
            a(f"s_add_u32 s59, s53, {k+1}\ns_and_b32 s59, s59, 3\ns_mul_i32 s60, s59, {9*2048}\ns_add_u32 s{76+k}, s55, s60\ns_mul_i32 s60, s59, {9*32*1152}\ns_add_u32 s{80+k}, s56, s60")
        a(f"s_and_b32 s59, s53, 1\ns_mul_i32 s60, s59, {8*32*1152}\ns_add_u32 s75, s80, s60\ns_xor_b32 s59, s59, 1\ns_mul_i32 s60, s59, {32*1152}\ns_add_u32 s74, s80, s60")
    def load_act(u):
        base = (u % NRING)*UNIT
        if EARLY:
            if u < 9: return
            a(f"s_add_u32 m0, s57, {base}\ns_add_u32 s59, s{76 + u//9}, {(u % 9)*2048}")
        else: a(f"s_add_u32 m0, s57, {base}\ns_add_u32 s59, s55, {u*2048}")
        a.vmop(f"buffer_load_dwordx4 v7, s[32:35], s59 offen {ld_act} lds", ("u", u))
        a.vmop(f"buffer_load_dwordx4 v7, s[32:35], s59 offen offset:1024 {ld_act} lds", ("u", u))
    def load_w(u):
        base = (u % NRING)*UNIT
        for j in range(3):
            a(f"s_add_u32 m0, s58, {base + j*1024}")
            if j == 0:
                if not EARLY: a(f"s_add_u32 s61, s56, {u*32*1152}")
                elif u < 8: a(f"s_add_u32 s61, s74, {u*32*1152}")
                elif u == 8: a("s_mov_b32 s61, s75")
                else: a(f"s_add_u32 s61, s{80 + u//9}, {(u % 9)*32*1152}")
            a.vmop(f"buffer_load_dwordx4 v{244+j}, s[24:27], s61 offen {ld_w2} lds", ("u", u))
    wdone = [0]
    def load_unit(u):
        load_act(u)
        if u >= wdone[0]: load_w(u)
    VL = NRING*UNIT
    FL = VL + 36864
    PA = 16; GB = 40; RC = 148; VB = 208
    g_ = []
    if MG:
        PQ = lambda t, k: RC + 16*t + 8*(k % 2)
        KK = lambda t: RC + 48 + 2*t
        R2 = RC + 54; SP = RC + 56
        g_ += f"""s_and_b32 s64, s54, 1              ; par
s_lshr_b32 s65, s54, 1             ; tile half
v_and_b32 v1, 15, v0
v_lshrrev_b32 v3, 4, v0
v_lshl_add_u32 v4, v3, 3, s64
v_cvt_f32_u32 v4, v4               ; j0
s_lshl_b32 s63, s53, 1
s_add_u32 s63, s63, s65
s_mul_i32 s63, s63, 48
v_add_u32 v10, s63, v1
v_cmp_eq_f32 s[70:71], 0, v4
v_cvt_f32_u32 v11, v10
v_lshlrev_b32 v{SP}, 31, v10
v_mul_f32 v11, {fbits(1/576)}, v11
v_or_b32 v{SP}, 0x3f003f00, v{SP}""".split("\n")
        def rot(dst, src, cs):
            g_.append(f"v_pk_mul_f32 {p2(dst)}, {p2(src)}, {p2(cs)} op_sel_hi:[1,0]")
            g_.append(f"v_pk_fma_f32 {p2(dst)}, {p2(src)}, {p2(cs)}, {p2(dst)} op_sel:[1,1,0] op_sel_hi:[0,1,1] neg_hi:[0,1,0]")
        for t in range(3):
            P, Q = PQ(t, 0), PQ(t, 1)
            if t: g_.append(f"v_add_f32 v11, {fbits(16/576)}, v11")
            g_ += f"""v_mul_f32 v12, v4, v11
v_add_f32 v13, v11, v11
v_mul_f32 v14, {fbits(32.0)}, v11
v_cos_f32 v{P}, v12
v_sin_f32_e64 v{P+1}, -v12
v_cos_f32 v{R2}, v13
v_sin_f32 v{R2+1}, v13
v_cos_f32 v{KK(t)}, v14
v_sin_f32 v{KK(t)+1}, v14""".split("\n")
            rot(P+4, P, R2); rot(Q, P, KK(t)); rot(P+2, P+4, R2); rot(Q+4, P+4, KK(t)); rot(P+6, P+2, R2); rot(Q+2, P+2, KK(t)); rot(Q+6, P+6, KK(t))
            g_.append(f"v_add_f32 v{KK(t)}, v{KK(t)}, v{KK(t)}")
        npk = opt.get("g_npk", 2 if EARLY else 4)
        for kk in range(9):
            if kk >= 2:
                for t in range(3):
                    cur, oth = PQ(t, kk), PQ(t, kk + 1)
                    if kk < npk:
                        for i in range(0, 8, 2): g_.append(f"v_pk_fma_f32 {p2(cur+i)}, {p2(oth+i)}, {p2(KK(t))}, {p2(cur+i)} op_sel_hi:[1,0,1] neg_lo:[0,0,1] neg_hi:[0,0,1]")
                    else:
                        for i in range(8): g_.append(f"v_fma_f32 v{cur+i}, v{oth+i}, v{KK(t)}, -v{cur+i}")
            for t in range(3):
                cur = PQ(t, kk)
                for i in range(4): g_.append(f"v_cvt_pk_bf16_f32 v{GB+12*kk+4*t+i}, v{cur+2*i}, v{cur+2*i+1}")
                if kk == 0: g_.append(f"v_cndmask_b32_e64 v{GB+4*t}, v{GB+4*t}, v{SP}, s[70:71]")
            if kk == npk - 1: npre = len(g_)
        g_ += f"""v_min_u32 v8, 7, v0
v_min_u32 v9, 1, v8
v_lshlrev_b32 v8, 7, v8
v_sub_u32 v9, 37, v9
s_mov_b32 s69, {WS_SYNC + 48*128}
s_lshl_b32 s66, s52, 2
s_add_u32 s66, s66, s51            ; G of the final task
s_lshl_b32 s68, s64, 1
s_add_u32 s68, s68, s65            ; quarter of V this wave loads
s_mul_i32 s67, s68, {72*8192}
s_lshl_b32 s66, s66, 7
s_add_u32 s67, s67, s66
s_add_u32 s67, s67, {WS_V}
s_mul_i32 s68, s68, 9216
s_add_u32 s68, s68, {VL}
v_lshrrev_b32 v5, 3, v0
v_and_b32 v6, 4, v5
v_xor_b32 v6, v6, v0
v_and_b32 v6, 7, v6
v_lshlrev_b32 v6, 4, v6
v_lshl_add_u32 v6, v5, 13, v6      ; V dma voffset
v_lshlrev_b32 v10, 9, v3
v_lshl_add_u32 v10, v1, 2, v10
v_and_b32 v11, 1, v3
v_lshl_add_u32 v10, v11, 6, v10
s_mul_i32 s66, s64, 18432
s_add_u32 s66, s66, {VL}
v_add_u32 v10, s66, v10
v_xor_b32 v11, 64, v10
v_add_u32 v12, 128, v10
v_add_u32 v13, 128, v11
s_mul_i32 s66, s54, {UNIT}
v_add_u32 v14, s66, v7             ; exchange write""".split("\n")
        a(f"""s_lshl_b32 s59, s54, 2
s_add_u32 s59, s59, {FL}
v_mov_b32 v240, s59
v_xor_b32 v241, 8, v240
v_mov_b32 v243, 0
v_mov_b32 v242, 1""")
    def vissue():
        a(f"v_mov_b32 v249, {FL + 16}\nds_write_b32 v249, v242")
        for k in range(9):
            a(f"buffer_load_dwordx4 v6, s[32:35], s67 offen sc1 lds")
            if k < 8: a("s_add_u32 m0, m0, 1024\ns_add_u32 s67, s67, 65536")
    def gen(n):
        for _ in range(n):
            if g_: a(g_.pop(0))
    a.vm = []
    first = opt.get("k2_first", 4)
    if MONO:
        wdone[0] = opt.get("wpre", 4)
        w1 = opt.get("wpre1", 2) if EARLY else wdone[0]
        for u in range(w1):
            load_w(u)
            if not EARLY: a("s_waitcnt vmcnt(0)")
        if EARLY:
            htail("g")
            a.vm = []
            hold = opt.get("hold", 1)
            if ASY:
                cp_first("g")
                wl = list(range(w1, wdone[0]))
                for p in range(4 - hold):
                    if wl: load_w(wl.pop(0))
                    a.copy_pair(p, "g")
                for u in wl: load_w(u)
            else:
                for u in range(w1, wdone[0]): load_w(u)
        a(f"""s_lshl_b32 s62, s52, 2
s_add_u32 s62, s62, s51
s_lshl_b32 s62, s62, 7
s_add_u32 s62, s62, {WS_SYNC + 64*128}""")
        n1 = opt.get("g_n1", 0)
        if EARLY: npre = 0
        else:
            a("s_barrier")
            gen(n1)
            a("s_cmp_lg_u32 s54, 0\ns_cbranch_scc1 K2_pa_d")
            poll(a, "K2_pa", 243, "s62", "16", sleep=opt.get("pasleep", 2))
            a("s_barrier")
        if not EARLY: a.vm = []
        first = wdone[0] if EARLY else opt.get("k2_first", 4)
        for u in range(first): load_unit(u)
        gen(npre - n1)
    else:
      for u in range(first):
        load_unit(u)
        if MG and u >= 1: gen(-(-npre // (first - 1)))
    nu = first
    per = -(-len(g_) // opt.get("g_per", 12))
    for g in range(NU//2):
        a.wait(vm=[("u", 2*g), ("u", 2*g+1)])
        if g == 1: a("s_waitcnt lgkmcnt(0)")
        a("s_barrier")
        if g == 0 and MG: a("ds_write_b32 v240, v243\nds_write_b32 v240, v243 offset:16")
        if MG and g == NU//2 - 3:
            assert not g_
            a.vmop("buffer_load_dword v15, v8, s[32:35], s69 offen sc1", "flag")
        if MG and g == NU//2 - 2:
            a.wait(vm="flag")
            nrem = len(a.vm)
            a("v_cmp_ne_u32 vcc, v15, v9\ns_mov_b32 m0, s68\ns_nop 3\ns_cbranch_vccnz K2_late")
            vissue()
            a("s_waitcnt vmcnt(9)\ns_barrier\ns_branch K2_vw\nK2_late:")
        lim = min(NU, 2*g + NRING, nu + opt.get("k2_ramp", 2))
        gchk = opt.get("g_chk", 3)
        if EARLY and g < gchk:
            if ASY and g == 0:
                for p in range(4 - hold, 4): a.copy_pair(p, "g", wait=False)
            if ASY and g == opt.get("g_sig", 1):
                a("v_mov_b32 v238, 1")
                a.wait(vm="cp")
                a("s_mov_b64 exec, 1")
                a.vmop("buffer_atomic_add v238, v243, s[32:35], s98 offen sc1", "sig")
                a("s_mov_b64 exec, -1")
            while wdone[0] < 2*g + NRING:
                load_w(wdone[0]); wdone[0] += 1
                gen(-(-per // 2))
            if g == gchk - 1: a.vmop("buffer_load_dword v247, v243, s[32:35], s62 offen sc1", "a2")
            nu = 9
            continue
        if EARLY and g == gchk:
            a.wait(vm="a2")
            a("v_cmp_ne_u32 vcc, 16, v247\ns_nop 4\ns_cbranch_vccz K2_pb_d")
            poll(a, "K2_pb", 243, "s62", "16", tmp=247, sleep=opt.get("pbsleep", 12))
            lim = min(2*g + NRING, 2*g + 2 + opt.get("k2_first", 4))
        while nu < lim:
            load_unit(nu); nu += 1
            gen(-(-per // 2))
        if MONO and g == opt.get("g_pft", 13) and opt.get("pft", 0):
            a("""s_getpc_b64 s[40:41]
K2_pct:
s_mov_b32 s42, 0x1800
s_mov_b32 s43, 0x20000
s_add_u32 s44, s40, K2_tailc-K2_pct
s_addc_u32 s45, s41, 0
s_mov_b32 s46, 0x2000
s_mov_b32 s47, 0x20000
v_lshrrev_b32 v254, 2, v0
v_lshlrev_b32 v254, 7, v254
s_lshl_b32 s59, s54, 11""")
            a.vmop("buffer_load_dword v255, v254, s[40:43], s59 offen", "pf")
            a.vmop("buffer_load_dword v255, v254, s[44:47], s59 offen", "pf")
        if g == NU//2 - 3 and opt.get("pf3c", 1) and "3" in opt.get("kernels", "123") and not MG:
            a("""s_getpc_b64 s[40:41]
K2_pc:
s_add_u32 s40, s40, k3_kernel-K2_pc
s_addc_u32 s41, s41, 0
s_mov_b32 s42, code_end-k3_kernel
s_mov_b32 s43, 0x20000
v_lshrrev_b32 v8, 1, v0
v_lshlrev_b32 v8, 7, v8
s_lshl_b32 s59, s54, 12""")
            a.vmop("buffer_load_dword v9, v8, s[40:43], s59 offen", "pf")
            a(f"""s_load_dwordx2 s[36:37], s[0:1], 0
s_mov_b32 s38, {T*D*2}
s_mov_b32 s39, 0x20000
v_and_b32 v8, 7, v0
v_mul_u32_u24 v8, 73728, v8
v_lshrrev_b32 v10, 3, v0
v_min_u32 v10, 2, v10
v_lshl_add_u32 v8, v10, 7, v8
s_lshl_b32 s59, s49, 3
s_and_b32 s62, s50, 7
s_add_u32 s59, s59, s62
s_mul_i32 s59, s59, 1152
s_mul_i32 s62, s53, 384
s_add_u32 s59, s59, s62
s_mul_i32 s62, s54, {8*73728}
s_add_u32 s59, s59, s62
s_waitcnt lgkmcnt(0)""")
            a.vmop("buffer_load_dword v9, v8, s[36:39], s59 offen", "pf")
    if MG:
        mark(a, opt, 0)
        a(f"v_mov_b32 v249, {FL + 16}\ns_cmp_lg_u32 s54, 0\ns_cbranch_scc1 K2_pl")
        poll(a, "K2_pv", 8, "s69", "v9", sleep=opt.get("pvsleep", 8))
        a("""s_branch K2_pl_d
K2_pl:
s_mov_b32 s72, 0x400000
K2_pl2:
ds_read_b32 v15, v249
s_waitcnt lgkmcnt(0)
v_cmp_ne_u32 vcc, 0, v15
s_sub_u32 s72, s72, 1
s_cbranch_scc1 K2_pl_d
s_nop 2
s_cbranch_vccnz K2_pl_d
s_sleep 2
s_branch K2_pl2
K2_pl_d:""")
        a("s_mov_b32 m0, s68\ns_nop 0")
        vissue()
        a("K2_vw:")
        mark(a, opt, 1)
        a("s_waitcnt vmcnt(0)")
        mark(a, opt, 2)
        a("""ds_write_b32 v240, v242
s_mov_b32 s72, 0x400000
K2_hs:
ds_read_b32 v243, v241
s_waitcnt lgkmcnt(0)
v_cmp_eq_u32 vcc, 0, v243
s_sub_u32 s72, s72, 1
s_cbranch_scc1 K2_hs_d
s_nop 2
s_cbranch_vccnz K2_hs
K2_hs_d:""")
        mark(a, opt, 3)
        a.lg = []
        def vread(kk, n):
            th, z = n // 2, n % 2
            d = VB + 8*(kk % 4) + 4*th + 2*z
            a.lgop(f"ds_read2st64_b32 v[{d}:{d+1}], v{10+th+2*z} offset0:{8*kk} offset1:{8*kk+1}", ("v", kk))
        for kk in range(3):
            for n in range(4): vread(kk, n)
        for kk in range(9):
            a.wait(lg=("v", kk))
            n = 0
            for t in range(3):
                for th in range(2):
                    d = PA + 8*t + 4*th
                    a(f"{M16} {r4(d)}, {r4(GB+12*kk+4*t)}, {r4(VB+8*(kk%4)+4*th)}, " + (r4(d) if kk else "0"))
                    if kk + 3 < 9 and n < 4: vread(kk + 3, n)
                    n += 1
        for k in range(6): a(f"ds_write_b128 v14, {r4(PA+4*k)} offset:{k*1024}")
        a("s_waitcnt lgkmcnt(0)")
        mark(a, opt, 4)
        if LSIG:
            a(f"""s_mul_i32 s60, s52, 3
s_add_u32 s60, s60, s53
s_lshl_b32 s60, s60, 7
s_add_u32 s60, s60, {WS_SYNC}
v_mov_b32 v13, 0
v_mov_b32 v15, 1""")
        a("s_barrier")
        if LSIG:
            a("""s_cmp_lg_u32 s54, 0
s_cbranch_scc1 K2_lx
s_mov_b64 exec, 1
buffer_atomic_add v15, v13, s[32:35], s60 offen sc0 sc1
s_waitcnt vmcnt(0)
v_cmp_ne_u32 vcc, 3, v15
s_nop 4
s_cbranch_vccz K2_pp_d""")
            poll(a, "K2_pp", 13, "s60", "4", sleep=opt.get("ppsleep", 0))
            a("s_mov_b64 exec, -1\ns_barrier\nK2_lx:")
        mark(a, opt, 5)
        if opt.get("stamp"): stamp_out(a, 2, "s48", 32, "K2_end")
    a("s_endpgm")
    ACC = 16; FB = 112
    a("K2_comp:")
    if MONO and not EARLY: a("s_barrier")
    a(f"""s_and_b32 s54, s48, 1
s_lshr_b32 s55, s48, 1             ; b : d tiles 6b..6b+5
v_lshrrev_b32 v8, 4, v0            ; g
v_and_b32 v9, 15, v0
v_lshlrev_b32 v10, {8 if B1 else 9}, v8
v_lshl_add_u32 v10, v9, 4, v10
s_lshl_b32 s59, s54, 12
v_add_u32 v5, s59, v10
v_add_u32 v248, {OWN_X}, v5
v_lshrrev_b32 v10, 2, v9           ; r
v_and_b32 v11, 1, v8
v_lshl_add_u32 v10, v11, 2, v10
v_lshrrev_b32 v11, 1, v8
v_mul_u32_u24 v11, {3072 if B1 else 6144}, v11
v_lshl_add_u32 v11, v10, 7, v11
v_and_b32 v12, 3, v0
v_lshl_add_u32 v11, v12, 3, v11
v_add_u32 v11, 8192, v11
v_lshrrev_b32 v10, 1, v10          ; swizzle
s_lshl_b32 s59, s55, 10
v_lshl_add_u32 v12, v10, 5, v11
v_add_u32 v1, s59, v12
v_xor_b32 v2, 32, v1
v_xor_b32 v3, 64, v1
v_xor_b32 v4, 0x60, v1
s_lshl_b32 s59, s55, 6
v_xor_b32 v12, s59, v12
v_add_u32 v6, 2048, v12
v_xor_b32 v13, 32, v6""")
    a("s_waitcnt lgkmcnt(0)")
    a.vm = []; a.lg = []
    win = [0]
    def reads(u):
        base = (u % NRING)*UNIT
        fb = FB + (u % 2)*40
        ops = []
        def setwin():
            if not (win[0] <= base and base + 8192 - win[0] <= 65535):
                for k in (1, 2, 3, 4, 5, 6, 13):
                    a(f"v_add_u32 v{k}, {(base - win[0]) & 0xffffffff:#x}, v{k}")
                win[0] = base
        def act(i):
            setwin()
            if EARLY and 6 <= u < 9: a.lgop(f"ds_read_b128 {r4(fb+4*i)}, v248 offset:{(u - 6)*8192 + i*1024}", ("a", u))
            else: a.lgop(f"ds_read_b128 {r4(fb+4*i)}, v5 offset:{base - win[0] + i*1024}", ("a", u))
        def w(j, t):
            d = fb + 16 + 4*j + 2*t
            a.lgop(f"ds_read_b64_tr_b16 v[{d}:{d+1}], v{(1, 2, 3, 4, 6, 13)[j]} offset:{base - win[0] + t*6144}", ("w", u, j))
        for i in range(4): ops.append(lambda i=i: act(i))
        for j in range(6):
            for t in range(2): ops.append(lambda j=j, t=t: w(j, t))
        return ops
    if MG:
        st_o = opt.get("st_o", "")
        OUT = 192; XR = 216; EO = 16; PB = 64; U = 228
        if MONO: late_ = ["s_mov_b64 s[36:37], s[4:5]", "s_mov_b64 s[40:41], s[18:19]"]
        else:
            a("s_load_dwordx2 s[36:37], s[0:1], 0\ns_load_dwordx2 s[40:41], s[0:1], 56\ns_waitcnt lgkmcnt(0)"); late_ = []
        late_ += f"""s_mul_i32 s57, s51, {64*18*2048}
s_lshl_b32 s59, s52, 2
s_lshl_b32 s60, s54, 1
s_add_u32 s59, s59, s60
s_mul_i32 s59, s59, {18*2048}
s_add_u32 s57, s57, s59
s_mul_i32 s59, s53, 6
s_mul_i32 s60, s55, 3
s_add_u32 s59, s59, s60
s_lshl_b32 s59, s59, 10
s_add_u32 s57, s57, s59
s_add_u32 s57, s57, {WS_PART}      ; partial store base
s_mov_b32 s38, {T*D*2}
s_mov_b32 s39, 0x20000
s_mov_b32 s42, {T*D*2}
s_mov_b32 s43, 0x20000
v_and_b32 v240, 8, v9
v_add_u32 v240, v240, v9
v_mul_u32_u24 v240, 73728, v240
v_and_b32 v241, 1, v8
v_lshl_add_u32 v240, v241, 5, v240
v_lshrrev_b32 v242, 1, v8
v_lshl_add_u32 v240, v242, 4, v240       ; x/out voffset
s_lshl_b32 s66, s52, 2
s_add_u32 s66, s66, s51            ; G
s_mul_i32 s74, s54, 9
s_mul_i32 s59, s53, 3
s_add_u32 s74, s74, s59            ; first output d-pair
s_mul_i32 s58, s66, 1152
s_lshl_b32 s59, s74, 6
s_add_u32 s58, s58, s59
s_mul_i32 s59, s55, {8*73728}
s_add_u32 s58, s58, s59            ; x/out soffset
s_mul_i32 s73, s66, 36864
s_lshl_b32 s59, s53, 1
s_add_u32 s59, s59, s54
s_mul_i32 s59, s59, 3072
s_add_u32 s73, s73, s59
s_add_u32 s59, s53, s54
s_and_b32 s59, s59, 1|s_cselect_b32 s76, 2048, 0|s_cselect_b32 s77, 0, 1024
s_add_u32 s78, s77, 1024
s_mul_i32 s59, s55, {18*1024}
s_add_u32 s73, s73, s59
s_add_u32 s73, s73, {WS_PART}""".split("\n")
    mark(a, opt, 0)
    if MONO and not EARLY: a("s_barrier")
    a("s_barrier")
    mark(a, opt, 1)
    probe(a, opt, "s2")
    for o in reads(0): o()
    for u in range(NU):
        if u == opt.get("m2u", 18): mark(a, opt, 2)
        if EARLY and not ASY and u == opt.get("u_sig", 1): a(sigB)
        if MG and u == opt.get("u_x", 33):
            for w in range(3): a(f"buffer_load_dwordx4 {r4(XR+4*w)}, v240, s[36:39], s58 offen offset:{w*64}")
        fb = FB + (u % 2)*40
        nxt = reads(u+1) if u + 1 < NU else []
        bar = (u % 2 == 1 and u + 1 < NU)
        n = 0
        for j in range(6):
            for i in range(4):
                if i == 0:
                    if bar and j == 0: a.wait(lg="all")
                    else: a.wait(lg=[("a", u), ("w", u, j)])
                d = ACC + (i*6 + j)*4
                a(f"{M16} {r4(d)}, {r4(fb+16+4*j)}, {r4(fb+4*i)}, " + (r4(d) if u else "0"))
                if bar and n == 0: a("s_barrier")
                elif nxt: nxt.pop(0)()
                elif late_ and u >= 2: a(late_.pop(0).replace("|", "\n"))
                n += 1
    a("K2_tailc:")
    mark(a, opt, 3)
    probe(a, opt, "l2")
    a(f"""s_lshl_b32 s59, s54, 1
s_sub_u32 s75, s51, s59
s_mul_i32 s59, s55, {UNIT}
s_add_u32 s59, s59, 8192
v_add_u32 v243, s59, v7""")
    for i in range(4):
        for jp in range(3):
            pk = FB + 4*((i*3 + jp) % 8)
            for t in range(2):
                d = ACC + (i*6 + 2*jp + t)*4
                a(f"v_cvt_pk_bf16_f32 v{pk+2*t}, v{d}, v{d+1}\nv_cvt_pk_bf16_f32 v{pk+2*t+1}, v{d+2}, v{d+3}")
            a(f"v_permlane16_swap_b32 v{pk}, v{pk+2}\nv_permlane16_swap_b32 v{pk+1}, v{pk+3}")
            if jp == 0: a(f"s_add_u32 s59, s57, {i*18*1024}")
            a(f"s_cbranch_scc1 K2_own{i}{jp}" if False else "")
            a(f"s_cmp_eq_u32 s75, {i//2}\ns_cbranch_scc1 K2_own{i}{jp}")
            a(f"buffer_store_dwordx4 {r4(pk)}, v7, s[32:35], s59 offen offset:{jp*1024} {st_p}\ns_branch K2_owd{i}{jp}")
            a(f"K2_own{i}{jp}:\nds_write_b128 v243, {r4(pk)} offset:{(i % 2)*2*UNIT + jp*1024}\nK2_owd{i}{jp}:")
    if MG:
        a(f"""v_lshlrev_b32 v10, 9, v242
v_lshl_add_u32 v10, v9, 4, v10
s_lshl_b32 s59, s55, 10
v_add_u32 v10, s59, v10
v_lshl_add_u32 v11, v241, 11, v10
v_mul_u32_u24 v12, {2*UNIT - 4096}, v241
v_add_u32 v12, v12, v10
s_mov_b32 s66, {fbits(LN2)}
s_mov_b32 s67, s66
s_mov_b32 s70, {fbits(2/(576*2048))}
s_mov_b32 s71, s70
s_lshl_b32 s68, s54, 31
s_xor_b32 s68, s68, s70
s_mov_b32 s69, s68
s_mul_i32 s60, s52, 3
s_add_u32 s60, s60, s53
s_lshl_b32 s60, s60, 7
s_add_u32 s60, s60, {WS_SYNC}
s_mul_i32 s59, s48, {UNIT}
s_add_u32 s59, s59, 8192
v_add_u32 v243, s59, v7
v_add_u32 v244, s76, v243
v_add_u32 v245, s77, v243
v_add_u32 v246, s78, v243
v_mov_b32 v13, 0
v_mov_b32 v14, 1
s_waitcnt vmcnt(0) lgkmcnt(0)""")
        mark(a, opt, 4)
        a("s_barrier")
        if not LSIG: a(f"""s_cmp_lg_u32 s48, 0
s_cbranch_scc1 K2_nosig
s_mov_b64 exec, 1
buffer_atomic_add v14, v13, s[32:35], s60 offen sc1
s_mov_b64 exec, -1
K2_nosig:""")
        a.lg = []; a.vm = []
        for w in range(3):
            reg, off = ((11, 0), (12, 4096), (11, 2*UNIT + 2048))[w]
            for par in range(2):
                for hf in range(2):
                    a.lgop(f"ds_read_b128 {r4(EO+16*w+8*par+4*hf)}, v{reg} offset:{off + par*UNIT + hf*256}", ("eo", w))
        for w in range(3): a.lgop(f"ds_read_b128 {r4(PB+16*w)}, v{244+w}", "own")
        for w in range(3):
            for e in range(4):
                a(f"v_lshlrev_b32 v{OUT+8*w+2*e}, 16, v{XR+4*w+e}\nv_and_b32 v{OUT+8*w+2*e+1}, 0xffff0000, v{XR+4*w+e}")
        for w in range(3):
            a.wait(lg=("eo", w))
            for e in range(0, 8, 2): a(f"v_pk_fma_f32 {p2(OUT+8*w+e)}, {p2(EO+16*w+e)}, s[70:71], {p2(OUT+8*w+e)}")
            for e in range(0, 8, 2): a(f"v_pk_fma_f32 {p2(OUT+8*w+e)}, {p2(EO+16*w+8+e)}, s[68:69], {p2(OUT+8*w+e)}")
        def psum(src0, w):
            for e in range(4):
                a(f"v_lshlrev_b32 v{U+2*e}, 16, v{src0+e}\nv_and_b32 v{U+2*e+1}, 0xffff0000, v{src0+e}")
            for e in range(0, 8, 2): a(f"v_pk_fma_f32 {p2(OUT+8*w+e)}, {p2(U+e)}, s[66:67], {p2(OUT+8*w+e)}")
        a.wait(lg="own")
        for w in range(3): psum(PB + 16*w, w)
        for s_ in range(1, 4):
            a(f"s_add_u32 s59, s51, {s_}\ns_and_b32 s59, s59, 3\ns_mul_i32 s59, s59, {64*18*2048}\ns_add_u32 s{79+s_}, s59, s73")
        a("v_add_u32 v244, s76, v7\nv_add_u32 v245, s77, v7\nv_add_u32 v246, s78, v7\nv_mov_b32 v14, 4")
        if not LSIG:
            a("s_cmp_lg_u32 s48, 0\ns_cbranch_scc1 K2_pp_d")
            poll(a, "K2_pp", 13, "s60", "v14")
        a("s_barrier")
        mark(a, opt, 5)
        for w in range(3):
            for s_ in range(1, 4):
                a.vmop(f"buffer_load_dwordx4 {r4(PB+16*w+4*s_)}, v{244+w}, s[32:35], s{79+s_} offen sc1", ("p", w, s_))
        for w in range(3):
            for s_ in range(1, 4):
                a.wait(vm=("p", w, s_))
                psum(PB + 16*w + 4*s_, w)
            for e in range(4): a(f"v_cvt_pk_bf16_f32 v{XR+4*w+e}, v{OUT+8*w+2*e}, v{OUT+8*w+2*e+1}")
            a.vmop(f"buffer_store_dwordx4 {r4(XR+4*w)}, v240, s[40:43], s58 offen offset:{w*64} {st_o}", "o")
    amp_out(a, opt)
    if opt.get("stamp"):
        a.wait(vm="all")
        stamp_out(a, 1, "s48", 32, "K2_end")
    a("s_endpgm")
    PR, PI, PN = 16, 32, 48
    AR, AI = 64, 96
    C32, S32, C64, S64, TWS = 128, 136, 144, 160, 176
    WL = T_END
    u0 = opt.get("apf0", 9)
    xpf = f"""s_cmp_lt_u32 s48, 5
s_cbranch_scc1 K2_end
s_and_b32 s59, s49, 1
s_lshl_b32 s59, s59, 3
s_add_u32 s59, s59, s50            ; rb
s_mul_i32 s59, s59, {4*144*2048}
s_lshr_b32 s60, s49, 1
s_mul_i32 s60, s60, {36*2048}
s_add_u32 s59, s59, s60
s_add_u32 s60, s48, {u0 - 5}
s_lshl_b32 s61, s60, 11
s_add_u32 s59, s59, s61
v_lshrrev_b32 v2, 4, v0
s_mov_b32 s61, {144*2048}
v_mul_lo_u32 v2, s61, v2
v_and_b32 v3, 15, v0
v_lshl_add_u32 v2, v3, 7, v2
s_waitcnt lgkmcnt(0)
K2_pfl:
buffer_load_dword v3, v2, s[32:35], s59 offen
s_add_u32 s59, s59, 6144
s_add_u32 s60, s60, 3
s_waitcnt vmcnt({opt.get("apfd", 0)})
s_cmp_lt_u32 s60, 36
s_cbranch_scc1 K2_pfl""" if opt.get("apf", 0) else ""
    a(f"""K2_fft:
s_lshl_b32 s51, s49, 3
s_add_u32 s51, s51, s50            ; f""")
    if EARLY:
        if ASY:
            a(f"""s_cmp_lt_u32 s48, 4
s_cbranch_scc1 K2_fs2""")
            htail("f")
            a(f"""s_cmp_lt_u32 s48, 5
s_cbranch_scc1 K2_ft
s_getpc_b64 s[28:29]
s_add_u32 s28, s28, fft_tab@rel32@lo+4
s_addc_u32 s29, s29, fft_tab@rel32@hi+12
s_mov_b32 s30, {T_END}
s_mov_b32 s31, 0x20000
s_sub_u32 s59, s48, 5
s_lshl_b32 s59, s59, 10
K2_tl0:
s_mov_b32 m0, s59
s_nop 0
buffer_load_dwordx4 v7, s[28:31], s59 offen lds
s_add_u32 s59, s59, 3072
s_cmp_lt_u32 s59, {T_END}
s_cbranch_scc1 K2_tl0
K2_ft:""")
            cp_first("f")
            for p in range(4): a.copy_pair(p, "f", track=False)
            a(sigB)
        else:
            a(f"s_cmp_ge_u32 s48, 4\ns_cbranch_scc1 K2_fs\n{sigB}\ns_branch K2_fs2\nK2_fs:")
            if TABE:
                a(f"""s_getpc_b64 s[28:29]
s_add_u32 s28, s28, fft_tab@rel32@lo+4
s_addc_u32 s29, s29, fft_tab@rel32@hi+12
s_mov_b32 s30, {T_END}
s_mov_b32 s31, 0x20000
s_sub_u32 s59, s48, 4
s_lshl_b32 s59, s59, 10
K2_tl0:
s_mov_b32 m0, s59
s_nop 0
buffer_load_dwordx4 v7, s[28:31], s59 offen lds
s_add_u32 s59, s59, 4096
s_cmp_lt_u32 s59, {T_TW2}
s_cbranch_scc1 K2_tl0""")
            htail("f")
        a("K2_fs2:")
    tl1 = "s_sub_u32 s53, s48, 5" if ASY else f"s_sub_u32 s53, s48, 5\ns_lshl_b32 s60, s53, 10\ns_add_u32 s60, s60, {T_TW2}" if TABE else f"""s_getpc_b64 s[28:29]
s_add_u32 s28, s28, fft_tab@rel32@lo+4
s_addc_u32 s29, s29, fft_tab@rel32@hi+12
s_mov_b32 s30, {T_END}
s_mov_b32 s31, 0x20000
s_sub_u32 s53, s48, 5
s_lshl_b32 s59, s53, 10
K2_tl:
s_mov_b32 m0, s59
s_nop 0
buffer_load_dwordx4 v7, s[28:31], s59 offen lds
s_add_u32 s59, s59, 3072
{'s_waitcnt vmcnt(2)' if MONO else ''}
s_cmp_lt_u32 s59, {T_END if MONO else T_TW2}
s_cbranch_scc1 K2_tl
s_mov_b32 s60, s59"""
    a(f"""s_cmp_ge_u32 s51, {opt.get("nfft", 58)}
s_cbranch_scc1 K2_xpf
s_mul_i32 s52, s51, 5              ; j0
s_cmp_lt_u32 s48, 5
s_cbranch_scc1 K2_fft_go
{tl1}
s_lshr_b32 s54, s52, 2
s_lshl_b32 s54, s54, 15
s_add_u32 s54, s54, {WS_WT}
s_lshl_b32 s53, s53, 10""")
    if MONO:
        a("s_waitcnt vmcnt(0)\n" + ("" if (EARLY and not TABE) else "s_barrier\n") + "s_cmp_lg_u32 s48, 5\ns_cbranch_scc1 K2_pw_d")
        a(f"v_min_u32 v8, 7, v0\nv_lshlrev_b32 v8, 7, v8\ns_mov_b32 s62, {WS_SYNC + 128*128}")
        poll(a, "K2_pw", 8, "s62", "32", sleep=opt.get("pwsleep", 10))
        a("s_barrier")
    else: a("s_waitcnt vmcnt(0) lgkmcnt(0)\ns_barrier")
    tl2 = "" if (MONO and not TABE) else f"""K2_tl2:
s_mov_b32 m0, s60
s_nop 0
buffer_load_dwordx4 v7, s[28:31], s60 offen lds
s_add_u32 s60, s60, 3072
s_cmp_lt_u32 s60, {T_END}
s_cbranch_scc1 K2_tl2"""
    a(f"""K2_wl:
s_add_u32 m0, s53, {WL}
s_add_u32 s59, s53, s54
buffer_load_dwordx4 v7, s[32:35], s59 offen {SC} lds
s_add_u32 s53, s53, 3072
s_cmp_lt_u32 s53, 65536
s_cbranch_scc1 K2_wl
{tl2}
s_waitcnt vmcnt(0)
s_barrier
K2_xpf:
{"s_cmp_lg_u32 s48, 7|s_cbranch_scc1 K2_end|s_sleep %d|buffer_wbl2 sc1|s_waitcnt vmcnt(0)".replace("|", chr(10)) % opt["wb"] if opt.get("wb") else ""}
{xpf}
s_endpgm
K2_fft_go:
s_add_u32 s56, s52, s48            ; j
s_cmp_gt_u32 s56, 288
s_cbranch_scc1 K2_xpf
s_lshr_b32 s54, s56, 1
s_and_b32 s59, s56, 1
s_mul_i32 s59, s59, 144
s_add_u32 s54, s54, s59            ; sigma
s_mov_b32 s61, 0                   ; 0 normal, 1: j=0, 2: j=288
s_cmp_eq_u32 s56, 0
s_cselect_b32 s61, 1, s61
s_cmp_eq_u32 s56, 288
s_cselect_b32 s61, 2, s61
s_cselect_b32 s54, 0, s54
s_cselect_b32 s59, 4096, 0
s_lshl_b32 s62, s54, 13
s_add_u32 s57, s62, {WS_U}
s_add_u32 s58, s57, 4096
s_add_u32 s57, s57, s59
s_cmp_lg_u32 s61, 0
s_cselect_b32 s58, 0x10000000, s58
v_and_b32 v2, 31, v0               ; n
v_lshrrev_b32 v3, 5, v0            ; h
v_lshlrev_b32 v4, 4, v3
v_lshl_add_u32 v4, v2, 6, v4       ; U voffset
s_waitcnt lgkmcnt(0)""")
    if MONO:
        a("s_barrier" if (EARLY and not TABE) else "s_barrier\ns_barrier")
    a.vm = []; a.lg = []
    for p in range(2):
        for ks in range(2):
            a.vmop(f"buffer_load_dwordx4 {r4(PR+8*p+4*ks)}, v4, s[32:35], s57 offen offset:{p*2048+ks*32} {SC}", "z")
            a.vmop(f"buffer_load_dwordx4 {r4(PI+8*p+4*ks)}, v4, s[32:35], s58 offen offset:{p*2048+ks*32} {SC}", "z")
    a(f"""v_lshrrev_b32 v5, 3, v2
v_add_u32 v5, s56, v5
v_and_b32 v5, 3, v5
v_lshlrev_b32 v5, 2, v5
v_lshl_add_u32 v5, v2, 4, v5
v_lshl_add_u32 v5, v3, 11, v5
s_lshr_b32 s59, s56, 2
s_lshr_b32 s60, s52, 2
s_sub_u32 s59, s59, s60
s_lshl_b32 s59, s59, 15
s_add_u32 s59, s59, {WL}
v_add_u32 v5, s59, v5
{vpos}
v_lshl_add_u32 v6, v3, 9, v6       ; V voffset
s_add_u32 s62, s62, {WS_V}
s_mov_b32 s64, -2.0
s_mov_b32 s65, -2.0""")
    if not MONO: a("s_barrier")
    for k in range(4): a.lgop(f"ds_read_b128 {r4(C32+4*k)}, v7 offset:{k*1024}", "t32")
    NB = 8
    def twread(tw, k):
        s = TWS + 8*(k % NB)
        off = (T_TW1 if tw == 0 else T_TW2) + k*2048
        a.lgop(f"ds_read_b128 {r4(s)}, v7 offset:{off}", ("tw", k))
        a.lgop(f"ds_read_b128 {r4(s+4)}, v7 offset:{off+1024}", ("tw", k))
    def wread(k):
        s = TWS + 8*(k % NB)
        for arr in range(2):
            for e in range(4):
                a.lgop(f"ds_read_u16 v{s+4*arr+e}, v5 offset:{arr*32768 + (8*k + e)*512}", ("tw", k))
    for k in range(4): twread(0, k)
    a.wait(vm="z")
    for k in range(16): a(f"v_xor_b32 v{PN+k}, 0x80008000, v{PR+k}")
    a.wait(lg="t32")
    def stage_small(X1, X2, X3, X4):
        for p in range(2):
            for (D, Xa, Xb) in ((AR, X1, X2), (AI, X3, X4)):
                d = D + 16*p
                for ks in range(2):
                    a(f"{M32} {r16(d)}, {r4(Xa+8*p+4*ks)}, {r4(C32+4*ks)}, " + (r16(d) if ks else "0"))
                    a(f"{M32} {r16(d)}, {r4(Xb+8*p+4*ks)}, {r4(S32+4*ks)}, {r16(d)}")
    def stage_big(X1, X2, X3, X4, dataA, fill=()):
        fill = list(fill)
        for (D, Xa, Xb) in ((AR, X1, X2), (AI, X3, X4)):
            for e in range(2):
                d = D + 16*e
                for p1 in range(2):
                    ks = 2*e + p1
                    for (X, Tb, first) in ((Xa, C64, p1 == 0), (Xb, S64, False)):
                        x, tb = r4(X+4*ks), r4(Tb+4*ks)
                        A_, B_ = (x, tb) if dataA else (tb, x)
                        a(f"{M32} {r16(d)}, {A_}, {B_}, " + ("0" if first else r16(d)))
                        if fill: fill.pop(0)()
        for D in (AR, AI):
            for k in range(0, 16, 2): a(f"v_pk_add_f32 {p2(D+k)}, {p2(D+k)}, {p2(D+16+k)}")
            for k in range(0, 16, 2): a(f"v_pk_fma_f32 {p2(D+16+k)}, {p2(D+16+k)}, s[64:65], {p2(D+k)}")
    def cmul4(k, cr, sr, sgn):
        ng = " neg_lo:[1,0,0] neg_hi:[1,0,0]"
        n1, n2 = (ng, "") if sgn > 0 else ("", ng)
        for e in (0, 2): a(f"v_pk_mul_f32 {p2(8+e)}, {p2(AR+4*k+e)}, {p2(cr+e)}")
        for e in (0, 2): a(f"v_pk_mul_f32 {p2(12+e)}, {p2(AI+4*k+e)}, {p2(cr+e)}")
        for e in (0, 2): a(f"v_pk_fma_f32 {p2(8+e)}, {p2(AI+4*k+e)}, {p2(sr+e)}, {p2(8+e)}{n1}")
        for e in (0, 2): a(f"v_pk_fma_f32 {p2(12+e)}, {p2(AR+4*k+e)}, {p2(sr+e)}, {p2(12+e)}{n2}")
    def pack4(k, negre, eo=False):
        dst = (lambda e: 8*e + k) if eo else (lambda e: 2*k + e)
        src = (lambda e: (e, e + 2)) if eo else (lambda e: (2*e, 2*e + 1))
        for e in range(2): a(f"v_cvt_pk_bf16_f32 v{PR+dst(e)}, v{8+src(e)[0]}, v{8+src(e)[1]}")
        for e in range(2): a(f"v_cvt_pk_bf16_f32 v{PI+dst(e)}, v{12+src(e)[0]}, v{12+src(e)[1]}")
        for e in range(2): a(f"v_xor_b32 v{PN+dst(e)}, 0x80008000, v{(PR if negre else PI)+dst(e)}")
    stage_small(PR, PI, PI, PN)
    t64 = [lambda k=k: a.lgop(f"ds_read_b128 {r4(C64+4*k)}, v7 offset:{T_C64+k*1024}", "t64") for k in range(8)]
    for k in range(8):
        a.wait(lg=("tw", k))
        s = TWS + 8*(k % NB)
        cmul4(k, s, s+4, -1)
        if k + 4 < 8: twread(0, k+4)
        t64.pop(0)()
        pack4(k, True, True)
    a.wait(lg="t64")
    mark(a, opt, 0)
    a("s_barrier")
    mark(a, opt, 1)
    def wr4(k, arr):
        for e in (2*arr, 2*arr + 1):
            a.lgop(f"ds_read_b32 v{TWS+8*k+4+e}, v5 offset:{(8*k + e)*512}", ("tw", k))
    stage_big(PR, PI, PI, PN, False, fill=[lambda k=k, arr=arr: wr4(k, arr) for k in range(8) for arr in range(2)])
    mark(a, opt, 2)
    for k in range(8):
        a.wait(lg=("tw", k))
        s = TWS + 8*(k % NB)
        for e in range(4): a(f"v_lshlrev_b32 v{s+e}, 16, v{s+4+e}")
        for e in range(4): a(f"v_and_b32 v{s+4+e}, 0xffff0000, v{s+4+e}")
        cmul4(k, s, s+4, +1)
        pack4(k, False, True)
    stage_big(PR, PN, PI, PR, True, fill=[lambda k=k: twread(1, k) for k in range(NB)])
    for k in range(8):
        a.wait(lg=("tw", k))
        s = TWS + 8*(k % NB)
        cmul4(k, s, s+4, +1)
        if k + NB < 8: twread(1, k+NB)
        pack4(k, False)
    mark(a, opt, 4)
    a("s_add_u32 s63, s62, 4096\ns_cmp_lg_u32 s61, 0\ns_cbranch_scc1 K2_fft_spw")
    off = lambda j: ((j & 3) + 8*(j >> 2))*128
    def last(special):
        o = []
        for p in range(2):
            for j in range(16):
                d = TWS + 16*p + j
                if special: o.append(f"v_cvt_pk_bf16_f32 v{d}, v{AR+16*p+j}, v{AR+16*p+j}\nbuffer_store_short v{d}, v6, s[32:35], s{62+p} offen offset:{off(j)} {st_v}")
                else: o.append(f"v_cvt_pk_bf16_f32 v{d}, v{AR+16*p+j}, v{AI+16*p+j}\nbuffer_store_dword v{d}, v6, s[32:35], s{62+p} offen offset:{off(j)} {st_v}")
        n = 0
        for p in range(2):
            for (D, Xa, Xb) in ((AR, PR, PN), (AI, PI, PR)):
                if special and D == AI: continue
                d = D + 16*p
                for ks in range(2):
                    for (X, Tb, first) in ((Xa, C32, ks == 0), (Xb, S32, False)):
                        a(f"{M32} {r16(d)}, {r4(X+8*p+4*ks)}, {r4(Tb+4*ks)}, " + ("0" if first else r16(d)))
                        if p == 1 and not special:
                            n += 1
                            if n >= 2: a(o.pop(0)); a(o.pop(0))
        for l in o: a(l)
    last(False)
    a("s_branch K2_fft_out\nK2_fft_spw:\ns_sub_u32 s59, s61, 1\ns_lshl_b32 s59, s59, 1\nv_add_u32 v6, s59, v6")
    last(True)
    a("K2_fft_out:")
    if MG:
        a(f"""s_and_b32 s59, s56, 7
s_lshl_b32 s59, s59, 7
s_add_u32 s59, s59, {WS_SYNC + 48*128}
v_mov_b32 v4, 0
v_mov_b32 v5, 1
s_waitcnt vmcnt(0)
s_mov_b64 exec, 1
buffer_atomic_add v5, v4, s[32:35], s59 offen sc1
s_mov_b64 exec, -1""")
    if opt.get("stamp"):
        a("s_waitcnt vmcnt(0)")
        a("s_mov_b32 s87, 0")
        mark(a, opt, 5)
        stamp_out(a, 3, "s48", 32, "K2_end")
    a("K2_end:\ns_endpgm")
    if not MONO:
        a.end_kernel("k2_kernel", 256, 96)
        a.launch("k2_kernel", 256, 512, 163840)
    tab = fft_tables()
    t = [".p2align 8", ".type fft_tab,@object", "fft_tab:"]
    for i in range(0, len(tab), 8):
        t.append(".long " + ",".join("0x%x" % x for x in tab[i:i+8]))
    a.tail += t
```

```python
import struct, math
T, D, F = 2048, 576, 4608
LOG2E = 1.4426950408889634; LN2 = 0.6931471805599453
def fbits(x): return "0x%08x" % struct.unpack("<I", struct.pack("<f", x))[0]
WS_ACT  = 0
WS_U    = 0x1200000
WS_WT   = WS_U + 576*4096
WS_V    = WS_WT + 64*65536
WS_PART = WS_V + 64*36*1024
WS_GT   = WS_PART + 4*64*18*2048
WS_END  = WS_GT + 9*36*1024
WS_SYNC = (WS_END + 8191) // 8192 * 8192
WS_STAMP = 0x4000000
assert WS_U == 64*144*2048


def probe(a, opt, name):
    amp = opt.get("amp")
    if amp:
        for r, n in ((100, amp[0]), (101, amp[1])):
            if n == name:
                a(f"s_memrealtime s[92:93]\ns_waitcnt lgkmcnt(0)\ns_mov_b32 s{r}, s92")
                a.lg = []
def amp_out(a, opt):
    amp = opt.get("amp")
    if amp:
        a(f"""s_waitcnt vmcnt(0)""")
        probe(a, opt, "end")
        if amp[2] == 0:
            a("""AMP_f:
s_memrealtime s[92:93]
s_waitcnt lgkmcnt(0)
s_sub_u32 s92, s92, s100
s_cmp_lt_u32 s92, 6000
s_cbranch_scc1 AMP_f""")
            return
        a(f"""s_sub_u32 s100, s101, s100
s_mul_i32 s100, s100, {amp[2]}
s_min_u32 s100, s100, 20000
s_memrealtime s[92:93]
s_waitcnt lgkmcnt(0)
s_mov_b32 s101, s92
AMP_l:
s_memrealtime s[92:93]
s_waitcnt lgkmcnt(0)
s_sub_u32 s92, s92, s101
s_cmp_lt_u32 s92, s100
s_cbranch_scc1 AMP_l""")
def mark(a, opt, k):
    if opt.get("stamp"):
        a(f"s_memrealtime s[92:93]\ns_waitcnt lgkmcnt(0)\ns_mov_b32 s{84+k}, s92")
        a.lg = []
def stamp_out(a, slot, wavereg, srd, endlab, wait=True):
    a(f"""s_memrealtime s[92:93]
s_waitcnt lgkmcnt(0)
s_lshl_b32 s94, s2, 3
s_add_u32 s94, s94, {wavereg}
s_lshl_b32 s94, s94, 5
s_add_u32 s94, s94, {WS_STAMP + slot*131072}
v_mov_b32 v4, s90
v_mov_b32 v5, s84
v_mov_b32 v6, s85
v_mov_b32 v7, s86
v_mov_b32 v8, s87
v_mov_b32 v9, s88
v_mov_b32 v10, s89
v_mov_b32 v11, s92
v_mov_b32 v12, 0
s_mov_b64 exec, 1
buffer_store_dwordx4 v[4:7], v12, s[{srd}:{srd+3}], s94 offen
buffer_store_dwordx4 v[8:11], v12, s[{srd}:{srd+3}], s94 offen offset:16
{"s_waitcnt vmcnt(0)" if wait else "s_nop 4"}
s_mov_b64 exec, -1""")

def poll(a, lab, voff, soff, vexp, srd=32, tmp=15, sleep=1):
    a(f"""s_mov_b32 s72, 0x40000
{lab}:
buffer_load_dword v{tmp}, v{voff}, s[{srd}:{srd+3}], {soff} offen sc1
s_waitcnt vmcnt(0)
v_cmp_ne_u32 vcc, {vexp}, v{tmp}
s_sub_u32 s72, s72, 1
s_cbranch_scc1 {lab}_d
s_nop 2
s_cbranch_vccz {lab}_d
{"s_sleep %d" % sleep if sleep else ""}
s_branch {lab}
{lab}_d:""")

OWN_X = 132096
def own_base(u): return u*20480 if u < 6 else OWN_X + (u - 6)*8192

def g_lines(opt, npk, lw, third):
    GB = 40; RC = 148
    def p2(x): return f"v[{x}:{x+1}]"
    g_ = []
    npre = 0
    PQ = lambda t, k: RC + 16*t + 8*(k % 2)
    KK = lambda t: RC + 48 + 2*t
    R2 = RC + 54; SP = RC + 56
    g_ += f"""s_and_b32 s42, {lw}, 1
s_lshr_b32 s43, {lw}, 1
v_lshrrev_b32 v16, 4, v0
v_lshl_add_u32 v16, v16, 3, s42
v_cvt_f32_u32 v16, v16             ; j0
s_lshl_b32 s42, {third}, 1
s_add_u32 s42, s42, s43
s_mul_i32 s42, s42, 48
v_and_b32 v17, 15, v0
v_add_u32 v17, s42, v17
v_cmp_eq_f32 s[42:43], 0, v16
v_cvt_f32_u32 v18, v17
v_lshlrev_b32 v{SP}, 31, v17
v_mul_f32 v18, {fbits(1/576)}, v18
v_or_b32 v{SP}, 0x3f003f00, v{SP}""".split("\n")
    def rot(dst, src, cs):
        if opt.get("g_plain"):
            g_.extend([f"v_mul_f32 v{dst}, v{src}, v{cs}", f"v_mul_f32 v{dst+1}, v{src+1}, v{cs}",
                       f"v_fmac_f32 v{dst}, v{src+1}, v{cs+1}", f"v_fma_f32 v{dst+1}, -v{src}, v{cs+1}, v{dst+1}"])
            return
        g_.append(f"v_pk_mul_f32 {p2(dst)}, {p2(src)}, {p2(cs)} op_sel_hi:[1,0]")
        g_.append(f"v_pk_fma_f32 {p2(dst)}, {p2(src)}, {p2(cs)}, {p2(dst)} op_sel:[1,1,0] op_sel_hi:[0,1,1] neg_hi:[0,1,0]")
    for t in range(3):
        P, Q = PQ(t, 0), PQ(t, 1)
        if t: g_.append(f"v_add_f32 v18, {fbits(16/576)}, v18")
        g_ += f"""v_mul_f32 v19, v16, v18
v_add_f32 v20, v18, v18
v_mul_f32 v21, {fbits(32.0)}, v18
v_cos_f32 v{P}, v19
v_sin_f32_e64 v{P+1}, -v19
v_cos_f32 v{R2}, v20
v_sin_f32 v{R2+1}, v20
v_cos_f32 v{KK(t)}, v21
v_sin_f32 v{KK(t)+1}, v21""".split("\n")
        rot(P+4, P, R2); rot(Q, P, KK(t)); rot(P+2, P+4, R2); rot(Q+4, P+4, KK(t)); rot(P+6, P+2, R2); rot(Q+2, P+2, KK(t)); rot(Q+6, P+6, KK(t))
        g_.append(f"v_add_f32 v{KK(t)}, v{KK(t)}, v{KK(t)}")
    for kk in range(9):
        if kk >= 2:
            for t in range(3):
                cur, oth = PQ(t, kk), PQ(t, kk + 1)
                if kk < npk or kk >= opt.get('g_pk2', 99):
                    for i in range(0, 8, 2): g_.append(f"v_pk_fma_f32 {p2(cur+i)}, {p2(oth+i)}, {p2(KK(t))}, {p2(cur+i)} op_sel_hi:[1,0,1] neg_lo:[0,0,1] neg_hi:[0,0,1]")
                else:
                    for i in range(8): g_.append(f"v_fma_f32 v{cur+i}, v{oth+i}, v{KK(t)}, -v{cur+i}")
        for t in range(3):
            cur = PQ(t, kk)
            for i in range(4): g_.append(f"v_cvt_pk_bf16_f32 v{GB+12*kk+4*t+i}, v{cur+2*i}, v{cur+2*i+1}")
            if kk == 0: g_.append(f"v_cndmask_b32_e64 v{GB+4*t}, v{GB+4*t}, v{SP}, s[42:43]")
        if kk == npk - 1: npre = len(g_)
    return g_, npre
```

```python
from fw import *
from common import *
import re
M16 = "v_mfma_f32_16x16x32_bf16"
def r4(x): return f"v[{x}:{x+3}]"
def p2(x): return f"v[{x}:{x+1}]"
WU = 18432
W_OFF = 0; NW = 4
X_OFF = NW*WU
NX = 3
F_OFF = X_OFF + NX*16384
E_OFF = F_OFF + 18432
ESTR = 1168
WR_OFF = 149504
CSB = 159744
BIAS = CSB + 1280
STAT = BIAS + 1280
SCR = 157184
RS = 0
NS = 18
PF = CSB + 1168
HC = CSB + 1152
UI = F_OFF

def gen_k1b(a, opt):
    st_act = opt.get("st_act", "sc1"); st_u = opt.get("st_u", "sc1"); st_wt = opt.get("st_wt", "sc1")
    MONO = opt.get("mono", 1) and "2" in opt.get("kernels", "123")
    KN = NAME + "_kernel" if MONO else "k1_kernel"
    if MONO: st_u = opt.get("st_u", "sc1")
    EARLY = MONO and opt.get("early", 1)
    ASY = EARLY and opt.get("asy", 0)
    def own_addr(b_, p, dst, areg):
        u0, u1 = (4*b_ + p, 4*b_ + (p ^ 1)) if p < 4 else (8, 8)
        t_ = f"s_mul_i32 s59, {areg}, {(own_base(u1) - own_base(u0) + 4096) & 0xffffffff:#x}\ns_add_u32 s59, s59, {own_base(u0)}\n"
        if ASY: t_ += f"s_mul_i32 s61, {areg}, {((u1 - u0)*8192 + 4096) & 0xffffffff:#x}\ns_add_u32 s61, s61, {49152 + u0*8192}\ns_cmp_eq_u32 s3, 0\ns_cselect_b32 s59, s61, s59\n"
        else: t_ += f"s_cmp_eq_u32 s3, 0\ns_cselect_b32 s59, {OWN_X}, s59\n"
        return t_ + f"v_add_u32 v{dst}, s59, v7"
    def signal(base, tag="all"):
        a(f"""s_lshl_b32 s59, s49, 2
s_lshr_b32 s60, s50, 2
s_add_u32 s59, s59, s60
s_lshl_b32 s59, s59, 7
s_add_u32 s59, s59, {WS_SYNC + base*128}
v_mov_b32 v12, 0
v_mov_b32 v13, 1""")
        a.wait(vm=tag)
        a("s_mov_b64 exec, 1")
        a.vmop("buffer_atomic_add v13, v12, s[32:35], s59 offen sc1", "sig")
        a("s_mov_b64 exec, -1")
    a.begin_kernel(KN)
    a("K1_start:")
    a("s_cmp_ge_u32 s2, 256\ns_cbranch_scc1 K1_end")
    if opt.get("stamp"): a("s_memrealtime s[90:91]")
    probe(a, opt, "start")
    a(f"""s_load_dwordx8 s[4:11], s[0:1], 0
s_load_dwordx8 s[12:19], s[0:1], 32
s_load_dwordx2 s[32:33], s[0:1], 72
s_lshr_b32 s60, s2, 3              ; idx
s_getpc_b64 s[80:81]
K1_pc:
s_mov_b32 s82, code_end-K1_pc
s_mov_b32 s83, 0x20000
v_mul_u32_u24 v1, 3, v0
v_lshrrev_b32 v1, 6, v1
v_lshlrev_b32 v1, 7, v1
s_mul_i32 s59, s60, 3072
s_mov_b32 m0, {SCR}
s_nop 0
buffer_load_dword v1, s[80:83], s59 offen lds
v_lshrrev_b32 v1, 6, v0
v_readfirstlane_b32 s48, v1        ; wave
v_mov_b32 v2, v0                   ; tid
v_and_b32 v0, 63, v0               ; lane
s_and_b32 s49, s2, 1
s_lshl_b32 s49, s49, 3
s_and_b32 s61, s60, 7
s_add_u32 s49, s49, s61            ; rb
s_lshr_b32 s3, s60, 3              ; cq
s_bfe_u32 s50, s2, 0x20001
s_lshl_b32 s50, s50, 2
s_add_u32 s50, s50, s3             ; cg
{"s_lshr_b32 s71, s2, 1|s_xor_b32 s71, s71, s2".replace("|", chr(10)) if opt.get("rotx") else "s_add_u32 s71, s3, s49"}
s_and_b32 s71, s71, {opt.get("rotmask", 0)}
s_mul_i32 s71, s71, {opt.get("rot", 4)}
s_mul_i32 s63, s50, 576
s_and_b32 s64, s50, 1
s_mov_b32 s34, 0x10000000
s_mov_b32 s35, 0x20000
v_lshlrev_b32 v7, 4, v0
s_cmp_lt_u32 s48, 4
s_cbranch_scc1 K1_comp""")
    a(f"""s_sub_u32 s51, s48, 4              ; lw
v_lshrrev_b32 v8, 3, v0            ; r
v_lshrrev_b32 v9, 4, v0
v_xor_b32 v9, v9, v0
v_and_b32 v9, 7, v9
v_lshlrev_b32 v9, 4, v9
s_mov_b32 s22, 73728
v_mad_u32_u24 v3, v8, s22, v9
v_xor_b32 v4, 64, v3
v_add_u32 v4, {16*73728-1024}, v4
s_lshl_b32 s53, s49, 2
s_add_u32 s53, s53, s51
s_mul_i32 s53, s53, 1152           ; x base
s_lshl_b32 s20, s71, 7
s_add_u32 s20, s20, s53
s_add_u32 s21, s53, 1152
s_lshl_b32 s57, s51, 12            ; lw*4096
s_mov_b32 s26, {T*D*2}
s_mov_b32 s27, 0x20000
s_waitcnt lgkmcnt(0)
s_mov_b64 s[24:25], s[4:5]""")
    wsetup = f"""v_and_b32 v9, 2, v8
s_and_b32 s59, s51, 1
s_lshl_b32 s59, s59, 2
v_or_b32 v9, s59, v9
v_xor_b32 v9, v9, v0
v_and_b32 v9, 7, v9
v_lshlrev_b32 v9, 4, v9
v_mul_u32_u24 v5, 9216, v8
v_add_u32 v5, v5, v9               ; W voffset
v_lshrrev_b32 v8, 2, v0
v_mul_u32_u24 v6, 9216, v8
s_lshr_b32 s59, s59, 1
v_xor_b32 v9, s59, v0
v_and_b32 v9, 3, v9
v_lshl_add_u32 v6, v9, 4, v6       ; H voffset
s_mul_i32 s54, s51, {8*9216}
s_add_u32 s54, s54, s63
s_mul_i32 s59, s71, {64*9216}
s_add_u32 s36, s54, s59
s_add_u32 s37, s54, {576*9216}
s_lshl_b32 s38, s64, 6
s_xor_b32 s39, s64, 1
s_lshl_b32 s39, s39, 9
s_lshl_b32 s58, s51, 9
s_mov_b32 s30, {D*F*2}
s_mov_b32 s31, 0x20000
s_mov_b64 s[28:29], s[12:13]"""
    a.vm = []; a.lg = []
    def x_items(c, th):
        def f0():
            a(f"s_add_u32 m0, s57, {X_OFF + (c % NX)*16384 + th*2048}")
            if th: a(f"s_add_u32 s23, s20, {8*73728}")
            else: a("s_mov_b32 s23, s20")
            a.vmop("buffer_load_dwordx4 v3, s[24:27], s23 offen lds", ("x", c))
        def f1():
            a(f"s_add_u32 m0, s57, {X_OFF + (c % NX)*16384 + th*2048}\ns_nop 0")
            a.vmop("buffer_load_dwordx4 v4, s[24:27], s23 offen offset:1024 lds", ("x", c))
            if th: a("s_add_u32 s20, s20, 128\ns_cmp_eq_u32 s20, s21\ns_cselect_b32 s20, s53, s20")
        return [f0, f1]
    def w_items(u):
        base = W_OFF + (u % NW)*WU
        it = []
        for j in range(4):
            def f(j=j):
                a(f"s_add_u32 m0, s57, {base + j*1024 - j*128}")
                if j == 0: a("s_add_u32 s40, s36, s38")
                else: a("s_nop 0")
                a.vmop(f"buffer_load_dwordx4 v5, s[28:31], s40 offen offset:{j*128} lds", ("w", u))
            it.append(f)
        def fh():
            a(f"s_add_u32 m0, s58, {base + 16384}\ns_add_u32 s41, s36, s39\ns_mov_b32 exec_hi, 0")
            a.vmop("buffer_load_dwordx4 v6, s[28:31], s41 offen lds", ("w", u))
            a(f"s_mov_b32 exec_hi, -1\ns_add_u32 s36, s36, {32*9216}\ns_cmp_eq_u32 s36, s37\ns_cselect_b32 s36, s54, s36")
        it.append(fh)
        return it
    for f in x_items(0, 0) + x_items(0, 1): f()
    a(wsetup)
    for f in w_items(0): f()
    a(f"""s_mov_b64 s[44:45], s[14:15]
s_mov_b32 s46, {F*2}
s_mov_b32 s47, 0x20000
v_subrev_u32 v10, 256, v2
v_lshlrev_b32 v11, 1, v10
v_lshlrev_b32 v10, 2, v10
v_add_u32 v10, {BIAS}, v10""")
    for f in w_items(1): f()
    a.vmop("buffer_load_ushort v12, v11, s[44:47], s63 offen", "bias")
    a.vmop("buffer_load_ushort v13, v11, s[44:47], s63 offen offset:512", "bias")
    XV = 64; XP = 96
    def recur():
        a(f"""s_lshl_b32 s59, s71, 6
v_lshl_add_u32 v18, v18, 5, s59    ; d0
v_cvt_f32_u32 v16, v16
v_cvt_f32_u32 v17, v17
v_cvt_f32_u32 v18, v18
v_mul_f32 v16, {fbits(1/576)}, v16
v_mul_f32 v17, {fbits(0.25)}, v17
v_fma_f32 v17, v18, v16, v17
v_fract_f32 v17, v17
v_add_f32 v18, v17, v16
v_cos_f32 v{XV}, v17
v_cos_f32 v{XV+1}, v18
v_cos_f32 v16, v16
v_and_b32 v{XV}, v20, v{XV}
v_and_b32 v{XV+1}, v20, v{XV+1}
v_add_f32 v16, v16, v16""")
    def recur2():
        for k in range(2, 32):
            a(f"v_fma_f32 v{XV+k}, v16, v{XV+k-1}, -v{XV+k-2}")
            if k % 2 == 0: a(f"v_cvt_pk_bf16_f32 v{XP+k//2-1}, v{XV+k-2}, v{XV+k-1}")
            if k % 8 == 0: a(f"ds_write_b128 v19, {r4(XP + k//2 - 4)}\nv_add_u32 v19, s72, v19")
        a(f"v_cvt_pk_bf16_f32 v{XP+15}, v{XV+30}, v{XV+31}\nds_write_b128 v19, {r4(XP+12)}")
    a(f"""v_and_b32 v8, 31, v0
v_lshrrev_b32 v9, 5, v0
v_bfe_u32 v14, v8, 1, 3
v_xor_b32 v14, v14, v9
v_lshlrev_b32 v14, 4, v14
v_lshl_add_u32 v14, v8, 7, v14
s_add_u32 s59, s57, {X_OFF}
v_add_u32 v24, s59, v14
v_xor_b32 v25, 32, v24
v_xor_b32 v26, 64, v24
v_xor_b32 v27, 0x60, v24
v_mov_b32 v28, 0
v_mov_b32 v29, 0""")
    a("s_branch K1_hloop")
    cut0 = len(a.lines)
    a("K1_hloop:")
    side = {}
    pre = []
    def sq_ops(c):
        o = [lambda: [a.lgop(f"ds_read_b128 {r4(32+4*i)}, v{24+i} offset:{(c % NX)*16384}", ("sq", i)) for i in range(4)]]
        for i in range(4):
            def f(i=i):
                a.wait(lg=("sq", i))
                if opt.get("sqdot"):
                    for k in range(4): a(f"v_dot2c_f32_bf16 v{28+k%2}, v{32+4*i+k}, v{32+4*i+k}")
                    return
                for hh in range(2):
                    for k in range(2): a(f"v_lshlrev_b32 v{48+2*k}, 16, v{32+4*i+2*hh+k}\nv_and_b32 v{49+2*k}, 0xffff0000, v{32+4*i+2*hh+k}")
                    for k in range(4): a(f"v_fmac_f32 v{28+k%2}, v{48+k}, v{48+k}")
            o.append(f)
        return o
    def bias_w():
        a.wait(vm="bias")
        a(f"v_lshlrev_b32 v12, 16, v12\nv_lshlrev_b32 v13, 16, v13\nv_mul_f32 v12, {fbits(LOG2E)}, v12\nv_mul_f32 v13, {fbits(LOG2E)}, v13")
        a.lgop("ds_write_b32 v10, v12", "pub")
        a(f"v_mov_b32 v8, {HC}\nv_mov_b32 v9, 0")
        a.lgop("ds_write_b32 v8, v9", "pub")
        a.lgop("ds_write_b32 v237, v9", "pub")
        a("s_cmp_lg_u32 s51, 0\ns_cbranch_scc1 K1_nb\nds_write_b32 v10, v13 offset:1024\nK1_nb:")
    side.setdefault(1, []).append(bias_w)
    def zero_sync():
        a(f"""s_lshl_b32 s59, s2, 2
s_or_b32 s59, s59, s51
s_cmp_lg_u32 s59, 0
s_cbranch_scc1 K1_nz
v_lshlrev_b32 v8, 7, v0
v_mov_b32 v9, 0
s_mov_b32 s59, {WS_SYNC}
buffer_store_dword v9, v8, s[32:35], s59 offen sc1""")
        if MONO:
            a("""s_add_u32 s59, s59, 8192
buffer_store_dword v9, v8, s[32:35], s59 offen sc1
s_add_u32 s59, s59, 8192
buffer_store_dword v9, v8, s[32:35], s59 offen sc1
s_add_u32 s59, s59, 8192
buffer_store_dword v9, v8, s[32:35], s59 offen sc1
""")
        a("K1_nz:")
    def init_flag():
        a("""s_lshl_b32 s59, s2, 2
s_or_b32 s59, s59, s51
s_cmp_lg_u32 s59, 0
s_cbranch_scc1 K1_nz2
v_mov_b32 v8, 1
v_mov_b32 v9, 0
s_mov_b64 exec, 1
buffer_store_dword v8, v9, s[44:47], 0 offen sc1
s_mov_b64 exec, -1
K1_nz2:""")
    if MONO: side.setdefault(6, []).append(init_flag)
    def dbg_srd():
        a("s_load_dwordx2 s[44:45], s[0:1], 64\ns_mov_b32 s46, 256\ns_waitcnt lgkmcnt(0)")
        a.lg = []
    if MONO: side.setdefault(2, []).append(dbg_srd)
    if opt.get("merge", 1): side.setdefault(2, []).append(zero_sync)
    if MONO:
        side.setdefault(opt.get('s_ini', 12), []).append(lambda: (a.vmop("buffer_load_dword v54, v53, s[44:47], 0 offen sc1", "init")))
        def chk():
            a.wait(vm="init")
            a("v_cmp_ne_u32 vcc, 1, v54\ns_nop 4\ns_cbranch_vccz K1_in_d")
            poll(a, "K1_in", 53, "0", "1", srd=44, tmp=54)
        side.setdefault(opt.get('s_chk', 15), []).insert(0, chk)
    fol = opt.get("fol", 0)
    nlab = [0]
    def guarded(f):
        def g():
            if not fol: return f(True)
            nlab[0] += 1
            a(f"s_cmp_lg_u32 s71, 0\ns_cbranch_scc1 K1_sj{nlab[0]}")
            f(False)
            a(f"K1_sj{nlab[0]}:")
        return g
    def vm(track, txt, tag):
        if track: a.vmop(txt, tag)
        else: a(txt)
    spf = opt.get("s_pf2", [15])
    full = opt.get('pffull', 0)
    nl = -(-(82 if (fol or full) else 41) // len(spf))
    pre.append(f"""s_mov_b32 s18, {F*D*2}
s_mov_b32 s19, 0x20000
s_bfe_u32 s65, s2, 0x20001
s_mul_i32 s65, s65, {1152*1152}
s_mul_i32 s66, s60, {324*128}
s_add_u32 s65, s65, s66
s_lshl_b32 s66, s51, 1
s_and_b32 s67, s2, {0 if full else 1}
s_add_u32 s66, s66, s67
s_mul_i32 s66, s66, {41*128}
s_add_u32 s95, s65, s66
v_min_u32 v52, {nl-1}, v0
v_lshlrev_b32 v52, 7, v52
v_lshrrev_b32 v56, 3, v0
v_lshlrev_b32 v56, 7, v56
v_min_u32 v57, 5, v0
v_lshlrev_b32 v57, 7, v57""")
    def pf2_setup(tr):
        if "2" in opt.get("kernels", "123"):
            a(f"""s_getpc_b64 s[80:81]
s_add_u32 s80, s80, fft_tab@rel32@lo+4
s_addc_u32 s81, s81, fft_tab@rel32@hi+12
s_mov_b32 s82, 45056
s_mov_b32 s83, 0x20000
s_lshr_b32 s65, s60, 1
s_lshl_b32 s65, s65, 2
s_add_u32 s65, s65, s51
s_mov_b32 m0, {SCR}
s_lshl_b32 s65, s65, 10""")
            vm(tr, "buffer_load_dword v56, s[80:83], s65 offen lds", "pf")
    def pf2(tr):
        a(f"s_mov_b32 m0, {SCR}\ns_nop 0")
        vm(tr, "buffer_load_dword v52, s[16:19], s95 offen lds", "pf")
        a(f"s_add_u32 s95, s95, {nl*128}")
    rows = opt.get("pf_rows", 4)
    pre.append(f"""s_mul_i32 s65, s50, {288*1152}
s_mul_i32 s66, s64, {32*1152}
s_add_u32 s65, s65, s66
s_and_b32 s66, s49, 7
s_lshl_b32 s66, s66, 2
s_add_u32 s66, s66, s51
s_mul_i32 s66, s66, {rows*1152}
s_add_u32 s65, s65, s66
s_add_u32 s66, s3, 2
s_mul_i32 s66, s66, 192
s_cmp_ge_u32 s66, 576
s_cselect_b32 s67, 576, 0
s_sub_u32 s66, s66, s67
s_add_u32 s96, s65, s66
v_lshrrev_b32 v58, 2, v0
v_min_u32 v58, {rows-1}, v58
v_mul_u32_u24 v58, 1152, v58
v_and_b32 v9, 1, v0
v_lshl_add_u32 v58, v9, 7, v58
v_bfe_u32 v9, v0, 1, 1
v_mul_u32_u24 v9, 576, v9
v_add_u32 v58, v58, v9""")
    def pf_first():
        a(f"s_mov_b32 m0, {SCR}\ns_nop 0")
        a.vmop("buffer_load_dword v58, s[16:19], s96 offen lds", "pf")
    if opt.get("pf2", 1):
        s0 = opt.get("s_pf0", 11) if MONO else spf[0]
        side.setdefault(s0, []).append(lambda: pf2_setup(True))
        if MONO: side.setdefault(s0, []).append(pf_first)
        for k in spf: side.setdefault(k, []).append(guarded(pf2))
    def touch(k0, n):
        def f():
            a(f"""v_lshl_add_u32 v8, v0, 2, s51
v_mul_u32_u24 v9, 52429, v8
v_lshrrev_b32 v9, 18, v9           ; /5
v_mul_u32_u24 v55, 5, v9
v_sub_u32 v8, v8, v55
v_min_u32 v9, {2*n-1}, v9
v_mul_u32_u24 v9, {16*9216}, v9
v_lshl_add_u32 v8, v8, 7, v9
s_mul_i32 s65, s49, 9216
s_and_b32 s66, s63, 0xffffff80
s_add_u32 s65, s65, s66
s_add_u32 s65, s65, {k0*32*9216}
s_mov_b32 m0, {SCR}
s_nop 0""")
            a.vmop("buffer_load_dword v8, s[28:31], s65 offen lds", "pf")
            a(f"""v_and_b32 v8, 1, v0
v_mul_u32_u24 v8, 73728, v8
v_lshrrev_b32 v9, 1, v0
v_min_u32 v9, {n//2-1}, v9
v_lshl_add_u32 v8, v9, 7, v8
s_mul_i32 s65, s50, {2*73728}
s_add_u32 s65, s65, s53
s_add_u32 s65, s65, {(k0//2)*128}""")
            a.vmop("buffer_load_dword v8, s[24:27], s65 offen lds", "pf")
        return f
    for (k, k0, n) in opt.get("tch", []): side.setdefault(k, []).append(touch(k0, n))
    def pf_code():
        a("""s_getpc_b64 s[80:81]
K1_pc2:
s_sub_u32 s80, s80, K1_pc2-K1_start
s_subb_u32 s81, s81, 0
s_mov_b32 s82, code_end-K1_start
s_mov_b32 s83, 0x20000
s_lshl_b32 s59, s60, 2
s_add_u32 s59, s59, s51
s_mul_i32 s59, s59, 768""")
        a.vmop("buffer_load_dword v255, v57, s[80:83], s59 offen", "pf")
    if opt.get("pf2c", 1) and "2" in opt.get("kernels", "123"): side.setdefault(opt.get("s_pfc", 14), []).append(pf_code)
    pre.append(f"""v_and_b32 v8, 7, v0
v_lshrrev_b32 v9, 3, v0
v_mul_u32_u24 v30, 289, v8
v_lshl_add_u32 v30, v9, 2, v30
v_and_b32 v30, -2, v30
v_lshlrev_b32 v30, 1, v30
v_lshlrev_b32 v253, 4, v8
v_lshl_add_u32 v31, v9, 15, v253
v_and_b32 v253, 16, v253
v_mov_b32 v53, 0""")
    def wt_load():
        a(f"""s_mov_b64 s[84:85], s[6:7]
s_mov_b32 s86, {T*289*2}
s_mov_b32 s87, 0x20000
s_mov_b64 s[76:77], s[8:9]
s_mov_b32 s78, {T*289*2}
s_mov_b32 s79, 0x20000
s_mul_i32 s67, s2, {8*578}
s_lshl_b32 s68, s51, 6
s_add_u32 s67, s67, s68""")
        for y in range(3):
            for z in range(2):
                a.vmop(f"buffer_load_dwordx3 v[{112+8*y+4*z}:{114+8*y+4*z}], v30, s[{84-8*z}:{87-8*z}], s67 offen offset:{256*y}", "wt")
        a(f"""s_lshl_b32 s69, s51, 18
s_lshl_b32 s68, s2, 7
s_add_u32 s69, s69, s68
s_add_u32 s4, s32, {WS_WT}
s_addc_u32 s5, s33, 0
s_mov_b32 s6, {73*32768}
s_mov_b32 s7, 0x20000
s_mov_b32 s8, 0x05040100
s_mov_b32 s9, 0x07060302""")
    def wt_store():
        for y in range(3):
            for z in range(2):
                r = 112 + 8*y + 4*z
                a(f"v_alignbit_b32 v{r}, v{r+1}, v{r}, v253\nv_alignbit_b32 v{r+1}, v{r+2}, v{r+1}, v253")
        a("s_and_b32 s68, s2, 3")
        for rot in range(4):
            if rot < 3: a(f"s_cmp_lg_u32 s68, {rot}\ns_cbranch_scc1 K1_nexr{rot}")
            for y in range(3):
                for k in range(4):
                    a(f"v_perm_b32 v{136+4*y+((k+rot)&3)}, v{116+8*y+k//2}, v{112+8*y+k//2}, s{8+k%2}")
            if rot < 3: a(f"s_branch K1_nexr\nK1_nexr{rot}:")
        a("K1_nexr:")
        for y in range(3):
            a(f"s_add_u32 s68, s69, {y*32*32768}")
            a.vmop(f"buffer_store_dwordx4 {r4(136+4*y)}, v31, s[4:7], s68 offen {st_wt}", "st")
    if not opt.get("nowt"):
        swt = opt.get("s_wt", [14])[0]; sws = opt.get("s_wts", ["late"])[0]
        side.setdefault(swt, []).append(wt_load)
        if sws == 17: side.setdefault(17, []).append(lambda: (a("s_waitcnt vmcnt(2)"), a.vm.clear()))
        else: side.setdefault(sws, []).append(lambda: a.wait(vm="wt"))
        side.setdefault(sws, []).append(wt_store)
    pre.append(f"""v_and_b32 v8, 31, v0
v_lshrrev_b32 v9, 5, v0
v_lshlrev_b32 v8, 2, v8
v_lshl_add_u32 v8, v9, 9, v8
s_lshl_b32 s59, s51, 7
s_add_u32 s59, s59, {STAT + 512}
v_add_u32 v59, s59, v8
s_lshl_b32 s59, s51, 11
s_add_u32 s59, s59, {UI}
v_add_u32 v250, s59, v7
v_lshrrev_b32 v8, 4, v0
v_and_b32 v9, 15, v0
v_lshlrev_b32 v9, 4, v9
v_lshl_add_u32 v251, v8, 12, v9
s_lshl_b32 s14, s50, 17
s_lshl_b32 s66, s49, 8
s_lshl_b32 s67, s51, 15
s_add_u32 s14, s14, s67
s_add_u32 s14, s14, s66
s_add_u32 s14, s14, {WS_U}
s_add_u32 s15, s14, 16384
s_lshl_b32 s10, s50, 14
s_add_u32 s10, s10, s66
s_add_u32 s10, s10, {WS_U + 512*4096}""")
    pre.append(f"s_lshl_b32 s59, s51, 2\ns_add_u32 s59, s59, {PF}\nv_mov_b32 v237, s59")
    if ASY:
        pre.append("s_and_b32 s12, s51, 1\ns_lshr_b32 s13, s51, 1\ns_cmp_lg_u32 s13, 0\ns_cbranch_scc1 K1_oa1")
        for p in range(5): pre.append(own_addr(0, p, 232 + p, "s12"))
        pre.append("s_branch K1_oa2\nK1_oa1:")
        for p in range(4): pre.append(own_addr(1, p, 232 + p, "s12"))
        pre.append("v_mov_b32 v236, v235\nK1_oa2:")
        side.setdefault("late", []).append(lambda: a(f"""s_lshl_b32 s59, s49, 2
s_lshr_b32 s98, s50, 2
s_add_u32 s98, s98, s59
s_lshl_b32 s98, s98, 7
s_add_u32 s98, s98, {WS_SYNC + 64*128}
s_lshl_b32 s61, s12, 1
s_add_u32 s59, s59, s61
s_mul_i32 s58, s59, {144*2048}
s_mul_i32 s59, s50, 9
s_xor_b32 s61, s64, 1
s_lshl_b32 s61, s61, 3
s_add_u32 s61, s61, s59
s_lshl_b32 s61, s61, 11
s_add_u32 s40, s58, s61
s_add_u32 s59, s59, s64
s_lshl_b32 s61, s13, 2
s_add_u32 s59, s59, s61
s_lshl_b32 s59, s59, 11
s_add_u32 s58, s58, s59
s_lshl_b32 s59, s12, 11
s_add_u32 s36, s58, s59
s_xor_b32 s59, s59, 2048
s_add_u32 s37, s58, s59
s_add_u32 s38, s36, 4096
s_add_u32 s39, s37, 4096"""))
    if EARLY and opt.get("g1", 0):
        a("s_add_u32 s62, s3, 3\ns_and_b32 s62, s62, 3")
        for l in g_lines(opt, 9, "s51", "s62")[0]: a.lines.append(";G" + l.split(";")[0])
    for t_ in pre: a(t_)
    xq = [(c, th) for c in range(1, 9) for th in range(2)]
    nw = 2
    sq = []
    for k in range(NS):
        a.wait(vm=[("w", k), ("x", k//2)], lg="all")
        a("s_barrier")
        items = []
        nx = 2 if k == 0 else 1
        while nx and xq and (xq[0][0] < NX or 2*(xq[0][0] - NX) + 2 <= k):
            items += x_items(*xq.pop(0)); nx -= 1
        while nw < NS and nw - NW <= k - 2 and nw <= k + 2:
            items += w_items(nw); nw += 1
        if k % 2 == 0: sq = sq_ops(k//2)
        fill = [sq.pop(0) for _ in range(3 if k % 2 == 0 else 2)]
        if k == NS - 2 and opt.get('sqlast', 1): fill += [sq.pop(0)]; sq = sq + [lambda: None]
        if fill and k % 2 == 0: fill.pop(0)()
        n = len(items)
        for i, f in enumerate(items):
            f()
            if fill and (i + 1) % 3 == 0: fill.pop(0)()
        for f in fill: f()
        if k < NS - 1:
            for f in side.get(k, []): f()
    assert not xq and nw == NS
    a("v_add_f32 v28, v28, v29\nds_write_b32 v59, v28\ns_waitcnt lgkmcnt(0)\ns_barrier")
    for f in side.get("late", []): f()
    a("s_barrier")
    if EARLY: a("s_mov_b32 s11, s69\nv_mov_b32 v252, v31\ns_branch K2_start")
    cut1 = len(a.lines)
    a(f"""s_barrier
ds_read_b128 v[32:35], v250
ds_read_b128 v[36:39], v250 offset:1024
ds_read_b128 v[40:43], v250 offset:8192
s_waitcnt lgkmcnt(0)
buffer_store_dwordx4 v[32:35], v251, s[32:35], s14 offen {st_u}
buffer_store_dwordx4 v[36:39], v251, s[32:35], s15 offen {st_u}
s_cmp_lg_u32 s48, 4
s_cbranch_scc1 K1_nex
buffer_store_dwordx4 v[40:43], v251, s[32:35], s10 offen {st_u}
K1_nex:""")
    for f in side.get(NS - 1, []): f()
    if MONO:
        a(f"""s_and_b32 s59, s2, 7
s_lshl_b32 s59, s59, 7
s_add_u32 s59, s59, {WS_SYNC + 128*128}
v_mov_b32 v8, {HC}
v_mov_b32 v9, 1
s_waitcnt vmcnt(0)
s_mov_b64 exec, 1
ds_add_rtn_u32 v10, v8, v9
v_mov_b32 v8, 0
s_waitcnt lgkmcnt(0)
v_readfirstlane_b32 s61, v10
s_cmp_lg_u32 s61, 3
s_cbranch_scc1 K1_ns
buffer_atomic_add v9, v8, s[32:35], s59 offen sc1
K1_ns:
s_mov_b64 exec, -1""")
    a("s_branch K2_start" if MONO else "s_endpgm")
    if EARLY:
        t_ = a.lines[cut1:-1]; del a.lines[cut1:]
        t_ = [l.replace("s68", "s23").replace("s69", "s11").replace("v31,", "v252,").replace("s_add_u32 s59, s59, s51", "s_add_u32 s59, s59, s48\n    s_sub_u32 s59, s59, 4").replace("s[80:83]", "s[44:47]").replace("s[80:81]", "s[44:45]").replace("s80", "s44").replace("s81", "s45").replace("s82", "s46").replace("s83", "s47").replace("s61", "s23").replace("s_add_u32 s44, s44, K2_start-K1_pc2", "s_sub_u32 s44, s44, K1_pc2-K2_start").replace("s_addc_u32 s45, s45, 0", "s_subb_u32 s45, s45, 0") for l in t_]
        a.helper_tail = t_
        def copy_pair(p, sfx, wait=True, track=True):
            d = (16, 208)[p % 2]
            if wait:
                a(f"""s_mov_b32 s72, 0x400000
K1_cp{p}{sfx}:
ds_read_b32 v238, v237
s_waitcnt lgkmcnt(0)
v_cmp_le_u32 vcc, {1 if p == 4 else p + 2}, v238
s_sub_u32 s72, s72, 1
s_cbranch_scc1 K1_cq{p}{sfx}
s_nop 2
s_cbranch_vccnz K1_cq{p}{sfx}
s_sleep {opt.get("cpsleep", 2)}
s_branch K1_cp{p}{sfx}
K1_cq{p}{sfx}:""")
            for i in range(4): a(f"ds_read_b128 {r4(d+4*i)}, v{232+p} offset:{i*1024}")
            a(f"s_add_u32 s23, s{36+p}, {144*2048}")
            for i in range(4):
                a(f"s_waitcnt lgkmcnt({3-i})")
                l = f"buffer_store_dwordx4 {r4(d+4*i)}, v7, s[32:35], s{36+p if i < 2 else 23} offen offset:{(i%2)*1024} {st_act}"
                if track: a.vmop(l, "cp")
                else: a(l)
        a.copy_pair = copy_pair
    def remap(l):
        def f(m):
            n = int(m.group(0))
            if 32 <= n <= 59: return str(n + 128)
            if 112 <= n <= 147: return str(n + 76)
            return m.group(0)
        if l.startswith(";G"): return "    " + l[2:].strip()
        code, _, com = l.partition(";")
        code = re.sub(r"(?<=\bv)\d+\b", f, code)
        code = re.sub(r"\bv\[(\d+):(\d+)\]", lambda m: "v[" + re.sub(r"\d+", f, m.group(1)) + ":" + re.sub(r"\d+", f, m.group(2)) + "]", code)
        return code
    a.lines[cut0:] = [remap(l) for l in a.lines[cut0:]]
    if EARLY: a.helper_tail = [remap(l) for l in a.helper_tail]
    hl = a.lines[cut0:]; del a.lines[cut0:]
    ACC = 16
    CS = 176
    XF = 204; WF = 236; ONE = 252
    a(f"""K1_comp:
s_movk_i32 s72, 256
s_and_b32 s51, s48, 1              ; a
s_lshr_b32 s52, s48, 1             ; b
v_and_b32 v8, 31, v0
s_lshl_b32 s61, s50, 5
s_sub_u32 s60, s61, 287
s_cmp_lt_u32 s50, 9
s_cselect_b32 s75, 1.0, -1.0       ; sgn
s_cselect_b32 s59, s61, s60        ; jb
s_cselect_b32 s60, 0, 2
v_and_b32 v12, 30, v8
v_add_u32 v12, s59, v12            ; j
v_and_or_b32 v13, v8, 1, s60
v_add_u32 v18, s61, v8
v_cmp_eq_u32 vcc, 1, v18
v_mov_b32 v19, 288
v_lshrrev_b32 v14, 5, v2           ; kk
v_mov_b32 v20, -1
v_cndmask_b32 v12, v12, v19, vcc
v_cndmask_b32_e64 v13, v13, 0, vcc
v_lshrrev_b32 v19, 4, v8
v_mul_u32_u24 v19, 9216, v19
v_and_b32 v9, 15, v0               ; n16
v_lshl_add_u32 v19, v9, 4, v19
v_add_u32 v15, {F_OFF}, v19
s_mov_b32 s70, 0
K1_fg0:
v_mov_b32 v16, v12
v_mov_b32 v17, v13
v_mov_b32 v18, v14
v_lshl_add_u32 v19, v14, 10, v15
K1_fg:""")
    recur(); recur2()
    a(f"""s_cmp_lg_u32 s70, 0
s_cbranch_scc1 K1_fgd
s_mov_b32 s70, 1
v_mov_b32 v14, 8
s_cmp_eq_u32 s48, 0
s_cbranch_scc1 K1_fg0
s_cmp_eq_u32 s48, 3
s_cbranch_scc1 K1_fgd
v_subrev_u32 v18, 64, v2
v_mul_u32_u24 v21, 3641, v18
v_lshrrev_b32 v21, 16, v21         ; row
v_mul_u32_u24 v19, 18, v21
v_sub_u32 v18, v18, v19            ; seg
v_mul_u32_u24 v19, {ESTR}, v21
v_lshl_add_u32 v19, v18, 6, v19
v_add_u32 v19, {E_OFF}, v19
s_lshl_b32 s59, s50, 2
s_add_u32 s59, s59, 225
v_and_b32 v16, 2, v21
v_add_u32 v16, s59, v16
v_cmp_gt_u32 vcc, 4, v21
v_and_b32 v17, 1, v21
s_movk_i32 s72, 16
v_cndmask_b32 v16, 0, v16, vcc
v_cmp_ne_u32 vcc, 5, v21
s_nop 1
v_cndmask_b32_e64 v20, 0, -1, vcc
s_branch K1_fg
K1_fgd:
v_lshrrev_b32 v10, 4, v0           ; g
v_bfe_u32 v11, v0, 2, 2            ; r
v_and_b32 v12, 3, v0
v_lshlrev_b32 v13, 12, v10
v_lshl_add_u32 v13, v11, 7, v13
v_lshl_add_u32 v13, v12, 3, v13
s_lshl_b32 s59, s52, 11
v_add_u32 v13, s59, v13
v_lshrrev_b32 v14, 1, v11
v_and_b32 v15, 1, v10
v_lshl_add_u32 v14, v15, 1, v14    ; swizzle
s_lshl_b32 s59, s51, 1
v_xor_b32 v14, s59, v14
v_lshl_add_u32 v1, v14, 5, v13
v_xor_b32 v2, 32, v1
v_xor_b32 v3, 64, v1
v_xor_b32 v4, 0x60, v1
v_lshrrev_b32 v14, 1, v9
v_xor_b32 v14, v14, v10
v_lshlrev_b32 v14, 4, v14
v_lshl_add_u32 v14, v9, 7, v14
s_lshl_b32 s59, s51, 13
s_add_u32 s59, s59, {X_OFF}
v_add_u32 v8, s59, v14
v_xor_b32 v14, 64, v8
v_min_u32 v13, 5, v9
v_mul_u32_u24 v13, {ESTR}, v13
v_lshl_add_u32 v13, v10, 4, v13
v_add_u32 v13, {E_OFF}, v13        ; E read
v_mov_b32 v{ONE}, 0x3f803f80
v_mov_b32 v{ONE+1}, v{ONE}
v_mov_b32 v{ONE+2}, v{ONE}
v_mov_b32 v{ONE+3}, v{ONE}
s_lshl_b32 s73, s49, 2
s_lshl_b32 s59, s51, 1
s_add_u32 s73, s73, s59
s_waitcnt lgkmcnt(0)
s_cmp_lg_u32 s52, 0
s_cbranch_scc1 K1_c1""")
    def comp(b):
        a.vm = []; a.lg = []
        EA = CS + (24 if b == 0 else 16)
        etok = [0] if b == 0 else [1, 2, 3]
        if b == 0:
            a(f"""v_lshlrev_b32 v5, 9, v10
v_lshl_add_u32 v5, v11, 6, v5
v_lshl_add_u32 v5, v12, 3, v5
v_lshl_add_u32 v5, v15, 5, v5
v_add_u32 v5, 16384, v5
v_xor_b32 v6, 32, v5""")
        else:
            a(f"v_add_u32 v5, {F_OFF}, v7")
        win = [0]
        NF = 11
        def frag(s, j, d):
            base = W_OFF + (s % NW)*WU
            tag = ("f", s, j)
            def setwin():
                want = 0
                if want != win[0]:
                    for k in ([1, 2, 3, 4] + ([5, 6] if b == 0 else [])):
                        a(f"v_add_u32 v{k}, {(want - win[0]) & 0xffffffff:#x}, v{k}")
                    win[0] = want
            def tr(reg, off, t):
                def f():
                    setwin()
                    a.lgop(f"ds_read_b64_tr_b16 v[{d+2*t}:{d+2*t+1}], v{reg} offset:{base - win[0] + off}", tag)
                return f
            if j < 8: return [tr(1 + j % 4, (j//4)*1024 + t*512, t) for t in range(2)]
            if j < 10:
                if b == 0: return [tr(5 + j - 8, t*256, t) for t in range(2)]
                return [lambda: a.lgop(f"ds_read_b128 {r4(d)}, v5 offset:{(j-8)*9216 + (s % 9)*1024}", tag)]
            return [lambda: a.lgop(f"ds_read_b128 {r4(d)}, v13 offset:{s*64}", tag)]
        def xrd(s, i):
            d = XF + 16*(s % 2) + 4*i
            return lambda: a.lgop(f"ds_read_b128 {r4(d)}, v{8 if s % 2 == 0 else 14} offset:{((s//2) % NX)*16384 + i*2048}", ("x", s))
        LA = 3
        order = [10, 0, 1, 4, 5, 2, 3, 6, 7, 8, 9]
        NBAR = opt.get("nbar", 6)
        slot = lambda s, n: WF + 4*((s*NF + n) % 4)
        if opt.get("cprio"): a(f"s_setprio {opt['cprio']}")
        mark(a, opt, 0)
        a("s_barrier")
        mark(a, opt, 1)
        probe(a, opt, 'b0')
        for i in range(4): xrd(0, i)()
        for n in range(LA):
            for f in frag(0, order[n], slot(0, n)): f()
        T0 = XF
        RR = XF + 8
        t = T0
        L = lambda txt: [(lambda l=l: a(l.replace("|", "\n"))) for l in txt.split("\n")]
        pub = L(f"""s_lshl_b32 s59, s52, 9|s_lshl_b32 s60, s51, 7|s_add_u32 s59, s59, s60|s_add_u32 s59, s59, {CSB}
v_lshl_add_u32 v{t+4}, v10, 4, s59
s_lshl_b32 s59, s51, 8|s_add_u32 s59, s59, {STAT}
v_lshl_add_u32 v{t+5}, v9, 2, s59
v_lshl_add_u32 v{t+6}, v0, 2, s59
s_lshl_b32 s59, s48, 10|s_add_u32 s59, s59, 45056
v_lshl_add_u32 v8, v0, 3, s59
v_lshl_add_u32 v{t+7}, v9, 3, s59
v_lshl_add_u32 v14, v0, 2, s59
v_lshl_add_u32 v15, v10, 4, s59""")
        def pub_sum():
            a("s_mov_b32 exec_lo, 0xffff0000\ns_mov_b32 exec_hi, 0")
            for k, i in enumerate(etok): a.lgop(f"ds_write_b32 v{t+5}, v{EA+4*k} offset:{64*i}", "pub")
            a("s_mov_b64 exec, -1")
        def pub_cs(k):
            a("s_mov_b32 exec_lo, 0x10001\ns_mov_b32 exec_hi, 0x10001")
            a.lgop(f"ds_write_b128 v{t+4}, {r4(CS+4*k)} offset:{(k//2)*256 + (k%2)*64}", "pub")
            a("s_mov_b64 exec, -1")
        post = [lambda: a.lgop(f"ds_read_b32 v{t}, v{t+6}", "st"),
                lambda: a.lgop(f"ds_read2st64_b32 v[{t+2}:{t+3}], v{t+6} offset0:2 offset1:4", "st")] + L(f"""s_mul_i32 s58, s73, {144*2048}|s_mul_i32 s59, s50, 9
s_xor_b32 s61, s64, 1|s_lshl_b32 s61, s61, 3
s_add_u32 s61, s61, s59|s_lshl_b32 s61, s61, 11
s_add_u32 s40, s58, s61|s_add_u32 s59, s59, s64
s_lshl_b32 s61, s52, 2|s_add_u32 s59, s59, s61
s_lshl_b32 s59, s59, 11|s_add_u32 s58, s58, s59
s_lshl_b32 s59, s51, 11|s_add_u32 s36, s58, s59
s_xor_b32 s59, s59, 2048|s_add_u32 s37, s58, s59""") + [lambda: a.wait(lg="st")] + L(f"""v_add_f32 v{t+2}, v{t+2}, v{t+3}|v_mul_f32 v{t}, {fbits(-1/576)}, v{t}
v_mul_f32 v{t+2}, {fbits(1/576)}, v{t+2}|v_fma_f32 v{t+2}, -v{t}, v{t}, v{t+2}
v_max_f32 v{t+2}, 0, v{t+2}|v_cvt_pk_bf16_f32 v{t}, v{t}, v{t+2}
v_and_b32 v{t+2}, 0xffff0000, v{t}|v_lshlrev_b32 v{t}, 16, v{t}
v_add_f32 v{t+2}, {fbits(1e-5)}, v{t+2}|v_cvt_pk_bf16_f32 v{t+2}, v{t+2}, v{t+2}
v_lshlrev_b32 v{t+2}, 16, v{t+2}|v_sqrt_f32 v{t+2}, v{t+2}
v_cvt_pk_bf16_f32 v{t+2}, v{t+2}, v{t+2}|v_lshlrev_b32 v{t+2}, 16, v{t+2}
v_rcp_f32 v{t+1}, v{t+2}
v_mul_f32 v{t+2}, {fbits(LOG2E)}, v{t+1}|v_mul_f32 v{t+3}, v{t}, v{t+2}""") + \
               [lambda: (a.lgop(f"ds_write_b64 v8, v[{t+2}:{t+3}]", "rw"), a.lgop(f"ds_write2st64_b32 v14, v{t+1}, v{t} offset0:2 offset1:3", "rw"))] + \
               [lambda i=i: a.lgop(f"ds_read_b64 {p2(RR+2*i)}, v{t+7} offset:{128*i}", "rr") for i in range(4)]
        for s in range(NS):
            if s == 9: mark(a, opt, 2)
            last = s == NS - 1
            xf = XF + 16*(s % 2)
            xo = list(pub) if last else []
            for n, j in enumerate(order):
                d = slot(s, n)
                nn = n + LA
                rds = frag(s, order[nn], slot(s, nn)) if nn < NF else (frag(s + 1, order[nn - NF], slot(s + 1, nn - NF)) if not last else [])
                bar = n == NBAR
                if last:
                    if n == 3: xo += [pub_sum, lambda: pub_cs(0), lambda: pub_cs(1)]
                    if n == 5: xo += [lambda: pub_cs(2), lambda: pub_cs(3)]
                if bar:
                    for f in xo: f()
                    xo = [xrd(s + 1, i) for i in range(4)] if not last else list(post)
                a.wait(lg=[("f", s, j), ("x", s)])
                if b == 1 and s == 9 and j in (8, 9):
                    for k in range(16): a(f"v_mul_f32 v{ACC + j*16 + k}, s75, v{ACC + j*16 + k}")
                ms = []
                c = lambda r: (r4(r) if s else "0")
                if j < 10:
                    if j < 8 and j % 4 < 2:
                        r = CS + 4*((j//4)*2 + j % 4); ms.append(f"{M16} {r4(r)}, {r4(d)}, {r4(ONE)}, {c(r)}")
                    if b == 0 and j >= 8:
                        r = CS + 16 + 4*(j - 8); ms.append(f"{M16} {r4(r)}, {r4(d)}, {r4(ONE)}, {c(r)}")
                    for i in range(4):
                        r = ACC + (j*4 + i)*4
                        if b == 1 and j >= 8: ms.append(f"{M16} {r4(r)}, {r4(xf+4*i)}, {r4(d)}, {c(r)}")
                        else: ms.append(f"{M16} {r4(r)}, {r4(d)}, {r4(xf+4*i)}, {c(r)}")
                else:
                    for k, i in enumerate(etok):
                        r = EA + 4*k; ms.append(f"{M16} {r4(r)}, {r4(d)}, {r4(xf+4*i)}, {c(r)}")
                for q, m in enumerate(ms):
                    a(m)
                    if bar and q == 0:
                        if last: a.wait(lg="pub")
                        a("s_barrier")
                    elif rds: rds.pop(0)()
                    elif xo:
                        xo.pop(0)()
                    if last and n > NBAR and xo and not rds and q % 2: xo.pop(0)()
                for f in rds: f()
            for f in xo: f()
        mark(a, opt, 3)
        probe(a, opt, 'l1')
        a(f"""s_lshl_b32 s59, s52, 9
s_add_u32 s59, s59, {CSB}
v_lshl_add_u32 v4, v10, 4, s59
v_add_u32 v1, s60, v4
s_xor_b32 s60, s60, 128
v_add_u32 v2, s60, v4
s_lshl_b32 s61, s64, 7
v_add_u32 v5, s61, v1
v_add_u32 v6, s61, v2
s_xor_b32 s61, s64, 1
s_lshl_b32 s61, s61, 10
s_add_u32 s61, s61, {BIAS}
v_lshl_add_u32 v11, v10, 4, s61
s_add_u32 s38, s36, 4096
s_add_u32 s39, s37, 4096""")
        CB = XF + 16
        npair = 5 if b == 0 else 4
        def cbread(p, tl):
            s = CB + 8*((2*p + tl) % 2)
            if p < 4:
                a.lgop(f"ds_read_b128 {r4(s)}, v{1 + p % 2} offset:{(p//2)*256 + tl*64}", ("cb", p, tl))
                a.lgop(f"ds_read_b128 {r4(s+4)}, v{5 + p % 2} offset:{BIAS - CSB + (p//2)*256 + tl*64}", ("cb", p, tl))
            else:
                a.lgop(f"ds_read_b128 {r4(s+4)}, v11 offset:{tl*64}", ("cb", p, tl))
        K1c, K2c = 244, 246
        a(f"v_mov_b32 v{K1c}, -0.5\nv_mov_b32 v{K1c+1}, -0.5\nv_mov_b32 v{K2c}, -1.0\nv_mov_b32 v{K2c+1}, -1.0")
        pseq = ([4] if b == 0 else []) + [0, 1, 2, 3] if ASY else list(range(npair))
        cbread(pseq[0], 0); cbread(pseq[0], 1)
        a.wait(lg="rr")
        E = WF
        def tstage(p, tl):
            a.wait(lg=("cb", p, tl))
            a(".p2align 3")
            s = CB + 8*((2*p + tl) % 2)
            cs = s if p < 4 else CS + 16 + 4*tl
            for i in range(4):
                r = ACC + ((2*p + tl)*4 + i)*4
                for h in (0, 2): a(f"v_pk_fma_f32 {p2(E+h+4*(i%2))}, {p2(cs+h)}, {p2(RR+2*i)}, {p2(s+4+h)} op_sel:[0,1,0] op_sel_hi:[1,1,1]")
                for h in (0, 2): a(f"v_pk_fma_f32 {p2(r+h)}, {p2(r+h)}, {p2(RR+2*i)}, {p2(E+h+4*(i%2))} op_sel_hi:[1,0,1]")
            if pseq.index(p) + 1 < npair: cbread(pseq[pseq.index(p) + 1], tl)
        P = ONE - 4
        def mish8(p, i):
            rs = [ACC + ((2*p + tl)*4 + i)*4 for tl in range(2)]
            reg = lambda k: rs[k//4] + k % 4
            a(".p2align 3")
            for k in range(8): a(f"v_exp_f32 v{E+k}, v{reg(k)}")
            for k in range(0, 8, 2): a(f"v_pk_fma_f32 {p2(P+k)}, {p2(E+k)}, {p2(K1c)}, {p2(K2c)}")
            for k in range(0, 8, 2): a(f"v_pk_fma_f32 {p2(E+k)}, {p2(E+k)}, {p2(P+k)}, {p2(K2c)}")
            for k in range(8): a(f"v_rcp_f32 v{E+k}, v{E+k}")
            for k in range(0, 8, 2): a(f"v_pk_fma_f32 {p2(reg(k))}, {p2(reg(k))}, {p2(E+k)}, {p2(reg(k))}")
            for k in range(4): a(f"v_cvt_pk_bf16_f32 v{rs[0]+k}, v{reg(2*k)}, v{reg(2*k+1)}")
            if i == 2 and not ASY: a(f"s_add_u32 s{36+p}, s{36+p}, {144*2048}")
            if not ASY: a.vmop(f"buffer_store_dwordx4 {r4(rs[0])}, v7, s[32:35], s{36+p} offen offset:{(i%2)*1024} {st_act}", ("st", p))
            if EARLY: a.lgop(f"ds_write_b128 v12, {r4(rs[0])} offset:{i*1024}", "own")
        a(f"""v_lshrrev_b32 v{E}, 2, v9
v_lshlrev_b32 v{E}, 4, v{E}
v_and_b32 v{E+1}, 3, v9
v_lshl_add_u32 v{E}, v{E+1}, 1, v{E}
s_lshl_b32 s76, s51, 7
s_add_u32 s76, s76, {UI}
v_add_u32 v{E}, s76, v{E}""")
        if b == 1:
            R2 = CS
            def r2rd(i):
                a.lgop(f"ds_read_b128 {r4(R2+8*(i%2))}, v15 offset:{512 + 64*i}", ("r2", i))
                a.lgop(f"ds_read_b128 {r4(R2+8*(i%2)+4)}, v15 offset:{768 + 64*i}", ("r2", i))
            r2rd(0); r2rd(1)
        for k, i in enumerate(etok):
            a(f"v_mul_f32 v{E+2}, {fbits(LN2)}, v{RR+2*i}")
            for j in range(4): a(f"v_mul_f32 v{EA+4*k+j}, v{EA+4*k+j}, v{E+2}")
            a(f"v_cvt_pk_bf16_f32 v{EA+4*k}, v{EA+4*k}, v{EA+4*k+1}\nv_cvt_pk_bf16_f32 v{EA+4*k+1}, v{EA+4*k+2}, v{EA+4*k+3}")
        a("s_barrier")
        a("s_mov_b64 exec, 0xffff")
        for j in range(4):
            for k, i in enumerate(etok):
                op = "ds_write_b16" if j % 2 == 0 else "ds_write_b16_d16_hi"
                a.lgop(f"{op} v{E}, v{EA+4*k+j//2} offset:{(32 + j)*256 + (i//2)*64 + (i%2)*8}", "ui")
        a("s_mov_b64 exec, -1")
        if b == 1:
            a(f"""s_mov_b32 s78, 0
s_cmp_eq_u32 s50, 0
s_cselect_b32 s78, {fbits(576.0)}, s78
s_cmp_eq_u32 s50, 2
s_cselect_b32 s78, {fbits(-0.25)}, s78
s_cmp_eq_u32 s50, 4
s_cselect_b32 s78, {fbits(-0.25)}, s78
s_cmp_eq_u32 s50, 8
s_cselect_b32 s78, {fbits(-0.25)}, s78
v_cmp_eq_u32 vcc, 0, v9
v_mov_b32 v{E+1}, s78
v_lshlrev_b32 v{E+2}, 4, v10
v_lshl_add_u32 v{E+2}, v9, 8, v{E+2}
v_cndmask_b32 v{E+1}, 0, v{E+1}, vcc
v_add_u32 v{E+2}, s76, v{E+2}""")
            for i in range(4):
                a.wait(lg=("r2", i))
                q = R2 + 8*(i % 2)
                for ct in range(2):
                    r = ACC + ((8 + ct)*4 + i)*4
                    if ct == 0:
                        for j in range(4): a(f"v_fmac_f32 v{r+j}, v{q+4+j}, v{E+1}")
                    for h in (0, 2): a(f"v_pk_mul_f32 {p2(r+h)}, {p2(r+h)}, {p2(q+h)}")
                    d = ACC + ((8 + ct)*4 + (i & 2))*4 + 2*(i % 2)
                    for h in range(2): a(f"v_cvt_pk_bf16_f32 v{d+h}, v{r+2*h}, v{r+2*h+1}")
                    if i % 2 == 1:
                        a.lgop(f"ds_write_b128 v{E+2}, {r4(d-2)} offset:{ct*4096 + (i//2)*64}", "ui")
                if i < 2: r2rd(i + 2)
            if opt.get("ubar1", -1) < 0: a.wait(lg="ui"); a("s_barrier")
        if ASY: a(f"s_lshl_b32 s59, s48, 2\ns_add_u32 s59, s59, {PF}\nv_mov_b32 v13, s59")
        for n_, p in enumerate(pseq):
            if EARLY: a(own_addr(b, p, 12, "s51"))
            tstage(p, 0); tstage(p, 1)
            for i in range(4):
                mish8(p, i)
                if 4*n_ + i == (opt.get("ubar", 1) if b == 0 else opt.get("ubar1", -1)):
                    a.wait(lg="ui"); a("s_barrier")
            if ASY:
                a(f"v_mov_b32 v8, {1 if p == 4 else p + 2}")
                a.lgop("ds_write_b32 v13, v8", "own")
        mark(a, opt, 4)
        mark(a, opt, 5)
        if ASY: pass
        elif EARLY and opt.get("defer", 1):
            a(f"""s_lshl_b32 s98, s49, 2
s_lshr_b32 s59, s50, 2
s_add_u32 s98, s98, s59
s_lshl_b32 s98, s98, 7
s_add_u32 s98, s98, {WS_SYNC + 64*128}""")
        elif MONO: signal(64)
        probe(a, opt, 'e1')
        if opt.get("stamp"):
            if not EARLY: a.wait(vm="all")
            stamp_out(a, 0, "s48", 32, "K1_end", wait=not EARLY)
        a("s_branch K2_start" if MONO else "s_endpgm")
    comp(0)
    a("K1_c1:")
    comp(1)
    a.lines += hl
    a("K1_end:\ns_endpgm")
    a.end_kernel(KN, 256, 102)
    a.launch(KN, 256, 512, 163840)
```

```python
from fw import *
from common import *
import numpy as np
M32 = "v_mfma_f32_32x32x16_bf16"; M16 = "v_mfma_f32_16x16x32_bf16"
def r4(x): return f"v[{x}:{x+3}]"
def r16(x): return f"v[{x}:{x+15}]"
UNIT = 20480; NRING = 6; NU = 36
T_C32, T_S32, T_C64, T_S64, T_TW1, T_TW2, T_END = 0, 2048, 4096, 8192, 12288, 28672, 45056
VIMG = 53248

def f2bf(x):
    u = np.ascontiguousarray(x, dtype=np.float32).view(np.uint32)
    return ((u + 0x7FFF + ((u >> 16) & 1)) >> 16).astype(np.uint16)
def fft_tables():
    lane = np.arange(64); n = lane & 31; h = lane >> 5
    i8 = np.arange(8); perm = (i8 & 3) + 8*(i8 >> 2)
    out = []
    def frag(N, lanebase, ks, fn):
        b = 16*ks + 4*h[:, None] + perm[None, :]
        return f2bf(fn(2*np.pi*(((lanebase + n)[:, None]*b) % N)/N)).tobytes()
    for fn in (np.cos, np.sin):
        for ks in range(2): out.append(frag(32, 0, ks, fn))
    for fn in (np.cos, np.sin):
        for e in range(2):
            for p1 in range(2):
                j = 2*i8 + e
                b = 32*p1 + (j & 3)[None, :] + 8*(j >> 2)[None, :] + 4*h[:, None]
                out.append(f2bf(fn(2*np.pi*((n[:, None]*b) % 64)/64)).tobytes())
    j4 = np.arange(4)
    for tw in range(2):
        for p in range(2):
            for jg in range(4):
                r = 8*jg + 4*h[:, None] + j4[None, :]
                prod = (32*p + r)*n[:, None] if tw == 0 else (32*p + n[:, None])*r
                for fn in (np.cos, np.sin):
                    out.append(fn(2*np.pi*prod/2048).astype(np.float32).tobytes())
    b = b"".join(out); assert len(b) == T_END
    return np.frombuffer(b, np.uint32)

def gen_k2(a, opt):
    st_p = opt.get("st_p", "sc1"); st_v = opt.get("st_v", "sc1"); st_g = opt.get("st_g", "sc1")
    ld_w2 = opt.get("ld_w2", ""); ld_act = opt.get("ld_act", "")
    B1 = opt.get("k1b", 1); MG = opt.get("merge", 1)
    def p2(x): return f"v[{x}:{x+1}]"
    MONO = opt.get("mono", 1)
    sigB = """v_mov_b32 v14, 0
v_mov_b32 v15, 1
s_waitcnt vmcnt(0)
s_mov_b64 exec, 1
buffer_atomic_add v15, v14, s[32:35], s98 offen sc1
s_mov_b64 exec, -1"""
    if not opt.get("defer", 1): sigB = ""
    if MONO: ld_act = opt.get("ld_act", "sc1")
    SC = "sc1" if MONO else ""
    vpos = "v_lshlrev_b32 v6, 2, v2" if not B1 else """v_and_b32 v6, 7, v2
v_bfe_u32 v8, v2, 3, 1
v_lshl_add_u32 v6, v8, 4, v6
v_bfe_u32 v8, v2, 4, 1
v_lshl_add_u32 v6, v8, 3, v6
v_lshlrev_b32 v6, 2, v6"""
    if MONO:
        a(".p2align 8\nK2_start:")
        if opt.get("stamp"): a("s_memrealtime s[90:91]")
        a("s_mov_b64 s[24:25], s[16:17]")
    else:
        a.begin_kernel("k2_kernel")
        a("K2_start:\ns_cmp_ge_u32 s2, 256\ns_cbranch_scc1 K2_end")
        if opt.get("stamp"): a("s_memrealtime s[90:91]")
        a("""s_load_dwordx2 s[24:25], s[0:1], 48
s_load_dwordx2 s[32:33], s[0:1], 72
v_lshrrev_b32 v1, 6, v0
v_and_b32 v0, 63, v0
v_readfirstlane_b32 s48, v1        ; wave""")
    a(f"""s_and_b32 s49, s2, 7               ; xcd
s_lshr_b32 s50, s2, 3              ; idx
s_mov_b32 s26, {F*D*2}
s_mov_b32 s27, 0x20000
s_mov_b32 s34, 0x10000000
s_mov_b32 s35, 0x20000
v_lshlrev_b32 v7, 4, v0            ; lane*16
s_cmp_lt_u32 s50, 8
s_cbranch_scc1 K2_fft
s_sub_u32 s50, s50, 8
s_lshr_b32 s51, s49, 1             ; split
s_and_b32 s52, s49, 1
s_lshl_b32 s52, s52, 3
s_and_b32 s59, s50, 7
s_add_u32 s52, s52, s59            ; rb
s_lshr_b32 s53, s50, 3             ; cb
s_cmp_lt_u32 s48, 4
s_cbranch_scc1 K2_comp""")
    a(f"""s_sub_u32 s54, s48, 4              ; lw
s_lshl_b32 s55, s52, 2
s_add_u32 s55, s55, s54            ; G
s_mul_i32 s55, s55, {144*2048}
s_mul_i32 s59, s51, {36*2048}
s_add_u32 s55, s55, s59
s_mul_i32 s56, s51, {1152*1152}
s_mul_i32 s59, s54, {8*1152}
s_add_u32 s56, s56, s59
s_mul_i32 s59, s53, 192
s_add_u32 s56, s56, s59
v_lshrrev_b32 v2, 3, v0            ; r
v_and_b32 v3, 7, v0
v_and_b32 v4, 6, v2
v_xor_b32 v3, v3, v4
v_mul_u32_u24 v2, 1152, v2
v_lshl_add_u32 v2, v3, 4, v2
s_and_b32 s59, s53, 1
s_lshl_b32 s60, s59, 6
v_add_u32 v244, s60, v2
s_sub_u32 s60, 640, s60
v_add_u32 v245, s60, v2
s_lshl_b32 s60, s59, 7
s_sub_u32 s61, 128, s60
s_lshl_b32 s60, s60, 1
s_add_u32 s60, s60, 384
v_lshrrev_b32 v3, 2, v3
v_mad_u32_u24 v246, v3, s60, v2
v_add_u32 v246, s61, v246
s_lshl_b32 s57, s54, 11
s_mul_i32 s58, s54, 3072
s_add_u32 s58, s58, 8192
s_and_b32 s60, s52, {opt.get("k2_rotmask", 0)}
s_mul_i32 s60, s60, {opt.get("k2_rot", 9)}
s_lshr_b32 s60, s60, 1
s_waitcnt lgkmcnt(0)""")
    EARLY = MONO and opt.get("early", 1)
    LSIG = opt.get("lsig", 1)
    TABE = EARLY and opt.get("tabe", 1) and not opt.get("asy", 0)
    ASY = EARLY and opt.get("asy", 0)
    def cp_first(sfx):
        a(f"s_cmp_lg_u32 s13, 0\ns_cbranch_scc1 K2_c4{sfx}")
        a.copy_pair(4, sfx, track=False)
        a(f"K2_c4{sfx}:")
    def htail(sfx, mid=None):
        import re
        for l in a.helper_tail:
            if mid and "s_and_b32 s59, s2, 7" in l: mid()
            for x in l.split("\n"): a(re.sub(r"(K1_nex|K1_ns|K1_pc2)", r"\1" + sfx, x))
    if EARLY:
        for k in range(4):
            a(f"s_add_u32 s59, s53, {k+1}\ns_and_b32 s59, s59, 3\ns_mul_i32 s60, s59, {9*2048}\ns_add_u32 s{76+k}, s55, s60\ns_mul_i32 s60, s59, {9*32*1152}\ns_add_u32 s{80+k}, s56, s60")
        a(f"s_and_b32 s59, s53, 1\ns_mul_i32 s60, s59, {8*32*1152}\ns_add_u32 s75, s80, s60\ns_xor_b32 s59, s59, 1\ns_mul_i32 s60, s59, {32*1152}\ns_add_u32 s74, s80, s60")
    def load_act(u):
        base = (u % NRING)*UNIT
        if EARLY:
            if u < 9: return
            a(f"s_add_u32 m0, s57, {base}\ns_add_u32 s59, s{76 + u//9}, {(u % 9)*2048}")
        else: a(f"s_add_u32 m0, s57, {base}\ns_add_u32 s59, s55, {u*2048}")
        a.vmop(f"buffer_load_dwordx4 v7, s[32:35], s59 offen {ld_act} lds", ("u", u))
        a.vmop(f"buffer_load_dwordx4 v7, s[32:35], s59 offen offset:1024 {ld_act} lds", ("u", u))
    def load_w(u):
        base = (u % NRING)*UNIT
        for j in range(3):
            a(f"s_add_u32 m0, s58, {base + j*1024}")
            if j == 0:
                if not EARLY: a(f"s_add_u32 s61, s56, {u*32*1152}")
                elif u < 8: a(f"s_add_u32 s61, s74, {u*32*1152}")
                elif u == 8: a("s_mov_b32 s61, s75")
                else: a(f"s_add_u32 s61, s{80 + u//9}, {(u % 9)*32*1152}")
            a.vmop(f"buffer_load_dwordx4 v{244+j}, s[24:27], s61 offen {ld_w2} lds", ("u", u))
    wdone = [0]
    def load_unit(u):
        load_act(u)
        if u >= wdone[0]: load_w(u)
    VL = NRING*UNIT
    FL = VL + 36864
    PA = 16; GB = 40; RC = 148; VB = 148
    g_ = []
    if MG:
        if not (EARLY and opt.get("g1", 0)): g_, npre = g_lines(opt, opt.get("g_npk", 2 if EARLY else 4), "s54", "s53")
        ga_ = f"""s_and_b32 s64, s54, 1
s_lshr_b32 s65, s54, 1
v_and_b32 v1, 15, v0
v_lshrrev_b32 v3, 4, v0
v_min_u32 v224, 7, v0
v_min_u32 v225, 1, v224
v_lshlrev_b32 v224, 7, v224
v_sub_u32 v225, 37, v225
s_mov_b32 s69, {WS_SYNC + 48*128}
s_lshl_b32 s66, s52, 2
s_add_u32 s66, s66, s51            ; G of the final task
s_lshl_b32 s68, s64, 1
s_add_u32 s68, s68, s65            ; quarter of V this wave loads
s_mul_i32 s67, s68, {72*8192}
s_lshl_b32 s66, s66, 7
s_add_u32 s67, s67, s66
s_add_u32 s67, s67, {WS_V}
s_mul_i32 s68, s68, 9216
s_add_u32 s68, s68, {VL}
v_lshrrev_b32 v5, 3, v0
v_and_b32 v6, 4, v5
v_xor_b32 v6, v6, v0
v_and_b32 v6, 7, v6
v_lshlrev_b32 v6, 4, v6
v_lshl_add_u32 v6, v5, 13, v6      ; V dma voffset
v_lshlrev_b32 v226, 9, v3
v_lshl_add_u32 v226, v1, 2, v226
v_and_b32 v227, 1, v3
v_lshl_add_u32 v226, v227, 6, v226
s_mul_i32 s66, s64, 18432
s_add_u32 s66, s66, {VL}
v_add_u32 v226, s66, v226
v_xor_b32 v227, 64, v226
v_add_u32 v228, 128, v226
v_add_u32 v229, 128, v227
s_mul_i32 s66, s54, {UNIT}
v_add_u32 v230, s66, v7             ; exchange write""".split("\n")
        a(f"""s_lshl_b32 s59, s54, 2
s_add_u32 s59, s59, {FL}
v_mov_b32 v240, s59
v_xor_b32 v241, 8, v240
v_mov_b32 v243, 0
v_mov_b32 v242, 1""")
    def vissue():
        a(f"v_mov_b32 v249, {FL + 16}\nds_write_b32 v249, v242")
        for k in range(9):
            a(f"buffer_load_dwordx4 v6, s[32:35], s67 offen sc1 lds")
            if k < 8: a("s_add_u32 m0, m0, 1024\ns_add_u32 s67, s67, 65536")
    def gen(n):
        for _ in range(n):
            if g_: a(g_.pop(0))
    a.vm = []
    first = opt.get("k2_first", 4)
    if MONO:
        wdone[0] = opt.get("wpre", 4)
        w1 = opt.get("wpre1", 2) if EARLY else wdone[0]
        for u in range(w1):
            load_w(u)
            if not EARLY: a("s_waitcnt vmcnt(0)")
        if EARLY:
            htail("g")
            a.vm = []
            hold = opt.get("hold", 1)
            if ASY:
                cp_first("g")
                wl = list(range(w1, wdone[0]))
                for p in range(4 - hold):
                    if wl: load_w(wl.pop(0))
                    a.copy_pair(p, "g")
                for u in wl: load_w(u)
            else:
                for u in range(w1, wdone[0]): load_w(u)
        a(f"""s_lshl_b32 s62, s52, 2
s_add_u32 s62, s62, s51
s_lshl_b32 s62, s62, 7
s_add_u32 s62, s62, {WS_SYNC + 64*128}""")
        n1 = opt.get("g_n1", 0)
        if EARLY: npre = 0
        else:
            a("s_barrier")
            gen(n1)
            a("s_cmp_lg_u32 s54, 0\ns_cbranch_scc1 K2_pa_d")
            poll(a, "K2_pa", 243, "s62", "16", sleep=opt.get("pasleep", 2))
            a("s_barrier")
        if not EARLY: a.vm = []
        first = wdone[0] if EARLY else opt.get("k2_first", 4)
        for u in range(first): load_unit(u)
        gen(npre - n1)
    else:
      for u in range(first):
        load_unit(u)
        if MG and u >= 1: gen(-(-npre // (first - 1)))
    nu = first
    for l in ga_: a(l)
    gen(opt.get("g_pre", 0))
    per = -(-len(g_) // opt.get("g_per", 12))
    gcnt = opt.get("g_cnt")
    for g in range(NU//2):
        a.wait(vm=[("u", 2*g), ("u", 2*g+1)])
        if g == 1: a("s_waitcnt lgkmcnt(0)")
        a("s_barrier")
        if g == 0 and MG: a("ds_write_b32 v240, v243\nds_write_b32 v240, v243 offset:16")
        if MG and g == NU//2 - 3:
            a.vmop("buffer_load_dword v15, v224, s[32:35], s69 offen sc1", "flag")
        if MG and g == NU//2 - 2:
            a.wait(vm="flag")
            nrem = len(a.vm)
            a("v_cmp_ne_u32 vcc, v15, v225\ns_mov_b32 m0, s68\ns_nop 3\ns_cbranch_vccnz K2_late")
            vissue()
            gl = [g_.pop(0) for _ in range(min(len(g_), gcnt[g] if gcnt else 0))]
            for l in gl: a(l)
            a("s_waitcnt vmcnt(9)\ns_barrier\ns_branch K2_vw\nK2_late:")
            for l in gl: a(l)
        if gcnt: per = gcnt[g]
        lim = min(NU, 2*g + NRING, nu + opt.get("k2_ramp", 2))
        gchk = opt.get("g_chk", 3)
        if EARLY and g < gchk:
            if ASY and g == 0:
                for p in range(4 - hold, 4): a.copy_pair(p, "g", wait=False)
            if ASY and g == opt.get("g_sig", 1):
                a("v_mov_b32 v238, 1")
                a.wait(vm="cp")
                a("s_mov_b64 exec, 1")
                a.vmop("buffer_atomic_add v238, v243, s[32:35], s98 offen sc1", "sig")
                a("s_mov_b64 exec, -1")
            while wdone[0] < 2*g + NRING:
                load_w(wdone[0]); wdone[0] += 1
                gen(-(-per // 2))
            if g == gchk - 1: a.vmop("buffer_load_dword v247, v243, s[32:35], s62 offen sc1", "a2")
            nu = 9
            continue
        if EARLY and g == gchk:
            a.wait(vm="a2")
            a("v_cmp_ne_u32 vcc, 16, v247\ns_nop 4\ns_cbranch_vccz K2_pb_d")
            poll(a, "K2_pb", 243, "s62", "16", tmp=247, sleep=opt.get("pbsleep", 12))
            lim = min(2*g + NRING, 2*g + 2 + opt.get("k2_first", 4))
        while nu < lim:
            load_unit(nu); nu += 1
            gen(-(-per // 2))
        if MONO and g == opt.get("g_pft", 13) and opt.get("pft", 0):
            a("""s_getpc_b64 s[40:41]
K2_pct:
s_mov_b32 s42, 0x1800
s_mov_b32 s43, 0x20000
s_add_u32 s44, s40, K2_tailc-K2_pct
s_addc_u32 s45, s41, 0
s_mov_b32 s46, 0x2000
s_mov_b32 s47, 0x20000
v_lshrrev_b32 v254, 2, v0
v_lshlrev_b32 v254, 7, v254
s_lshl_b32 s59, s54, 11""")
            a.vmop("buffer_load_dword v255, v254, s[40:43], s59 offen", "pf")
            a.vmop("buffer_load_dword v255, v254, s[44:47], s59 offen", "pf")
        if g == NU//2 - 3 and opt.get("pf3c", 1) and "3" in opt.get("kernels", "123") and not MG:
            a("""s_getpc_b64 s[40:41]
K2_pc:
s_add_u32 s40, s40, k3_kernel-K2_pc
s_addc_u32 s41, s41, 0
s_mov_b32 s42, code_end-k3_kernel
s_mov_b32 s43, 0x20000
v_lshrrev_b32 v8, 1, v0
v_lshlrev_b32 v8, 7, v8
s_lshl_b32 s59, s54, 12""")
            a.vmop("buffer_load_dword v9, v8, s[40:43], s59 offen", "pf")
            a(f"""s_load_dwordx2 s[36:37], s[0:1], 0
s_mov_b32 s38, {T*D*2}
s_mov_b32 s39, 0x20000
v_and_b32 v8, 7, v0
v_mul_u32_u24 v8, 73728, v8
v_lshrrev_b32 v10, 3, v0
v_min_u32 v10, 2, v10
v_lshl_add_u32 v8, v10, 7, v8
s_lshl_b32 s59, s49, 3
s_and_b32 s62, s50, 7
s_add_u32 s59, s59, s62
s_mul_i32 s59, s59, 1152
s_mul_i32 s62, s53, 384
s_add_u32 s59, s59, s62
s_mul_i32 s62, s54, {8*73728}
s_add_u32 s59, s59, s62
s_waitcnt lgkmcnt(0)""")
            a.vmop("buffer_load_dword v9, v8, s[36:39], s59 offen", "pf")
    if MG:
        mark(a, opt, 0)
        a(f"v_mov_b32 v249, {FL + 16}\ns_cmp_lg_u32 s54, 0\ns_cbranch_scc1 K2_pl")
        poll(a, "K2_pv", 224, "s69", "v225", sleep=opt.get("pvsleep", 8))
        a("""s_branch K2_pl_d
K2_pl:
s_mov_b32 s72, 0x400000
K2_pl2:
ds_read_b32 v15, v249
s_waitcnt lgkmcnt(0)
v_cmp_ne_u32 vcc, 0, v15
s_sub_u32 s72, s72, 1
s_cbranch_scc1 K2_pl_d
s_nop 2
s_cbranch_vccnz K2_pl_d
s_sleep 2
s_branch K2_pl2
K2_pl_d:""")
        a("s_mov_b32 m0, s68\ns_nop 0")
        vissue()
        a("K2_vw:")
        gen(len(g_))
        mark(a, opt, 1)
        a("s_waitcnt vmcnt(0)")
        mark(a, opt, 2)
        a("""ds_write_b32 v240, v242
s_mov_b32 s72, 0x400000
K2_hs:
ds_read_b32 v243, v241
s_waitcnt lgkmcnt(0)
v_cmp_eq_u32 vcc, 0, v243
s_sub_u32 s72, s72, 1
s_cbranch_scc1 K2_hs_d
s_nop 2
s_cbranch_vccnz K2_hs
K2_hs_d:""")
        mark(a, opt, 3)
        a.lg = []
        def vread(kk, n):
            th, z = n // 2, n % 2
            d = VB + 8*(kk % 4) + 4*th + 2*z
            a.lgop(f"ds_read2st64_b32 v[{d}:{d+1}], v{226+th+2*z} offset0:{8*kk} offset1:{8*kk+1}", ("v", kk))
        for kk in range(3):
            for n in range(4): vread(kk, n)
        for kk in range(9):
            a.wait(lg=("v", kk))
            n = 0
            for t in range(3):
                for th in range(2):
                    d = PA + 8*t + 4*th
                    a(f"{M16} {r4(d)}, {r4(GB+12*kk+4*t)}, {r4(VB+8*(kk%4)+4*th)}, " + (r4(d) if kk else "0"))
                    if kk + 3 < 9 and n < 4: vread(kk + 3, n)
                    n += 1
        for k in range(6): a(f"ds_write_b128 v230, {r4(PA+4*k)} offset:{k*1024}")
        a("s_waitcnt lgkmcnt(0)")
        mark(a, opt, 4)
        if LSIG:
            a(f"""s_mul_i32 s60, s52, 3
s_add_u32 s60, s60, s53
s_lshl_b32 s60, s60, 7
s_add_u32 s60, s60, {WS_SYNC}
v_mov_b32 v13, 0
v_mov_b32 v15, 1""")
        a("s_barrier")
        if LSIG:
            a("""s_cmp_lg_u32 s54, 0
s_cbranch_scc1 K2_lx
s_mov_b64 exec, 1
buffer_atomic_add v15, v13, s[32:35], s60 offen sc0 sc1
s_waitcnt vmcnt(0)
v_cmp_ne_u32 vcc, 3, v15
s_nop 4
s_cbranch_vccz K2_pp_d""")
            poll(a, "K2_pp", 13, "s60", "4", sleep=opt.get("ppsleep", 0))
            a("s_mov_b64 exec, -1\ns_barrier\nK2_lx:")
        mark(a, opt, 5)
        if opt.get("stamp"): stamp_out(a, 2, "s48", 32, "K2_end")
    a("s_endpgm")
    ACC = 16; FB = 112
    a("K2_comp:")
    if MONO and not EARLY: a("s_barrier")
    a(f"""s_and_b32 s54, s48, 1
s_lshr_b32 s55, s48, 1             ; b : d tiles 6b..6b+5
v_lshrrev_b32 v8, 4, v0            ; g
v_and_b32 v9, 15, v0
v_lshlrev_b32 v10, {8 if B1 else 9}, v8
v_lshl_add_u32 v10, v9, 4, v10
s_lshl_b32 s59, s54, 12
v_add_u32 v5, s59, v10
v_add_u32 v248, {OWN_X}, v5
v_lshrrev_b32 v10, 2, v9           ; r
v_and_b32 v11, 1, v8
v_lshl_add_u32 v10, v11, 2, v10
v_lshrrev_b32 v11, 1, v8
v_mul_u32_u24 v11, {3072 if B1 else 6144}, v11
v_lshl_add_u32 v11, v10, 7, v11
v_and_b32 v12, 3, v0
v_lshl_add_u32 v11, v12, 3, v11
v_add_u32 v11, 8192, v11
v_lshrrev_b32 v10, 1, v10          ; swizzle
s_lshl_b32 s59, s55, 10
v_lshl_add_u32 v12, v10, 5, v11
v_add_u32 v1, s59, v12
v_xor_b32 v2, 32, v1
v_xor_b32 v3, 64, v1
v_xor_b32 v4, 0x60, v1
s_lshl_b32 s59, s55, 6
v_xor_b32 v12, s59, v12
v_add_u32 v6, 2048, v12
v_xor_b32 v13, 32, v6""")
    a("s_waitcnt lgkmcnt(0)")
    a.vm = []; a.lg = []
    win = [0]
    def reads(u):
        base = (u % NRING)*UNIT
        fb = FB + (u % 2)*40
        ops = []
        def setwin():
            if not (win[0] <= base and base + 8192 - win[0] <= 65535):
                for k in (1, 2, 3, 4, 5, 6, 13):
                    a(f"v_add_u32 v{k}, {(base - win[0]) & 0xffffffff:#x}, v{k}")
                win[0] = base
        def act(i):
            setwin()
            if EARLY and 6 <= u < 9: a.lgop(f"ds_read_b128 {r4(fb+4*i)}, v248 offset:{(u - 6)*8192 + i*1024}", ("a", u))
            else: a.lgop(f"ds_read_b128 {r4(fb+4*i)}, v5 offset:{base - win[0] + i*1024}", ("a", u))
        def w(j, t):
            d = fb + 16 + 4*j + 2*t
            a.lgop(f"ds_read_b64_tr_b16 v[{d}:{d+1}], v{(1, 2, 3, 4, 6, 13)[j]} offset:{base - win[0] + t*6144}", ("w", u, j))
        for i in range(4): ops.append(lambda i=i: act(i))
        for j in range(6):
            for t in range(2): ops.append(lambda j=j, t=t: w(j, t))
        return ops
    if MG:
        st_o = opt.get("st_o", "")
        OUT = 192; XR = 216; EO = 16; PB = 64; U = 228
        if MONO: late_ = ["s_mov_b64 s[36:37], s[4:5]", "s_mov_b64 s[40:41], s[18:19]"]
        else:
            a("s_load_dwordx2 s[36:37], s[0:1], 0\ns_load_dwordx2 s[40:41], s[0:1], 56\ns_waitcnt lgkmcnt(0)"); late_ = []
        late_ += f"""s_mul_i32 s57, s51, {64*18*2048}
s_lshl_b32 s59, s52, 2
s_lshl_b32 s60, s54, 1
s_add_u32 s59, s59, s60
s_mul_i32 s59, s59, {18*2048}
s_add_u32 s57, s57, s59
s_mul_i32 s59, s53, 6
s_mul_i32 s60, s55, 3
s_add_u32 s59, s59, s60
s_lshl_b32 s59, s59, 10
s_add_u32 s57, s57, s59
s_add_u32 s57, s57, {WS_PART}      ; partial store base
s_mov_b32 s38, {T*D*2}
s_mov_b32 s39, 0x20000
s_mov_b32 s42, {T*D*2}
s_mov_b32 s43, 0x20000
v_and_b32 v240, 8, v9
v_add_u32 v240, v240, v9
v_mul_u32_u24 v240, 73728, v240
v_and_b32 v241, 1, v8
v_lshl_add_u32 v240, v241, 5, v240
v_lshrrev_b32 v242, 1, v8
v_lshl_add_u32 v240, v242, 4, v240       ; x/out voffset
s_lshl_b32 s66, s52, 2
s_add_u32 s66, s66, s51            ; G
s_mul_i32 s74, s54, 9
s_mul_i32 s59, s53, 3
s_add_u32 s74, s74, s59            ; first output d-pair
s_mul_i32 s58, s66, 1152
s_lshl_b32 s59, s74, 6
s_add_u32 s58, s58, s59
s_mul_i32 s59, s55, {8*73728}
s_add_u32 s58, s58, s59            ; x/out soffset
s_mul_i32 s73, s66, 36864
s_lshl_b32 s59, s53, 1
s_add_u32 s59, s59, s54
s_mul_i32 s59, s59, 3072
s_add_u32 s73, s73, s59
s_add_u32 s59, s53, s54
s_and_b32 s59, s59, 1|s_cselect_b32 s76, 2048, 0|s_cselect_b32 s77, 0, 1024
s_add_u32 s78, s77, 1024
s_mul_i32 s59, s55, {18*1024}
s_add_u32 s73, s73, s59
s_add_u32 s73, s73, {WS_PART}""".split("\n")
    mark(a, opt, 0)
    if MONO and not EARLY: a("s_barrier")
    a("s_barrier")
    mark(a, opt, 1)
    probe(a, opt, "s2")
    for o in reads(0): o()
    for u in range(NU):
        if u == opt.get("m2u", 18): mark(a, opt, 2)
        if EARLY and not ASY and u == opt.get("u_sig", 1): a(sigB)
        if MG and u == opt.get("u_x", 33):
            for w in range(3): a(f"buffer_load_dwordx4 {r4(XR+4*w)}, v240, s[36:39], s58 offen offset:{w*64}")
        fb = FB + (u % 2)*40
        nxt = reads(u+1) if u + 1 < NU else []
        bar = (u % 2 == 1 and u + 1 < NU)
        n = 0
        for j in range(6):
            for i in range(4):
                if i == 0:
                    if bar and j == 0: a.wait(lg="all")
                    else: a.wait(lg=[("a", u), ("w", u, j)])
                d = ACC + (i*6 + j)*4
                a(f"{M16} {r4(d)}, {r4(fb+16+4*j)}, {r4(fb+4*i)}, " + (r4(d) if u else "0"))
                if bar and n == 0: a("s_barrier")
                elif nxt: nxt.pop(0)()
                elif late_ and u >= 2: a(late_.pop(0).replace("|", "\n"))
                n += 1
    a("K2_tailc:")
    mark(a, opt, 3)
    probe(a, opt, "l2")
    a(f"""s_lshl_b32 s59, s54, 1
s_sub_u32 s75, s51, s59
s_mul_i32 s59, s55, {UNIT}
s_add_u32 s59, s59, 8192
v_add_u32 v243, s59, v7""")
    for i in range(4):
        for jp in range(3):
            pk = FB + 4*((i*3 + jp) % 8)
            for t in range(2):
                d = ACC + (i*6 + 2*jp + t)*4
                a(f"v_cvt_pk_bf16_f32 v{pk+2*t}, v{d}, v{d+1}\nv_cvt_pk_bf16_f32 v{pk+2*t+1}, v{d+2}, v{d+3}")
            a(f"v_permlane16_swap_b32 v{pk}, v{pk+2}\nv_permlane16_swap_b32 v{pk+1}, v{pk+3}")
            if jp == 0: a(f"s_add_u32 s59, s57, {i*18*1024}")
            a(f"s_cbranch_scc1 K2_own{i}{jp}" if False else "")
            a(f"s_cmp_eq_u32 s75, {i//2}\ns_cbranch_scc1 K2_own{i}{jp}")
            a(f"buffer_store_dwordx4 {r4(pk)}, v7, s[32:35], s59 offen offset:{jp*1024} {st_p}\ns_branch K2_owd{i}{jp}")
            a(f"K2_own{i}{jp}:\nds_write_b128 v243, {r4(pk)} offset:{(i % 2)*2*UNIT + jp*1024}\nK2_owd{i}{jp}:")
    if MG:
        a(f"""v_lshlrev_b32 v10, 9, v242
v_lshl_add_u32 v10, v9, 4, v10
s_lshl_b32 s59, s55, 10
v_add_u32 v10, s59, v10
v_lshl_add_u32 v11, v241, 11, v10
v_mul_u32_u24 v12, {2*UNIT - 4096}, v241
v_add_u32 v12, v12, v10
s_mov_b32 s66, {fbits(LN2)}
s_mov_b32 s67, s66
s_mov_b32 s70, {fbits(2/(576*2048))}
s_mov_b32 s71, s70
s_lshl_b32 s68, s54, 31
s_xor_b32 s68, s68, s70
s_mov_b32 s69, s68
s_mul_i32 s60, s52, 3
s_add_u32 s60, s60, s53
s_lshl_b32 s60, s60, 7
s_add_u32 s60, s60, {WS_SYNC}
s_mul_i32 s59, s48, {UNIT}
s_add_u32 s59, s59, 8192
v_add_u32 v243, s59, v7
v_add_u32 v244, s76, v243
v_add_u32 v245, s77, v243
v_add_u32 v246, s78, v243
v_mov_b32 v13, 0
v_mov_b32 v14, 1
s_waitcnt vmcnt(0) lgkmcnt(0)""")
        mark(a, opt, 4)
        a("s_barrier")
        if not LSIG: a(f"""s_cmp_lg_u32 s48, 0
s_cbranch_scc1 K2_nosig
s_mov_b64 exec, 1
buffer_atomic_add v14, v13, s[32:35], s60 offen sc1
s_mov_b64 exec, -1
K2_nosig:""")
        a.lg = []; a.vm = []
        for w in range(3):
            reg, off = ((11, 0), (12, 4096), (11, 2*UNIT + 2048))[w]
            for par in range(2):
                for hf in range(2):
                    a.lgop(f"ds_read_b128 {r4(EO+16*w+8*par+4*hf)}, v{reg} offset:{off + par*UNIT + hf*256}", ("eo", w))
        for w in range(3): a.lgop(f"ds_read_b128 {r4(PB+16*w)}, v{244+w}", "own")
        for w in range(3):
            for e in range(4):
                a(f"v_lshlrev_b32 v{OUT+8*w+2*e}, 16, v{XR+4*w+e}\nv_and_b32 v{OUT+8*w+2*e+1}, 0xffff0000, v{XR+4*w+e}")
        for w in range(3):
            a.wait(lg=("eo", w))
            for e in range(0, 8, 2): a(f"v_pk_fma_f32 {p2(OUT+8*w+e)}, {p2(EO+16*w+e)}, s[70:71], {p2(OUT+8*w+e)}")
            for e in range(0, 8, 2): a(f"v_pk_fma_f32 {p2(OUT+8*w+e)}, {p2(EO+16*w+8+e)}, s[68:69], {p2(OUT+8*w+e)}")
        def psum(src0, w):
            for e in range(4):
                a(f"v_lshlrev_b32 v{U+2*e}, 16, v{src0+e}\nv_and_b32 v{U+2*e+1}, 0xffff0000, v{src0+e}")
            for e in range(0, 8, 2): a(f"v_pk_fma_f32 {p2(OUT+8*w+e)}, {p2(U+e)}, s[66:67], {p2(OUT+8*w+e)}")
        a.wait(lg="own")
        for w in range(3): psum(PB + 16*w, w)
        for s_ in range(1, 4):
            a(f"s_add_u32 s59, s51, {s_}\ns_and_b32 s59, s59, 3\ns_mul_i32 s59, s59, {64*18*2048}\ns_add_u32 s{79+s_}, s59, s73")
        a("v_add_u32 v244, s76, v7\nv_add_u32 v245, s77, v7\nv_add_u32 v246, s78, v7\nv_mov_b32 v14, 4")
        if not LSIG:
            a("s_cmp_lg_u32 s48, 0\ns_cbranch_scc1 K2_pp_d")
            poll(a, "K2_pp", 13, "s60", "v14")
        a("s_barrier")
        mark(a, opt, 5)
        for w in range(3):
            for s_ in range(1, 4):
                a.vmop(f"buffer_load_dwordx4 {r4(PB+16*w+4*s_)}, v{244+w}, s[32:35], s{79+s_} offen sc1", ("p", w, s_))
        for w in range(3):
            for s_ in range(1, 4):
                a.wait(vm=("p", w, s_))
                psum(PB + 16*w + 4*s_, w)
            for e in range(4): a(f"v_cvt_pk_bf16_f32 v{XR+4*w+e}, v{OUT+8*w+2*e}, v{OUT+8*w+2*e+1}")
            a.vmop(f"buffer_store_dwordx4 {r4(XR+4*w)}, v240, s[40:43], s58 offen offset:{w*64} {st_o}", "o")
    amp_out(a, opt)
    if opt.get("stamp"):
        a.wait(vm="all")
        stamp_out(a, 1, "s48", 32, "K2_end")
    a("s_endpgm")
    PR, PI, PN = 16, 32, 48
    AR, AI = 64, 96
    C32, S32, C64, S64, TWS = 128, 136, 144, 160, 176
    WL = T_END
    xpf = f"""s_cmp_lt_u32 s48, 5
s_cbranch_scc1 K2_xe
s_cmp_lt_u32 s51, 58
s_cbranch_scc1 K2_x1
s_barrier
K2_x1:
s_lshr_b32 s59, s49, 1
s_mul_i32 s59, s59, {1152*1152}
s_mul_i32 s60, s50, 3
s_add_u32 s60, s60, s48
s_sub_u32 s60, s60, 5
s_mul_i32 s60, s60, {12*128}
s_add_u32 s59, s59, s60
v_lshrrev_b32 v2, 4, v0
v_mul_u32_u24 v2, {9*32*1152}, v2
v_and_b32 v3, 15, v0
v_min_u32 v3, 11, v3
v_lshl_add_u32 v2, v3, 7, v2
s_mov_b32 s60, 9
K2_pfl:
buffer_load_dword v3, v2, s[24:27], s59 offen
s_add_u32 s59, s59, {32*1152}
s_waitcnt vmcnt({opt.get("apfd", 0)})
s_sub_u32 s60, s60, 1
s_cmp_lg_u32 s60, 0
s_cbranch_scc1 K2_pfl
K2_xe:""" if opt.get("apf", 0) else ""
    a(f"""K2_fft:
s_lshl_b32 s51, s49, 3
s_add_u32 s51, s51, s50            ; f""")
    if EARLY:
        if ASY:
            a(f"""s_cmp_lt_u32 s48, 4
s_cbranch_scc1 K2_fs2""")
            htail("f")
            a(f"""s_cmp_lt_u32 s48, 5
s_cbranch_scc1 K2_ft
s_getpc_b64 s[28:29]
s_add_u32 s28, s28, fft_tab@rel32@lo+4
s_addc_u32 s29, s29, fft_tab@rel32@hi+12
s_mov_b32 s30, {T_END}
s_mov_b32 s31, 0x20000
s_sub_u32 s59, s48, 5
s_lshl_b32 s59, s59, 10
K2_tl0:
s_mov_b32 m0, s59
s_nop 0
buffer_load_dwordx4 v7, s[28:31], s59 offen lds
s_add_u32 s59, s59, 3072
s_cmp_lt_u32 s59, {T_END}
s_cbranch_scc1 K2_tl0
K2_ft:""")
            cp_first("f")
            for p in range(4): a.copy_pair(p, "f", track=False)
            a(sigB)
        else:
            a(f"s_cmp_ge_u32 s48, 4\ns_cbranch_scc1 K2_fs\n{sigB}\ns_branch K2_fs2\nK2_fs:")
            if TABE:
                a(f"""s_getpc_b64 s[28:29]
s_add_u32 s28, s28, fft_tab@rel32@lo+4
s_addc_u32 s29, s29, fft_tab@rel32@hi+12
s_mov_b32 s30, {T_END}
s_mov_b32 s31, 0x20000
s_sub_u32 s59, s48, 4
s_lshl_b32 s59, s59, 10
K2_tl0:
s_mov_b32 m0, s59
s_nop 0
buffer_load_dwordx4 v7, s[28:31], s59 offen lds
s_add_u32 s59, s59, 4096
s_cmp_lt_u32 s59, {T_TW2}
s_cbranch_scc1 K2_tl0""")
            htail("f")
        a("K2_fs2:")
    tl1 = "s_sub_u32 s53, s48, 5" if ASY else f"s_sub_u32 s53, s48, 5\ns_lshl_b32 s60, s53, 10\ns_add_u32 s60, s60, {T_TW2}" if TABE else f"""s_getpc_b64 s[28:29]
s_add_u32 s28, s28, fft_tab@rel32@lo+4
s_addc_u32 s29, s29, fft_tab@rel32@hi+12
s_mov_b32 s30, {T_END}
s_mov_b32 s31, 0x20000
s_sub_u32 s53, s48, 5
s_lshl_b32 s59, s53, 10
K2_tl:
s_mov_b32 m0, s59
s_nop 0
buffer_load_dwordx4 v7, s[28:31], s59 offen lds
s_add_u32 s59, s59, 3072
{'s_waitcnt vmcnt(2)' if MONO else ''}
s_cmp_lt_u32 s59, {T_END if MONO else T_TW2}
s_cbranch_scc1 K2_tl
s_mov_b32 s60, s59"""
    a(f"""s_cmp_ge_u32 s51, {opt.get("nfft", 58)}
s_cbranch_scc1 K2_xpf
s_mul_i32 s52, s51, 5              ; j0
s_cmp_lt_u32 s48, 5
s_cbranch_scc1 K2_fft_go
{tl1}
s_lshr_b32 s54, s52, 2
s_lshl_b32 s54, s54, 15
s_add_u32 s54, s54, {WS_WT}
s_lshl_b32 s53, s53, 10""")
    if MONO:
        a("s_waitcnt vmcnt(0)\n" + ("" if (EARLY and not TABE) else "s_barrier\n") + "s_cmp_lg_u32 s48, 5\ns_cbranch_scc1 K2_pw_d")
        a(f"v_min_u32 v8, 7, v0\nv_lshlrev_b32 v8, 7, v8\ns_mov_b32 s62, {WS_SYNC + 128*128}")
        poll(a, "K2_pw", 8, "s62", "32", sleep=opt.get("pwsleep", 10))
        a("s_barrier")
    else: a("s_waitcnt vmcnt(0) lgkmcnt(0)\ns_barrier")
    tl2 = "" if (MONO and not TABE) else f"""K2_tl2:
s_mov_b32 m0, s60
s_nop 0
buffer_load_dwordx4 v7, s[28:31], s60 offen lds
s_add_u32 s60, s60, 3072
s_cmp_lt_u32 s60, {T_END}
s_cbranch_scc1 K2_tl2"""
    a(f"""K2_wl:
s_add_u32 m0, s53, {WL}
s_add_u32 s59, s53, s54
buffer_load_dwordx4 v7, s[32:35], s59 offen {SC} lds
s_add_u32 s53, s53, 3072
s_cmp_lt_u32 s53, 65536
s_cbranch_scc1 K2_wl
{tl2}
s_waitcnt vmcnt(0)
s_barrier
K2_xpf:
{"s_cmp_lg_u32 s48, 7|s_cbranch_scc1 K2_end|s_sleep %d|buffer_wbl2 sc1|s_waitcnt vmcnt(0)".replace("|", chr(10)) % opt["wb"] if opt.get("wb") else ""}
{xpf}
s_endpgm
K2_fft_go:
s_add_u32 s56, s52, s48            ; j
s_cmp_gt_u32 s56, 288
s_cbranch_scc1 K2_xpf
s_lshr_b32 s54, s56, 1
s_and_b32 s59, s56, 1
s_mul_i32 s59, s59, 144
s_add_u32 s54, s54, s59            ; sigma
s_mov_b32 s61, 0                   ; 0 normal, 1: j=0, 2: j=288
s_cmp_eq_u32 s56, 0
s_cselect_b32 s61, 1, s61
s_cmp_eq_u32 s56, 288
s_cselect_b32 s61, 2, s61
s_cselect_b32 s54, 0, s54
s_cselect_b32 s59, 4096, 0
s_lshl_b32 s62, s54, 13
s_add_u32 s57, s62, {WS_U}
s_add_u32 s58, s57, 4096
s_add_u32 s57, s57, s59
s_cmp_lg_u32 s61, 0
s_cselect_b32 s58, 0x10000000, s58
v_and_b32 v2, 31, v0               ; n
v_lshrrev_b32 v3, 5, v0            ; h
v_lshlrev_b32 v4, 4, v3
v_lshl_add_u32 v4, v2, 6, v4       ; U voffset
s_waitcnt lgkmcnt(0)""")
    if MONO:
        a("s_barrier" if (EARLY and not TABE) else "s_barrier\ns_barrier")
    a.vm = []; a.lg = []
    for p in range(2):
        for ks in range(2):
            a.vmop(f"buffer_load_dwordx4 {r4(PR+8*p+4*ks)}, v4, s[32:35], s57 offen offset:{p*2048+ks*32} {SC}", "z")
            a.vmop(f"buffer_load_dwordx4 {r4(PI+8*p+4*ks)}, v4, s[32:35], s58 offen offset:{p*2048+ks*32} {SC}", "z")
    a(f"""v_lshrrev_b32 v5, 3, v2
v_add_u32 v5, s56, v5
v_and_b32 v5, 3, v5
v_lshlrev_b32 v5, 2, v5
v_lshl_add_u32 v5, v2, 4, v5
v_lshl_add_u32 v5, v3, 11, v5
s_lshr_b32 s59, s56, 2
s_lshr_b32 s60, s52, 2
s_sub_u32 s59, s59, s60
s_lshl_b32 s59, s59, 15
s_add_u32 s59, s59, {WL}
v_add_u32 v5, s59, v5
{vpos}
v_lshl_add_u32 v6, v3, 9, v6       ; V voffset
s_add_u32 s62, s62, {WS_V}
s_mov_b32 s64, -2.0
s_mov_b32 s65, -2.0""")
    if not MONO: a("s_barrier")
    for k in range(4): a.lgop(f"ds_read_b128 {r4(C32+4*k)}, v7 offset:{k*1024}", "t32")
    NB = 8
    def twread(tw, k):
        s = TWS + 8*(k % NB)
        off = (T_TW1 if tw == 0 else T_TW2) + k*2048
        a.lgop(f"ds_read_b128 {r4(s)}, v7 offset:{off}", ("tw", k))
        a.lgop(f"ds_read_b128 {r4(s+4)}, v7 offset:{off+1024}", ("tw", k))
    def wread(k):
        s = TWS + 8*(k % NB)
        for arr in range(2):
            for e in range(4):
                a.lgop(f"ds_read_u16 v{s+4*arr+e}, v5 offset:{arr*32768 + (8*k + e)*512}", ("tw", k))
    for k in range(4): twread(0, k)
    a.wait(vm="z")
    for k in range(16): a(f"v_xor_b32 v{PN+k}, 0x80008000, v{PR+k}")
    a.wait(lg="t32")
    def stage_small(X1, X2, X3, X4):
        for p in range(2):
            for (D, Xa, Xb) in ((AR, X1, X2), (AI, X3, X4)):
                d = D + 16*p
                for ks in range(2):
                    a(f"{M32} {r16(d)}, {r4(Xa+8*p+4*ks)}, {r4(C32+4*ks)}, " + (r16(d) if ks else "0"))
                    a(f"{M32} {r16(d)}, {r4(Xb+8*p+4*ks)}, {r4(S32+4*ks)}, {r16(d)}")
    def stage_big(X1, X2, X3, X4, dataA, fill=()):
        fill = list(fill)
        for (D, Xa, Xb) in ((AR, X1, X2), (AI, X3, X4)):
            for e in range(2):
                d = D + 16*e
                for p1 in range(2):
                    ks = 2*e + p1
                    for (X, Tb, first) in ((Xa, C64, p1 == 0), (Xb, S64, False)):
                        x, tb = r4(X+4*ks), r4(Tb+4*ks)
                        A_, B_ = (x, tb) if dataA else (tb, x)
                        a(f"{M32} {r16(d)}, {A_}, {B_}, " + ("0" if first else r16(d)))
                        if fill: fill.pop(0)()
        for D in (AR, AI):
            for k in range(0, 16, 2): a(f"v_pk_add_f32 {p2(D+k)}, {p2(D+k)}, {p2(D+16+k)}")
            for k in range(0, 16, 2): a(f"v_pk_fma_f32 {p2(D+16+k)}, {p2(D+16+k)}, s[64:65], {p2(D+k)}")
    def cmul4(k, cr, sr, sgn):
        ng = " neg_lo:[1,0,0] neg_hi:[1,0,0]"
        n1, n2 = (ng, "") if sgn > 0 else ("", ng)
        for e in (0, 2): a(f"v_pk_mul_f32 {p2(8+e)}, {p2(AR+4*k+e)}, {p2(cr+e)}")
        for e in (0, 2): a(f"v_pk_mul_f32 {p2(12+e)}, {p2(AI+4*k+e)}, {p2(cr+e)}")
        for e in (0, 2): a(f"v_pk_fma_f32 {p2(8+e)}, {p2(AI+4*k+e)}, {p2(sr+e)}, {p2(8+e)}{n1}")
        for e in (0, 2): a(f"v_pk_fma_f32 {p2(12+e)}, {p2(AR+4*k+e)}, {p2(sr+e)}, {p2(12+e)}{n2}")
    def pack4(k, negre, eo=False):
        dst = (lambda e: 8*e + k) if eo else (lambda e: 2*k + e)
        src = (lambda e: (e, e + 2)) if eo else (lambda e: (2*e, 2*e + 1))
        for e in range(2): a(f"v_cvt_pk_bf16_f32 v{PR+dst(e)}, v{8+src(e)[0]}, v{8+src(e)[1]}")
        for e in range(2): a(f"v_cvt_pk_bf16_f32 v{PI+dst(e)}, v{12+src(e)[0]}, v{12+src(e)[1]}")
        for e in range(2): a(f"v_xor_b32 v{PN+dst(e)}, 0x80008000, v{(PR if negre else PI)+dst(e)}")
    stage_small(PR, PI, PI, PN)
    t64 = [lambda k=k: a.lgop(f"ds_read_b128 {r4(C64+4*k)}, v7 offset:{T_C64+k*1024}", "t64") for k in range(8)]
    for k in range(8):
        a.wait(lg=("tw", k))
        s = TWS + 8*(k % NB)
        cmul4(k, s, s+4, -1)
        if k + 4 < 8: twread(0, k+4)
        t64.pop(0)()
        pack4(k, True, True)
    a.wait(lg="t64")
    mark(a, opt, 0)
    a("s_barrier")
    mark(a, opt, 1)
    def wr4(k, arr):
        for e in (2*arr, 2*arr + 1):
            a.lgop(f"ds_read_b32 v{TWS+8*k+4+e}, v5 offset:{(8*k + e)*512}", ("tw", k))
    stage_big(PR, PI, PI, PN, False, fill=[lambda k=k, arr=arr: wr4(k, arr) for k in range(8) for arr in range(2)])
    mark(a, opt, 2)
    for k in range(8):
        a.wait(lg=("tw", k))
        s = TWS + 8*(k % NB)
        for e in range(4): a(f"v_lshlrev_b32 v{s+e}, 16, v{s+4+e}")
        for e in range(4): a(f"v_and_b32 v{s+4+e}, 0xffff0000, v{s+4+e}")
        cmul4(k, s, s+4, +1)
        pack4(k, False, True)
    stage_big(PR, PN, PI, PR, True, fill=[lambda k=k: twread(1, k) for k in range(NB)])
    for k in range(8):
        a.wait(lg=("tw", k))
        s = TWS + 8*(k % NB)
        cmul4(k, s, s+4, +1)
        if k + NB < 8: twread(1, k+NB)
        pack4(k, False)
    mark(a, opt, 4)
    a("s_add_u32 s63, s62, 4096\ns_cmp_lg_u32 s61, 0\ns_cbranch_scc1 K2_fft_spw")
    off = lambda j: ((j & 3) + 8*(j >> 2))*128
    def last(special):
        o = []
        for p in range(2):
            for j in range(16):
                d = TWS + 16*p + j
                if special: o.append(f"v_cvt_pk_bf16_f32 v{d}, v{AR+16*p+j}, v{AR+16*p+j}\nbuffer_store_short v{d}, v6, s[32:35], s{62+p} offen offset:{off(j)} {st_v}")
                else: o.append(f"v_cvt_pk_bf16_f32 v{d}, v{AR+16*p+j}, v{AI+16*p+j}\nbuffer_store_dword v{d}, v6, s[32:35], s{62+p} offen offset:{off(j)} {st_v}")
        n = 0
        for p in range(2):
            for (D, Xa, Xb) in ((AR, PR, PN), (AI, PI, PR)):
                if special and D == AI: continue
                d = D + 16*p
                for ks in range(2):
                    for (X, Tb, first) in ((Xa, C32, ks == 0), (Xb, S32, False)):
                        a(f"{M32} {r16(d)}, {r4(X+8*p+4*ks)}, {r4(Tb+4*ks)}, " + ("0" if first else r16(d)))
                        if p == 1 and not special:
                            n += 1
                            if n >= 2: a(o.pop(0)); a(o.pop(0))
        for l in o: a(l)
    last(False)
    a("s_branch K2_fft_out\nK2_fft_spw:\ns_sub_u32 s59, s61, 1\ns_lshl_b32 s59, s59, 1\nv_add_u32 v6, s59, v6")
    last(True)
    a("K2_fft_out:")
    if MG:
        a(f"""s_and_b32 s59, s56, 7
s_lshl_b32 s59, s59, 7
s_add_u32 s59, s59, {WS_SYNC + 48*128}
v_mov_b32 v4, 0
v_mov_b32 v5, 1
s_waitcnt vmcnt(0)
s_mov_b64 exec, 1
buffer_atomic_add v5, v4, s[32:35], s59 offen sc1
s_mov_b64 exec, -1""")
    if opt.get("stamp"):
        a("s_waitcnt vmcnt(0)")
        a("s_mov_b32 s87, 0")
        mark(a, opt, 5)
        stamp_out(a, 3, "s48", 32, "K2_end")
    a("K2_end:\ns_endpgm")
    if not MONO:
        a.end_kernel("k2_kernel", 256, 96)
        a.launch("k2_kernel", 256, 512, 163840)
    tab = fft_tables()
    t = [".p2align 8", ".type fft_tab,@object", "fft_tab:"]
    for i in range(0, len(tab), 8):
        t.append(".long " + ",".join("0x%x" % x for x in tab[i:i+8]))
    a.tail += t
```
